```python
import torch

def _softmax(x, axis=-1):
    return torch.softmax(x, dim=axis)
def _gelu(x):
    return torch.nn.functional.gelu(x, approximate="tanh")
def _silu(x):
    return torch.nn.functional.silu(x)
def _sigmoid(x):
    return torch.sigmoid(x)
def _layernorm(x, axis=-1, eps=1e-5):
    m = x.mean(dim=axis, keepdim=True)
    v = x.var(dim=axis, keepdim=True, unbiased=False)
    return (x - m) / torch.sqrt(v + eps)
def _scatter_add(tgt, idx, src, axis=0):
    return tgt.clone().index_add_(axis, idx, src)
def _segment_sum(src, seg, n):
    out = torch.zeros((n,) + src.shape[1:], dtype=src.dtype)
    return out.index_add_(0, seg, src)
def _pad(x, pw):
    flat = tuple(v for pair in reversed(pw) for v in pair)
    return torch.nn.functional.pad(x, flat)

kernel_name = 'standalone__controlnet__diffusion'

def setup_inputs():

    _w = (lambda a: (lambda t: t.to(torch.bfloat16) if t.is_floating_point() else t)(torch.as_tensor(a)))
    B, HW, C = 2, 32, 512
    sc = C ** -0.5
    return {
        "x_frozen": _w((lambda *s: torch.randn(*s, dtype=torch.bfloat16) * 0.4)(B, HW, HW, C)),
        "x": _w((lambda *s: torch.randn(*s, dtype=torch.bfloat16) * 0.8)(B, HW, HW, C)),
        "c": _w((lambda *s: torch.randn(*s, dtype=torch.bfloat16) * 1.6)(B, HW, HW, C)),
        "w_z1": _w((lambda *s: torch.randn(*s, dtype=torch.bfloat16) * 1.6)(C, C) * sc),
        "w_z2": _w((lambda *s: torch.randn(*s, dtype=torch.bfloat16) * 0.8)(C, C) * sc),
        "w_conv": _w((lambda *s: torch.randn(*s, dtype=torch.bfloat16) * 0.8)(3, 3, C, C) * sc / 3.0),
    }

def reference(x_frozen, x, c, w_z1, w_z2, w_conv):
    B, H, W, C = x.shape
    h_in = x + torch.einsum("bhwc,cd->bhwd", c, w_z1)
    h = _silu(_layernorm(h_in, axis=-1))
    hp = _pad(h, ((0, 0), (1, 1), (1, 1), (0, 0)))
    acc = h * 0.0
    for di in range(3):
        for dj in range(3):
            acc = acc + torch.einsum("bhwc,cd->bhwd", hp[:, di:di + H, dj:dj + W, :], w_conv[di, dj])
    h = h_in + acc
    return x_frozen + torch.einsum("bhwc,cd->bhwd", h, w_z2)
```

```python
import sys

class Gen:
    def __init__(self):
        self.lines = []
        self.vm = []
        self.lg = []
    def e(self, s): self.lines.append("    " + s)
    def c(self, s): self.lines.append("    ; " + s)
    def label(self, l): self.lines.append(l + ":")
    def raw(self, s): self.lines.append(s)
    def vmem(self, s, tok=None):
        self.e(s); self.vm.append(tok if tok is not None else object())
        assert len(self.vm) <= 63, "vmcnt overflow"
    def lds(self, s, tok=None):
        self.e(s); self.lg.append(tok if tok is not None else object())
    def wait_vm(self, toks):
        if not isinstance(toks, (list, tuple, set)): toks = [toks]
        idx = [i for i, t in enumerate(self.vm) if t in toks]
        if not idx: return
        k = max(idx); n = len(self.vm) - 1 - k
        self.e(f"s_waitcnt vmcnt({n})"); self.vm = self.vm[k+1:]
    def wait_lg(self, toks):
        if not isinstance(toks, (list, tuple, set)): toks = [toks]
        idx = [i for i, t in enumerate(self.lg) if t in toks]
        if not idx: return
        k = max(idx); n = len(self.lg) - 1 - k
        assert n <= 15
        self.e(f"s_waitcnt lgkmcnt({n})"); self.lg = self.lg[k+1:]
    def wait_all(self):
        self.e("s_waitcnt vmcnt(0) lgkmcnt(0)"); self.vm = []; self.lg = []
    def text(self): return "\n".join(self.lines) + "\n"

def vr(b, n=4): return f"v[{b}:{b+n-1}]"
def ar(b, n=4): return f"a[{b}:{b+n-1}]"
def sr(b, n=4): return f"s[{b}:{b+n-1}]"

WS_H, WS_HI, WS_WP, WS_ST = 0, 2 << 20, 4 << 20, 10 << 20
WP_BYTES = 16*32*10*1024

def srd(g, d, lo, hi, size, add=0):
    if add:
        g.e(f"s_add_u32 s{d}, s{lo}, {add:#x}")
        g.e(f"s_addc_u32 s{d+1}, s{hi}, 0")
        g.e(f"s_and_b32 s{d+1}, s{d+1}, 0xffff")
    else:
        g.e(f"s_mov_b32 s{d}, s{lo}")
        g.e(f"s_and_b32 s{d+1}, s{hi}, 0xffff")
    g.e(f"s_mov_b32 s{d+2}, {size:#x}")
    g.e(f"s_mov_b32 s{d+3}, 0x00020000")

def kd(name, vgpr, accum, sgpr=102):
    return f""".section .rodata,"a"
.p2align 6
.amdhsa_kernel {name}
  .amdhsa_next_free_vgpr {vgpr}
  .amdhsa_next_free_sgpr {sgpr}
  .amdhsa_accum_offset {accum}
  .amdhsa_group_segment_fixed_size 0
  .amdhsa_kernarg_size 72
  .amdhsa_user_sgpr_count 2
  .amdhsa_user_sgpr_kernarg_segment_ptr 1
  .amdhsa_system_sgpr_workgroup_id_x 1
.end_amdhsa_kernel
.text
"""

def gen_conv(name, NST=4, no_mfma=False, no_dpp=False, no_load=False, stamps=False):
    g = Gen()
    g.raw(f".globl {name}\n.p2align 8\n.type {name},@function\n{name}:")
    SA, SW, SX, SO = 12, 16, 20, 24
    C4K, C8K, C2M, C2M4K = 28, 29, 30, 31
    sW, sMT, sNT, sB, sT0, sT1 = 32, 33, 34, 35, 36, 37
    vLane, vT, vW, vMR, vML, vO = 1, 2, 3, 4, 5, 6
    vH = [8+j for j in range(6)]
    vXF = 16
    HB = 24
    HIB = HB + NST*24
    T0 = HIB + NST*16
    T2 = T0 + 24
    VEND = T2 + 24
    assert VEND <= 256
    ACC = 0
    WB = 64
    AEND = WB + NST*40
    assert AEND <= 256
    g.e("s_cmp_ge_u32 s2, 256")
    g.e(f"s_cbranch_scc1 {name}_end")
    g.e("s_load_dwordx2 s[4:5], s[0:1], 0")
    g.e("s_load_dwordx2 s[6:7], s[0:1], 48")
    g.e("s_load_dwordx2 s[8:9], s[0:1], 64")
    g.e(f"v_and_b32 v{vLane}, 63, v0")
    g.e(f"v_lshrrev_b32 v{vT}, 6, v0")
    g.e(f"s_and_b32 s{sT0}, s2, 7")
    g.e(f"v_readfirstlane_b32 s{sW}, v{vT}")
    g.e(f"s_lshr_b32 s{sT1}, s2, 3")
    g.e(f"s_and_b32 s{sB}, s{sT0}, 1")
    g.e(f"s_lshr_b32 s{sT0}, s{sT0}, 1")
    g.e(f"s_and_b32 s{sMT}, s{sT1}, 7")
    g.e(f"s_lshr_b32 s{sT1}, s{sT1}, 3")
    g.e(f"s_lshl_b32 s{sNT}, s{sT0}, 2")
    g.e(f"s_add_u32 s{sNT}, s{sNT}, s{sT1}")
    g.e(f"s_movk_i32 s{C4K}, 0x1000")
    g.e(f"s_movk_i32 s{C8K}, 0x2000")
    g.e(f"s_mov_b32 s{C2M}, 0x200000")
    g.e(f"s_mov_b32 s{C2M4K}, 0x201000")
    g.e(f"s_lshl_b32 s{sT0}, s{sB}, 5")
    g.e(f"s_lshl_b32 s{sT1}, s{sMT}, 2")
    g.e(f"s_add_u32 s38, s{sT0}, s{sT1}")
    g.e(f"s_lshl_b32 s39, s38, 15")
    g.e(f"s_lshl_b32 s{sT0}, s{sW}, 13")
    g.e(f"s_add_u32 s39, s39, s{sT0}")
    g.e(f"v_lshlrev_b32 v{vT}, 4, v{vLane}")
    for j in range(1, 5):
        g.e(f"s_add_u32 s{sT0}, s39, {(j-1)*32768}")
        g.e(f"v_add_u32 v{vH[j]}, s{sT0}, v{vT}")
    g.e(f"s_sub_u32 s{sT0}, s39, 32768")
    g.e(f"s_cmp_eq_u32 s{sMT}, 0")
    g.e(f"s_cselect_b32 s{sT0}, 0x40000000, s{sT0}")
    g.e(f"v_add_u32 v{vH[0]}, s{sT0}, v{vT}")
    g.e(f"s_add_u32 s{sT0}, s39, {4*32768}")
    g.e(f"s_cmp_eq_u32 s{sMT}, 7")
    g.e(f"s_cselect_b32 s{sT0}, 0x40000000, s{sT0}")
    g.e(f"v_add_u32 v{vH[5]}, s{sT0}, v{vT}")
    g.e(f"s_lshl_b32 s{sT0}, s{sNT}, 5")
    g.e(f"s_lshl_b32 s{sT1}, s{sW}, 3")
    g.e(f"s_add_u32 s{sT0}, s{sT0}, s{sT1}")
    g.e(f"s_mul_i32 s{sT0}, s{sT0}, 10240")
    g.e(f"v_add_u32 v{vW}, s{sT0}, v{vT}")
    g.e("s_waitcnt lgkmcnt(0)")
    srd(g, SA, 8, 9, 4 << 20)
    srd(g, SW, 8, 9, WP_BYTES, add=WS_WP)

    def Hreg(st, j): return HB + st*24 + j*4
    def HIreg(st, r): return HIB + st*16 + r*4
    def Wreg(st, t): return WB + st*40 + t*4
    def stage_loads(k):
        st = k % NST
        L = []
        so_h = "0" if k < 4 else f"s{C4K}"
        so_hi = f"s{C2M}" if k < 4 else f"s{C2M4K}"
        io = (k % 4) * 1024
        def ldH(j): return (f"buffer_load_dwordx4 {vr(Hreg(st,j))}, v{vH[j]}, {sr(SA)}, {so_h} offen offset:{io}", ("H", k, j))
        def ldHI(r): return (f"buffer_load_dwordx4 {vr(HIreg(st,r))}, v{vH[r+1]}, {sr(SA)}, {so_hi} offen offset:{io}", ("HI", k, r))
        def ldW(t):
            so = ["0", f"s{C4K}", f"s{C8K}"][t // 4]
            return (f"buffer_load_dwordx4 {ar(Wreg(st,t))}, v{vW}, {sr(SW)}, {so} offen offset:{(t%4)*1024}", ("W", k, t))
        L += [ldW(1), ldH(0), ldH(1), ldH(2), ldH(3), ldW(4), ldH(4), ldW(7), ldH(5), ldW(9)]
        L += [ldHI(r) for r in range(4)]
        L += [ldW(0), ldW(3), ldW(6), ldW(2), ldW(5), ldW(8)]
        L.append(("BUMP", None))
        return L
    def issue(item):
        s, tok = item
        if s == "BUMP":
            g.e(f"v_add_u32 v{vW}, 10240, v{vW}")
        elif no_load and tok[0] != "XF":
            pass
        else:
            g.vmem(s, tok)
    nst = [0]
    def stamp():
        if stamps:
            g.e(f"s_memtime s[{50+2*nst[0]}:{51+2*nst[0]}]"); nst[0] += 1
    stamp()
    if stamps: g.e("s_memrealtime s[90:91]")
    for k in range(NST-1):
        for it in stage_loads(k): issue(it)
    srd(g, SX, 4, 5, 2 << 20)
    srd(g, SO, 6, 7, 2 << 20)
    for i in range(64): g.e(f"v_accvgpr_write_b32 a{ACC+i}, 0")
    g.e(f"v_and_b32 v{vT}, 31, v{vLane}")
    g.e(f"v_cmp_ne_u32 vcc, 0, v{vT}")
    g.e("s_nop 1")
    g.e(f"v_cndmask_b32 v{vMR}, 0, -1, vcc")
    g.e(f"v_cmp_ne_u32 vcc, 31, v{vT}")
    g.e("s_nop 1")
    g.e(f"v_cndmask_b32 v{vML}, 0, -1, vcc")
    g.e(f"s_add_u32 s{sT0}, s38, s{sW}")
    g.e(f"s_lshl_b32 s{sT0}, s{sT0}, 15")
    g.e(f"s_lshl_b32 s{sT1}, s{sNT}, 6")
    g.e(f"s_add_u32 s{sT0}, s{sT0}, s{sT1}")
    g.e(f"v_lshlrev_b32 v{vO}, 10, v{vT}")
    g.e(f"v_lshrrev_b32 v{vT}, 5, v{vLane}")
    g.e(f"v_lshlrev_b32 v{vT}, 3, v{vT}")
    g.e(f"v_add3_u32 v{vO}, v{vO}, v{vT}, s{sT0}")

    NK = 8
    for k in range(NK):
        st = k % NST
        g.c(f"---- k-step {k}")
        stamp()
        pend = list(stage_loads(k + NST - 1)) if k + NST - 1 < NK else []
        if k == NK - 3:
            pend += [(f"buffer_load_dwordx2 {vr(vXF+2*q,2)}, v{vO}, {sr(SX)}, 0 offen offset:{q*16}", ("XF", q)) for q in range(4)]
        dpp0 = [(j, i) for j in range(6) for i in range(4)]
        dpp2 = list(dpp0)
        mf = []
        for di in range(3):
            for r in range(4):
                mf.append((r, ("W", k, di*3+1), Wreg(st, di*3+1), [("H", k, r+di)], Hreg(st, r+di), "A"))
        for r in range(4):
            mf.append((r, ("W", k, 9), Wreg(st, 9), [("HI", k, r)], HIreg(st, r), "B"))
        for di in range(3):
            for r in range(4):
                mf.append((r, ("W", k, di*3+0), Wreg(st, di*3), [], T0 + (r+di)*4, "C"))
        for di in range(3):
            for r in range(4):
                mf.append((r, ("W", k, di*3+2), Wreg(st, di*3+2), [], T2 + (r+di)*4, "D"))
        for n, (r, wt, wreg, ht, hreg, grp) in enumerate(mf):
            g.wait_vm([wt] + ht)
            if not no_mfma: g.e(f"v_mfma_f32_32x32x16_bf16 {ar(ACC+16*r,16)}, {ar(wreg)}, {vr(hreg)}, {ar(ACC+16*r,16)}")
            if grp in "AB" and n >= 2:
                for _ in range(2):
                    if dpp0:
                        j, i = dpp0.pop(0)
                        g.wait_vm([("H", k, j)])
                        if not no_dpp: g.e(f"v_and_b32_dpp v{T0+j*4+i}, v{Hreg(st,j)+i}, v{vMR} wave_shr:1 row_mask:0xf bank_mask:0xf bound_ctrl:0")
            if grp == "C":
                for _ in range(3):
                    if dpp2:
                        j, i = dpp2.pop(0)
                        if not no_dpp: g.e(f"v_and_b32_dpp v{T2+j*4+i}, v{Hreg(st,j)+i}, v{vML} wave_shl:1 row_mask:0xf bank_mask:0xf bound_ctrl:0")
            if n >= 10 and pend and len(g.vm) < 62:
                issue(pend.pop(0))
                if pend and pend[0][0] == "BUMP": issue(pend.pop(0))
        assert not dpp0 and not dpp2
        while pend: issue(pend.pop(0))
    g.c("---- epilogue")
    stamp()
    g.e("s_nop 15")
    vA = HB
    g.e(f"v_lshlrev_b32 v{vA}, 4, v{vLane}")
    for r in range(4):
        g.e(f"s_sub_u32 s{sT0}, s{sW}, {r+1}")
        g.e(f"s_and_b32 s{sT0}, s{sT0}, 3")
        g.e(f"s_cmp_eq_u32 s{sT0}, 3")
        g.e(f"s_cbranch_scc1 {name}_skip{r}")
        g.e(f"s_lshl_b32 s{sT0}, s{sT0}, 12")
        g.e(f"v_add_u32 v{vA+1}, s{sT0}, v{vA}")
        for q in range(4):
            g.e(f"ds_write_b128 v{vA+1}, {ar(ACC+16*r+4*q)} offset:{r*3*4096 + q*1024}")
        g.e(f"s_branch {name}_next{r}")
        g.label(f"{name}_skip{r}")
        for i in range(16):
            g.e(f"v_accvgpr_read_b32 v{vA+8+i}, a{ACC+16*r+i}")
        g.label(f"{name}_next{r}")
    g.e("s_waitcnt lgkmcnt(0)")
    g.e("s_barrier")
    g.e(f"s_mul_i32 s{sT0}, s{sW}, {3*4096}")
    g.e(f"v_add_u32 v{vA+1}, s{sT0}, v{vA}")
    R = vA + 24
    for s_ in range(3):
        for q in range(4):
            g.lds(f"ds_read_b128 {vr(R+s_*16+q*4)}, v{vA+1} offset:{s_*4096+q*1024}", ("R", s_, q))
    own = vA + 8
    g.wait_vm([("XF", q) for q in range(4)])
    for q in range(4):
        for i in range(2):
            g.e(f"v_lshlrev_b32 v{vA+2}, 16, v{vXF+2*q+i}")
            g.e(f"v_and_b32 v{vA+3}, 0xffff0000, v{vXF+2*q+i}")
            g.e(f"v_add_f32 v{own+4*q+2*i}, v{own+4*q+2*i}, v{vA+2}")
            g.e(f"v_add_f32 v{own+4*q+2*i+1}, v{own+4*q+2*i+1}, v{vA+3}")
    for s_ in range(3):
        for q in range(4):
            g.wait_lg([("R", s_, q)])
            for i in range(4):
                g.e(f"v_add_f32 v{own+4*q+i}, v{own+4*q+i}, v{R+s_*16+q*4+i}")
    for q in range(4):
        g.e(f"v_cvt_pk_bf16_f32 v{vXF+2*q}, v{own+4*q}, v{own+4*q+1}")
        g.e(f"v_cvt_pk_bf16_f32 v{vXF+2*q+1}, v{own+4*q+2}, v{own+4*q+3}")
        g.vmem(f"buffer_store_dwordx2 {vr(vXF+2*q,2)}, v{vO}, {sr(SO)}, 0 offen offset:{q*16}")
    if stamps:
        stamp()
        g.e("s_waitcnt vmcnt(0)")
        stamp()
        g.e(f"s_memrealtime s[{50+2*nst[0]}:{51+2*nst[0]}]")
        g.e("s_waitcnt lgkmcnt(0)")
        g.e(f"s_sub_u32 s{50+2*nst[0]}, s{50+2*nst[0]}, s90")
        g.e(f"s_add_u32 s{50+2*nst[0]}, s{50+2*nst[0]}, s50")
        nst[0] += 1
        srd(g, SX, 8, 9, 1 << 20, add=12 << 20)
        g.e(f"s_lshl_b32 s{sT0}, s2, 2")
        g.e(f"s_add_u32 s{sT0}, s{sT0}, s{sW}")
        g.e(f"s_lshl_b32 s{sT0}, s{sT0}, 7")
        g.e(f"v_mov_b32 v2, s{sT0}")
        for i in range(nst[0]):
            g.e(f"v_mov_b32 v3, s{50+2*i}")
            g.e(f"buffer_store_dword v3, v2, {sr(SX)}, 0 offen offset:{4*i}")
    g.label(f"{name}_end")
    g.e("s_endpgm")
    return g.text(), kd(name, 256 + AEND, 256, 100), 48*1024

HEADER = open("standalone__controlnet__diffusion.s.ref").read().split("; Override launch")[0]

def build(kernels, out):
    s = HEADER
    for (name, text, k, grid, block, lds) in kernels:
        s += f"; @launch kernel={name} grid=({grid},1,1) block=({block},1,1) lds={lds}\n"
    s += '.amdgcn_target "amdgcn-amd-amdhsa--gfx950"\n.text\n'
    done = set()
    for (name, text, k, grid, block, lds) in kernels:
        if name in done: continue
        done.add(name)
        s += text + k
    open(out, "w").write(s)

if __name__ == "__main__":
    out = sys.argv[1] if len(sys.argv) > 1 else "k2.s"
    opts = {a.split("=")[0]: int(a.split("=")[1]) for a in sys.argv[2:]}
    t, k, lds = gen_conv("conv_kernel", **opts)
    build([("conv_kernel", t, k, 256, 256, lds)], out)
```

```python
import sys
from gen import *

LOG2E = 1.4426950408889634
import struct
def f2u(x): return struct.unpack("<I", struct.pack("<f", x))[0]

def gen_prep(name, stamps=False, st_flag=""):
    g = Gen()
    g.raw(f".globl {name}\n.p2align 8\n.type {name},@function\n{name}:")
    SX, SWT, SWS, SXI, SDB = 12, 16, 20, 24, 28
    sW, sCT, sU, sT0, sT1, sT2, sXROW, sM0X, sM0W = 32, 33, 34, 35, 36, 37, 38, 39, 40
    sSOX, sSOW = 41, 42
    vLane, vT, vT2, vXD, vWD, vWA, vPX, vHF = 1, 2, 3, 4, 5, 6, 7, 8
    vXA = [10, 11, 12, 13]
    vXAs = [14, 15, 16, 17]
    vWAs = 18
    vST = 19
    XF = 24
    WF = 64
    ACC = 72
    XR = 152
    TMP = 168
    nst = [0]
    def stamp():
        if stamps:
            g.e(f"s_memtime s[{50+2*nst[0]}:{51+2*nst[0]}]"); nst[0] += 1
    g.e("s_cmp_ge_u32 s2, 256")
    g.e(f"s_cbranch_scc1 {name}_end")
    g.e("s_load_dwordx8 s[68:75], s[0:1], 8")
    g.e("s_load_dwordx2 s[76:77], s[0:1], 40")
    g.e("s_load_dwordx4 s[80:83], s[0:1], 56")
    stamp()
    if stamps: g.e("s_memrealtime s[90:91]")
    g.e(f"v_and_b32 v{vLane}, 63, v0")
    g.e(f"v_lshrrev_b32 v{vT}, 6, v0")
    g.e(f"s_and_b32 s{sT0}, s2, 7")
    g.e(f"v_readfirstlane_b32 s{sW}, v{vT}")
    g.e(f"s_lshr_b32 s{sT1}, s2, 3")
    g.e(f"s_and_b32 s{sCT}, s{sT1}, 3")
    g.e(f"v_lshrrev_b32 v{vT}, 3, v{vLane}")
    g.e(f"s_lshl_b32 s{sT2}, s{sW}, 3")
    g.e(f"v_add_u32 v{vXD}, s{sT2}, v{vT}")
    g.e(f"v_lshrrev_b32 v{vT}, 1, v{vXD}")
    g.e(f"v_and_b32 v{vT}, 7, v{vT}")
    g.e(f"v_and_b32 v{vT2}, 7, v{vLane}")
    g.e(f"v_xor_b32 v{vT}, v{vT}, v{vT2}")
    g.e(f"v_lshlrev_b32 v{vT}, 4, v{vT}")
    g.e(f"v_lshl_add_u32 v{vXD}, v{vXD}, 10, v{vT}")
    g.e(f"v_lshrrev_b32 v{vT}, 4, v{vLane}")
    g.e(f"v_lshlrev_b32 v{vT2}, 2, v{vT}")
    g.e(f"v_and_b32 v{vWD}, 15, v{vLane}")
    g.e(f"v_xor_b32 v{vWD}, v{vWD}, v{vT2}")
    g.e(f"v_lshlrev_b32 v{vWD}, 4, v{vWD}")
    g.e(f"s_lshl_b32 s{sT2}, s{sW}, 2")
    g.e(f"v_add_u32 v{vT}, s{sT2}, v{vT}")
    g.e(f"v_lshl_add_u32 v{vWD}, v{vT}, 10, v{vWD}")
    g.e(f"s_lshl_b32 s{sT2}, s{sCT}, 8")
    g.e(f"v_add_u32 v{vWD}, s{sT2}, v{vWD}")
    g.e(f"s_lshl_b32 s{sM0X}, s{sW}, 10")
    g.e(f"s_cmp_lt_u32 s{sT1}, 16")
    g.e(f"s_cbranch_scc1 {name}_G")
    g.e(f"s_sub_u32 s{sT1}, s{sT1}, 16")
    g.e(f"s_lshr_b32 s{sT1}, s{sT1}, 2")
    g.e(f"s_lshl_b32 s{sT1}, s{sT1}, 3")
    g.e(f"s_add_u32 s{sU}, s{sT0}, s{sT1}")
    g.e(f"s_cmp_gt_u32 s{sU}, 28")
    g.e(f"s_cbranch_scc1 {name}_end")
    g.e(f"s_cmp_eq_u32 s{sU}, 28")
    g.e(f"s_cbranch_scc1 {name}_PL")
    g.e(f"s_branch {name}_P")

    def frag_consts():
        g.e(f"v_and_b32 v{vPX}, 31, v{vLane}")
        g.e(f"v_lshrrev_b32 v{vHF}, 5, v{vLane}")
        g.e(f"v_lshrrev_b32 v{vT}, 1, v{vPX}")
        g.e(f"v_and_b32 v{vT}, 7, v{vT}")
        g.e(f"v_xor_b32 v{vT}, v{vT}, v{vHF}")
        g.e(f"v_lshlrev_b32 v{vT}, 4, v{vT}")
        g.e(f"v_lshl_add_u32 v{vXA[0]}, v{vPX}, 7, v{vT}")
        for s in range(1, 4):
            g.e(f"v_xor_b32 v{vXA[s]}, {s*32}, v{vXA[0]}")
        g.e(f"v_bfe_u32 v{vT}, v{vLane}, 2, 2")
        g.e(f"v_lshl_add_u32 v{vT2}, v{vHF}, 3, v{vT}")
        g.e(f"v_lshlrev_b32 v{vWA}, 8, v{vT2}")
        g.e(f"v_xor_b32 v{vT}, s{sW}, v{vT}")
        g.e(f"v_lshl_add_u32 v{vWA}, v{vT}, 6, v{vWA}")
        g.e(f"v_bfe_u32 v{vT}, v{vLane}, 4, 1")
        g.e(f"v_lshl_add_u32 v{vWA}, v{vT}, 5, v{vWA}")
        g.e(f"v_and_b32 v{vT}, 3, v{vLane}")
        g.e(f"v_lshl_add_u32 v{vWA}, v{vT}, 3, v{vWA}")

    def body(role):
        NX = {"G": 2, "P": 5, "PL": 4}[role]
        S = {"G": 6, "P": 4, "PL": 4}[role]
        XB = NX * 4096
        STG = XB + 16384
        g.vm = []; g.lg = []
        g.label(f"{name}_{role}")
        if role == "G":
            g.e(f"s_lshr_b32 s{sT1}, s{sT1}, 2")
            g.e(f"s_lshl_b32 s{sU}, s{sT0}, 2")
            g.e(f"s_add_u32 s{sU}, s{sU}, s{sT1}")
            g.e(f"s_lshl_b32 s{sXROW}, s{sU}, 16")
        else:
            g.e(f"s_mul_i32 s{sXROW}, s{sU}, {160*1024}")
        g.e("s_waitcnt lgkmcnt(0)")
        if role == "G":
            srd(g, SX, 70, 71, 2 << 20)
            srd(g, SWT, 72, 73, 512 << 10)
        else:
            srd(g, SX, 76, 77, 4608*1024)
            srd(g, SWT, 74, 75, 512 << 10)
        def dma(kc):
            sb = (kc % S) * STG
            for m in range(NX):
                g.e(f"s_add_u32 m0, s{sM0X}, {sb + m*4096}")
                g.e(f"s_add_u32 s{sSOX}, s{sXROW}, {m*32768 + kc*128}")
                g.vmem(f"buffer_load_dwordx4 v{vXD}, {sr(SX)}, s{sSOX} offen lds", ("D", kc))
            for m in range(4):
                g.e(f"s_add_u32 m0, s{sM0X}, {sb + XB + m*4096}")
                g.e(f"s_mov_b32 s{sSOW}, {(kc*64 + 16*m)*1024}")
                g.vmem(f"buffer_load_dwordx4 v{vWD}, {sr(SWT)}, s{sSOW} offen lds", ("D", kc))
        for kc in range(min(S, 8)): dma(kc)
        frag_consts()
        srd(g, SWS, 82, 83, 16 << 20)
        if role == "G":
            srd(g, SXI, 68, 69, 2 << 20)
            srd(g, SDB, 80, 81, 256)
            g.e(f"s_lshl_b32 s{sT0}, s{sCT}, 8")
            g.e(f"s_lshl_b32 s{sT1}, s{sW}, 6")
            g.e(f"s_add_u32 s{sT0}, s{sT0}, s{sT1}")
            g.e(f"s_add_u32 s{sT0}, s{sT0}, s{sXROW}")
            g.e(f"v_lshlrev_b32 v{vT}, 10, v{vPX}")
            g.e(f"v_lshl_add_u32 v{vT}, v{vHF}, 3, v{vT}")
            g.e(f"v_add_u32 v{vT}, s{sT0}, v{vT}")
            g.e(f"s_mov_b32 s{sT2}, 0x8000")
            for pb in range(2):
                for q in range(4):
                    g.vmem(f"buffer_load_dwordx2 {vr(XR+pb*8+q*2,2)}, v{vT}, {sr(SXI)}, {'0' if pb==0 else 's%d'%sT2} offen offset:{q*16}", ("X", pb, q))
        else:
            g.e(f"s_lshl_b32 s{sT0}, s{sCT}, 2")
            g.e(f"s_add_u32 s{sT0}, s{sT0}, s{sW}")
            g.e(f"s_mul_i32 s{sT0}, s{sT0}, {32*10240}")
            g.e(f"s_add_u32 s{sT0}, s{sT0}, {WS_WP}")
            g.e(f"v_lshlrev_b32 v{vST}, 4, v{vLane}")
            g.e(f"v_add_u32 v{vST}, s{sT0}, v{vST}")
        for i in range(NX*16): g.e(f"v_mov_b32 v{ACC+i}, 0")
        def stage_addr(kc):
            sb = (kc % S) * STG
            for s in range(4):
                g.e(f"v_add_u32 v{vXAs[s]}, {sb}, v{vXA[s]}")
            g.e(f"v_add_u32 v{vWAs}, {sb + XB}, v{vWA}")
        def reads(kc, s):
            p = (kc*4 + s) % 2
            for h in range(2):
                g.lds(f"ds_read_b64_tr_b16 {vr(WF+p*4+h*2,2)}, v{vWAs} offset:{s*4096+h*1024}", ("R", kc, s))
            for b in range(NX):
                g.lds(f"ds_read_b128 {vr(XF+p*20+b*4)}, v{vXAs[s]} offset:{b*4096}", ("R", kc, s))
        def mfmas(kc, s):
            p = (kc*4 + s) % 2
            for b in range(NX):
                xa, wa, ac = vr(XF+p*20+b*4), vr(WF+p*4), vr(ACC+16*b, 16)
                if role == "G": g.e(f"v_mfma_f32_32x32x16_bf16 {ac}, {wa}, {xa}, {ac}")
                else:           g.e(f"v_mfma_f32_32x32x16_bf16 {ac}, {xa}, {wa}, {ac}")
            if role == "PL":
                ks = kc*4 + s
                g.e(f"s_mov_b32 s{sT2}, {(ks*10+9)*1024}")
                g.vmem(f"buffer_store_dwordx4 {vr(WF+p*4)}, v{vST}, {sr(SWS)}, s{sT2} offen{st_flag}")
        stamp()
        g.wait_vm([("D", 0)])
        g.e("s_barrier")
        stage_addr(0)
        reads(0, 0)
        for kc in range(8):
            for s in range(3):
                reads(kc, s+1)
                g.wait_lg([("R", kc, s)])
                mfmas(kc, s)
            g.wait_lg([("R", kc, 3)])
            if kc < 7:
                g.wait_vm([("D", kc+1)])
                g.e("s_barrier")
                if kc + S < 8: dma(kc + S)
                stage_addr(kc+1)
                reads(kc+1, 0)
            mfmas(kc, 3)
        stamp()
        g.e("s_nop 15")
        if role != "G":
            for b in range(NX):
                g.e(f"s_mul_i32 s{sT0}, s{sU}, 160")
                g.e(f"s_add_u32 s{sT0}, s{sT0}, {32*b}")
                g.e(f"s_lshr_b32 s{sT1}, s{sT0}, 9")
                g.e(f"s_and_b32 s{sT0}, s{sT0}, 511")
                g.e(f"s_lshr_b32 s{sT0}, s{sT0}, 4")
                g.e(f"s_mul_i32 s{sT0}, s{sT0}, 10")
                g.e(f"s_add_u32 s{sT0}, s{sT0}, s{sT1}")
                g.e(f"s_lshl_b32 s{sT0}, s{sT0}, 10")
                g.e(f"s_add_u32 s{sT1}, s{sT0}, 10240")
                for hh in range(2):
                    d = TMP + (b*2+hh)*4
                    for i in range(4):
                        g.e(f"v_cvt_pk_bf16_f32 v{d+i}, v{ACC+16*b+8*hh+2*i}, v{ACC+16*b+8*hh+2*i+1}")
                    g.vmem(f"buffer_store_dwordx4 {vr(d)}, v{vST}, {sr(SWS)}, s{sT0 if hh==0 else sT1} offen{st_flag}")
        else:
            STAT = 6*STG
            STAT2 = STAT + 4096
            S1 = [TMP, TMP+2];
            for pb in range(2):
                for q in range(4):
                    g.wait_vm([("X", pb, q)])
                    for i in range(2):
                        x = XR+pb*8+q*2+i; a = ACC+16*pb+4*q+2*i
                        g.e(f"v_lshlrev_b32 v{vT}, 16, v{x}")
                        g.e(f"v_and_b32 v{vT2}, 0xffff0000, v{x}")
                        g.e(f"v_add_f32 v{a}, v{a}, v{vT}")
                        g.e(f"v_add_f32 v{a+1}, v{a+1}, v{vT2}")
            for pb in range(2):
                a = ACC + 16*pb; s1 = TMP + 2*pb; s2 = s1 + 1
                g.e(f"v_add_f32 v{s1}, v{a}, v{a+1}")
                g.e(f"v_mul_f32 v{s2}, v{a}, v{a}")
                g.e(f"v_fmac_f32 v{s2}, v{a+1}, v{a+1}")
                for i in range(2, 16):
                    g.e(f"v_add_f32 v{s1}, v{s1}, v{a+i}")
                    g.e(f"v_fmac_f32 v{s2}, v{a+i}, v{a+i}")
            g.e(f"s_lshl_b32 s{sT0}, s{sW}, 10")
            g.e(f"s_add_u32 s{sT0}, s{sT0}, {STAT}")
            g.e(f"v_lshlrev_b32 v{vT}, 9, v{vHF}")
            g.e(f"v_lshl_add_u32 v{vT}, v{vPX}, 3, v{vT}")
            g.e(f"v_add_u32 v{vT}, s{sT0}, v{vT}")
            g.e(f"ds_write_b64 v{vT}, {vr(TMP,2)}")
            g.e(f"ds_write_b64 v{vT}, {vr(TMP+2,2)} offset:256")
            g.e(f"s_lshl_b32 s{sT0}, s{sCT}, 13")
            g.e(f"s_lshl_b32 s{sT1}, s{sW}, 11")
            g.e(f"s_add_u32 s{sT0}, s{sT0}, s{sT1}")
            g.e(f"s_add_u32 s{sT0}, s{sT0}, s{sXROW}")
            g.e(f"v_lshlrev_b32 v{vST}, 4, v{vLane}")
            g.e(f"v_add_u32 v{vST}, s{sT0}, v{vST}")
            g.e(f"v_lshlrev_b32 v{vT2}, 4, v{vPX}")
            g.e(f"v_lshl_add_u32 v{vT2}, v{vHF}, 3, v{vT2}")
            g.e(f"v_add_u32 v{vT2}, s{sT0}, v{vT2}")
            g.e(f"s_mov_b32 s{sT1}, {WS_HI}")
            g.e(f"s_mov_b32 s{sT2}, {WS_HI + 32768}")
            g.e("s_waitcnt lgkmcnt(0)")
            g.e("s_barrier")
            for pb in range(2):
                for q in range(4):
                    a = ACC+16*pb+4*q; d = XR+pb*8+q*2
                    g.e(f"v_cvt_pk_bf16_f32 v{d}, v{a}, v{a+1}")
                    g.e(f"v_cvt_pk_bf16_f32 v{d+1}, v{a+2}, v{a+3}")
                    g.vmem(f"buffer_store_dwordx2 {vr(d,2)}, v{vT2}, {sr(SWS)}, s{sT1 if pb==0 else sT2} offen offset:{(q//2)*1024+(q%2)*512}{st_flag}")
            g.e(f"s_cmp_lg_u32 s{sW}, 0")
            g.e(f"s_cbranch_scc1 {name}_Gwait")
            E = TMP + 8
            g.e(f"v_lshlrev_b32 v{vT}, 3, v{vLane}")
            g.e(f"v_add_u32 v{vT}, {STAT}, v{vT}")
            for e_ in range(8):
                g.e(f"ds_read_b64 {vr(E+2*e_,2)}, v{vT} offset:{e_*512}")
            g.e("s_waitcnt lgkmcnt(0)")
            for e_ in range(1, 8):
                g.e(f"v_add_f32 v{E}, v{E}, v{E+2*e_}")
                g.e(f"v_add_f32 v{E+1}, v{E+1}, v{E+2*e_+1}")
            g.e(f"s_lshl_b32 s{sT0}, s{sU}, 11")
            g.e(f"s_add_u32 s{sT0}, s{sT0}, {WS_ST}")
            g.e(f"v_lshlrev_b32 v{vT}, 3, v{vLane}")
            g.e(f"v_add_u32 v{vT}, s{sT0}, v{vT}")
            g.e(f"s_lshl_b32 s{sT1}, s{sCT}, 9")
            g.e(f"buffer_store_dwordx2 {vr(E,2)}, v{vT}, {sr(SWS)}, s{sT1} offen sc1")
            g.e(f"s_lshl_b32 s{sT0}, s{sU}, 3")
            g.e(f"s_lshl_b32 s{sT1}, s{sCT}, 1")
            g.e(f"v_mov_b32 v{E+2}, s{sT0}")
            g.e(f"v_mov_b32 v{E+3}, 1")
            g.e("s_waitcnt vmcnt(0)")
            g.e("s_mov_b64 exec, 1")
            g.e(f"buffer_store_short v{E+3}, v{E+2}, {sr(SDB)}, s{sT1} offen sc1")
            g.e(f"s_mov_b32 s{sT2}, 0")
            g.label(f"{name}_poll")
            g.e(f"s_add_u32 s{sT2}, s{sT2}, 1")
            g.e(f"s_cmp_gt_u32 s{sT2}, 100000")
            g.e(f"s_cbranch_scc1 {name}_pollx")
            g.e(f"buffer_load_dwordx2 {vr(E+4,2)}, v{E+2}, {sr(SDB)}, 0 offen sc1")
            g.e("s_waitcnt vmcnt(0)")
            g.e(f"v_and_b32 v{E+4}, v{E+4}, v{E+5}")
            g.e("s_nop 0")
            g.e(f"v_readfirstlane_b32 s{sT0}, v{E+4}")
            g.e(f"s_cmp_eq_u32 s{sT0}, 0x00010001")
            g.e(f"s_cbranch_scc0 {name}_poll")
            g.label(f"{name}_pollx")
            g.e("s_mov_b64 exec, -1")
            for e_ in range(4):
                g.e(f"buffer_load_dwordx2 {vr(E+2*e_,2)}, v{vT}, {sr(SWS)}, 0 offen offset:{e_*512} sc1")
            g.e("s_waitcnt vmcnt(0)")
            for e_ in range(1, 4):
                g.e(f"v_add_f32 v{E}, v{E}, v{E+2*e_}")
                g.e(f"v_add_f32 v{E+1}, v{E+1}, v{E+2*e_+1}")
            g.e(f"v_mul_f32 v{E}, {f2u(1/512):#x}, v{E}")
            g.e(f"v_mul_f32 v{E+1}, {f2u(1/512):#x}, v{E+1}")
            g.e(f"v_fma_f32 v{E+1}, -v{E}, v{E}, v{E+1}")
            g.e(f"v_max_f32 v{E+1}, 0, v{E+1}")
            g.e(f"v_add_f32 v{E+1}, {f2u(1e-5):#x}, v{E+1}")
            g.e(f"v_rsq_f32 v{E+2}, v{E+1}")
            g.e("s_nop 0")
            g.e(f"v_mul_f32 v{E+3}, v{E}, v{E+2}")
            g.e(f"v_sub_f32 v{E+3}, 0, v{E+3}")
            g.e(f"v_lshlrev_b32 v{vT}, 3, v{vLane}")
            g.e(f"v_add_u32 v{vT}, {STAT2}, v{vT}")
            g.e(f"ds_write_b64 v{vT}, {vr(E+2,2)}")
            g.e("s_waitcnt lgkmcnt(0)")
            g.label(f"{name}_Gwait")
            g.e("s_barrier")
            stamp()
            AB = TMP
            g.e(f"v_lshlrev_b32 v{vT}, 3, v{vPX}")
            g.e(f"v_add_u32 v{vT}, {STAT2}, v{vT}")
            g.e(f"ds_read_b64 {vr(AB,2)}, v{vT}")
            g.e(f"ds_read_b64 {vr(AB+2,2)}, v{vT} offset:256")
            g.e("s_waitcnt lgkmcnt(0)")
            g.e(f"s_mov_b32 s{sT0}, {f2u(-LOG2E):#x}")
            g.e(f"s_mov_b32 s{sT2}, 0x8000")
            Y = TMP + 8
            for pb in range(2):
                for hh in range(2):
                    a = ACC + 16*pb + 8*hh
                    for i in range(8):
                        g.e(f"v_fma_f32 v{a+i}, v{a+i}, v{AB+2*pb}, v{AB+2*pb+1}")
                    for i in range(8):
                        g.e(f"v_mul_f32 v{Y+i}, s{sT0}, v{a+i}")
                    for i in range(8):
                        g.e(f"v_exp_f32 v{Y+i}, v{Y+i}")
                    for i in range(8):
                        g.e(f"v_add_f32 v{Y+i}, 1.0, v{Y+i}")
                    for i in range(8):
                        g.e(f"v_rcp_f32 v{Y+i}, v{Y+i}")
                    for i in range(8):
                        g.e(f"v_mul_f32 v{a+i}, v{a+i}, v{Y+i}")
                    d = Y + 8 + (pb*2+hh)*4
                    for i in range(4):
                        g.e(f"v_cvt_pk_bf16_f32 v{d+i}, v{a+2*i}, v{a+2*i+1}")
                    g.e(f"buffer_store_dwordx4 {vr(d)}, v{vST}, {sr(SWS)}, {'0' if pb==0 else 's%d'%sT2} offen offset:{hh*1024}{st_flag}")
        if stamps:
            while nst[0] < 4: stamp()
            g.e("s_waitcnt vmcnt(0)")
            stamp()
            g.e(f"s_memrealtime s[{50+2*nst[0]}:{51+2*nst[0]}]")
            g.e("s_waitcnt lgkmcnt(0)")
            g.e(f"s_sub_u32 s{50+2*nst[0]}, s{50+2*nst[0]}, s90")
            g.e(f"s_add_u32 s{50+2*nst[0]}, s{50+2*nst[0]}, s50")
            nst[0] += 1
            g.e(f"s_lshl_b32 s{sT0}, s2, 2")
            g.e(f"s_add_u32 s{sT0}, s{sT0}, s{sW}")
            g.e(f"s_lshl_b32 s{sT0}, s{sT0}, 7")
            g.e(f"s_add_u32 s{sT0}, s{sT0}, {12 << 20}")
            g.e(f"v_mov_b32 v2, s{sT0}")
            for i in range(nst[0]):
                g.e(f"v_mov_b32 v3, s{50+2*i}")
                g.e(f"buffer_store_dword v3, v2, {sr(SWS)}, 0 offen offset:{4*i}")
            nst[0] = 1
        g.e("s_endpgm")
    body("G"); body("P"); body("PL")
    g.label(f"{name}_end")
    g.e("s_endpgm")
    return g.text(), kd(name, 256, 256, 100), 152*1024

if __name__ == "__main__":
    out = sys.argv[1]
    opts = {a.split("=")[0]: int(a.split("=")[1]) for a in sys.argv[2:]}
    t1, k1, l1 = gen_prep("prep_kernel", stamps=bool(opts.get("st1", 0)))
    t2, k2, l2 = gen_conv("conv_kernel", stamps=bool(opts.get("st2", 0)))
    build([("prep_kernel", t1, k1, 256, 256, l1), ("conv_kernel", t2, k2, 256, 256, l2)], out)
```

```python
from gen1 import *
t1, k1, l1 = gen_prep("prep_kernel")
t2, k2, l2 = gen_conv("conv_kernel")
te = ".globl empty_kernel\n.p2align 8\n.type empty_kernel,@function\nempty_kernel:\n    s_endpgm\n"
ke = kd("empty_kernel", 8, 8, 16)
A = ("prep_kernel", t1, k1, 256, 256, l1); B = ("conv_kernel", t2, k2, 256, 256, l2)
E = ("empty_kernel", te, ke, 256, 256, 0); E1 = ("empty_kernel", te, ke, 1, 64, 0)
build([A, B], "va.s")
build([A, B, E], "vb.s")
build([E, A, B], "vc.s")
build([A, B, E, E, E, E], "vd.s")
build([A, A, B], "ve.s")
build([A, B, B], "vf.s")
```

```python
import sys

class Gen:
    def __init__(self):
        self.lines = []
        self.vm = []
        self.lg = []
    def e(self, s): self.lines.append("    " + s)
    def c(self, s): self.lines.append("    ; " + s)
    def label(self, l): self.lines.append(l + ":")
    def raw(self, s): self.lines.append(s)
    def vmem(self, s, tok=None):
        self.e(s); self.vm.append(tok if tok is not None else object())
        assert len(self.vm) <= 63, "vmcnt overflow"
    def lds(self, s, tok=None):
        self.e(s); self.lg.append(tok if tok is not None else object())
    def wait_vm(self, toks):
        if not isinstance(toks, (list, tuple, set)): toks = [toks]
        idx = [i for i, t in enumerate(self.vm) if t in toks]
        if not idx: return
        k = max(idx); n = len(self.vm) - 1 - k
        self.e(f"s_waitcnt vmcnt({n})"); self.vm = self.vm[k+1:]
    def wait_lg(self, toks):
        if not isinstance(toks, (list, tuple, set)): toks = [toks]
        idx = [i for i, t in enumerate(self.lg) if t in toks]
        if not idx: return
        k = max(idx); n = len(self.lg) - 1 - k
        n = min(n, 15)
        self.e(f"s_waitcnt lgkmcnt({n})"); self.lg = self.lg[len(self.lg)-n:] if n else []
    def wait_all(self):
        self.e("s_waitcnt vmcnt(0) lgkmcnt(0)"); self.vm = []; self.lg = []
    def text(self): return "\n".join(self.lines) + "\n"

def vr(b, n=4): return f"v[{b}:{b+n-1}]"
def ar(b, n=4): return f"a[{b}:{b+n-1}]"
def sr(b, n=4): return f"s[{b}:{b+n-1}]"

WS_H, WS_HI, WS_WP, WS_ST = 0, 2 << 20, 4 << 20, 10 << 20
WP_BYTES = 16*32*10*1024

def srd(g, d, lo, hi, size, add=0):
    if add:
        g.e(f"s_add_u32 s{d}, s{lo}, {add:#x}")
        g.e(f"s_addc_u32 s{d+1}, s{hi}, 0")
        g.e(f"s_and_b32 s{d+1}, s{d+1}, 0xffff")
    else:
        g.e(f"s_mov_b32 s{d}, s{lo}")
        g.e(f"s_and_b32 s{d+1}, s{hi}, 0xffff")
    g.e(f"s_mov_b32 s{d+2}, {size:#x}")
    g.e(f"s_mov_b32 s{d+3}, 0x00020000")

def kd(name, vgpr, accum, sgpr=102):
    return f""".section .rodata,"a"
.p2align 6
.amdhsa_kernel {name}
  .amdhsa_next_free_vgpr {vgpr}
  .amdhsa_next_free_sgpr {sgpr}
  .amdhsa_accum_offset {accum}
  .amdhsa_group_segment_fixed_size 0
  .amdhsa_kernarg_size 72
  .amdhsa_user_sgpr_count 2
  .amdhsa_user_sgpr_kernarg_segment_ptr 1
  .amdhsa_system_sgpr_workgroup_id_x 1
.end_amdhsa_kernel
.text
"""

def gen_conv(name, NST=4, no_mfma=False, no_dpp=False, no_load=False, stamps=False, PRE=30, EVERY=2):
    g = Gen()
    g.raw(f".globl {name}\n.p2align 8\n.type {name},@function\n{name}:")
    SA, SW, SX, SO = 12, 16, 20, 24
    C4K, C8K, C2M, C2M4K = 28, 29, 30, 31
    sW, sMT, sNT, sB, sT0, sT1 = 32, 33, 34, 35, 36, 37
    vLane, vT, vW, vMR, vML, vO = 1, 2, 3, 4, 5, 6
    vH = [8+j for j in range(6)]
    vXF = 16
    HB = 24
    HIB = HB + NST*24
    T0 = HIB + NST*16
    T2 = T0 + 24
    VEND = T2 + 24
    assert VEND <= 256
    ACC = 0
    WB = 64
    AEND = WB + NST*40
    assert AEND <= 256
    g.e("s_cmp_ge_u32 s2, 256")
    g.e(f"s_cbranch_scc1 {name}_end")
    g.e("s_load_dwordx2 s[4:5], s[0:1], 0")
    g.e("s_load_dwordx2 s[6:7], s[0:1], 48")
    g.e("s_load_dwordx2 s[8:9], s[0:1], 64")
    g.e(f"v_and_b32 v{vLane}, 63, v0")
    g.e(f"v_lshrrev_b32 v{vT}, 6, v0")
    g.e(f"s_and_b32 s{sT0}, s2, 7")
    g.e(f"v_readfirstlane_b32 s{sW}, v{vT}")
    g.e(f"s_lshr_b32 s{sT1}, s2, 3")
    g.e(f"s_and_b32 s{sB}, s{sT0}, 1")
    g.e(f"s_lshr_b32 s{sT0}, s{sT0}, 1")
    g.e(f"s_and_b32 s{sMT}, s{sT1}, 7")
    g.e(f"s_lshr_b32 s{sT1}, s{sT1}, 3")
    g.e(f"s_lshl_b32 s{sNT}, s{sT0}, 2")
    g.e(f"s_add_u32 s{sNT}, s{sNT}, s{sT1}")
    g.e(f"s_movk_i32 s{C4K}, 0x1000")
    g.e(f"s_movk_i32 s{C8K}, 0x2000")
    g.e(f"s_mov_b32 s{C2M}, 0x200000")
    g.e(f"s_mov_b32 s{C2M4K}, 0x201000")
    g.e(f"s_lshl_b32 s{sT0}, s{sB}, 5")
    g.e(f"s_lshl_b32 s{sT1}, s{sMT}, 2")
    g.e(f"s_add_u32 s38, s{sT0}, s{sT1}")
    g.e(f"s_lshl_b32 s39, s38, 15")
    g.e(f"s_lshl_b32 s{sT0}, s{sW}, 13")
    g.e(f"s_add_u32 s39, s39, s{sT0}")
    g.e(f"v_lshlrev_b32 v{vT}, 4, v{vLane}")
    for j in range(1, 5):
        g.e(f"s_add_u32 s{sT0}, s39, {(j-1)*32768}")
        g.e(f"v_add_u32 v{vH[j]}, s{sT0}, v{vT}")
    g.e(f"s_sub_u32 s{sT0}, s39, 32768")
    g.e(f"s_cmp_eq_u32 s{sMT}, 0")
    g.e(f"s_cselect_b32 s{sT0}, 0x40000000, s{sT0}")
    g.e(f"v_add_u32 v{vH[0]}, s{sT0}, v{vT}")
    g.e(f"s_add_u32 s{sT0}, s39, {4*32768}")
    g.e(f"s_cmp_eq_u32 s{sMT}, 7")
    g.e(f"s_cselect_b32 s{sT0}, 0x40000000, s{sT0}")
    g.e(f"v_add_u32 v{vH[5]}, s{sT0}, v{vT}")
    g.e(f"s_lshl_b32 s{sT0}, s{sNT}, 5")
    g.e(f"s_lshl_b32 s{sT1}, s{sW}, 3")
    g.e(f"s_add_u32 s{sT0}, s{sT0}, s{sT1}")
    g.e(f"s_mul_i32 s{sT0}, s{sT0}, 10240")
    g.e(f"v_add_u32 v{vW}, s{sT0}, v{vT}")
    g.e("s_waitcnt lgkmcnt(0)")
    srd(g, SA, 8, 9, 4 << 20)
    srd(g, SW, 8, 9, WP_BYTES, add=WS_WP)

    def Hreg(st, j): return HB + st*24 + j*4
    def HIreg(st, r): return HIB + st*16 + r*4
    def Wreg(st, t): return WB + st*40 + t*4
    def stage_loads(k):
        st = k % NST
        L = []
        so_h = "0" if k < 4 else f"s{C4K}"
        so_hi = f"s{C2M}" if k < 4 else f"s{C2M4K}"
        io = (k % 4) * 1024
        def ldH(j): return (f"buffer_load_dwordx4 {vr(Hreg(st,j))}, v{vH[j]}, {sr(SA)}, {so_h} offen offset:{io}", ("H", k, j))
        def ldHI(r): return (f"buffer_load_dwordx4 {vr(HIreg(st,r))}, v{vH[r+1]}, {sr(SA)}, {so_hi} offen offset:{io}", ("HI", k, r))
        def ldW(t):
            so = ["0", f"s{C4K}", f"s{C8K}"][t // 4]
            return (f"buffer_load_dwordx4 {ar(Wreg(st,t))}, v{vW}, {sr(SW)}, {so} offen offset:{(t%4)*1024}", ("W", k, t))
        L += [ldW(1), ldH(0), ldH(1), ldH(2), ldH(3), ldW(4), ldH(4), ldW(7), ldH(5), ldW(9)]
        L += [ldHI(r) for r in range(4)]
        L += [ldW(0), ldW(3), ldW(6), ldW(2), ldW(5), ldW(8)]
        L.append(("BUMP", None))
        return L
    def issue(item):
        s, tok = item
        if s == "BUMP":
            g.e(f"v_add_u32 v{vW}, 10240, v{vW}")
        elif no_load and tok[0] != "XF":
            pass
        else:
            g.vmem(s, tok)
    nst = [0]
    def stamp():
        if stamps:
            g.e(f"s_memtime s[{50+2*nst[0]}:{51+2*nst[0]}]"); nst[0] += 1
    stamp()
    if stamps: g.e("s_memrealtime s[90:91]")
    queue = []
    for k in range(8):
        for it in stage_loads(k): queue.append((k, it))
        if k == 5:
            queue += [(k, (f"buffer_load_dwordx2 {vr(vXF+2*q,2)}, v{vO}, {sr(SX)}, 0 offen offset:{q*16}", ("XF", q))) for q in range(4)]
    def issue_next(cur_k):
        if not queue: return False
        k, it = queue[0]
        if k - NST >= cur_k or len(g.vm) >= 62: return False
        queue.pop(0); issue(it)
        if queue and queue[0][1][0] == "BUMP": issue(queue.pop(0)[1])
        return True
    for _ in range(PRE): issue_next(0)
    srd(g, SX, 4, 5, 2 << 20)
    srd(g, SO, 6, 7, 2 << 20)
    for i in range(64): g.e(f"v_accvgpr_write_b32 a{ACC+i}, 0")
    g.e(f"v_and_b32 v{vT}, 31, v{vLane}")
    g.e(f"v_cmp_ne_u32 vcc, 0, v{vT}")
    g.e("s_nop 1")
    g.e(f"v_cndmask_b32 v{vMR}, 0, -1, vcc")
    g.e(f"v_cmp_ne_u32 vcc, 31, v{vT}")
    g.e("s_nop 1")
    g.e(f"v_cndmask_b32 v{vML}, 0, -1, vcc")
    g.e(f"s_add_u32 s{sT0}, s38, s{sW}")
    g.e(f"s_lshl_b32 s{sT0}, s{sT0}, 15")
    g.e(f"s_lshl_b32 s{sT1}, s{sNT}, 6")
    g.e(f"s_add_u32 s{sT0}, s{sT0}, s{sT1}")
    g.e(f"v_lshlrev_b32 v{vO}, 10, v{vT}")
    g.e(f"v_lshrrev_b32 v{vT}, 5, v{vLane}")
    g.e(f"v_lshlrev_b32 v{vT}, 3, v{vT}")
    g.e(f"v_add3_u32 v{vO}, v{vO}, v{vT}, s{sT0}")

    NK = 8
    for k in range(NK):
        st = k % NST
        g.c(f"---- k-step {k}")
        stamp()
        dpp0 = [(j, i) for j in range(6) for i in range(4)]
        dpp2 = list(dpp0)
        mf = []
        for di in range(3):
            for r in range(4):
                mf.append((r, ("W", k, di*3+1), Wreg(st, di*3+1), [("H", k, r+di)], Hreg(st, r+di), "A"))
        for r in range(4):
            mf.append((r, ("W", k, 9), Wreg(st, 9), [("HI", k, r)], HIreg(st, r), "B"))
        for di in range(3):
            for r in range(4):
                mf.append((r, ("W", k, di*3+0), Wreg(st, di*3), [], T0 + (r+di)*4, "C"))
        for di in range(3):
            for r in range(4):
                mf.append((r, ("W", k, di*3+2), Wreg(st, di*3+2), [], T2 + (r+di)*4, "D"))
        for n, (r, wt, wreg, ht, hreg, grp) in enumerate(mf):
            for tok in [wt] + ht:
                while any(it[1] == tok for _, it in queue): assert issue_next(k)
            g.wait_vm([wt] + ht)
            if not no_mfma: g.e(f"v_mfma_f32_32x32x16_bf16 {ar(ACC+16*r,16)}, {ar(wreg)}, {vr(hreg)}, {ar(ACC+16*r,16)}")
            if grp in "AB" and n >= 2:
                for _ in range(2):
                    if dpp0:
                        j, i = dpp0.pop(0)
                        while any(it[1] == ("H", k, j) for _, it in queue): assert issue_next(k)
                        g.wait_vm([("H", k, j)])
                        if not no_dpp: g.e(f"v_and_b32_dpp v{T0+j*4+i}, v{Hreg(st,j)+i}, v{vMR} wave_shr:1 row_mask:0xf bank_mask:0xf bound_ctrl:0")
            if grp == "C":
                for _ in range(3):
                    if dpp2:
                        j, i = dpp2.pop(0)
                        if not no_dpp: g.e(f"v_and_b32_dpp v{T2+j*4+i}, v{Hreg(st,j)+i}, v{vML} wave_shl:1 row_mask:0xf bank_mask:0xf bound_ctrl:0")
            if n % EVERY == EVERY - 1: issue_next(k)
        assert not dpp0 and not dpp2
    assert not queue
    g.c("---- epilogue")
    stamp()
    g.e("s_nop 15")
    vA = HB
    g.e(f"v_lshlrev_b32 v{vA}, 4, v{vLane}")
    for r in range(4):
        g.e(f"s_sub_u32 s{sT0}, s{sW}, {r+1}")
        g.e(f"s_and_b32 s{sT0}, s{sT0}, 3")
        g.e(f"s_cmp_eq_u32 s{sT0}, 3")
        g.e(f"s_cbranch_scc1 {name}_skip{r}")
        g.e(f"s_lshl_b32 s{sT0}, s{sT0}, 12")
        g.e(f"v_add_u32 v{vA+1}, s{sT0}, v{vA}")
        for q in range(4):
            g.e(f"ds_write_b128 v{vA+1}, {ar(ACC+16*r+4*q)} offset:{r*3*4096 + q*1024}")
        g.e(f"s_branch {name}_next{r}")
        g.label(f"{name}_skip{r}")
        for i in range(16):
            g.e(f"v_accvgpr_read_b32 v{vA+8+i}, a{ACC+16*r+i}")
        g.label(f"{name}_next{r}")
    g.e("s_waitcnt lgkmcnt(0)")
    g.e("s_barrier")
    g.e(f"s_mul_i32 s{sT0}, s{sW}, {3*4096}")
    g.e(f"v_add_u32 v{vA+1}, s{sT0}, v{vA}")
    R = vA + 24
    for s_ in range(3):
        for q in range(4):
            g.lds(f"ds_read_b128 {vr(R+s_*16+q*4)}, v{vA+1} offset:{s_*4096+q*1024}", ("R", s_, q))
    own = vA + 8
    g.wait_vm([("XF", q) for q in range(4)])
    for q in range(4):
        for i in range(2):
            g.e(f"v_lshlrev_b32 v{vA+2}, 16, v{vXF+2*q+i}")
            g.e(f"v_and_b32 v{vA+3}, 0xffff0000, v{vXF+2*q+i}")
            g.e(f"v_add_f32 v{own+4*q+2*i}, v{own+4*q+2*i}, v{vA+2}")
            g.e(f"v_add_f32 v{own+4*q+2*i+1}, v{own+4*q+2*i+1}, v{vA+3}")
    for s_ in range(3):
        for q in range(4):
            g.wait_lg([("R", s_, q)])
            for i in range(4):
                g.e(f"v_add_f32 v{own+4*q+i}, v{own+4*q+i}, v{R+s_*16+q*4+i}")
    for q in range(4):
        g.e(f"v_cvt_pk_bf16_f32 v{vXF+2*q}, v{own+4*q}, v{own+4*q+1}")
        g.e(f"v_cvt_pk_bf16_f32 v{vXF+2*q+1}, v{own+4*q+2}, v{own+4*q+3}")
        g.vmem(f"buffer_store_dwordx2 {vr(vXF+2*q,2)}, v{vO}, {sr(SO)}, 0 offen offset:{q*16}")
    if stamps:
        stamp()
        g.e("s_waitcnt vmcnt(0)")
        stamp()
        g.e(f"s_memrealtime s[{50+2*nst[0]}:{51+2*nst[0]}]")
        g.e("s_waitcnt lgkmcnt(0)")
        g.e(f"s_sub_u32 s{50+2*nst[0]}, s{50+2*nst[0]}, s90")
        g.e(f"s_add_u32 s{50+2*nst[0]}, s{50+2*nst[0]}, s50")
        nst[0] += 1
        srd(g, SX, 8, 9, 1 << 20, add=12 << 20)
        g.e(f"s_lshl_b32 s{sT0}, s2, 2")
        g.e(f"s_add_u32 s{sT0}, s{sT0}, s{sW}")
        g.e(f"s_lshl_b32 s{sT0}, s{sT0}, 7")
        g.e(f"v_mov_b32 v2, s{sT0}")
        for i in range(nst[0]):
            g.e(f"v_mov_b32 v3, s{50+2*i}")
            g.e(f"buffer_store_dword v3, v2, {sr(SX)}, 0 offen offset:{4*i}")
    g.label(f"{name}_end")
    g.e("s_endpgm")
    return g.text(), kd(name, 256 + AEND, 256, 100), 48*1024

HEADER = open("standalone__controlnet__diffusion.s.ref").read().split("; Override launch")[0]

def build(kernels, out):
    s = HEADER
    for (name, text, k, grid, block, lds) in kernels:
        s += f"; @launch kernel={name} grid=({grid},1,1) block=({block},1,1) lds={lds}\n"
    s += '.amdgcn_target "amdgcn-amd-amdhsa--gfx950"\n.text\n'
    done = set()
    for (name, text, k, grid, block, lds) in kernels:
        if name in done: continue
        done.add(name)
        s += text + k
    open(out, "w").write(s)

if __name__ == "__main__":
    out = sys.argv[1] if len(sys.argv) > 1 else "k2.s"
    opts = {a.split("=")[0]: int(a.split("=")[1]) for a in sys.argv[2:]}
    t, k, lds = gen_conv("conv_kernel", **opts)
    build([("conv_kernel", t, k, 256, 256, lds)], out)
```

```python
import sys, struct
from gen import Gen, vr, ar, sr, srd, kd, build, WS_H, WS_HI, WS_WP, WS_ST, WP_BYTES

LOG2E = 1.4426950408889634
def f2u(x): return struct.unpack("<I", struct.pack("<f", x))[0]

sW = 32
WS_MB = 11 << 20

class Stamper:
    def __init__(self, g, on): self.g, self.on, self.n = g, on, 0
    def __call__(self):
        if self.on:
            assert self.n < 21
            self.g.e(f"s_memtime s[{52+2*self.n}:{53+2*self.n}]"); self.n += 1
    def start(self):
        if self.on:
            self(); self.g.e("s_memrealtime s[98:99]")
    def finish(self, total):
        if not self.on: return
        g = self.g
        while self.n < total - 1: self()
        g.e("s_waitcnt vmcnt(0)")
        self()
        n = self.n
        g.e(f"s_memrealtime s[{52+2*n}:{53+2*n}]")
        g.e("s_waitcnt lgkmcnt(0)")
        g.e(f"s_sub_u32 s{52+2*n}, s{52+2*n}, s98")
        g.e(f"s_add_u32 s{52+2*n}, s{52+2*n}, s52")
        srd(g, 20, 50, 51, 16 << 20)
        g.e(f"s_lshl_b32 s35, s2, 2")
        g.e(f"s_add_u32 s35, s35, s{sW}")
        g.e(f"s_lshl_b32 s35, s35, 7")
        g.e(f"s_add_u32 s35, s35, {12 << 20}")
        g.e(f"v_mov_b32 v2, s35")
        for i in range(n + 1):
            g.e(f"v_mov_b32 v3, s{52+2*i}")
            g.e(f"buffer_store_dword v3, v2, s[20:23], 0 offen offset:{4*i}")
        g.e(f"v_mov_b32 v3, s98")
        g.e(f"buffer_store_dword v3, v2, s[20:23], 0 offen offset:{4*(n+1)}")

def entry(g, name, st):
    g.raw(f".globl {name}\n.p2align 8\n.type {name},@function\n{name}:")
    g.e("s_cmp_ge_u32 s2, 256")
    g.e(f"s_cbranch_scc1 {name}_end")
    st.start()
    g.e("s_load_dwordx8 s[4:11], s[0:1], 8")
    g.e("s_load_dwordx8 s[44:51], s[0:1], 40")
    g.e("s_load_dwordx2 s[40:41], s[0:1], 0")
    g.e(f"v_and_b32 v1, 63, v0")
    g.e(f"v_lshrrev_b32 v2, 6, v0")
    g.e("s_nop 0")
    g.e(f"v_readfirstlane_b32 s{sW}, v2")

def phase1(g, name, st, fused, o):
    stf = o.get("stf", " sc1") if fused else o.get("stf", "")
    ldf = " nt" if o.get("nt", 1) else ""
    SX, SWT, SWS, SXI, SDB = 12, 16, 20, 24, 28
    sCT, sU, sT0, sT1, sT2, sXROW, sM0X = 33, 34, 35, 36, 37, 38, 39
    sSOX, sSOW, sNONCE = 42, 43, 3
    vLane, vT, vT2, vXD, vWD, vWA, vPX, vHF, vL16 = 1, 2, 3, 4, 5, 6, 7, 8, 9
    vXA = [10, 11, 12, 13]; vXAs = [14, 15, 16, 17]
    vWAs, vST, vWR, vNC, vZ, vWRs = 18, 19, 20, 21, 22, 23
    XF, WF, ACC, TMP = 24, 64, 80, 160
    g.e(f"s_and_b32 s{sT0}, s2, 7")
    g.e(f"s_lshr_b32 s{sT1}, s2, 3")
    g.e(f"s_and_b32 s{sCT}, s{sT1}, 3")
    g.e(f"s_lshr_b32 s{sT1}, s{sT1}, 2")
    g.e(f"s_and_b32 s{sU}, s{sT0}, 3")
    g.e(f"s_lshl_b32 s{sU}, s{sU}, 3")
    g.e(f"s_add_u32 s{sU}, s{sU}, s{sT1}")
    g.e(f"v_lshrrev_b32 v{vT}, 3, v{vLane}")
    g.e(f"s_lshl_b32 s{sT2}, s{sW}, 3")
    g.e(f"v_add_u32 v{vXD}, s{sT2}, v{vT}")
    g.e(f"v_lshrrev_b32 v{vT}, 1, v{vXD}")
    g.e(f"v_and_b32 v{vT}, 7, v{vT}")
    g.e(f"v_and_b32 v{vT2}, 7, v{vLane}")
    g.e(f"v_xor_b32 v{vT}, v{vT}, v{vT2}")
    g.e(f"v_lshlrev_b32 v{vT}, 4, v{vT}")
    g.e(f"v_lshl_add_u32 v{vXD}, v{vXD}, 10, v{vT}")
    g.e(f"v_lshrrev_b32 v{vT}, 4, v{vLane}")
    g.e(f"v_lshlrev_b32 v{vT2}, 2, v{vT}")
    g.e(f"v_and_b32 v{vWD}, 15, v{vLane}")
    g.e(f"v_xor_b32 v{vWD}, v{vWD}, v{vT2}")
    g.e(f"v_lshlrev_b32 v{vWD}, 4, v{vWD}")
    g.e(f"s_lshl_b32 s{sT2}, s{sW}, 2")
    g.e(f"v_add_u32 v{vT}, s{sT2}, v{vT}")
    g.e(f"v_lshl_add_u32 v{vWD}, v{vT}, 10, v{vWD}")
    g.e(f"s_lshl_b32 s{sT2}, s{sCT}, 8")
    g.e(f"v_add_u32 v{vWD}, s{sT2}, v{vWD}")
    g.e(f"s_lshl_b32 s{sM0X}, s{sW}, 10")
    g.e(f"v_mov_b32 v{vZ}, 0")
    g.e(f"s_cmp_lt_u32 s{sT0}, 4")
    g.e(f"s_cbranch_scc1 {name}_G")
    g.e(f"s_cmp_lt_u32 s{sU}, 28")
    g.e(f"s_cbranch_scc1 {name}_P")
    g.e(f"s_cmp_eq_u32 s{sU}, 28")
    g.e(f"s_cbranch_scc1 {name}_PL")
    st_n0 = st.n
    IDLE = True

    def nonce_wait(role):
        g.wait_vm([("NC",)])
        g.e(f"s_mov_b32 s{sT2}, 0")
        g.label(f"{name}_ncpoll{role}")
        g.e(f"v_readfirstlane_b32 s{sNONCE}, v{vNC}")
        g.e(f"s_add_u32 s{sT2}, s{sT2}, 1")
        g.e(f"s_cmp_gt_u32 s{sT2}, 100000")
        g.e(f"s_cbranch_scc1 {name}_ncok{role}")
        g.e(f"s_cmp_lg_u32 s{sNONCE}, 0")
        g.e(f"s_cbranch_scc1 {name}_ncok{role}")
        g.e("s_sleep 4")
        g.e(f"buffer_load_dword v{vNC}, v{vZ}, {sr(SDB)}, 0 offen sc1")
        g.e("s_waitcnt vmcnt(0)")
        g.e(f"s_branch {name}_ncpoll{role}")
        g.label(f"{name}_ncok{role}")

    def body(role):
        G = role == "G"
        NX = {"G": 2, "P": 5, "PL": 4}[role]
        S = {"G": 6, "P": 4, "PL": 4}[role]
        XB = NX * 4096
        STG = XB + 16384
        NI = NX + 4
        PRE1 = o.get("PRE1", 2)
        g.vm = []; g.lg = []
        st.n = st_n0
        g.label(f"{name}_{role}")
        if G: g.e(f"s_lshl_b32 s{sXROW}, s{sU}, 16")
        else: g.e(f"s_mul_i32 s{sXROW}, s{sU}, {160*1024}")
        vPFX, vPFW = vXAs[0], vXAs[1]
        if G:
            g.e(f"v_lshrrev_b32 v{vT}, 2, v{vLane}")
            g.e(f"v_and_b32 v{vT2}, 3, v{vLane}")
            g.e(f"v_lshlrev_b32 v{vT2}, 6, v{vT2}")
            g.e(f"v_lshl_add_u32 v{vPFX}, v{vT}, 10, v{vT2}")
            g.e(f"s_lshl_b32 s{sT2}, s{sW}, 14")
        else:
            g.e(f"v_lshrrev_b32 v{vT}, 1, v{vLane}")
            g.e(f"v_and_b32 v{vT2}, 1, v{vLane}")
            g.e(f"v_lshlrev_b32 v{vT2}, 7, v{vT2}")
            g.e(f"v_lshl_add_u32 v{vPFX}, v{vT}, 10, v{vT2}")
            g.e(f"s_mul_i32 s{sT2}, s{sW}, {40*1024}")
        g.e(f"s_add_u32 s{sT2}, s{sT2}, s{sXROW}")
        g.e(f"s_lshl_b32 s{sT0}, s{sCT}, 8")
        g.e(f"s_add_u32 s{sT2}, s{sT2}, s{sT0}")
        g.e(f"v_add_u32 v{vPFX}, s{sT2}, v{vPFX}")
        g.e(f"s_lshr_b32 s{sT0}, s2, 3")
        g.e(f"s_lshl_b32 s{sT0}, s{sT0}, 14")
        g.e(f"s_lshl_b32 s{sT2}, s{sW}, 12")
        g.e(f"s_add_u32 s{sT0}, s{sT0}, s{sT2}")
        g.e(f"v_lshlrev_b32 v{vPFW}, 6, v{vLane}")
        g.e(f"v_add_u32 v{vPFW}, s{sT0}, v{vPFW}")
        g.e("s_waitcnt lgkmcnt(0)")
        st()
        if G:
            srd(g, SX, 6, 7, 2 << 20); srd(g, SWT, 8, 9, 512 << 10)
        else:
            srd(g, SX, 44, 45, 4608*1024); srd(g, SWT, 10, 11, 512 << 10)
        srd(g, SDB, 48, 49, 256)
        def ld1(kc, m):
            sb = (kc % S) * STG
            isx = m < NX
            mm = m if isx else m - NX
            g.e(f"s_add_u32 m0, s{sM0X}, {sb + m*4096}")
            if isx: g.e(f"s_add_u32 s{sSOX}, s{sXROW}, {mm*32768 + kc*128}")
            else:   g.e(f"s_mov_b32 s{sSOW}, {(kc*64 + 16*mm)*1024}")
            va, sd, so = (vXD, SX, sSOX) if isx else (vWD, SWT, sSOW)
            g.vmem(f"buffer_load_dwordx4 v{va}, {sr(sd)}, s{so} offen{ldf} lds", ("D", kc))
        if G:
            g.e(f"s_or_b32 s{sT0}, s2, s{sW}")
            g.e(f"s_cmp_lg_u32 s{sT0}, 0")
            g.e(f"s_cbranch_scc1 {name}_nn")
            g.e("s_memrealtime s[96:97]")
            g.e("s_waitcnt lgkmcnt(0)")
            g.e(f"s_or_b32 s96, s96, 1")
            g.e(f"v_mov_b32 v{vT}, s96")
            g.e(f"buffer_store_dword v{vT}, v{vZ}, {sr(SDB)}, 0 offen sc1")
            g.label(f"{name}_nn")
        def prefetch():
            if not o.get("pf", 1): return
            g.vmem(f"buffer_load_dword v{TMP}, v{vPFX}, {sr(SX)}, 0 offen{ldf}")
            if not G:
                g.e(f"s_mov_b32 s{sSOX}, 0x8000")
                g.vmem(f"buffer_load_dword v{TMP+1}, v{vPFX}, {sr(SX)}, s{sSOX} offen{ldf}")
            g.vmem(f"buffer_load_dword v{TMP+2}, v{vPFW}, {sr(SWT)}, 0 offen{ldf}")
        if o.get("pf", 1) == 2: prefetch()
        for m in range(NI): ld1(0, m)
        if o.get("pf", 1) == 1: prefetch()
        for kc in range(1, PRE1):
            for m in range(NI): ld1(kc, m)
        ldq = [(kc, m) for kc in range(PRE1, 8) for m in range(NI)]
        if G:
            srd(g, SXI, 4, 5, 2 << 20)
            g.e(f"v_lshrrev_b32 v{vT}, 4, v{vLane}")
            g.e(f"s_lshl_b32 s{sT2}, s{sW}, 2")
            g.e(f"v_add_u32 v{vT}, s{sT2}, v{vT}")
            g.e(f"v_and_b32 v{vT2}, 15, v{vLane}")
            g.e(f"v_xor_b32 v{vT2}, v{vT2}, v{vT}")
            g.e(f"v_lshlrev_b32 v{vT2}, 4, v{vT2}")
            g.e(f"v_lshl_add_u32 v{vT}, v{vT}, 10, v{vT2}")
            g.e(f"s_lshl_b32 s{sT2}, s{sCT}, 8")
            g.e(f"v_add_u32 v{vWR}, s{sT2}, v{vT}")
            k6 = [i for i, (kc, m) in enumerate(ldq) if kc >= S][0]
            ldq[k6:k6] = [("X", m) for m in range(4)]
        freed = [0]
        def ldnext():
            if not ldq: return False
            kc, m = ldq[0]
            if kc == "X":
                ldq.pop(0)
                g.e(f"s_add_u32 m0, s{sM0X}, {6*STG + m*4096}")
                g.e(f"s_add_u32 s{sSOX}, s{sXROW}, {m*16384}")
                g.vmem(f"buffer_load_dwordx4 v{vWR}, {sr(SXI)}, s{sSOX} offen{ldf} lds", ("XI",))
                return True
            if kc - S >= freed[0]: return False
            ldq.pop(0); ld1(kc, m); return True
        g.e(f"v_and_b32 v{vPX}, 31, v{vLane}")
        g.e(f"v_lshrrev_b32 v{vHF}, 5, v{vLane}")
        g.e(f"v_lshlrev_b32 v{vL16}, 4, v{vLane}")
        g.e(f"v_lshrrev_b32 v{vT}, 1, v{vPX}")
        g.e(f"v_and_b32 v{vT}, 7, v{vT}")
        g.e(f"v_xor_b32 v{vT}, v{vT}, v{vHF}")
        g.e(f"v_lshlrev_b32 v{vT}, 4, v{vT}")
        g.e(f"v_lshl_add_u32 v{vXA[0]}, v{vPX}, 7, v{vT}")
        if G:
            g.e(f"s_lshr_b32 s{sT2}, s{sW}, 1")
            g.e(f"s_lshl_b32 s{sT2}, s{sT2}, 12")
            g.e(f"v_add_u32 v{vXA[0]}, s{sT2}, v{vXA[0]}")
        for s in range(1, 4):
            g.e(f"v_xor_b32 v{vXA[s]}, {s*32}, v{vXA[0]}")
        g.e(f"v_bfe_u32 v{vT}, v{vLane}, 2, 2")
        g.e(f"v_lshl_add_u32 v{vT2}, v{vHF}, 3, v{vT}")
        g.e(f"v_lshlrev_b32 v{vWA}, 8, v{vT2}")
        if G:
            g.e(f"s_and_b32 s{sT2}, s{sW}, 1")
            g.e(f"s_lshl_b32 s{sT2}, s{sT2}, 1")
            g.e(f"v_xor_b32 v{vT}, s{sT2}, v{vT}")
        else:
            g.e(f"v_xor_b32 v{vT}, s{sW}, v{vT}")
        g.e(f"v_lshl_add_u32 v{vWA}, v{vT}, 6, v{vWA}")
        g.e(f"v_bfe_u32 v{vT}, v{vLane}, 4, 1")
        g.e(f"v_lshl_add_u32 v{vWA}, v{vT}, 5, v{vWA}")
        g.e(f"v_and_b32 v{vT}, 3, v{vLane}")
        g.e(f"v_lshl_add_u32 v{vWA}, v{vT}, 3, v{vWA}")
        srd(g, SWS, 50, 51, 16 << 20)
        if o.get("tlb", 0):
            g.e(f"v_lshlrev_b32 v{vT}, {o['tlb']}, v{vLane}")
            g.vmem(f"buffer_load_dword v{TMP+3}, v{vT}, {sr(SWS)}, 0 offen")
        if not G:
            g.e(f"s_lshl_b32 s{sT0}, s{sCT}, 2")
            g.e(f"s_add_u32 s{sT0}, s{sT0}, s{sW}")
            g.e(f"s_mul_i32 s{sT0}, s{sT0}, {32*10240}")
            g.e(f"s_add_u32 s{sT0}, s{sT0}, {WS_WP}")
            g.e(f"v_add_u32 v{vST}, s{sT0}, v{vL16}")
        if role == "PL":
            g.e(f"v_lshlrev_b32 v{vWR}, 10, v{vHF}")
        NACC = 2 if G else NX
        vWAs2 = vST if G else vWRs
        def stage_addr(kc):
            sb = (kc % S) * STG
            for s in range(4):
                g.e(f"v_add_u32 v{vXAs[s]}, {sb}, v{vXA[s]}")
            g.e(f"v_add_u32 v{vWAs}, {sb + XB}, v{vWA}")
            if G: g.e(f"v_xor_b32 v{vWAs2}, 64, v{vWAs}")
            if role == "PL": g.e(f"v_sub_u32 v{vWAs2}, v{vWAs}, v{vWR}")
        def read_list(kc, s):
            p = (kc*4 + s) % 2
            L = []
            if G:
                L.append((f"ds_read_b128 {vr(XF+p*20)}, v{vXAs[s]}", 0))
                for cb in range(2):
                    for h in range(2):
                        L.append((f"ds_read_b64_tr_b16 {vr(WF+p*8+cb*4+h*2,2)}, v{vWAs if cb==0 else vWAs2} offset:{s*4096+h*1024}", cb))
            else:
                for h in range(2):
                    L.append((f"ds_read_b64_tr_b16 {vr(WF+p*8+h*2,2)}, v{vWAs} offset:{s*4096+h*1024}", 0))
                for b in range(NX):
                    L.append((f"ds_read_b128 {vr(XF+p*20+b*4)}, v{vXAs[s]} offset:{b*4096}", b))
                if role == "PL":
                    for h in range(2):
                        L.append((f"ds_read_b64_tr_b16 {vr(WF+p*8+4+h*2,2)}, v{vWAs2} offset:{s*4096+h*2048}", NX-1))
            return [(r, ("R", kc, s, b)) for r, b in L]
        def mfma_list(kc, s):
            p = (kc*4 + s) % 2
            first = kc == 0 and s == 0
            L = []
            for b in range(NACC):
                ac = vr(ACC+16*b, 16); c = "0" if first else ac
                if G: L.append(f"v_mfma_f32_32x32x16_bf16 {ac}, {vr(WF+p*8+b*4)}, {vr(XF+p*20)}, {c}")
                else: L.append(f"v_mfma_f32_32x32x16_bf16 {ac}, {vr(XF+p*20+b*4)}, {vr(WF+p*8)}, {c}")
            return L
        st()
        g.wait_vm([("D", 0)])
        g.e("s_barrier")
        st()
        stage_addr(0)
        for r, t in read_list(0, 0): g.lds(r, t)
        LPM = 3 if G else 2
        for kc in range(8):
            for s in range(4):
                if s < 3:
                    nxt = read_list(kc, s+1)
                else:
                    nxt = []
                    if kc < 7:
                        g.wait_lg([("R", kc, 3, b) for b in range(NACC)])
                        while any(c_ == kc+1 for c_, _ in ldq): assert ldnext()
                        g.wait_vm([("D", kc+1)])
                        if G and kc == 6: g.wait_vm([("XI",)])
                        g.e("s_barrier")
                        st()
                        freed[0] = kc + 1
                        stage_addr(kc+1)
                        nxt = read_list(kc+1, 0)
                mfl = mfma_list(kc, s)
                per = -(-len(nxt) // len(mfl))
                for mi, mf in enumerate(mfl):
                    g.wait_lg([("R", kc, s, b) for b in range(mi+1)])
                    g.e(mf)
                    for _ in range(per):
                        if nxt:
                            r, t = nxt.pop(0); g.lds(r, t)
                    for _ in range(LPM): ldnext()
                if role == "PL":
                    p = (kc*4 + s) % 2
                    g.e(f"s_mov_b32 s{sT2}, {((kc*4+s)*10+9)*1024}")
                    g.vmem(f"buffer_store_dwordx4 {vr(WF+p*8+4)}, v{vST}, {sr(SWS)}, s{sT2} offen{stf}")
            if kc == 4 and (G or fused):
                g.vmem(f"buffer_load_dword v{vNC}, v{vZ}, {sr(SDB)}, 0 offen sc1", ("NC",))
        assert not ldq
        st()
        if not G:
            g.e("s_nop 7")
            for b in range(NX):
                g.e(f"s_mul_i32 s{sT0}, s{sU}, 160")
                g.e(f"s_add_u32 s{sT0}, s{sT0}, {32*b}")
                g.e(f"s_lshr_b32 s{sT1}, s{sT0}, 9")
                g.e(f"s_and_b32 s{sT0}, s{sT0}, 511")
                g.e(f"s_lshr_b32 s{sT0}, s{sT0}, 4")
                g.e(f"s_mul_i32 s{sT0}, s{sT0}, 10")
                g.e(f"s_add_u32 s{sT0}, s{sT0}, s{sT1}")
                g.e(f"s_lshl_b32 s{sT0}, s{sT0}, 10")
                g.e(f"s_add_u32 s{sT1}, s{sT0}, 10240")
                for hh in range(2):
                    d = TMP + (b*2+hh)*4
                    for i in range(4):
                        g.e(f"v_cvt_pk_bf16_f32 v{d+i}, v{ACC+16*b+8*hh+2*i}, v{ACC+16*b+8*hh+2*i+1}")
                    g.vmem(f"buffer_store_dwordx4 {vr(d)}, v{vST}, {sr(SWS)}, s{sT0 if hh==0 else sT1} offen{stf}")
        else:
            XT = 6*STG
            XR = TMP
            g.e(f"s_lshr_b32 s{sT0}, s{sW}, 1")
            g.e(f"s_and_b32 s{sT1}, s{sW}, 1")
            g.e(f"s_lshl_b32 s{sT2}, s{sT0}, 13")
            g.e(f"s_add_u32 s{sT2}, s{sT2}, {XT}")
            g.e(f"v_and_b32 v{vT}, 15, v{vPX}")
            g.e(f"s_lshl_b32 s{sSOX}, s{sT1}, 3")
            g.e(f"v_xor_b32 v{vT}, s{sSOX}, v{vT}")
            g.e(f"v_lshlrev_b32 v{vT}, 4, v{vT}")
            g.e(f"v_lshl_add_u32 v{vT}, v{vPX}, 8, v{vT}")
            g.e(f"v_lshl_add_u32 v{vT}, v{vHF}, 3, v{vT}")
            g.e(f"v_add_u32 v{vT}, s{sT2}, v{vT}")
            for j in range(8):
                g.e(f"v_xor_b32 v{vT2}, {j*16}, v{vT}")
                g.lds(f"ds_read_b64 {vr(XR+2*j,2)}, v{vT2}", ("XR", j))
            g.e(f"s_lshl_b32 s{sT2}, s{sT0}, 15")
            g.e(f"s_add_u32 s{sT2}, s{sT2}, s{sXROW}")
            g.e(f"s_lshl_b32 s{sSOX}, s{sCT}, 13")
            g.e(f"s_add_u32 s{sT2}, s{sT2}, s{sSOX}")
            g.e(f"s_lshl_b32 s{sSOX}, s{sT1}, 12")
            g.e(f"s_add_u32 s{sT2}, s{sT2}, s{sSOX}")
            g.e(f"v_add_u32 v{vST}, s{sT2}, v{vL16}")
            vGA, vGO = vXAs[0], vXAs[1]
            g.e(f"s_lshl_b32 s{sSOX}, s{sU}, 1")
            g.e(f"s_add_u32 s{sSOX}, s{sSOX}, s{sT0}")
            g.e(f"s_lshl_b32 s{sSOX}, s{sSOX}, 12")
            g.e(f"s_add_u32 s{sSOX}, s{sSOX}, {WS_ST}")
            g.e(f"v_lshlrev_b32 v{vGO}, 4, v{vPX}")
            g.e(f"v_add_u32 v{vGO}, s{sSOX}, v{vGO}")
            g.e(f"v_lshl_add_u32 v{vGA}, v{vHF}, 11, v{vGO}")
            g.e(f"s_lshl_b32 s{sSOW}, s{sCT}, 1")
            g.e(f"s_add_u32 s{sSOW}, s{sSOW}, s{sT1}")
            g.e(f"s_lshl_b32 s{sSOW}, s{sSOW}, 9")
            S1, S2 = TMP+16, TMP+18
            S1b, S2b = TMP+20, TMP+21
            for j in range(8):
                g.wait_lg([("XR", j)])
                for i in range(2):
                    x = XR+2*j+i; a = ACC+4*j+2*i
                    g.e(f"v_lshlrev_b32 v{vT}, 16, v{x}")
                    g.e(f"v_and_b32 v{vT2}, 0xffff0000, v{x}")
                    g.e(f"v_add_f32 v{a}, v{a}, v{vT}")
                    g.e(f"v_add_f32 v{a+1}, v{a+1}, v{vT2}")
                    if j == 0 and i == 0:
                        g.e(f"v_mov_b32 v{S1}, v{a}")
                        g.e(f"v_mov_b32 v{S1b}, v{a+1}")
                        g.e(f"v_mul_f32 v{S2}, v{a}, v{a}")
                        g.e(f"v_mul_f32 v{S2b}, v{a+1}, v{a+1}")
                    else:
                        g.e(f"v_add_f32 v{S1}, v{S1}, v{a}")
                        g.e(f"v_add_f32 v{S1b}, v{S1b}, v{a+1}")
                        g.e(f"v_fmac_f32 v{S2}, v{a}, v{a}")
                        g.e(f"v_fmac_f32 v{S2b}, v{a+1}, v{a+1}")
            g.e(f"v_add_f32 v{S1}, v{S1}, v{S1b}")
            g.e(f"v_add_f32 v{S2}, v{S2}, v{S2b}")
            g.e(f"v_mov_b32 v{vT}, v{S1}")
            g.e(f"v_mov_b32 v{vT2}, v{S2}")
            g.e("s_nop 1")
            g.e(f"v_permlane32_swap_b32 v{S1}, v{vT}")
            g.e(f"v_permlane32_swap_b32 v{S2}, v{vT2}")
            g.e(f"v_add_f32 v{S1}, v{S1}, v{vT}")
            g.e(f"v_add_f32 v{S2}, v{S2}, v{vT2}")
            nonce_wait(role)
            g.e(f"v_mov_b32 v{S1+1}, v{vNC}")
            g.e(f"v_mov_b32 v{S2+1}, v{vNC}")
            g.e("s_mov_b64 exec, 0xffffffff")
            g.e(f"buffer_store_dwordx4 {vr(S1)}, v{vGO}, {sr(SWS)}, s{sSOW} offen sc1")
            g.e("s_mov_b64 exec, -1")
            st()
            E = TMP + 24
            g.e(f"s_mov_b32 s{sT1}, {WS_HI}")
            for j in range(16):
                g.e(f"v_cvt_pk_bf16_f32 v{XR+j}, v{ACC+2*j}, v{ACC+2*j+1}")
            g.e(f"s_mov_b32 s{sT2}, 0")
            g.label(f"{name}_poll")
            for e_ in range(4):
                g.e(f"buffer_load_dwordx4 {vr(E+4*e_)}, v{vGA}, {sr(SWS)}, 0 offen offset:{e_*512} sc1")
            g.e(f"s_add_u32 s{sT2}, s{sT2}, 1")
            g.e(f"s_cmp_gt_u32 s{sT2}, 100000")
            g.e(f"s_cbranch_scc1 {name}_pollx")
            g.e("s_waitcnt vmcnt(0)")
            g.e(f"v_xor_b32 v{vT}, v{E+1}, v{vNC}")
            for e_ in range(4):
                for o_ in (1, 3):
                    if e_ == 0 and o_ == 1: continue
                    g.e(f"v_xor_b32 v{vT2}, v{E+4*e_+o_}, v{vNC}")
                    g.e(f"v_or_b32 v{vT}, v{vT}, v{vT2}")
            g.e(f"v_cmp_ne_u32 vcc, 0, v{vT}")
            g.e("s_nop 4")
            g.e(f"s_cbranch_vccnz {name}_poll")
            g.label(f"{name}_pollx")
            g.e("s_waitcnt vmcnt(0)")
            st()
            for hh in range(4):
                g.e(f"buffer_store_dwordx4 {vr(XR+4*hh)}, v{vST}, {sr(SWS)}, s{sT1} offen offset:{hh*1024}{stf}")
            for e_ in range(1, 4):
                g.e(f"v_add_f32 v{E}, v{E}, v{E+4*e_}")
                g.e(f"v_add_f32 v{E+2}, v{E+2}, v{E+4*e_+2}")
            g.e(f"v_mov_b32 v{vT}, v{E}")
            g.e(f"v_mov_b32 v{vT2}, v{E+2}")
            g.e("s_nop 1")
            g.e(f"v_permlane32_swap_b32 v{E}, v{vT}")
            g.e(f"v_permlane32_swap_b32 v{E+2}, v{vT2}")
            g.e(f"v_add_f32 v{E}, v{E}, v{vT}")
            g.e(f"v_add_f32 v{E+2}, v{E+2}, v{vT2}")
            g.e(f"v_mul_f32 v{E}, {f2u(1/512):#x}, v{E}")
            g.e(f"v_mul_f32 v{E+2}, {f2u(1/512):#x}, v{E+2}")
            g.e(f"v_fma_f32 v{E+2}, -v{E}, v{E}, v{E+2}")
            g.e(f"v_max_f32 v{E+2}, 0, v{E+2}")
            g.e(f"v_add_f32 v{E+2}, {f2u(1e-5):#x}, v{E+2}")
            A_, B_, A2, B2 = E+4, E+5, E+6, E+7
            g.e(f"v_rsq_f32 v{A_}, v{E+2}")
            g.e("s_nop 0")
            g.e(f"v_mul_f32 v{B_}, v{E}, v{A_}")
            g.e(f"v_sub_f32 v{B_}, 0, v{B_}")
            g.e(f"v_mul_f32 v{A2}, {f2u(-LOG2E):#x}, v{A_}")
            g.e(f"v_mul_f32 v{B2}, {f2u(-LOG2E):#x}, v{B_}")
            Y = E + 8
            for hh in range(4):
                a = ACC + 8*hh
                for i in range(8): g.e(f"v_fma_f32 v{Y+i}, v{a+i}, v{A2}, v{B2}")
                for i in range(8): g.e(f"v_exp_f32 v{Y+i}, v{Y+i}")
                for i in range(8): g.e(f"v_fma_f32 v{a+i}, v{a+i}, v{A_}, v{B_}")
                for i in range(8): g.e(f"v_add_f32 v{Y+i}, 1.0, v{Y+i}")
                for i in range(8): g.e(f"v_rcp_f32 v{Y+i}, v{Y+i}")
                g.e("s_nop 0")
                for i in range(8): g.e(f"v_mul_f32 v{a+i}, v{a+i}, v{Y+i}")
                d = Y + 8 + hh*4
                for i in range(4): g.e(f"v_cvt_pk_bf16_f32 v{d+i}, v{a+2*i}, v{a+2*i+1}")
                g.e(f"buffer_store_dwordx4 {vr(d)}, v{vST}, {sr(SWS)}, 0 offen offset:{hh*1024}{stf}")
        if fused:
            while st.on and st.n < 15: st()
            if not G: nonce_wait(role)
            if G:
                g.e(f"s_lshr_b32 s{sT0}, s{sU}, 1")
                g.e(f"s_and_b32 s{sT1}, s{sU}, 1")
                g.e(f"s_lshl_b32 s{sT2}, s{sT1}, 1")
                g.e(f"s_add_u32 s{sT2}, s{sT2}, s{sT0}")
                g.e(f"s_sub_u32 s{sT2}, s{sT2}, 1")
                g.e(f"s_lshl_b32 s{sSOX}, s{sT0}, 12")
                g.e(f"s_add_u32 s{sSOW}, s{sT1}, 1")
                g.e(f"s_lshl_b32 s{sSOW}, s{sSOW}, 4")
                g.e(f"s_add_u32 s{sSOX}, s{sSOX}, s{sSOW}")
                g.e(f"s_lshl_b32 s{sSOW}, s{sT2}, 12")
                g.e(f"s_cmp_eq_u32 s{sT1}, 0")
                g.e(f"s_cselect_b32 s{sT1}, 48, 0")
                g.e(f"s_add_u32 s{sSOW}, s{sSOW}, s{sT1}")
                g.e(f"s_lshr_b32 s{sT2}, s{sT2}, 3")
                g.e(f"s_lshr_b32 s{sT0}, s{sT0}, 3")
                g.e(f"s_cmp_eq_u32 s{sT2}, s{sT0}")
                g.e(f"s_cselect_b32 s{sSOW}, s{sSOW}, s{sSOX}")
                g.e(f"v_and_b32 v{vT}, 15, v{vLane}")
                g.e(f"v_lshlrev_b32 v{vT}, 8, v{vT}")
                g.e(f"v_mov_b32 v{vT2}, s{sSOW}")
                g.e(f"v_mov_b32 v{vPX}, s{sSOX}")
                g.e(f"v_cmp_gt_u32 vcc, 16, v{vLane}")
                g.e("s_nop 1")
                g.e(f"v_cndmask_b32 v{vT2}, v{vT2}, v{vPX}, vcc")
                g.e(f"v_add_u32 v{vT}, v{vT}, v{vT2}")
                g.e(f"s_lshl_b32 s{sT0}, s{sCT}, 2")
                g.e(f"s_add_u32 s{sT0}, s{sT0}, {WS_MB}")
            else:
                g.e(f"v_lshrrev_b32 v{vT}, 2, v{vLane}")
                g.e(f"v_lshlrev_b32 v{vT}, 12, v{vT}")
                g.e(f"v_and_b32 v{vT2}, 3, v{vLane}")
                g.e(f"v_lshl_add_u32 v{vT}, v{vT2}, 8, v{vT}")
                g.e(f"s_lshl_b32 s{sT0}, s{sCT}, 10")
                g.e(f"s_lshl_b32 s{sT1}, s{sU}, 2")
                g.e(f"s_add_u32 s{sT0}, s{sT0}, s{sT1}")
                g.e(f"s_add_u32 s{sT0}, s{sT0}, {WS_MB + 64}")
            g.e("s_waitcnt vmcnt(0)")
            g.e("s_barrier")
            g.e(f"s_cmp_lg_u32 s{sW}, 0")
            g.e(f"s_cbranch_scc1 {name}_ph2")
            if G: g.e("s_mov_b64 exec, 0xffffffff")
            g.e(f"buffer_store_dword v{vNC}, v{vT}, {sr(SWS)}, s{sT0} offen sc1")
            if G: g.e("s_mov_b64 exec, -1")
            g.e(f"s_branch {name}_ph2")
        else:
            st.finish(16)
            g.e("s_endpgm")
    if fused:
        g.e("s_waitcnt lgkmcnt(0)")
        srd(g, SDB, 48, 49, 256)
        g.e("s_sleep 32")
        g.vmem(f"buffer_load_dword v{vNC}, v{vZ}, {sr(SDB)}, 0 offen sc1", ("NC",))
        nonce_wait("I")
        g.e(f"s_branch {name}_ph2")
    else:
        g.e(f"s_branch {name}_end")
    body("G"); body("P"); body("PL")

def phase2(g, name, st, fused, o):
    NST, PRE, EVERY = o.get("NST", 3), o.get("PRE", 20), o.get("EVERY", 2)
    lf = " sc1" if fused else ""
    SA, SWP, SX, SO, SDB = 12, 16, 20, 24, 28
    C4K, C8K, C2M, C2M4K = 33, 34, 42, 43
    sMT, sNT, sB, sT0, sT1, sR0, sBASE = 35, 36, 37, 38, 39, 97, 96
    vLane, vT, vW, vMR, vML, vO, vT2 = 1, 2, 3, 4, 5, 6, 7
    vH = [8+j for j in range(6)]
    vXF = 16
    HB = 24
    HIB = HB + NST*24
    T0 = HIB + NST*16
    T2 = T0 + 24
    VEND = T2 + 24
    assert VEND <= 256
    ACC, WB = 0, 64
    AEND = WB + NST*40
    g.vm = []; g.lg = []
    if fused:
        g.label(f"{name}_ph2")
        if st.on: st.n = 15
        st()
    g.e(f"s_and_b32 s{sT0}, s2, 7")
    g.e(f"s_lshr_b32 s{sT1}, s2, 3")
    g.e(f"s_and_b32 s{sB}, s{sT0}, 1")
    g.e(f"s_lshr_b32 s{sT0}, s{sT0}, 1")
    g.e(f"s_and_b32 s{sMT}, s{sT1}, 7")
    g.e(f"s_lshr_b32 s{sT1}, s{sT1}, 3")
    g.e(f"s_lshl_b32 s{sNT}, s{sT0}, 2")
    g.e(f"s_add_u32 s{sNT}, s{sNT}, s{sT1}")
    g.e(f"s_movk_i32 s{C4K}, 0x1000")
    g.e(f"s_movk_i32 s{C8K}, 0x2000")
    g.e(f"s_mov_b32 s{C2M}, 0x200000")
    g.e(f"s_mov_b32 s{C2M4K}, 0x201000")
    g.e(f"s_lshl_b32 s{sT0}, s{sB}, 5")
    g.e(f"s_lshl_b32 s{sT1}, s{sMT}, 2")
    g.e(f"s_add_u32 s{sR0}, s{sT0}, s{sT1}")
    g.e(f"s_lshl_b32 s{sBASE}, s{sR0}, 15")
    g.e(f"s_lshl_b32 s{sT0}, s{sW}, 13")
    g.e(f"s_add_u32 s{sBASE}, s{sBASE}, s{sT0}")
    g.e(f"v_lshlrev_b32 v{vT}, 4, v{vLane}")
    for j in range(1, 5):
        g.e(f"s_add_u32 s{sT0}, s{sBASE}, {(j-1)*32768}")
        g.e(f"v_add_u32 v{vH[j]}, s{sT0}, v{vT}")
    g.e(f"s_sub_u32 s{sT0}, s{sBASE}, 32768")
    g.e(f"s_cmp_eq_u32 s{sMT}, 0")
    g.e(f"s_cselect_b32 s{sT0}, 0x40000000, s{sT0}")
    g.e(f"v_add_u32 v{vH[0]}, s{sT0}, v{vT}")
    g.e(f"s_add_u32 s{sT0}, s{sBASE}, {4*32768}")
    g.e(f"s_cmp_eq_u32 s{sMT}, 7")
    g.e(f"s_cselect_b32 s{sT0}, 0x40000000, s{sT0}")
    g.e(f"v_add_u32 v{vH[5]}, s{sT0}, v{vT}")
    g.e(f"s_lshl_b32 s{sT0}, s{sNT}, 5")
    g.e(f"s_lshl_b32 s{sT1}, s{sW}, 3")
    g.e(f"s_add_u32 s{sT0}, s{sT0}, s{sT1}")
    g.e(f"s_mul_i32 s{sT0}, s{sT0}, 10240")
    g.e(f"v_add_u32 v{vW}, s{sT0}, v{vT}")
    if not fused:
        g.e("s_waitcnt lgkmcnt(0)")
        st()
    srd(g, SA, 50, 51, 4 << 20)
    srd(g, SWP, 50, 51, WP_BYTES, add=WS_WP)
    srd(g, SX, 40, 41, 2 << 20)
    srd(g, SO, 46, 47, 2 << 20)
    g.e(f"s_add_u32 s{sT0}, s{sR0}, s{sW}")
    g.e(f"s_lshl_b32 s{sT0}, s{sT0}, 15")
    g.e(f"s_lshl_b32 s{sT1}, s{sNT}, 6")
    g.e(f"s_add_u32 s{sT0}, s{sT0}, s{sT1}")
    g.e(f"v_lshrrev_b32 v{vO}, 2, v{vLane}")
    g.e(f"v_lshlrev_b32 v{vO}, 10, v{vO}")
    g.e(f"v_and_b32 v{vT2}, 3, v{vLane}")
    g.e(f"v_lshlrev_b32 v{vT2}, 4, v{vT2}")
    g.e(f"v_add3_u32 v{vO}, v{vO}, v{vT2}, s{sT0}")
    g.e(f"s_movk_i32 s{sT1}, 0x4000")
    xfl = " nt" if o.get("nt", 1) else ""
    if fused:
        g.vmem(f"buffer_load_dwordx4 {vr(vXF)}, v{vO}, {sr(SX)}, 0 offen{xfl}", ("XF", 0))
        g.vmem(f"buffer_load_dwordx4 {vr(vXF+4)}, v{vO}, {sr(SX)}, s{sT1} offen{xfl}", ("XF", 1))
    g.e(f"v_and_b32 v{vT}, 31, v{vLane}")
    g.e(f"v_cmp_ne_u32 vcc, 0, v{vT}")
    g.e("s_nop 1")
    g.e(f"v_cndmask_b32 v{vMR}, 0, -1, vcc")
    g.e(f"v_cmp_ne_u32 vcc, 31, v{vT}")
    g.e("s_nop 1")
    g.e(f"v_cndmask_b32 v{vML}, 0, -1, vcc")
    if fused:
        g.e(f"s_cmp_lg_u32 s{sW}, 0")
        g.e(f"s_cbranch_scc1 {name}_fw")
        srd(g, SDB, 50, 51, 16 << 20)
        vF, vG = HB, HB+1
        g.e(f"s_mov_b32 s{sT0}, -1")
        g.e(f"s_cmp_eq_u32 s{sMT}, 0")
        g.e(f"s_cselect_b32 s{sT0}, 0xfffffff0, s{sT0}")
        g.e(f"s_cmp_eq_u32 s{sMT}, 7")
        g.e(f"s_cselect_b32 s94, 0xffff0fff, s{sT0}")
        g.e(f"s_movk_i32 s95, 0x1fff")
        g.e(f"s_lshr_b32 s{sT0}, s{sR0}, 2")
        g.e(f"s_lshl_b32 s{sT0}, s{sT0}, 4")
        g.e(f"s_add_u32 s{sT0}, s{sT0}, s{sNT}")
        g.e(f"s_lshl_b32 s{sT0}, s{sT0}, 8")
        g.e(f"s_add_u32 s{sT0}, s{sT0}, {WS_MB}")
        g.e(f"v_lshlrev_b32 v{vF}, 2, v{vLane}")
        g.e(f"v_add_u32 v{vF}, s{sT0}, v{vF}")
        g.e(f"s_mov_b32 s{sT0}, 0")
        g.label(f"{name}_fpoll")
        g.e(f"buffer_load_dword v{vG}, v{vF}, {sr(SDB)}, 0 offen sc1")
        g.e(f"s_add_u32 s{sT0}, s{sT0}, 1")
        g.e(f"s_cmp_gt_u32 s{sT0}, 200000")
        g.e(f"s_cbranch_scc1 {name}_fw")
        g.e("s_waitcnt vmcnt(0)")
        g.e(f"v_cmp_ne_u32 vcc, s3, v{vG}")
        g.e("s_nop 4")
        g.e("s_and_b64 vcc, vcc, s[94:95]")
        g.e(f"s_cbranch_scc1 {name}_fpoll")
        g.label(f"{name}_fw")
        g.e("s_barrier")
        st()

    def Hreg(s_, j): return HB + s_*24 + j*4
    def HIreg(s_, r): return HIB + s_*16 + r*4
    def Wreg(s_, t): return WB + s_*40 + t*4
    def stage_loads(k):
        s_ = k % NST
        so_h = "0" if k < 4 else f"s{C4K}"
        so_hi = f"s{C2M}" if k < 4 else f"s{C2M4K}"
        io = (k % 4) * 1024
        def ldH(j): return (f"buffer_load_dwordx4 {vr(Hreg(s_,j))}, v{vH[j]}, {sr(SA)}, {so_h} offen offset:{io}{lf}", ("H", k, j))
        def ldHI(r): return (f"buffer_load_dwordx4 {vr(HIreg(s_,r))}, v{vH[r+1]}, {sr(SA)}, {so_hi} offen offset:{io}{lf}", ("HI", k, r))
        def ldW(t):
            so = ["0", f"s{C4K}", f"s{C8K}"][t // 4]
            return (f"buffer_load_dwordx4 {ar(Wreg(s_,t))}, v{vW}, {sr(SWP)}, {so} offen offset:{(t%4)*1024}{lf}", ("W", k, t))
        L = [ldW(1), ldH(0), ldH(1), ldH(2), ldH(3), ldW(4), ldH(4), ldW(7), ldH(5), ldW(9)]
        L += [ldHI(r) for r in range(4)]
        L += [ldW(0), ldW(3), ldW(6), ldW(2), ldW(5), ldW(8)]
        L.append(("BUMP", None))
        return L
    queue = []
    for k in range(8):
        for it in stage_loads(k): queue.append((k, it))
        if k == 3 and not fused:
            queue.append((k, (f"buffer_load_dwordx4 {vr(vXF)}, v{vO}, {sr(SX)}, 0 offen{xfl}", ("XF", 0))))
            queue.append((k, (f"buffer_load_dwordx4 {vr(vXF+4)}, v{vO}, {sr(SX)}, s{sT1} offen{xfl}", ("XF", 1))))
    def issue(item):
        s, tok = item
        if s == "BUMP": g.e(f"v_add_u32 v{vW}, 10240, v{vW}")
        else: g.vmem(s, tok)
    def issue_next(cur_k):
        if not queue: return False
        k, it = queue[0]
        if k - NST >= cur_k or len(g.vm) >= 62: return False
        queue.pop(0); issue(it)
        if queue and queue[0][1][0] == "BUMP": issue(queue.pop(0)[1])
        return True
    for _ in range(PRE): issue_next(0)
    for k in range(8):
        s_ = k % NST
        g.c(f"---- k-step {k}")
        if not fused or k in (1,): st()
        dpp0 = [(j, i) for j in range(6) for i in range(4)]
        dpp2 = list(dpp0)
        mf = []
        for di in range(3):
            for r in range(4): mf.append((r, ("W", k, di*3+1), Wreg(s_, di*3+1), [("H", k, r+di)], Hreg(s_, r+di), "A"))
        for r in range(4): mf.append((r, ("W", k, 9), Wreg(s_, 9), [("HI", k, r)], HIreg(s_, r), "B"))
        for di in range(3):
            for r in range(4): mf.append((r, ("W", k, di*3+0), Wreg(s_, di*3), [], T0 + (r+di)*4, "C"))
        for di in range(3):
            for r in range(4): mf.append((r, ("W", k, di*3+2), Wreg(s_, di*3+2), [], T2 + (r+di)*4, "D"))
        for n, (r, wt, wreg, ht, hreg, grp) in enumerate(mf):
            for tok in [wt] + ht:
                while any(it[1] == tok for _, it in queue): assert issue_next(k)
            g.wait_vm([wt] + ht)
            c = "0" if (k == 0 and n < 4) else ar(ACC+16*r, 16)
            g.e(f"v_mfma_f32_32x32x16_bf16 {ar(ACC+16*r,16)}, {ar(wreg)}, {vr(hreg)}, {c}")
            if grp in "AB" and n >= 2:
                for _ in range(2):
                    if dpp0:
                        j, i = dpp0.pop(0)
                        while any(it[1] == ("H", k, j) for _, it in queue): assert issue_next(k)
                        g.wait_vm([("H", k, j)])
                        g.e(f"v_and_b32_dpp v{T0+j*4+i}, v{Hreg(s_,j)+i}, v{vMR} wave_shr:1 row_mask:0xf bank_mask:0xf bound_ctrl:0")
            if grp == "C":
                for _ in range(3):
                    if dpp2:
                        j, i = dpp2.pop(0)
                        g.e(f"v_and_b32_dpp v{T2+j*4+i}, v{Hreg(s_,j)+i}, v{vML} wave_shl:1 row_mask:0xf bank_mask:0xf bound_ctrl:0")
            if n % EVERY == EVERY - 1: issue_next(k)
        assert not dpp0 and not dpp2
    assert not queue
    g.c("---- epilogue")
    st()
    vA = HB
    g.e(f"v_lshlrev_b32 v{vA}, 4, v{vLane}")
    g.e(f"s_lshl_b32 s{sT0}, s{sW}, 12")
    g.e(f"v_add_u32 v{vA}, s{sT0}, v{vA}")
    g.e(f"v_and_b32 v{vA+1}, 3, v{vLane}")
    g.e(f"v_lshlrev_b32 v{vA+1}, 10, v{vA+1}")
    g.e(f"v_lshrrev_b32 v{vA+2}, 2, v{vLane}")
    g.e(f"v_lshl_add_u32 v{vA+1}, v{vA+2}, 4, v{vA+1}")
    g.e(f"s_lshl_b32 s{sT0}, s{sW}, 14")
    g.e(f"v_add_u32 v{vA+1}, s{sT0}, v{vA+1}")
    g.e("s_nop 4")
    for r in range(4):
        for q in range(4):
            g.e(f"ds_write_b128 v{vA}, {ar(ACC+16*r+4*q)} offset:{r*16384 + q*1024}")
    g.e("s_waitcnt lgkmcnt(0)")
    g.e("s_barrier")
    R = vA + 8
    for i in range(2):
        for src in range(4):
            for hf in range(2):
                g.lds(f"ds_read_b128 {vr(R + ((i*4+src)*2+hf)*4)}, v{vA+1} offset:{src*4096 + hf*512 + i*256}", ("R", i, src))
    g.wait_vm([("XF", 0), ("XF", 1)])
    for i in range(2):
        base = R + i*32
        g.wait_lg([("R", i, 1)])
        for e_ in range(8): g.e(f"v_add_f32 v{base+e_}, v{base+e_}, v{base+8+e_}")
        g.wait_lg([("R", i, 3)])
        for e_ in range(8): g.e(f"v_add_f32 v{base+16+e_}, v{base+16+e_}, v{base+24+e_}")
        for e_ in range(4):
            x = vXF + 4*i + e_
            g.e(f"v_lshlrev_b32 v{vA+2}, 16, v{x}")
            g.e(f"v_and_b32 v{vA+3}, 0xffff0000, v{x}")
            g.e(f"v_add_f32 v{base+2*e_}, v{base+2*e_}, v{vA+2}")
            g.e(f"v_add_f32 v{base+2*e_+1}, v{base+2*e_+1}, v{vA+3}")
        for e_ in range(8): g.e(f"v_add_f32 v{base+e_}, v{base+e_}, v{base+16+e_}")
        for e_ in range(4): g.e(f"v_cvt_pk_bf16_f32 v{vXF+4*i+e_}, v{base+2*e_}, v{base+2*e_+1}")
        g.vmem(f"buffer_store_dwordx4 {vr(vXF+4*i)}, v{vO}, {sr(SO)}, {'0' if i==0 else 's%d'%sT1} offen{o.get('ostf','')}")
    st.finish(st.n + 2)
    return AEND

def gen_all(out, o):
    fused = o.get("fused", 1)
    if fused:
        name = "standalone__controlnet__diffusion_kernel" if o.get("single", 0) else "fused_kernel"
        g = Gen(); st = Stamper(g, o.get("st", 0))
        entry(g, name, st)
        phase1(g, name, st, True, o)
        aend = phase2(g, name, st, True, o)
        g.label(f"{name}_end"); g.e("s_endpgm")
        build([(name, g.text(), kd(name, 256 + max(aend, 144), 256, 100), 256, 256, 160*1024)], out)
    else:
        g = Gen(); st = Stamper(g, o.get("st", 0) == 1)
        entry(g, "prep_kernel", st); phase1(g, "prep_kernel", st, False, o)
        g.label("prep_kernel_end"); g.e("s_endpgm")
        g2 = Gen(); st2 = Stamper(g2, o.get("st", 0) == 2)
        entry(g2, "conv_kernel", st2); aend = phase2(g2, "conv_kernel", st2, False, o)
        g2.label("conv_kernel_end"); g2.e("s_endpgm")
        build([("prep_kernel", g.text(), kd("prep_kernel", 256+144, 256, 100), 256, 256, 160*1024),
               ("conv_kernel", g2.text(), kd("conv_kernel", 256+aend, 256, 100), 256, 256, 65536)], out)

if __name__ == "__main__":
    o = {}
    for a in sys.argv[2:]:
        k, v = a.split("=")
        o[k] = int(v) if v.lstrip("-").isdigit() else " " + v.replace("+", " ")
    gen_all(sys.argv[1], o)
```

```python
import sys, struct
from gen import Gen, vr, ar, sr, srd, kd, build, WS_H, WS_HI, WS_WP, WS_ST, WP_BYTES

LOG2E = 1.4426950408889634
def f2u(x): return struct.unpack("<I", struct.pack("<f", x))[0]

sW = 32
WS_MB = 11 << 20

class Stamper:
    def __init__(self, g, on): self.g, self.on, self.n = g, on, 0
    def __call__(self):
        if self.on:
            assert self.n < 21
            self.g.e(f"s_memtime s[{52+2*self.n}:{53+2*self.n}]"); self.n += 1
    def start(self):
        if self.on:
            self(); self.g.e("s_memrealtime s[98:99]")
    def finish(self, total):
        if not self.on: return
        g = self.g
        while self.n < total - 1: self()
        g.e("s_waitcnt vmcnt(0)")
        self()
        n = self.n
        g.e(f"s_memrealtime s[{52+2*n}:{53+2*n}]")
        g.e("s_waitcnt lgkmcnt(0)")
        g.e(f"s_sub_u32 s{52+2*n}, s{52+2*n}, s98")
        g.e(f"s_add_u32 s{52+2*n}, s{52+2*n}, s52")
        srd(g, 20, 50, 51, 16 << 20)
        g.e(f"s_lshl_b32 s35, s2, 2")
        g.e(f"s_add_u32 s35, s35, s{sW}")
        g.e(f"s_lshl_b32 s35, s35, 7")
        g.e(f"s_add_u32 s35, s35, {12 << 20}")
        g.e(f"v_mov_b32 v2, s35")
        for i in range(n + 1):
            g.e(f"v_mov_b32 v3, s{52+2*i}")
            g.e(f"buffer_store_dword v3, v2, s[20:23], 0 offen offset:{4*i}")
        g.e(f"v_mov_b32 v3, s98")
        g.e(f"buffer_store_dword v3, v2, s[20:23], 0 offen offset:{4*(n+1)}")

DT = [False]
def dt(g, i, neg=False):
    if not DT[0]: return
    lab = f"dt_{len(g.lines)}"
    g.e(f"s_cmp_lg_u32 s{sW}, 0")
    g.e(f"s_cbranch_scc1 {lab}")
    g.e("s_memrealtime s[90:91]")
    g.e("s_mov_b32 s84, s48")
    g.e("s_and_b32 s85, s49, 0xffff")
    g.e("s_movk_i32 s86, 0x100")
    g.e("s_mov_b32 s87, 0x00020000")
    g.e("s_waitcnt lgkmcnt(0)")
    if neg: g.e("s_not_b32 s90, s90")
    g.e("v_mov_b32 v250, s90")
    g.e(f"v_mov_b32 v251, {4*i}")
    g.e("s_mov_b64 exec, 1")
    g.e("buffer_atomic_umax v250, v251, s[84:87], 0 offen")
    g.e("s_mov_b64 exec, -1")
    g.label(lab)

def entry(g, name, st):
    g.raw(f".globl {name}\n.p2align 8\n.type {name},@function\n{name}:")
    g.e("s_cmp_ge_u32 s2, 256")
    g.e(f"s_cbranch_scc1 {name}_end")
    st.start()
    g.e("s_load_dwordx8 s[4:11], s[0:1], 8")
    g.e("s_load_dwordx8 s[44:51], s[0:1], 40")
    g.e("s_load_dwordx2 s[40:41], s[0:1], 0")
    g.e(f"v_and_b32 v1, 63, v0")
    g.e(f"v_lshrrev_b32 v2, 6, v0")
    g.e("s_nop 0")
    g.e(f"v_readfirstlane_b32 s{sW}, v2")

def phase1(g, name, st, fused, o):
    stf = o.get("stf", " sc1") if fused else o.get("stf", "")
    ldf = " nt" if o.get("nt", 1) else ""
    SX, SWT, SWS, SXI, SDB = 12, 16, 20, 24, 28
    sCT, sU, sT0, sT1, sT2, sXROW, sM0X = 33, 34, 35, 36, 37, 38, 39
    sSOX, sSOW, sNONCE = 42, 43, 3
    vLane, vT, vT2, vXD, vWD, vWA, vPX, vHF, vL16 = 1, 2, 3, 4, 5, 6, 7, 8, 9
    vXA = [10, 11, 12, 13]; vXAs = [14, 15, 16, 17]
    vWAs, vST, vWR, vNC, vZ, vWRs = 18, 19, 20, 21, 22, 23
    XF, WF, ACC, TMP = 24, 64, 80, 160
    g.e(f"s_and_b32 s{sT0}, s2, 7")
    g.e(f"s_lshr_b32 s{sT1}, s2, 3")
    g.e(f"s_and_b32 s{sCT}, s{sT1}, 3")
    g.e(f"s_lshr_b32 s{sT1}, s{sT1}, 2")
    g.e(f"s_and_b32 s{sU}, s{sT0}, 3")
    g.e(f"s_lshl_b32 s{sU}, s{sU}, 3")
    g.e(f"s_add_u32 s{sU}, s{sU}, s{sT1}")
    g.e(f"v_lshrrev_b32 v{vT}, 3, v{vLane}")
    g.e(f"s_lshl_b32 s{sT2}, s{sW}, 3")
    g.e(f"v_add_u32 v{vXD}, s{sT2}, v{vT}")
    g.e(f"v_lshrrev_b32 v{vT}, 1, v{vXD}")
    g.e(f"v_and_b32 v{vT}, 7, v{vT}")
    g.e(f"v_and_b32 v{vT2}, 7, v{vLane}")
    g.e(f"v_xor_b32 v{vT}, v{vT}, v{vT2}")
    g.e(f"v_lshlrev_b32 v{vT}, 4, v{vT}")
    g.e(f"v_lshl_add_u32 v{vXD}, v{vXD}, 10, v{vT}")
    g.e(f"v_lshrrev_b32 v{vT}, 4, v{vLane}")
    g.e(f"v_lshlrev_b32 v{vT2}, 2, v{vT}")
    g.e(f"v_and_b32 v{vWD}, 15, v{vLane}")
    g.e(f"v_xor_b32 v{vWD}, v{vWD}, v{vT2}")
    g.e(f"v_lshlrev_b32 v{vWD}, 4, v{vWD}")
    g.e(f"s_lshl_b32 s{sT2}, s{sW}, 2")
    g.e(f"v_add_u32 v{vT}, s{sT2}, v{vT}")
    g.e(f"v_lshl_add_u32 v{vWD}, v{vT}, 10, v{vWD}")
    g.e(f"s_lshl_b32 s{sT2}, s{sCT}, 8")
    g.e(f"v_add_u32 v{vWD}, s{sT2}, v{vWD}")
    g.e(f"s_lshl_b32 s{sM0X}, s{sW}, 10")
    g.e(f"v_mov_b32 v{vZ}, 0")
    g.e(f"s_cmp_lt_u32 s{sT0}, 4")
    g.e(f"s_cbranch_scc1 {name}_G")
    g.e(f"s_cmp_lt_u32 s{sU}, 28")
    g.e(f"s_cbranch_scc1 {name}_P")
    g.e(f"s_cmp_eq_u32 s{sU}, 28")
    g.e(f"s_cbranch_scc1 {name}_PL")
    st_n0 = st.n
    IDLE = True

    def nonce_wait(role):
        g.wait_vm([("NC",)])
        g.e(f"s_mov_b32 s{sT2}, 0")
        g.label(f"{name}_ncpoll{role}")
        g.e(f"v_readfirstlane_b32 s{sNONCE}, v{vNC}")
        g.e(f"s_add_u32 s{sT2}, s{sT2}, 1")
        g.e(f"s_cmp_gt_u32 s{sT2}, 100000")
        g.e(f"s_cbranch_scc1 {name}_ncok{role}")
        g.e(f"s_cmp_lg_u32 s{sNONCE}, 0")
        g.e(f"s_cbranch_scc1 {name}_ncok{role}")
        g.e("s_sleep 4")
        g.e(f"buffer_load_dword v{vNC}, v{vZ}, {sr(SDB)}, 0 offen sc1")
        g.e("s_waitcnt vmcnt(0)")
        g.e(f"s_branch {name}_ncpoll{role}")
        g.label(f"{name}_ncok{role}")

    def body(role):
        G = role == "G"
        NX = {"G": 2, "P": 5, "PL": 4}[role]
        S = {"G": 6, "P": 4, "PL": 4}[role]
        XB = NX * 4096
        STG = XB + 16384
        NI = NX + 4
        PRE1 = o.get("PRE1", 2)
        g.vm = []; g.lg = []
        st.n = st_n0
        g.label(f"{name}_{role}")
        if G: g.e(f"s_lshl_b32 s{sXROW}, s{sU}, 16")
        else: g.e(f"s_mul_i32 s{sXROW}, s{sU}, {160*1024}")
        vPFX, vPFW = vXAs[0], vXAs[1]
        if G:
            g.e(f"v_lshrrev_b32 v{vT}, 2, v{vLane}")
            g.e(f"v_and_b32 v{vT2}, 3, v{vLane}")
            g.e(f"v_lshlrev_b32 v{vT2}, 6, v{vT2}")
            g.e(f"v_lshl_add_u32 v{vPFX}, v{vT}, 10, v{vT2}")
            g.e(f"s_lshl_b32 s{sT2}, s{sW}, 14")
        else:
            g.e(f"v_lshrrev_b32 v{vT}, 1, v{vLane}")
            g.e(f"v_and_b32 v{vT2}, 1, v{vLane}")
            g.e(f"v_lshlrev_b32 v{vT2}, 7, v{vT2}")
            g.e(f"v_lshl_add_u32 v{vPFX}, v{vT}, 10, v{vT2}")
            g.e(f"s_mul_i32 s{sT2}, s{sW}, {40*1024}")
        g.e(f"s_add_u32 s{sT2}, s{sT2}, s{sXROW}")
        g.e(f"s_lshl_b32 s{sT0}, s{sCT}, 8")
        g.e(f"s_add_u32 s{sT2}, s{sT2}, s{sT0}")
        g.e(f"v_add_u32 v{vPFX}, s{sT2}, v{vPFX}")
        g.e(f"s_lshr_b32 s{sT0}, s2, 3")
        g.e(f"s_lshl_b32 s{sT0}, s{sT0}, 14")
        g.e(f"s_lshl_b32 s{sT2}, s{sW}, 12")
        g.e(f"s_add_u32 s{sT0}, s{sT0}, s{sT2}")
        g.e(f"v_lshlrev_b32 v{vPFW}, 6, v{vLane}")
        g.e(f"v_add_u32 v{vPFW}, s{sT0}, v{vPFW}")
        g.e("s_waitcnt lgkmcnt(0)")
        st()
        dt(g, 1, True); dt(g, 2)
        if G:
            srd(g, SX, 6, 7, 2 << 20); srd(g, SWT, 8, 9, 512 << 10)
        else:
            srd(g, SX, 44, 45, 4608*1024); srd(g, SWT, 10, 11, 512 << 10)
        srd(g, SDB, 48, 49, 256)
        def ld1(kc, m):
            sb = (kc % S) * STG
            isx = m < NX
            mm = m if isx else m - NX
            g.e(f"s_add_u32 m0, s{sM0X}, {sb + m*4096}")
            if isx: g.e(f"s_add_u32 s{sSOX}, s{sXROW}, {mm*32768 + kc*128}")
            else:   g.e(f"s_mov_b32 s{sSOW}, {(kc*64 + 16*mm)*1024}")
            va, sd, so = (vXD, SX, sSOX) if isx else (vWD, SWT, sSOW)
            g.vmem(f"buffer_load_dwordx4 v{va}, {sr(sd)}, s{so} offen{ldf} lds", ("D", kc))
        if G:
            g.e(f"s_or_b32 s{sT0}, s2, s{sW}")
            g.e(f"s_cmp_lg_u32 s{sT0}, 0")
            g.e(f"s_cbranch_scc1 {name}_nn")
            g.e("s_memrealtime s[96:97]")
            g.e("s_waitcnt lgkmcnt(0)")
            g.e(f"s_or_b32 s96, s96, 1")
            g.e(f"v_mov_b32 v{vT}, s96")
            g.e(f"buffer_store_dword v{vT}, v{vZ}, {sr(SDB)}, 0 offen sc1")
            g.label(f"{name}_nn")
        def prefetch():
            if not o.get("pf", 1): return
            g.vmem(f"buffer_load_dword v{TMP}, v{vPFX}, {sr(SX)}, 0 offen{ldf}")
            if not G:
                g.e(f"s_mov_b32 s{sSOX}, 0x8000")
                g.vmem(f"buffer_load_dword v{TMP+1}, v{vPFX}, {sr(SX)}, s{sSOX} offen{ldf}")
            g.vmem(f"buffer_load_dword v{TMP+2}, v{vPFW}, {sr(SWT)}, 0 offen{ldf}")
        if o.get("pf", 1) == 2: prefetch()
        for m in range(NI): ld1(0, m)
        if o.get("pf", 1) == 1: prefetch()
        for kc in range(1, PRE1):
            for m in range(NI): ld1(kc, m)
        ldq = [(kc, m) for kc in range(PRE1, 8) for m in range(NI)]
        if G:
            srd(g, SXI, 4, 5, 2 << 20)
            g.e(f"v_lshrrev_b32 v{vT}, 4, v{vLane}")
            g.e(f"s_lshl_b32 s{sT2}, s{sW}, 2")
            g.e(f"v_add_u32 v{vT}, s{sT2}, v{vT}")
            g.e(f"v_and_b32 v{vT2}, 15, v{vLane}")
            g.e(f"v_xor_b32 v{vT2}, v{vT2}, v{vT}")
            g.e(f"v_lshlrev_b32 v{vT2}, 4, v{vT2}")
            g.e(f"v_lshl_add_u32 v{vT}, v{vT}, 10, v{vT2}")
            g.e(f"s_lshl_b32 s{sT2}, s{sCT}, 8")
            g.e(f"v_add_u32 v{vWR}, s{sT2}, v{vT}")
            k6 = [i for i, (kc, m) in enumerate(ldq) if kc >= S][0]
            ldq[k6:k6] = [("X", m) for m in range(4)]
        freed = [0]
        def ldnext():
            if not ldq: return False
            kc, m = ldq[0]
            if kc == "X":
                ldq.pop(0)
                g.e(f"s_add_u32 m0, s{sM0X}, {6*STG + m*4096}")
                g.e(f"s_add_u32 s{sSOX}, s{sXROW}, {m*16384}")
                g.vmem(f"buffer_load_dwordx4 v{vWR}, {sr(SXI)}, s{sSOX} offen{ldf} lds", ("XI",))
                return True
            if kc - S >= freed[0]: return False
            ldq.pop(0); ld1(kc, m); return True
        g.e(f"v_and_b32 v{vPX}, 31, v{vLane}")
        g.e(f"v_lshrrev_b32 v{vHF}, 5, v{vLane}")
        g.e(f"v_lshlrev_b32 v{vL16}, 4, v{vLane}")
        g.e(f"v_lshrrev_b32 v{vT}, 1, v{vPX}")
        g.e(f"v_and_b32 v{vT}, 7, v{vT}")
        g.e(f"v_xor_b32 v{vT}, v{vT}, v{vHF}")
        g.e(f"v_lshlrev_b32 v{vT}, 4, v{vT}")
        g.e(f"v_lshl_add_u32 v{vXA[0]}, v{vPX}, 7, v{vT}")
        if G:
            g.e(f"s_lshr_b32 s{sT2}, s{sW}, 1")
            g.e(f"s_lshl_b32 s{sT2}, s{sT2}, 12")
            g.e(f"v_add_u32 v{vXA[0]}, s{sT2}, v{vXA[0]}")
        for s in range(1, 4):
            g.e(f"v_xor_b32 v{vXA[s]}, {s*32}, v{vXA[0]}")
        g.e(f"v_bfe_u32 v{vT}, v{vLane}, 2, 2")
        g.e(f"v_lshl_add_u32 v{vT2}, v{vHF}, 3, v{vT}")
        g.e(f"v_lshlrev_b32 v{vWA}, 8, v{vT2}")
        if G:
            g.e(f"s_and_b32 s{sT2}, s{sW}, 1")
            g.e(f"s_lshl_b32 s{sT2}, s{sT2}, 1")
            g.e(f"v_xor_b32 v{vT}, s{sT2}, v{vT}")
        else:
            g.e(f"v_xor_b32 v{vT}, s{sW}, v{vT}")
        g.e(f"v_lshl_add_u32 v{vWA}, v{vT}, 6, v{vWA}")
        g.e(f"v_bfe_u32 v{vT}, v{vLane}, 4, 1")
        g.e(f"v_lshl_add_u32 v{vWA}, v{vT}, 5, v{vWA}")
        g.e(f"v_and_b32 v{vT}, 3, v{vLane}")
        g.e(f"v_lshl_add_u32 v{vWA}, v{vT}, 3, v{vWA}")
        srd(g, SWS, 50, 51, 16 << 20)
        if o.get("tlb", 0):
            g.e(f"v_lshlrev_b32 v{vT}, {o['tlb']}, v{vLane}")
            g.vmem(f"buffer_load_dword v{TMP+3}, v{vT}, {sr(SWS)}, 0 offen")
        if not G:
            g.e(f"s_lshl_b32 s{sT0}, s{sCT}, 2")
            g.e(f"s_add_u32 s{sT0}, s{sT0}, s{sW}")
            g.e(f"s_mul_i32 s{sT0}, s{sT0}, {32*10240}")
            g.e(f"s_add_u32 s{sT0}, s{sT0}, {WS_WP}")
            g.e(f"v_add_u32 v{vST}, s{sT0}, v{vL16}")
        if role == "PL":
            g.e(f"v_lshlrev_b32 v{vWR}, 10, v{vHF}")
        NACC = 2 if G else NX
        vWAs2 = vST if G else vWRs
        def stage_addr(kc):
            sb = (kc % S) * STG
            for s in range(4):
                g.e(f"v_add_u32 v{vXAs[s]}, {sb}, v{vXA[s]}")
            g.e(f"v_add_u32 v{vWAs}, {sb + XB}, v{vWA}")
            if G: g.e(f"v_xor_b32 v{vWAs2}, 64, v{vWAs}")
            if role == "PL": g.e(f"v_sub_u32 v{vWAs2}, v{vWAs}, v{vWR}")
        def read_list(kc, s):
            p = (kc*4 + s) % 2
            L = []
            if G:
                L.append((f"ds_read_b128 {vr(XF+p*20)}, v{vXAs[s]}", 0))
                for cb in range(2):
                    for h in range(2):
                        L.append((f"ds_read_b64_tr_b16 {vr(WF+p*8+cb*4+h*2,2)}, v{vWAs if cb==0 else vWAs2} offset:{s*4096+h*1024}", cb))
            else:
                for h in range(2):
                    L.append((f"ds_read_b64_tr_b16 {vr(WF+p*8+h*2,2)}, v{vWAs} offset:{s*4096+h*1024}", 0))
                for b in range(NX):
                    L.append((f"ds_read_b128 {vr(XF+p*20+b*4)}, v{vXAs[s]} offset:{b*4096}", b))
                if role == "PL":
                    for h in range(2):
                        L.append((f"ds_read_b64_tr_b16 {vr(WF+p*8+4+h*2,2)}, v{vWAs2} offset:{s*4096+h*2048}", NX-1))
            return [(r, ("R", kc, s, b)) for r, b in L]
        def mfma_list(kc, s):
            p = (kc*4 + s) % 2
            first = kc == 0 and s == 0
            L = []
            for b in range(NACC):
                ac = vr(ACC+16*b, 16); c = "0" if first else ac
                if G: L.append(f"v_mfma_f32_32x32x16_bf16 {ac}, {vr(WF+p*8+b*4)}, {vr(XF+p*20)}, {c}")
                else: L.append(f"v_mfma_f32_32x32x16_bf16 {ac}, {vr(XF+p*20+b*4)}, {vr(WF+p*8)}, {c}")
            return L
        st()
        g.wait_vm([("D", 0)])
        g.e("s_barrier")
        st()
        stage_addr(0)
        for r, t in read_list(0, 0): g.lds(r, t)
        LPM = 3 if G else 2
        for kc in range(8):
            for s in range(4):
                if s < 3:
                    nxt = read_list(kc, s+1)
                else:
                    nxt = []
                    if kc < 7:
                        g.wait_lg([("R", kc, 3, b) for b in range(NACC)])
                        while any(c_ == kc+1 for c_, _ in ldq): assert ldnext()
                        g.wait_vm([("D", kc+1)])
                        if G and kc == 6: g.wait_vm([("XI",)])
                        g.e("s_barrier")
                        st()
                        freed[0] = kc + 1
                        stage_addr(kc+1)
                        nxt = read_list(kc+1, 0)
                mfl = mfma_list(kc, s)
                per = -(-len(nxt) // len(mfl))
                for mi, mf in enumerate(mfl):
                    g.wait_lg([("R", kc, s, b) for b in range(mi+1)])
                    g.e(mf)
                    for _ in range(per):
                        if nxt:
                            r, t = nxt.pop(0); g.lds(r, t)
                    for _ in range(LPM): ldnext()
                if role == "PL":
                    p = (kc*4 + s) % 2
                    g.e(f"s_mov_b32 s{sT2}, {((kc*4+s)*10+9)*1024}")
                    g.vmem(f"buffer_store_dwordx4 {vr(WF+p*8+4)}, v{vST}, {sr(SWS)}, s{sT2} offen{stf}")
            if kc == 4 and (G or fused):
                g.vmem(f"buffer_load_dword v{vNC}, v{vZ}, {sr(SDB)}, 0 offen sc1", ("NC",))
        assert not ldq
        st()
        dt(g, 3 if G else 4)
        if not G:
            g.e("s_nop 7")
            for b in range(NX):
                g.e(f"s_mul_i32 s{sT0}, s{sU}, 160")
                g.e(f"s_add_u32 s{sT0}, s{sT0}, {32*b}")
                g.e(f"s_lshr_b32 s{sT1}, s{sT0}, 9")
                g.e(f"s_and_b32 s{sT0}, s{sT0}, 511")
                g.e(f"s_lshr_b32 s{sT0}, s{sT0}, 4")
                g.e(f"s_mul_i32 s{sT0}, s{sT0}, 10")
                g.e(f"s_add_u32 s{sT0}, s{sT0}, s{sT1}")
                g.e(f"s_lshl_b32 s{sT0}, s{sT0}, 10")
                g.e(f"s_add_u32 s{sT1}, s{sT0}, 10240")
                for hh in range(2):
                    d = TMP + (b*2+hh)*4
                    for i in range(4):
                        g.e(f"v_cvt_pk_bf16_f32 v{d+i}, v{ACC+16*b+8*hh+2*i}, v{ACC+16*b+8*hh+2*i+1}")
                    g.vmem(f"buffer_store_dwordx4 {vr(d)}, v{vST}, {sr(SWS)}, s{sT0 if hh==0 else sT1} offen{stf}")
        else:
            XT = 6*STG
            XR = TMP
            g.e(f"s_lshr_b32 s{sT0}, s{sW}, 1")
            g.e(f"s_and_b32 s{sT1}, s{sW}, 1")
            g.e(f"s_lshl_b32 s{sT2}, s{sT0}, 13")
            g.e(f"s_add_u32 s{sT2}, s{sT2}, {XT}")
            g.e(f"v_and_b32 v{vT}, 15, v{vPX}")
            g.e(f"s_lshl_b32 s{sSOX}, s{sT1}, 3")
            g.e(f"v_xor_b32 v{vT}, s{sSOX}, v{vT}")
            g.e(f"v_lshlrev_b32 v{vT}, 4, v{vT}")
            g.e(f"v_lshl_add_u32 v{vT}, v{vPX}, 8, v{vT}")
            g.e(f"v_lshl_add_u32 v{vT}, v{vHF}, 3, v{vT}")
            g.e(f"v_add_u32 v{vT}, s{sT2}, v{vT}")
            for j in range(8):
                g.e(f"v_xor_b32 v{vT2}, {j*16}, v{vT}")
                g.lds(f"ds_read_b64 {vr(XR+2*j,2)}, v{vT2}", ("XR", j))
            g.e(f"s_lshl_b32 s{sT2}, s{sT0}, 15")
            g.e(f"s_add_u32 s{sT2}, s{sT2}, s{sXROW}")
            g.e(f"s_lshl_b32 s{sSOX}, s{sCT}, 13")
            g.e(f"s_add_u32 s{sT2}, s{sT2}, s{sSOX}")
            g.e(f"s_lshl_b32 s{sSOX}, s{sT1}, 12")
            g.e(f"s_add_u32 s{sT2}, s{sT2}, s{sSOX}")
            g.e(f"v_add_u32 v{vST}, s{sT2}, v{vL16}")
            vGA, vGO = vXAs[0], vXAs[1]
            g.e(f"s_lshl_b32 s{sSOX}, s{sU}, 1")
            g.e(f"s_add_u32 s{sSOX}, s{sSOX}, s{sT0}")
            g.e(f"s_lshl_b32 s{sSOX}, s{sSOX}, 12")
            g.e(f"s_add_u32 s{sSOX}, s{sSOX}, {WS_ST}")
            g.e(f"v_lshlrev_b32 v{vGO}, 4, v{vPX}")
            g.e(f"v_add_u32 v{vGO}, s{sSOX}, v{vGO}")
            g.e(f"v_lshl_add_u32 v{vGA}, v{vHF}, 11, v{vGO}")
            g.e(f"s_lshl_b32 s{sSOW}, s{sCT}, 1")
            g.e(f"s_add_u32 s{sSOW}, s{sSOW}, s{sT1}")
            g.e(f"s_lshl_b32 s{sSOW}, s{sSOW}, 9")
            S1, S2 = TMP+16, TMP+18
            S1b, S2b = TMP+20, TMP+21
            for j in range(8):
                g.wait_lg([("XR", j)])
                for i in range(2):
                    x = XR+2*j+i; a = ACC+4*j+2*i
                    g.e(f"v_lshlrev_b32 v{vT}, 16, v{x}")
                    g.e(f"v_and_b32 v{vT2}, 0xffff0000, v{x}")
                    g.e(f"v_add_f32 v{a}, v{a}, v{vT}")
                    g.e(f"v_add_f32 v{a+1}, v{a+1}, v{vT2}")
                    if j == 0 and i == 0:
                        g.e(f"v_mov_b32 v{S1}, v{a}")
                        g.e(f"v_mov_b32 v{S1b}, v{a+1}")
                        g.e(f"v_mul_f32 v{S2}, v{a}, v{a}")
                        g.e(f"v_mul_f32 v{S2b}, v{a+1}, v{a+1}")
                    else:
                        g.e(f"v_add_f32 v{S1}, v{S1}, v{a}")
                        g.e(f"v_add_f32 v{S1b}, v{S1b}, v{a+1}")
                        g.e(f"v_fmac_f32 v{S2}, v{a}, v{a}")
                        g.e(f"v_fmac_f32 v{S2b}, v{a+1}, v{a+1}")
            g.e(f"v_add_f32 v{S1}, v{S1}, v{S1b}")
            g.e(f"v_add_f32 v{S2}, v{S2}, v{S2b}")
            g.e(f"v_mov_b32 v{vT}, v{S1}")
            g.e(f"v_mov_b32 v{vT2}, v{S2}")
            g.e("s_nop 1")
            g.e(f"v_permlane32_swap_b32 v{S1}, v{vT}")
            g.e(f"v_permlane32_swap_b32 v{S2}, v{vT2}")
            g.e(f"v_add_f32 v{S1}, v{S1}, v{vT}")
            g.e(f"v_add_f32 v{S2}, v{S2}, v{vT2}")
            nonce_wait(role)
            g.e(f"v_mov_b32 v{S1+1}, v{vNC}")
            g.e(f"v_mov_b32 v{S2+1}, v{vNC}")
            g.e("s_mov_b64 exec, 0xffffffff")
            g.e(f"buffer_store_dwordx4 {vr(S1)}, v{vGO}, {sr(SWS)}, s{sSOW} offen sc1")
            g.e("s_mov_b64 exec, -1")
            st()
            E = TMP + 24
            g.e(f"s_mov_b32 s{sT1}, {WS_HI}")
            for j in range(16):
                g.e(f"v_cvt_pk_bf16_f32 v{XR+j}, v{ACC+2*j}, v{ACC+2*j+1}")
            g.e(f"s_mov_b32 s{sT2}, 0")
            g.label(f"{name}_poll")
            for e_ in range(4):
                g.e(f"buffer_load_dwordx4 {vr(E+4*e_)}, v{vGA}, {sr(SWS)}, 0 offen offset:{e_*512} sc1")
            g.e(f"s_add_u32 s{sT2}, s{sT2}, 1")
            g.e(f"s_cmp_gt_u32 s{sT2}, 100000")
            g.e(f"s_cbranch_scc1 {name}_pollx")
            g.e("s_waitcnt vmcnt(0)")
            g.e(f"v_xor_b32 v{vT}, v{E+1}, v{vNC}")
            for e_ in range(4):
                for o_ in (1, 3):
                    if e_ == 0 and o_ == 1: continue
                    g.e(f"v_xor_b32 v{vT2}, v{E+4*e_+o_}, v{vNC}")
                    g.e(f"v_or_b32 v{vT}, v{vT}, v{vT2}")
            g.e(f"v_cmp_ne_u32 vcc, 0, v{vT}")
            g.e("s_nop 4")
            g.e(f"s_cbranch_vccnz {name}_poll")
            g.label(f"{name}_pollx")
            g.e("s_waitcnt vmcnt(0)")
            st()
            for hh in range(4):
                g.e(f"buffer_store_dwordx4 {vr(XR+4*hh)}, v{vST}, {sr(SWS)}, s{sT1} offen offset:{hh*1024}{stf}")
            for e_ in range(1, 4):
                g.e(f"v_add_f32 v{E}, v{E}, v{E+4*e_}")
                g.e(f"v_add_f32 v{E+2}, v{E+2}, v{E+4*e_+2}")
            g.e(f"v_mov_b32 v{vT}, v{E}")
            g.e(f"v_mov_b32 v{vT2}, v{E+2}")
            g.e("s_nop 1")
            g.e(f"v_permlane32_swap_b32 v{E}, v{vT}")
            g.e(f"v_permlane32_swap_b32 v{E+2}, v{vT2}")
            g.e(f"v_add_f32 v{E}, v{E}, v{vT}")
            g.e(f"v_add_f32 v{E+2}, v{E+2}, v{vT2}")
            g.e(f"v_mul_f32 v{E}, {f2u(1/512):#x}, v{E}")
            g.e(f"v_mul_f32 v{E+2}, {f2u(1/512):#x}, v{E+2}")
            g.e(f"v_fma_f32 v{E+2}, -v{E}, v{E}, v{E+2}")
            g.e(f"v_max_f32 v{E+2}, 0, v{E+2}")
            g.e(f"v_add_f32 v{E+2}, {f2u(1e-5):#x}, v{E+2}")
            A_, B_, A2, B2 = E+4, E+5, E+6, E+7
            g.e(f"v_rsq_f32 v{A_}, v{E+2}")
            g.e("s_nop 0")
            g.e(f"v_mul_f32 v{B_}, v{E}, v{A_}")
            g.e(f"v_sub_f32 v{B_}, 0, v{B_}")
            g.e(f"v_mul_f32 v{A2}, {f2u(-LOG2E):#x}, v{A_}")
            g.e(f"v_mul_f32 v{B2}, {f2u(-LOG2E):#x}, v{B_}")
            Y = E + 8
            for hh in range(4):
                a = ACC + 8*hh
                for i in range(8): g.e(f"v_fma_f32 v{Y+i}, v{a+i}, v{A2}, v{B2}")
                for i in range(8): g.e(f"v_exp_f32 v{Y+i}, v{Y+i}")
                for i in range(8): g.e(f"v_fma_f32 v{a+i}, v{a+i}, v{A_}, v{B_}")
                for i in range(8): g.e(f"v_add_f32 v{Y+i}, 1.0, v{Y+i}")
                for i in range(8): g.e(f"v_rcp_f32 v{Y+i}, v{Y+i}")
                g.e("s_nop 0")
                for i in range(8): g.e(f"v_mul_f32 v{a+i}, v{a+i}, v{Y+i}")
                d = Y + 8 + hh*4
                for i in range(4): g.e(f"v_cvt_pk_bf16_f32 v{d+i}, v{a+2*i}, v{a+2*i+1}")
                g.e(f"buffer_store_dwordx4 {vr(d)}, v{vST}, {sr(SWS)}, 0 offen offset:{hh*1024}{stf}")
        if fused:
            while st.on and st.n < 15: st()
            if not G: nonce_wait(role)
            if G:
                g.e(f"s_lshr_b32 s{sT0}, s{sU}, 1")
                g.e(f"s_and_b32 s{sT1}, s{sU}, 1")
                g.e(f"s_lshl_b32 s{sT2}, s{sT1}, 1")
                g.e(f"s_add_u32 s{sT2}, s{sT2}, s{sT0}")
                g.e(f"s_sub_u32 s{sT2}, s{sT2}, 1")
                g.e(f"s_lshl_b32 s{sSOX}, s{sT0}, 12")
                g.e(f"s_add_u32 s{sSOW}, s{sT1}, 1")
                g.e(f"s_lshl_b32 s{sSOW}, s{sSOW}, 4")
                g.e(f"s_add_u32 s{sSOX}, s{sSOX}, s{sSOW}")
                g.e(f"s_lshl_b32 s{sSOW}, s{sT2}, 12")
                g.e(f"s_cmp_eq_u32 s{sT1}, 0")
                g.e(f"s_cselect_b32 s{sT1}, 48, 0")
                g.e(f"s_add_u32 s{sSOW}, s{sSOW}, s{sT1}")
                g.e(f"s_lshr_b32 s{sT2}, s{sT2}, 3")
                g.e(f"s_lshr_b32 s{sT0}, s{sT0}, 3")
                g.e(f"s_cmp_eq_u32 s{sT2}, s{sT0}")
                g.e(f"s_cselect_b32 s{sSOW}, s{sSOW}, s{sSOX}")
                g.e(f"v_and_b32 v{vT}, 15, v{vLane}")
                g.e(f"v_lshlrev_b32 v{vT}, 8, v{vT}")
                g.e(f"v_mov_b32 v{vT2}, s{sSOW}")
                g.e(f"v_mov_b32 v{vPX}, s{sSOX}")
                g.e(f"v_cmp_gt_u32 vcc, 16, v{vLane}")
                g.e("s_nop 1")
                g.e(f"v_cndmask_b32 v{vT2}, v{vT2}, v{vPX}, vcc")
                g.e(f"v_add_u32 v{vT}, v{vT}, v{vT2}")
                g.e(f"s_lshl_b32 s{sT0}, s{sCT}, 2")
                g.e(f"s_add_u32 s{sT0}, s{sT0}, {WS_MB}")
            else:
                g.e(f"v_lshrrev_b32 v{vT}, 2, v{vLane}")
                g.e(f"v_lshlrev_b32 v{vT}, 12, v{vT}")
                g.e(f"v_and_b32 v{vT2}, 3, v{vLane}")
                g.e(f"v_lshl_add_u32 v{vT}, v{vT2}, 8, v{vT}")
                g.e(f"s_lshl_b32 s{sT0}, s{sCT}, 10")
                g.e(f"s_lshl_b32 s{sT1}, s{sU}, 2")
                g.e(f"s_add_u32 s{sT0}, s{sT0}, s{sT1}")
                g.e(f"s_add_u32 s{sT0}, s{sT0}, {WS_MB + 64}")
            dt(g, 5 if G else 6)
            g.e("s_waitcnt vmcnt(0)")
            g.e("s_barrier")
            dt(g, 7 if G else 8)
            g.e(f"s_cmp_lg_u32 s{sW}, 0")
            g.e(f"s_cbranch_scc1 {name}_ph2")
            if G: g.e("s_mov_b64 exec, 0xffffffff")
            g.e(f"buffer_store_dword v{vNC}, v{vT}, {sr(SWS)}, s{sT0} offen sc1")
            if G: g.e("s_mov_b64 exec, -1")
            g.e(f"s_branch {name}_ph2")
        else:
            st.finish(16)
            g.e("s_endpgm")
    if fused:
        g.e("s_waitcnt lgkmcnt(0)")
        srd(g, SDB, 48, 49, 256)
        g.e("s_sleep 32")
        g.vmem(f"buffer_load_dword v{vNC}, v{vZ}, {sr(SDB)}, 0 offen sc1", ("NC",))
        nonce_wait("I")
        g.e(f"s_branch {name}_ph2")
    else:
        g.e(f"s_branch {name}_end")
    body("G"); body("P"); body("PL")

def phase2(g, name, st, fused, o):
    NST, PRE, EVERY = o.get("NST", 3), o.get("PRE", 20), o.get("EVERY", 2)
    lf = " sc1" if fused else ""
    SA, SWP, SX, SO, SDB = 12, 16, 20, 24, 28
    C4K, C8K, C2M, C2M4K = 33, 34, 42, 43
    sMT, sNT, sB, sT0, sT1, sR0, sBASE = 35, 36, 37, 38, 39, 97, 96
    vLane, vT, vW, vMR, vML, vO, vT2 = 1, 2, 3, 4, 5, 6, 7
    vH = [8+j for j in range(6)]
    vXF = 16
    HB = 24
    HIB = HB + NST*24
    T0 = HIB + NST*16
    T2 = T0 + 24
    VEND = T2 + 24
    assert VEND <= 256
    ACC, WB = 0, 64
    AEND = WB + NST*40
    g.vm = []; g.lg = []
    if fused:
        g.label(f"{name}_ph2")
        if st.on: st.n = 15
        st()
    g.e(f"s_and_b32 s{sT0}, s2, 7")
    g.e(f"s_lshr_b32 s{sT1}, s2, 3")
    g.e(f"s_and_b32 s{sB}, s{sT0}, 1")
    g.e(f"s_lshr_b32 s{sT0}, s{sT0}, 1")
    g.e(f"s_and_b32 s{sMT}, s{sT1}, 7")
    g.e(f"s_lshr_b32 s{sT1}, s{sT1}, 3")
    g.e(f"s_lshl_b32 s{sNT}, s{sT0}, 2")
    g.e(f"s_add_u32 s{sNT}, s{sNT}, s{sT1}")
    g.e(f"s_movk_i32 s{C4K}, 0x1000")
    g.e(f"s_movk_i32 s{C8K}, 0x2000")
    g.e(f"s_mov_b32 s{C2M}, 0x200000")
    g.e(f"s_mov_b32 s{C2M4K}, 0x201000")
    g.e(f"s_lshl_b32 s{sT0}, s{sB}, 5")
    g.e(f"s_lshl_b32 s{sT1}, s{sMT}, 2")
    g.e(f"s_add_u32 s{sR0}, s{sT0}, s{sT1}")
    g.e(f"s_lshl_b32 s{sBASE}, s{sR0}, 15")
    g.e(f"s_lshl_b32 s{sT0}, s{sW}, 13")
    g.e(f"s_add_u32 s{sBASE}, s{sBASE}, s{sT0}")
    g.e(f"v_lshlrev_b32 v{vT}, 4, v{vLane}")
    for j in range(1, 5):
        g.e(f"s_add_u32 s{sT0}, s{sBASE}, {(j-1)*32768}")
        g.e(f"v_add_u32 v{vH[j]}, s{sT0}, v{vT}")
    g.e(f"s_sub_u32 s{sT0}, s{sBASE}, 32768")
    g.e(f"s_cmp_eq_u32 s{sMT}, 0")
    g.e(f"s_cselect_b32 s{sT0}, 0x40000000, s{sT0}")
    g.e(f"v_add_u32 v{vH[0]}, s{sT0}, v{vT}")
    g.e(f"s_add_u32 s{sT0}, s{sBASE}, {4*32768}")
    g.e(f"s_cmp_eq_u32 s{sMT}, 7")
    g.e(f"s_cselect_b32 s{sT0}, 0x40000000, s{sT0}")
    g.e(f"v_add_u32 v{vH[5]}, s{sT0}, v{vT}")
    g.e(f"s_lshl_b32 s{sT0}, s{sNT}, 5")
    g.e(f"s_lshl_b32 s{sT1}, s{sW}, 3")
    g.e(f"s_add_u32 s{sT0}, s{sT0}, s{sT1}")
    g.e(f"s_mul_i32 s{sT0}, s{sT0}, 10240")
    g.e(f"v_add_u32 v{vW}, s{sT0}, v{vT}")
    if not fused:
        g.e("s_waitcnt lgkmcnt(0)")
        st()
    srd(g, SA, 50, 51, 4 << 20)
    srd(g, SWP, 50, 51, WP_BYTES, add=WS_WP)
    srd(g, SX, 40, 41, 2 << 20)
    srd(g, SO, 46, 47, 2 << 20)
    g.e(f"s_add_u32 s{sT0}, s{sR0}, s{sW}")
    g.e(f"s_lshl_b32 s{sT0}, s{sT0}, 15")
    g.e(f"s_lshl_b32 s{sT1}, s{sNT}, 6")
    g.e(f"s_add_u32 s{sT0}, s{sT0}, s{sT1}")
    g.e(f"v_lshrrev_b32 v{vO}, 2, v{vLane}")
    g.e(f"v_lshlrev_b32 v{vO}, 10, v{vO}")
    g.e(f"v_and_b32 v{vT2}, 3, v{vLane}")
    g.e(f"v_lshlrev_b32 v{vT2}, 4, v{vT2}")
    g.e(f"v_add3_u32 v{vO}, v{vO}, v{vT2}, s{sT0}")
    g.e(f"s_movk_i32 s{sT1}, 0x4000")
    xfl = " nt" if o.get("nt", 1) else ""
    if fused:
        g.vmem(f"buffer_load_dwordx4 {vr(vXF)}, v{vO}, {sr(SX)}, 0 offen{xfl}", ("XF", 0))
        g.vmem(f"buffer_load_dwordx4 {vr(vXF+4)}, v{vO}, {sr(SX)}, s{sT1} offen{xfl}", ("XF", 1))
    g.e(f"v_and_b32 v{vT}, 31, v{vLane}")
    g.e(f"v_cmp_ne_u32 vcc, 0, v{vT}")
    g.e("s_nop 1")
    g.e(f"v_cndmask_b32 v{vMR}, 0, -1, vcc")
    g.e(f"v_cmp_ne_u32 vcc, 31, v{vT}")
    g.e("s_nop 1")
    g.e(f"v_cndmask_b32 v{vML}, 0, -1, vcc")
    if fused:
        g.e(f"s_cmp_lg_u32 s{sW}, 0")
        g.e(f"s_cbranch_scc1 {name}_fw")
        srd(g, SDB, 50, 51, 16 << 20)
        vF, vG = HB, HB+1
        g.e(f"s_mov_b32 s{sT0}, -1")
        g.e(f"s_cmp_eq_u32 s{sMT}, 0")
        g.e(f"s_cselect_b32 s{sT0}, 0xfffffff0, s{sT0}")
        g.e(f"s_cmp_eq_u32 s{sMT}, 7")
        g.e(f"s_cselect_b32 s94, 0xffff0fff, s{sT0}")
        g.e(f"s_movk_i32 s95, 0x1fff")
        g.e(f"s_lshr_b32 s{sT0}, s{sR0}, 2")
        g.e(f"s_lshl_b32 s{sT0}, s{sT0}, 4")
        g.e(f"s_add_u32 s{sT0}, s{sT0}, s{sNT}")
        g.e(f"s_lshl_b32 s{sT0}, s{sT0}, 8")
        g.e(f"s_add_u32 s{sT0}, s{sT0}, {WS_MB}")
        g.e(f"v_lshlrev_b32 v{vF}, 2, v{vLane}")
        g.e(f"v_add_u32 v{vF}, s{sT0}, v{vF}")
        g.e(f"s_mov_b32 s{sT0}, 0")
        g.label(f"{name}_fpoll")
        g.e(f"buffer_load_dword v{vG}, v{vF}, {sr(SDB)}, 0 offen sc1")
        g.e(f"s_add_u32 s{sT0}, s{sT0}, 1")
        g.e(f"s_cmp_gt_u32 s{sT0}, 200000")
        g.e(f"s_cbranch_scc1 {name}_fw")
        g.e("s_waitcnt vmcnt(0)")
        g.e(f"v_cmp_ne_u32 vcc, s3, v{vG}")
        g.e("s_nop 4")
        g.e("s_and_b64 vcc, vcc, s[94:95]")
        g.e(f"s_cbranch_scc1 {name}_fpoll")
        g.label(f"{name}_fw")
        g.e("s_barrier")
        st()
        dt(g, 9); dt(g, 10, True)

    def Hreg(s_, j): return HB + s_*24 + j*4
    def HIreg(s_, r): return HIB + s_*16 + r*4
    def Wreg(s_, t): return WB + s_*40 + t*4
    def stage_loads(k):
        s_ = k % NST
        so_h = "0" if k < 4 else f"s{C4K}"
        so_hi = f"s{C2M}" if k < 4 else f"s{C2M4K}"
        io = (k % 4) * 1024
        def ldH(j): return (f"buffer_load_dwordx4 {vr(Hreg(s_,j))}, v{vH[j]}, {sr(SA)}, {so_h} offen offset:{io}{lf}", ("H", k, j))
        def ldHI(r): return (f"buffer_load_dwordx4 {vr(HIreg(s_,r))}, v{vH[r+1]}, {sr(SA)}, {so_hi} offen offset:{io}{lf}", ("HI", k, r))
        def ldW(t):
            so = ["0", f"s{C4K}", f"s{C8K}"][t // 4]
            return (f"buffer_load_dwordx4 {ar(Wreg(s_,t))}, v{vW}, {sr(SWP)}, {so} offen offset:{(t%4)*1024}{lf}", ("W", k, t))
        L = [ldW(1), ldH(0), ldH(1), ldH(2), ldH(3), ldW(4), ldH(4), ldW(7), ldH(5), ldW(9)]
        L += [ldHI(r) for r in range(4)]
        L += [ldW(0), ldW(3), ldW(6), ldW(2), ldW(5), ldW(8)]
        L.append(("BUMP", None))
        return L
    queue = []
    for k in range(8):
        for it in stage_loads(k): queue.append((k, it))
        if k == 3 and not fused:
            queue.append((k, (f"buffer_load_dwordx4 {vr(vXF)}, v{vO}, {sr(SX)}, 0 offen{xfl}", ("XF", 0))))
            queue.append((k, (f"buffer_load_dwordx4 {vr(vXF+4)}, v{vO}, {sr(SX)}, s{sT1} offen{xfl}", ("XF", 1))))
    def issue(item):
        s, tok = item
        if s == "BUMP": g.e(f"v_add_u32 v{vW}, 10240, v{vW}")
        else: g.vmem(s, tok)
    def issue_next(cur_k):
        if not queue: return False
        k, it = queue[0]
        if k - NST >= cur_k or len(g.vm) >= 62: return False
        queue.pop(0); issue(it)
        if queue and queue[0][1][0] == "BUMP": issue(queue.pop(0)[1])
        return True
    for _ in range(PRE): issue_next(0)
    for k in range(8):
        s_ = k % NST
        g.c(f"---- k-step {k}")
        if not fused or k in (1,): st()
        dpp0 = [(j, i) for j in range(6) for i in range(4)]
        dpp2 = list(dpp0)
        mf = []
        for di in range(3):
            for r in range(4): mf.append((r, ("W", k, di*3+1), Wreg(s_, di*3+1), [("H", k, r+di)], Hreg(s_, r+di), "A"))
        for r in range(4): mf.append((r, ("W", k, 9), Wreg(s_, 9), [("HI", k, r)], HIreg(s_, r), "B"))
        for di in range(3):
            for r in range(4): mf.append((r, ("W", k, di*3+0), Wreg(s_, di*3), [], T0 + (r+di)*4, "C"))
        for di in range(3):
            for r in range(4): mf.append((r, ("W", k, di*3+2), Wreg(s_, di*3+2), [], T2 + (r+di)*4, "D"))
        for n, (r, wt, wreg, ht, hreg, grp) in enumerate(mf):
            for tok in [wt] + ht:
                while any(it[1] == tok for _, it in queue): assert issue_next(k)
            g.wait_vm([wt] + ht)
            c = "0" if (k == 0 and n < 4) else ar(ACC+16*r, 16)
            g.e(f"v_mfma_f32_32x32x16_bf16 {ar(ACC+16*r,16)}, {ar(wreg)}, {vr(hreg)}, {c}")
            if grp in "AB" and n >= 2:
                for _ in range(2):
                    if dpp0:
                        j, i = dpp0.pop(0)
                        while any(it[1] == ("H", k, j) for _, it in queue): assert issue_next(k)
                        g.wait_vm([("H", k, j)])
                        g.e(f"v_and_b32_dpp v{T0+j*4+i}, v{Hreg(s_,j)+i}, v{vMR} wave_shr:1 row_mask:0xf bank_mask:0xf bound_ctrl:0")
            if grp == "C":
                for _ in range(3):
                    if dpp2:
                        j, i = dpp2.pop(0)
                        g.e(f"v_and_b32_dpp v{T2+j*4+i}, v{Hreg(s_,j)+i}, v{vML} wave_shl:1 row_mask:0xf bank_mask:0xf bound_ctrl:0")
            if n % EVERY == EVERY - 1: issue_next(k)
        assert not dpp0 and not dpp2
    assert not queue
    g.c("---- epilogue")
    st()
    dt(g, 11)
    vA = HB
    g.e(f"v_lshlrev_b32 v{vA}, 4, v{vLane}")
    g.e(f"s_lshl_b32 s{sT0}, s{sW}, 12")
    g.e(f"v_add_u32 v{vA}, s{sT0}, v{vA}")
    g.e(f"v_and_b32 v{vA+1}, 3, v{vLane}")
    g.e(f"v_lshlrev_b32 v{vA+1}, 10, v{vA+1}")
    g.e(f"v_lshrrev_b32 v{vA+2}, 2, v{vLane}")
    g.e(f"v_lshl_add_u32 v{vA+1}, v{vA+2}, 4, v{vA+1}")
    g.e(f"s_lshl_b32 s{sT0}, s{sW}, 14")
    g.e(f"v_add_u32 v{vA+1}, s{sT0}, v{vA+1}")
    g.e("s_nop 4")
    for r in range(4):
        for q in range(4):
            g.e(f"ds_write_b128 v{vA}, {ar(ACC+16*r+4*q)} offset:{r*16384 + q*1024}")
    g.e("s_waitcnt lgkmcnt(0)")
    g.e("s_barrier")
    R = vA + 8
    for i in range(2):
        for src in range(4):
            for hf in range(2):
                g.lds(f"ds_read_b128 {vr(R + ((i*4+src)*2+hf)*4)}, v{vA+1} offset:{src*4096 + hf*512 + i*256}", ("R", i, src))
    g.wait_vm([("XF", 0), ("XF", 1)])
    for i in range(2):
        base = R + i*32
        g.wait_lg([("R", i, 1)])
        for e_ in range(8): g.e(f"v_add_f32 v{base+e_}, v{base+e_}, v{base+8+e_}")
        g.wait_lg([("R", i, 3)])
        for e_ in range(8): g.e(f"v_add_f32 v{base+16+e_}, v{base+16+e_}, v{base+24+e_}")
        for e_ in range(4):
            x = vXF + 4*i + e_
            g.e(f"v_lshlrev_b32 v{vA+2}, 16, v{x}")
            g.e(f"v_and_b32 v{vA+3}, 0xffff0000, v{x}")
            g.e(f"v_add_f32 v{base+2*e_}, v{base+2*e_}, v{vA+2}")
            g.e(f"v_add_f32 v{base+2*e_+1}, v{base+2*e_+1}, v{vA+3}")
        for e_ in range(8): g.e(f"v_add_f32 v{base+e_}, v{base+e_}, v{base+16+e_}")
        for e_ in range(4): g.e(f"v_cvt_pk_bf16_f32 v{vXF+4*i+e_}, v{base+2*e_}, v{base+2*e_+1}")
        g.vmem(f"buffer_store_dwordx4 {vr(vXF+4*i)}, v{vO}, {sr(SO)}, {'0' if i==0 else 's%d'%sT1} offen{o.get('ostf','')}")
    if DT[0]:
        g.e("s_waitcnt vmcnt(0)")
        dt(g, 12)
    st.finish(st.n + 2)
    return AEND

def gen_all(out, o):
    fused = o.get("fused", 1)
    DT[0] = bool(o.get("dt", 0))
    if fused:
        name = "standalone__controlnet__diffusion_kernel" if o.get("single", 0) else "fused_kernel"
        g = Gen(); st = Stamper(g, o.get("st", 0))
        entry(g, name, st)
        phase1(g, name, st, True, o)
        aend = phase2(g, name, st, True, o)
        g.label(f"{name}_end"); g.e("s_endpgm")
        build([(name, g.text(), kd(name, 256 + max(aend, 144), 256, 100), 256, 256, 160*1024)], out)
    else:
        g = Gen(); st = Stamper(g, o.get("st", 0) == 1)
        entry(g, "prep_kernel", st); phase1(g, "prep_kernel", st, False, o)
        g.label("prep_kernel_end"); g.e("s_endpgm")
        g2 = Gen(); st2 = Stamper(g2, o.get("st", 0) == 2)
        entry(g2, "conv_kernel", st2); aend = phase2(g2, "conv_kernel", st2, False, o)
        g2.label("conv_kernel_end"); g2.e("s_endpgm")
        build([("prep_kernel", g.text(), kd("prep_kernel", 256+144, 256, 100), 256, 256, 160*1024),
               ("conv_kernel", g2.text(), kd("conv_kernel", 256+aend, 256, 100), 256, 256, 65536)], out)

if __name__ == "__main__":
    o = {}
    for a in sys.argv[2:]:
        k, v = a.split("=")
        o[k] = int(v) if v.lstrip("-").isdigit() else " " + v.replace("+", " ")
    gen_all(sys.argv[1], o)
```

```python
import sys, struct
from gen import Gen, vr, ar, sr, srd, kd, build, WS_H, WS_HI, WS_WP, WS_ST, WP_BYTES

LOG2E = 1.4426950408889634
def f2u(x): return struct.unpack("<I", struct.pack("<f", x))[0]

sW = 32
WS_MB = 11 << 20

class Stamper:
    def __init__(self, g, on): self.g, self.on, self.n = g, on, 0
    def __call__(self):
        if self.on:
            assert self.n < 21
            self.g.e(f"s_memtime s[{52+2*self.n}:{53+2*self.n}]"); self.n += 1
    def start(self):
        if self.on:
            self(); self.g.e("s_memrealtime s[98:99]")
    def finish(self, total):
        if not self.on: return
        g = self.g
        while self.n < total - 1: self()
        g.e("s_waitcnt vmcnt(0)")
        self()
        n = self.n
        g.e(f"s_memrealtime s[{52+2*n}:{53+2*n}]")
        g.e("s_waitcnt lgkmcnt(0)")
        g.e(f"s_sub_u32 s{52+2*n}, s{52+2*n}, s98")
        g.e(f"s_add_u32 s{52+2*n}, s{52+2*n}, s52")
        srd(g, 20, 50, 51, 16 << 20)
        g.e(f"s_lshl_b32 s35, s2, 2")
        g.e(f"s_add_u32 s35, s35, s{sW}")
        g.e(f"s_lshl_b32 s35, s35, 7")
        g.e(f"s_add_u32 s35, s35, {12 << 20}")
        g.e(f"v_mov_b32 v2, s35")
        for i in range(n + 1):
            g.e(f"v_mov_b32 v3, s{52+2*i}")
            g.e(f"buffer_store_dword v3, v2, s[20:23], 0 offen offset:{4*i}")
        g.e(f"v_mov_b32 v3, s98")
        g.e(f"buffer_store_dword v3, v2, s[20:23], 0 offen offset:{4*(n+1)}")

DT = [False]
def dt(g, i, neg=False):
    if not DT[0] or neg: return
    g.e(f"s_memrealtime s[{52+2*i}:{53+2*i}]")
def dt_finish(g):
    if not DT[0]: return
    g.e("s_waitcnt vmcnt(0)")
    g.e("s_memrealtime s[76:77]")
    g.e("s_mov_b32 s84, s48")
    g.e("s_and_b32 s85, s49, 0xffff")
    g.e("s_movk_i32 s86, 0x100")
    g.e("s_mov_b32 s87, 0x00020000")
    g.e("s_waitcnt lgkmcnt(0)")
    g.e(f"s_cmp_lg_u32 s{sW}, 0")
    g.e("s_cbranch_scc1 dt_done")
    g.e("s_cmp_eq_u32 s2, 8")
    g.e("s_cbranch_scc1 dt_g")
    g.e("s_cmp_eq_u32 s2, 12")
    g.e("s_cbranch_scc0 dt_done")
    for j, i in enumerate([2, 4, 6, 8, 9, 11, 12]):
        g.e(f"s_sub_u32 s88, s{52+2*i}, s52")
        g.e("v_mov_b32 v250, s88")
        g.e(f"v_mov_b32 v251, {4*(8+j)}")
        g.e("buffer_store_dword v250, v251, s[84:87], 0 offen")
    g.e("s_branch dt_done")
    g.label("dt_g")
    for j, i in enumerate([2, 3, 5, 7, 9, 11, 12]):
        g.e(f"s_sub_u32 s88, s{52+2*i}, s52")
        g.e("v_mov_b32 v250, s88")
        g.e(f"v_mov_b32 v251, {4*(1+j)}")
        g.e("buffer_store_dword v250, v251, s[84:87], 0 offen")
    g.label("dt_done")

def entry(g, name, st):
    g.raw(f".globl {name}\n.p2align 8\n.type {name},@function\n{name}:")
    g.e("s_cmp_ge_u32 s2, 256")
    g.e(f"s_cbranch_scc1 {name}_end")
    st.start()
    dt(g, 0)
    g.e("s_load_dwordx8 s[4:11], s[0:1], 8")
    g.e("s_load_dwordx8 s[44:51], s[0:1], 40")
    g.e("s_load_dwordx2 s[40:41], s[0:1], 0")
    g.e(f"v_and_b32 v1, 63, v0")
    g.e(f"v_lshrrev_b32 v2, 6, v0")
    g.e("s_nop 0")
    g.e(f"v_readfirstlane_b32 s{sW}, v2")

def phase1(g, name, st, fused, o):
    stf = o.get("stf", " sc1") if fused else o.get("stf", "")
    ldf = " nt" if o.get("nt", 1) else ""
    SX, SWT, SWS, SXI, SDB = 12, 16, 20, 24, 28
    sCT, sU, sT0, sT1, sT2, sXROW, sM0X = 33, 34, 35, 36, 37, 38, 39
    sSOX, sSOW, sNONCE = 42, 43, 3
    vLane, vT, vT2, vXD, vWD, vWA, vPX, vHF, vL16 = 1, 2, 3, 4, 5, 6, 7, 8, 9
    vXA = [10, 11, 12, 13]; vXAs = [14, 15, 16, 17]
    vWAs, vST, vWR, vNC, vZ, vWRs = 18, 19, 20, 21, 22, 23
    XF, WF, ACC, TMP = 24, 64, 80, 160
    g.e(f"s_and_b32 s{sT0}, s2, 7")
    g.e(f"s_lshr_b32 s{sT1}, s2, 3")
    g.e(f"s_and_b32 s{sCT}, s{sT1}, 3")
    g.e(f"s_lshr_b32 s{sT1}, s{sT1}, 2")
    g.e(f"s_and_b32 s{sU}, s{sT0}, 3")
    g.e(f"s_lshl_b32 s{sU}, s{sU}, 3")
    g.e(f"s_add_u32 s{sU}, s{sU}, s{sT1}")
    g.e(f"v_lshrrev_b32 v{vT}, 3, v{vLane}")
    g.e(f"s_lshl_b32 s{sT2}, s{sW}, 3")
    g.e(f"v_add_u32 v{vXD}, s{sT2}, v{vT}")
    g.e(f"v_lshrrev_b32 v{vT}, 1, v{vXD}")
    g.e(f"v_and_b32 v{vT}, 7, v{vT}")
    g.e(f"v_and_b32 v{vT2}, 7, v{vLane}")
    g.e(f"v_xor_b32 v{vT}, v{vT}, v{vT2}")
    g.e(f"v_lshlrev_b32 v{vT}, 4, v{vT}")
    g.e(f"v_lshl_add_u32 v{vXD}, v{vXD}, 10, v{vT}")
    g.e(f"v_lshrrev_b32 v{vT}, 4, v{vLane}")
    g.e(f"v_lshlrev_b32 v{vT2}, 2, v{vT}")
    g.e(f"v_and_b32 v{vWD}, 15, v{vLane}")
    g.e(f"v_xor_b32 v{vWD}, v{vWD}, v{vT2}")
    g.e(f"v_lshlrev_b32 v{vWD}, 4, v{vWD}")
    g.e(f"s_lshl_b32 s{sT2}, s{sW}, 2")
    g.e(f"v_add_u32 v{vT}, s{sT2}, v{vT}")
    g.e(f"v_lshl_add_u32 v{vWD}, v{vT}, 10, v{vWD}")
    g.e(f"s_lshl_b32 s{sT2}, s{sCT}, 8")
    g.e(f"v_add_u32 v{vWD}, s{sT2}, v{vWD}")
    g.e(f"s_lshl_b32 s{sM0X}, s{sW}, 10")
    g.e(f"v_mov_b32 v{vZ}, 0")
    g.e(f"s_cmp_lt_u32 s{sT0}, 4")
    g.e(f"s_cbranch_scc1 {name}_G")
    g.e(f"s_cmp_lt_u32 s{sU}, 28")
    g.e(f"s_cbranch_scc1 {name}_P")
    g.e(f"s_cmp_eq_u32 s{sU}, 28")
    g.e(f"s_cbranch_scc1 {name}_PL")
    st_n0 = st.n
    IDLE = True

    def nonce_wait(role):
        g.wait_vm([("NC",)])
        g.e(f"s_mov_b32 s{sT2}, 0")
        g.label(f"{name}_ncpoll{role}")
        g.e(f"v_readfirstlane_b32 s{sNONCE}, v{vNC}")
        g.e(f"s_add_u32 s{sT2}, s{sT2}, 1")
        g.e(f"s_cmp_gt_u32 s{sT2}, 100000")
        g.e(f"s_cbranch_scc1 {name}_ncok{role}")
        g.e(f"s_cmp_lg_u32 s{sNONCE}, 0")
        g.e(f"s_cbranch_scc1 {name}_ncok{role}")
        g.e("s_sleep 4")
        g.e(f"buffer_load_dword v{vNC}, v{vZ}, {sr(SDB)}, 0 offen sc1")
        g.e("s_waitcnt vmcnt(0)")
        g.e(f"s_branch {name}_ncpoll{role}")
        g.label(f"{name}_ncok{role}")

    def body(role):
        G = role == "G"
        NX = {"G": 2, "P": 5, "PL": 4}[role]
        S = {"G": 6, "P": 4, "PL": 4}[role]
        XB = NX * 4096
        STG = XB + 16384
        NI = NX + 4
        PRE1 = o.get("PRE1", 2)
        g.vm = []; g.lg = []
        st.n = st_n0
        g.label(f"{name}_{role}")
        if G: g.e(f"s_lshl_b32 s{sXROW}, s{sU}, 16")
        else: g.e(f"s_mul_i32 s{sXROW}, s{sU}, {160*1024}")
        vPFX, vPFW = vXAs[0], vXAs[1]
        if G:
            g.e(f"v_lshrrev_b32 v{vT}, 2, v{vLane}")
            g.e(f"v_and_b32 v{vT2}, 3, v{vLane}")
            g.e(f"v_lshlrev_b32 v{vT2}, 6, v{vT2}")
            g.e(f"v_lshl_add_u32 v{vPFX}, v{vT}, 10, v{vT2}")
            g.e(f"s_lshl_b32 s{sT2}, s{sW}, 14")
        else:
            g.e(f"v_lshrrev_b32 v{vT}, 1, v{vLane}")
            g.e(f"v_and_b32 v{vT2}, 1, v{vLane}")
            g.e(f"v_lshlrev_b32 v{vT2}, 7, v{vT2}")
            g.e(f"v_lshl_add_u32 v{vPFX}, v{vT}, 10, v{vT2}")
            g.e(f"s_mul_i32 s{sT2}, s{sW}, {40*1024}")
        g.e(f"s_add_u32 s{sT2}, s{sT2}, s{sXROW}")
        g.e(f"s_lshl_b32 s{sT0}, s{sCT}, 8")
        g.e(f"s_add_u32 s{sT2}, s{sT2}, s{sT0}")
        g.e(f"v_add_u32 v{vPFX}, s{sT2}, v{vPFX}")
        g.e(f"s_lshr_b32 s{sT0}, s2, 3")
        g.e(f"s_lshl_b32 s{sT0}, s{sT0}, 14")
        g.e(f"s_lshl_b32 s{sT2}, s{sW}, 12")
        g.e(f"s_add_u32 s{sT0}, s{sT0}, s{sT2}")
        g.e(f"v_lshlrev_b32 v{vPFW}, 6, v{vLane}")
        g.e(f"v_add_u32 v{vPFW}, s{sT0}, v{vPFW}")
        g.e("s_waitcnt lgkmcnt(0)")
        st()
        dt(g, 1, True); dt(g, 2)
        if G:
            srd(g, SX, 6, 7, 2 << 20); srd(g, SWT, 8, 9, 512 << 10)
        else:
            srd(g, SX, 44, 45, 4608*1024); srd(g, SWT, 10, 11, 512 << 10)
        srd(g, SDB, 48, 49, 256)
        def ld1(kc, m):
            sb = (kc % S) * STG
            isx = m < NX
            mm = m if isx else m - NX
            g.e(f"s_add_u32 m0, s{sM0X}, {sb + m*4096}")
            if isx: g.e(f"s_add_u32 s{sSOX}, s{sXROW}, {mm*32768 + kc*128}")
            else:   g.e(f"s_mov_b32 s{sSOW}, {(kc*64 + 16*mm)*1024}")
            va, sd, so = (vXD, SX, sSOX) if isx else (vWD, SWT, sSOW)
            g.vmem(f"buffer_load_dwordx4 v{va}, {sr(sd)}, s{so} offen{ldf} lds", ("D", kc))
        if G:
            g.e(f"s_or_b32 s{sT0}, s2, s{sW}")
            g.e(f"s_cmp_lg_u32 s{sT0}, 0")
            g.e(f"s_cbranch_scc1 {name}_nn")
            g.e("s_memrealtime s[96:97]")
            g.e("s_waitcnt lgkmcnt(0)")
            g.e(f"s_or_b32 s96, s96, 1")
            g.e(f"v_mov_b32 v{vT}, s96")
            g.e(f"buffer_store_dword v{vT}, v{vZ}, {sr(SDB)}, 0 offen sc1")
            g.label(f"{name}_nn")
        def prefetch():
            if not o.get("pf", 1): return
            g.vmem(f"buffer_load_dword v{TMP}, v{vPFX}, {sr(SX)}, 0 offen{ldf}")
            if not G:
                g.e(f"s_mov_b32 s{sSOX}, 0x8000")
                g.vmem(f"buffer_load_dword v{TMP+1}, v{vPFX}, {sr(SX)}, s{sSOX} offen{ldf}")
            g.vmem(f"buffer_load_dword v{TMP+2}, v{vPFW}, {sr(SWT)}, 0 offen{ldf}")
        if o.get("pf", 1) == 2: prefetch()
        for m in range(NI): ld1(0, m)
        if o.get("pf", 1) == 1: prefetch()
        for kc in range(1, PRE1):
            for m in range(NI): ld1(kc, m)
        ldq = [(kc, m) for kc in range(PRE1, 8) for m in range(NI)]
        if G:
            srd(g, SXI, 4, 5, 2 << 20)
            g.e(f"v_lshrrev_b32 v{vT}, 4, v{vLane}")
            g.e(f"s_lshl_b32 s{sT2}, s{sW}, 2")
            g.e(f"v_add_u32 v{vT}, s{sT2}, v{vT}")
            g.e(f"v_and_b32 v{vT2}, 15, v{vLane}")
            g.e(f"v_xor_b32 v{vT2}, v{vT2}, v{vT}")
            g.e(f"v_lshlrev_b32 v{vT2}, 4, v{vT2}")
            g.e(f"v_lshl_add_u32 v{vT}, v{vT}, 10, v{vT2}")
            g.e(f"s_lshl_b32 s{sT2}, s{sCT}, 8")
            g.e(f"v_add_u32 v{vWR}, s{sT2}, v{vT}")
            k6 = [i for i, (kc, m) in enumerate(ldq) if kc >= S][0]
            ldq[k6:k6] = [("X", m) for m in range(4)]
        freed = [0]
        def ldnext():
            if not ldq: return False
            kc, m = ldq[0]
            if kc == "X":
                ldq.pop(0)
                g.e(f"s_add_u32 m0, s{sM0X}, {6*STG + m*4096}")
                g.e(f"s_add_u32 s{sSOX}, s{sXROW}, {m*16384}")
                g.vmem(f"buffer_load_dwordx4 v{vWR}, {sr(SXI)}, s{sSOX} offen{ldf} lds", ("XI",))
                return True
            if kc - S >= freed[0]: return False
            ldq.pop(0); ld1(kc, m); return True
        g.e(f"v_and_b32 v{vPX}, 31, v{vLane}")
        g.e(f"v_lshrrev_b32 v{vHF}, 5, v{vLane}")
        g.e(f"v_lshlrev_b32 v{vL16}, 4, v{vLane}")
        g.e(f"v_lshrrev_b32 v{vT}, 1, v{vPX}")
        g.e(f"v_and_b32 v{vT}, 7, v{vT}")
        g.e(f"v_xor_b32 v{vT}, v{vT}, v{vHF}")
        g.e(f"v_lshlrev_b32 v{vT}, 4, v{vT}")
        g.e(f"v_lshl_add_u32 v{vXA[0]}, v{vPX}, 7, v{vT}")
        if G:
            g.e(f"s_lshr_b32 s{sT2}, s{sW}, 1")
            g.e(f"s_lshl_b32 s{sT2}, s{sT2}, 12")
            g.e(f"v_add_u32 v{vXA[0]}, s{sT2}, v{vXA[0]}")
        for s in range(1, 4):
            g.e(f"v_xor_b32 v{vXA[s]}, {s*32}, v{vXA[0]}")
        g.e(f"v_bfe_u32 v{vT}, v{vLane}, 2, 2")
        g.e(f"v_lshl_add_u32 v{vT2}, v{vHF}, 3, v{vT}")
        g.e(f"v_lshlrev_b32 v{vWA}, 8, v{vT2}")
        if G:
            g.e(f"s_and_b32 s{sT2}, s{sW}, 1")
            g.e(f"s_lshl_b32 s{sT2}, s{sT2}, 1")
            g.e(f"v_xor_b32 v{vT}, s{sT2}, v{vT}")
        else:
            g.e(f"v_xor_b32 v{vT}, s{sW}, v{vT}")
        g.e(f"v_lshl_add_u32 v{vWA}, v{vT}, 6, v{vWA}")
        g.e(f"v_bfe_u32 v{vT}, v{vLane}, 4, 1")
        g.e(f"v_lshl_add_u32 v{vWA}, v{vT}, 5, v{vWA}")
        g.e(f"v_and_b32 v{vT}, 3, v{vLane}")
        g.e(f"v_lshl_add_u32 v{vWA}, v{vT}, 3, v{vWA}")
        srd(g, SWS, 50, 51, 16 << 20)
        if o.get("tlb", 0):
            g.e(f"v_lshlrev_b32 v{vT}, {o['tlb']}, v{vLane}")
            g.vmem(f"buffer_load_dword v{TMP+3}, v{vT}, {sr(SWS)}, 0 offen")
        if not G:
            g.e(f"s_lshl_b32 s{sT0}, s{sCT}, 2")
            g.e(f"s_add_u32 s{sT0}, s{sT0}, s{sW}")
            g.e(f"s_mul_i32 s{sT0}, s{sT0}, {32*10240}")
            g.e(f"s_add_u32 s{sT0}, s{sT0}, {WS_WP}")
            g.e(f"v_add_u32 v{vST}, s{sT0}, v{vL16}")
        if role == "PL":
            g.e(f"v_lshlrev_b32 v{vWR}, 10, v{vHF}")
        NACC = 2 if G else NX
        vWAs2 = vST if G else vWRs
        def stage_addr(kc):
            sb = (kc % S) * STG
            for s in range(4):
                g.e(f"v_add_u32 v{vXAs[s]}, {sb}, v{vXA[s]}")
            g.e(f"v_add_u32 v{vWAs}, {sb + XB}, v{vWA}")
            if G: g.e(f"v_xor_b32 v{vWAs2}, 64, v{vWAs}")
            if role == "PL": g.e(f"v_sub_u32 v{vWAs2}, v{vWAs}, v{vWR}")
        def read_list(kc, s):
            p = (kc*4 + s) % 2
            L = []
            if G:
                L.append((f"ds_read_b128 {vr(XF+p*20)}, v{vXAs[s]}", 0))
                for cb in range(2):
                    for h in range(2):
                        L.append((f"ds_read_b64_tr_b16 {vr(WF+p*8+cb*4+h*2,2)}, v{vWAs if cb==0 else vWAs2} offset:{s*4096+h*1024}", cb))
            else:
                for h in range(2):
                    L.append((f"ds_read_b64_tr_b16 {vr(WF+p*8+h*2,2)}, v{vWAs} offset:{s*4096+h*1024}", 0))
                for b in range(NX):
                    L.append((f"ds_read_b128 {vr(XF+p*20+b*4)}, v{vXAs[s]} offset:{b*4096}", b))
                if role == "PL":
                    for h in range(2):
                        L.append((f"ds_read_b64_tr_b16 {vr(WF+p*8+4+h*2,2)}, v{vWAs2} offset:{s*4096+h*2048}", NX-1))
            return [(r, ("R", kc, s, b)) for r, b in L]
        def mfma_list(kc, s):
            p = (kc*4 + s) % 2
            first = kc == 0 and s == 0
            L = []
            for b in range(NACC):
                ac = vr(ACC+16*b, 16); c = "0" if first else ac
                if G: L.append(f"v_mfma_f32_32x32x16_bf16 {ac}, {vr(WF+p*8+b*4)}, {vr(XF+p*20)}, {c}")
                else: L.append(f"v_mfma_f32_32x32x16_bf16 {ac}, {vr(XF+p*20+b*4)}, {vr(WF+p*8)}, {c}")
            return L
        st()
        g.wait_vm([("D", 0)])
        g.e("s_barrier")
        st()
        stage_addr(0)
        for r, t in read_list(0, 0): g.lds(r, t)
        LPM = 3 if G else 2
        for kc in range(8):
            for s in range(4):
                if s < 3:
                    nxt = read_list(kc, s+1)
                else:
                    nxt = []
                    if kc < 7:
                        g.wait_lg([("R", kc, 3, b) for b in range(NACC)])
                        while any(c_ == kc+1 for c_, _ in ldq): assert ldnext()
                        g.wait_vm([("D", kc+1)])
                        if G and kc == 6: g.wait_vm([("XI",)])
                        g.e("s_barrier")
                        st()
                        freed[0] = kc + 1
                        stage_addr(kc+1)
                        nxt = read_list(kc+1, 0)
                mfl = mfma_list(kc, s)
                per = -(-len(nxt) // len(mfl))
                for mi, mf in enumerate(mfl):
                    g.wait_lg([("R", kc, s, b) for b in range(mi+1)])
                    g.e(mf)
                    for _ in range(per):
                        if nxt:
                            r, t = nxt.pop(0); g.lds(r, t)
                    for _ in range(LPM): ldnext()
                if role == "PL":
                    p = (kc*4 + s) % 2
                    g.e(f"s_mov_b32 s{sT2}, {((kc*4+s)*10+9)*1024}")
                    g.vmem(f"buffer_store_dwordx4 {vr(WF+p*8+4)}, v{vST}, {sr(SWS)}, s{sT2} offen{stf}")
            if kc == 4 and (G or fused):
                g.vmem(f"buffer_load_dword v{vNC}, v{vZ}, {sr(SDB)}, 0 offen sc1", ("NC",))
        assert not ldq
        st()
        dt(g, 3 if G else 4)
        if not G:
            g.e("s_nop 7")
            for b in range(NX):
                g.e(f"s_mul_i32 s{sT0}, s{sU}, 160")
                g.e(f"s_add_u32 s{sT0}, s{sT0}, {32*b}")
                g.e(f"s_lshr_b32 s{sT1}, s{sT0}, 9")
                g.e(f"s_and_b32 s{sT0}, s{sT0}, 511")
                g.e(f"s_lshr_b32 s{sT0}, s{sT0}, 4")
                g.e(f"s_mul_i32 s{sT0}, s{sT0}, 10")
                g.e(f"s_add_u32 s{sT0}, s{sT0}, s{sT1}")
                g.e(f"s_lshl_b32 s{sT0}, s{sT0}, 10")
                g.e(f"s_add_u32 s{sT1}, s{sT0}, 10240")
                for hh in range(2):
                    d = TMP + (b*2+hh)*4
                    for i in range(4):
                        g.e(f"v_cvt_pk_bf16_f32 v{d+i}, v{ACC+16*b+8*hh+2*i}, v{ACC+16*b+8*hh+2*i+1}")
                    g.vmem(f"buffer_store_dwordx4 {vr(d)}, v{vST}, {sr(SWS)}, s{sT0 if hh==0 else sT1} offen{stf}")
        else:
            XT = 6*STG
            XR = TMP
            g.e(f"s_lshr_b32 s{sT0}, s{sW}, 1")
            g.e(f"s_and_b32 s{sT1}, s{sW}, 1")
            g.e(f"s_lshl_b32 s{sT2}, s{sT0}, 13")
            g.e(f"s_add_u32 s{sT2}, s{sT2}, {XT}")
            g.e(f"v_and_b32 v{vT}, 15, v{vPX}")
            g.e(f"s_lshl_b32 s{sSOX}, s{sT1}, 3")
            g.e(f"v_xor_b32 v{vT}, s{sSOX}, v{vT}")
            g.e(f"v_lshlrev_b32 v{vT}, 4, v{vT}")
            g.e(f"v_lshl_add_u32 v{vT}, v{vPX}, 8, v{vT}")
            g.e(f"v_lshl_add_u32 v{vT}, v{vHF}, 3, v{vT}")
            g.e(f"v_add_u32 v{vT}, s{sT2}, v{vT}")
            for j in range(8):
                g.e(f"v_xor_b32 v{vT2}, {j*16}, v{vT}")
                g.lds(f"ds_read_b64 {vr(XR+2*j,2)}, v{vT2}", ("XR", j))
            g.e(f"s_lshl_b32 s{sT2}, s{sT0}, 15")
            g.e(f"s_add_u32 s{sT2}, s{sT2}, s{sXROW}")
            g.e(f"s_lshl_b32 s{sSOX}, s{sCT}, 13")
            g.e(f"s_add_u32 s{sT2}, s{sT2}, s{sSOX}")
            g.e(f"s_lshl_b32 s{sSOX}, s{sT1}, 12")
            g.e(f"s_add_u32 s{sT2}, s{sT2}, s{sSOX}")
            g.e(f"v_add_u32 v{vST}, s{sT2}, v{vL16}")
            vGA, vGO = vXAs[0], vXAs[1]
            g.e(f"s_lshl_b32 s{sSOX}, s{sU}, 1")
            g.e(f"s_add_u32 s{sSOX}, s{sSOX}, s{sT0}")
            g.e(f"s_lshl_b32 s{sSOX}, s{sSOX}, 12")
            g.e(f"s_add_u32 s{sSOX}, s{sSOX}, {WS_ST}")
            g.e(f"v_lshlrev_b32 v{vGO}, 4, v{vPX}")
            g.e(f"v_add_u32 v{vGO}, s{sSOX}, v{vGO}")
            g.e(f"v_lshl_add_u32 v{vGA}, v{vHF}, 11, v{vGO}")
            g.e(f"s_lshl_b32 s{sSOW}, s{sCT}, 1")
            g.e(f"s_add_u32 s{sSOW}, s{sSOW}, s{sT1}")
            g.e(f"s_lshl_b32 s{sSOW}, s{sSOW}, 9")
            S1, S2 = TMP+16, TMP+18
            S1b, S2b = TMP+20, TMP+21
            for j in range(8):
                g.wait_lg([("XR", j)])
                for i in range(2):
                    x = XR+2*j+i; a = ACC+4*j+2*i
                    g.e(f"v_lshlrev_b32 v{vT}, 16, v{x}")
                    g.e(f"v_and_b32 v{vT2}, 0xffff0000, v{x}")
                    g.e(f"v_add_f32 v{a}, v{a}, v{vT}")
                    g.e(f"v_add_f32 v{a+1}, v{a+1}, v{vT2}")
                    if j == 0 and i == 0:
                        g.e(f"v_mov_b32 v{S1}, v{a}")
                        g.e(f"v_mov_b32 v{S1b}, v{a+1}")
                        g.e(f"v_mul_f32 v{S2}, v{a}, v{a}")
                        g.e(f"v_mul_f32 v{S2b}, v{a+1}, v{a+1}")
                    else:
                        g.e(f"v_add_f32 v{S1}, v{S1}, v{a}")
                        g.e(f"v_add_f32 v{S1b}, v{S1b}, v{a+1}")
                        g.e(f"v_fmac_f32 v{S2}, v{a}, v{a}")
                        g.e(f"v_fmac_f32 v{S2b}, v{a+1}, v{a+1}")
            g.e(f"v_add_f32 v{S1}, v{S1}, v{S1b}")
            g.e(f"v_add_f32 v{S2}, v{S2}, v{S2b}")
            g.e(f"v_mov_b32 v{vT}, v{S1}")
            g.e(f"v_mov_b32 v{vT2}, v{S2}")
            g.e("s_nop 1")
            g.e(f"v_permlane32_swap_b32 v{S1}, v{vT}")
            g.e(f"v_permlane32_swap_b32 v{S2}, v{vT2}")
            g.e(f"v_add_f32 v{S1}, v{S1}, v{vT}")
            g.e(f"v_add_f32 v{S2}, v{S2}, v{vT2}")
            nonce_wait(role)
            g.e(f"v_mov_b32 v{S1+1}, v{vNC}")
            g.e(f"v_mov_b32 v{S2+1}, v{vNC}")
            g.e("s_mov_b64 exec, 0xffffffff")
            g.e(f"buffer_store_dwordx4 {vr(S1)}, v{vGO}, {sr(SWS)}, s{sSOW} offen sc1")
            g.e("s_mov_b64 exec, -1")
            st()
            E = TMP + 24
            g.e(f"s_mov_b32 s{sT1}, {WS_HI}")
            for j in range(16):
                g.e(f"v_cvt_pk_bf16_f32 v{XR+j}, v{ACC+2*j}, v{ACC+2*j+1}")
            g.e(f"s_mov_b32 s{sT2}, 0")
            g.label(f"{name}_poll")
            for e_ in range(4):
                g.e(f"buffer_load_dwordx4 {vr(E+4*e_)}, v{vGA}, {sr(SWS)}, 0 offen offset:{e_*512} sc1")
            g.e(f"s_add_u32 s{sT2}, s{sT2}, 1")
            g.e(f"s_cmp_gt_u32 s{sT2}, 100000")
            g.e(f"s_cbranch_scc1 {name}_pollx")
            g.e("s_waitcnt vmcnt(0)")
            g.e(f"v_xor_b32 v{vT}, v{E+1}, v{vNC}")
            for e_ in range(4):
                for o_ in (1, 3):
                    if e_ == 0 and o_ == 1: continue
                    g.e(f"v_xor_b32 v{vT2}, v{E+4*e_+o_}, v{vNC}")
                    g.e(f"v_or_b32 v{vT}, v{vT}, v{vT2}")
            g.e(f"v_cmp_ne_u32 vcc, 0, v{vT}")
            g.e("s_nop 4")
            g.e(f"s_cbranch_vccnz {name}_poll")
            g.label(f"{name}_pollx")
            g.e("s_waitcnt vmcnt(0)")
            st()
            for hh in range(4):
                g.e(f"buffer_store_dwordx4 {vr(XR+4*hh)}, v{vST}, {sr(SWS)}, s{sT1} offen offset:{hh*1024}{stf}")
            for e_ in range(1, 4):
                g.e(f"v_add_f32 v{E}, v{E}, v{E+4*e_}")
                g.e(f"v_add_f32 v{E+2}, v{E+2}, v{E+4*e_+2}")
            g.e(f"v_mov_b32 v{vT}, v{E}")
            g.e(f"v_mov_b32 v{vT2}, v{E+2}")
            g.e("s_nop 1")
            g.e(f"v_permlane32_swap_b32 v{E}, v{vT}")
            g.e(f"v_permlane32_swap_b32 v{E+2}, v{vT2}")
            g.e(f"v_add_f32 v{E}, v{E}, v{vT}")
            g.e(f"v_add_f32 v{E+2}, v{E+2}, v{vT2}")
            g.e(f"v_mul_f32 v{E}, {f2u(1/512):#x}, v{E}")
            g.e(f"v_mul_f32 v{E+2}, {f2u(1/512):#x}, v{E+2}")
            g.e(f"v_fma_f32 v{E+2}, -v{E}, v{E}, v{E+2}")
            g.e(f"v_max_f32 v{E+2}, 0, v{E+2}")
            g.e(f"v_add_f32 v{E+2}, {f2u(1e-5):#x}, v{E+2}")
            A_, B_, A2, B2 = E+4, E+5, E+6, E+7
            g.e(f"v_rsq_f32 v{A_}, v{E+2}")
            g.e("s_nop 0")
            g.e(f"v_mul_f32 v{B_}, v{E}, v{A_}")
            g.e(f"v_sub_f32 v{B_}, 0, v{B_}")
            g.e(f"v_mul_f32 v{A2}, {f2u(-LOG2E):#x}, v{A_}")
            g.e(f"v_mul_f32 v{B2}, {f2u(-LOG2E):#x}, v{B_}")
            Y = E + 8
            for hh in range(4):
                a = ACC + 8*hh
                for i in range(8): g.e(f"v_fma_f32 v{Y+i}, v{a+i}, v{A2}, v{B2}")
                for i in range(8): g.e(f"v_exp_f32 v{Y+i}, v{Y+i}")
                for i in range(8): g.e(f"v_fma_f32 v{a+i}, v{a+i}, v{A_}, v{B_}")
                for i in range(8): g.e(f"v_add_f32 v{Y+i}, 1.0, v{Y+i}")
                for i in range(8): g.e(f"v_rcp_f32 v{Y+i}, v{Y+i}")
                g.e("s_nop 0")
                for i in range(8): g.e(f"v_mul_f32 v{a+i}, v{a+i}, v{Y+i}")
                d = Y + 8 + hh*4
                for i in range(4): g.e(f"v_cvt_pk_bf16_f32 v{d+i}, v{a+2*i}, v{a+2*i+1}")
                g.e(f"buffer_store_dwordx4 {vr(d)}, v{vST}, {sr(SWS)}, 0 offen offset:{hh*1024}{stf}")
        if fused:
            while st.on and st.n < 15: st()
            if not G: nonce_wait(role)
            if G:
                g.e(f"s_lshr_b32 s{sT0}, s{sU}, 1")
                g.e(f"s_and_b32 s{sT1}, s{sU}, 1")
                g.e(f"s_lshl_b32 s{sT2}, s{sT1}, 1")
                g.e(f"s_add_u32 s{sT2}, s{sT2}, s{sT0}")
                g.e(f"s_sub_u32 s{sT2}, s{sT2}, 1")
                g.e(f"s_lshl_b32 s{sSOX}, s{sT0}, 12")
                g.e(f"s_add_u32 s{sSOW}, s{sT1}, 1")
                g.e(f"s_lshl_b32 s{sSOW}, s{sSOW}, 4")
                g.e(f"s_add_u32 s{sSOX}, s{sSOX}, s{sSOW}")
                g.e(f"s_lshl_b32 s{sSOW}, s{sT2}, 12")
                g.e(f"s_cmp_eq_u32 s{sT1}, 0")
                g.e(f"s_cselect_b32 s{sT1}, 48, 0")
                g.e(f"s_add_u32 s{sSOW}, s{sSOW}, s{sT1}")
                g.e(f"s_lshr_b32 s{sT2}, s{sT2}, 3")
                g.e(f"s_lshr_b32 s{sT0}, s{sT0}, 3")
                g.e(f"s_cmp_eq_u32 s{sT2}, s{sT0}")
                g.e(f"s_cselect_b32 s{sSOW}, s{sSOW}, s{sSOX}")
                g.e(f"v_and_b32 v{vT}, 15, v{vLane}")
                g.e(f"v_lshlrev_b32 v{vT}, 8, v{vT}")
                g.e(f"v_mov_b32 v{vT2}, s{sSOW}")
                g.e(f"v_mov_b32 v{vPX}, s{sSOX}")
                g.e(f"v_cmp_gt_u32 vcc, 16, v{vLane}")
                g.e("s_nop 1")
                g.e(f"v_cndmask_b32 v{vT2}, v{vT2}, v{vPX}, vcc")
                g.e(f"v_add_u32 v{vT}, v{vT}, v{vT2}")
                g.e(f"s_lshl_b32 s{sT0}, s{sCT}, 2")
                g.e(f"s_add_u32 s{sT0}, s{sT0}, {WS_MB}")
            else:
                g.e(f"v_lshrrev_b32 v{vT}, 2, v{vLane}")
                g.e(f"v_lshlrev_b32 v{vT}, 12, v{vT}")
                g.e(f"v_and_b32 v{vT2}, 3, v{vLane}")
                g.e(f"v_lshl_add_u32 v{vT}, v{vT2}, 8, v{vT}")
                g.e(f"s_lshl_b32 s{sT0}, s{sCT}, 10")
                g.e(f"s_lshl_b32 s{sT1}, s{sU}, 2")
                g.e(f"s_add_u32 s{sT0}, s{sT0}, s{sT1}")
                g.e(f"s_add_u32 s{sT0}, s{sT0}, {WS_MB + 64}")
            dt(g, 5 if G else 6)
            g.e("s_waitcnt vmcnt(0)")
            g.e("s_barrier")
            dt(g, 7 if G else 8)
            g.e(f"s_cmp_lg_u32 s{sW}, 0")
            g.e(f"s_cbranch_scc1 {name}_ph2")
            if G: g.e("s_mov_b64 exec, 0xffffffff")
            g.e(f"buffer_store_dword v{vNC}, v{vT}, {sr(SWS)}, s{sT0} offen sc1")
            if G: g.e("s_mov_b64 exec, -1")
            g.e(f"s_branch {name}_ph2")
        else:
            st.finish(16)
            g.e("s_endpgm")
    if fused:
        g.e("s_waitcnt lgkmcnt(0)")
        srd(g, SDB, 48, 49, 256)
        g.e("s_sleep 32")
        g.vmem(f"buffer_load_dword v{vNC}, v{vZ}, {sr(SDB)}, 0 offen sc1", ("NC",))
        nonce_wait("I")
        g.e(f"s_branch {name}_ph2")
    else:
        g.e(f"s_branch {name}_end")
    body("G"); body("P"); body("PL")

def phase2(g, name, st, fused, o):
    NST, PRE, EVERY = o.get("NST", 3), o.get("PRE", 20), o.get("EVERY", 2)
    lf = " sc1" if fused else ""
    SA, SWP, SX, SO, SDB = 12, 16, 20, 24, 28
    C4K, C8K, C2M, C2M4K = 33, 34, 42, 43
    sMT, sNT, sB, sT0, sT1, sR0, sBASE = 35, 36, 37, 38, 39, 97, 96
    vLane, vT, vW, vMR, vML, vO, vT2 = 1, 2, 3, 4, 5, 6, 7
    vH = [8+j for j in range(6)]
    vXF = 16
    HB = 24
    HIB = HB + NST*24
    T0 = HIB + NST*16
    T2 = T0 + 24
    VEND = T2 + 24
    assert VEND <= 256
    ACC, WB = 0, 64
    AEND = WB + NST*40
    g.vm = []; g.lg = []
    if fused:
        g.label(f"{name}_ph2")
        if st.on: st.n = 15
        st()
    g.e(f"s_and_b32 s{sT0}, s2, 7")
    g.e(f"s_lshr_b32 s{sT1}, s2, 3")
    g.e(f"s_and_b32 s{sB}, s{sT0}, 1")
    g.e(f"s_lshr_b32 s{sT0}, s{sT0}, 1")
    g.e(f"s_and_b32 s{sMT}, s{sT1}, 7")
    g.e(f"s_lshr_b32 s{sT1}, s{sT1}, 3")
    g.e(f"s_lshl_b32 s{sNT}, s{sT0}, 2")
    g.e(f"s_add_u32 s{sNT}, s{sNT}, s{sT1}")
    g.e(f"s_movk_i32 s{C4K}, 0x1000")
    g.e(f"s_movk_i32 s{C8K}, 0x2000")
    g.e(f"s_mov_b32 s{C2M}, 0x200000")
    g.e(f"s_mov_b32 s{C2M4K}, 0x201000")
    g.e(f"s_lshl_b32 s{sT0}, s{sB}, 5")
    g.e(f"s_lshl_b32 s{sT1}, s{sMT}, 2")
    g.e(f"s_add_u32 s{sR0}, s{sT0}, s{sT1}")
    g.e(f"s_lshl_b32 s{sBASE}, s{sR0}, 15")
    g.e(f"s_lshl_b32 s{sT0}, s{sW}, 13")
    g.e(f"s_add_u32 s{sBASE}, s{sBASE}, s{sT0}")
    g.e(f"v_lshlrev_b32 v{vT}, 4, v{vLane}")
    for j in range(1, 5):
        g.e(f"s_add_u32 s{sT0}, s{sBASE}, {(j-1)*32768}")
        g.e(f"v_add_u32 v{vH[j]}, s{sT0}, v{vT}")
    g.e(f"s_sub_u32 s{sT0}, s{sBASE}, 32768")
    g.e(f"s_cmp_eq_u32 s{sMT}, 0")
    g.e(f"s_cselect_b32 s{sT0}, 0x40000000, s{sT0}")
    g.e(f"v_add_u32 v{vH[0]}, s{sT0}, v{vT}")
    g.e(f"s_add_u32 s{sT0}, s{sBASE}, {4*32768}")
    g.e(f"s_cmp_eq_u32 s{sMT}, 7")
    g.e(f"s_cselect_b32 s{sT0}, 0x40000000, s{sT0}")
    g.e(f"v_add_u32 v{vH[5]}, s{sT0}, v{vT}")
    g.e(f"s_lshl_b32 s{sT0}, s{sNT}, 5")
    g.e(f"s_lshl_b32 s{sT1}, s{sW}, 3")
    g.e(f"s_add_u32 s{sT0}, s{sT0}, s{sT1}")
    g.e(f"s_mul_i32 s{sT0}, s{sT0}, 10240")
    g.e(f"v_add_u32 v{vW}, s{sT0}, v{vT}")
    if not fused:
        g.e("s_waitcnt lgkmcnt(0)")
        st()
    srd(g, SA, 50, 51, 4 << 20)
    srd(g, SWP, 50, 51, WP_BYTES, add=WS_WP)
    srd(g, SX, 40, 41, 2 << 20)
    srd(g, SO, 46, 47, 2 << 20)
    g.e(f"s_add_u32 s{sT0}, s{sR0}, s{sW}")
    g.e(f"s_lshl_b32 s{sT0}, s{sT0}, 15")
    g.e(f"s_lshl_b32 s{sT1}, s{sNT}, 6")
    g.e(f"s_add_u32 s{sT0}, s{sT0}, s{sT1}")
    g.e(f"v_lshrrev_b32 v{vO}, 2, v{vLane}")
    g.e(f"v_lshlrev_b32 v{vO}, 10, v{vO}")
    g.e(f"v_and_b32 v{vT2}, 3, v{vLane}")
    g.e(f"v_lshlrev_b32 v{vT2}, 4, v{vT2}")
    g.e(f"v_add3_u32 v{vO}, v{vO}, v{vT2}, s{sT0}")
    g.e(f"s_movk_i32 s{sT1}, 0x4000")
    xfl = " nt" if o.get("nt", 1) else ""
    if fused:
        g.vmem(f"buffer_load_dwordx4 {vr(vXF)}, v{vO}, {sr(SX)}, 0 offen{xfl}", ("XF", 0))
        g.vmem(f"buffer_load_dwordx4 {vr(vXF+4)}, v{vO}, {sr(SX)}, s{sT1} offen{xfl}", ("XF", 1))
    g.e(f"v_and_b32 v{vT}, 31, v{vLane}")
    g.e(f"v_cmp_ne_u32 vcc, 0, v{vT}")
    g.e("s_nop 1")
    g.e(f"v_cndmask_b32 v{vMR}, 0, -1, vcc")
    g.e(f"v_cmp_ne_u32 vcc, 31, v{vT}")
    g.e("s_nop 1")
    g.e(f"v_cndmask_b32 v{vML}, 0, -1, vcc")
    if fused:
        g.e(f"s_cmp_lg_u32 s{sW}, 0")
        g.e(f"s_cbranch_scc1 {name}_fw")
        srd(g, SDB, 50, 51, 16 << 20)
        vF, vG = HB, HB+1
        g.e(f"s_mov_b32 s{sT0}, -1")
        g.e(f"s_cmp_eq_u32 s{sMT}, 0")
        g.e(f"s_cselect_b32 s{sT0}, 0xfffffff0, s{sT0}")
        g.e(f"s_cmp_eq_u32 s{sMT}, 7")
        g.e(f"s_cselect_b32 s94, 0xffff0fff, s{sT0}")
        g.e(f"s_movk_i32 s95, 0x1fff")
        g.e(f"s_lshr_b32 s{sT0}, s{sR0}, 2")
        g.e(f"s_lshl_b32 s{sT0}, s{sT0}, 4")
        g.e(f"s_add_u32 s{sT0}, s{sT0}, s{sNT}")
        g.e(f"s_lshl_b32 s{sT0}, s{sT0}, 8")
        g.e(f"s_add_u32 s{sT0}, s{sT0}, {WS_MB}")
        g.e(f"v_lshlrev_b32 v{vF}, 2, v{vLane}")
        g.e(f"v_add_u32 v{vF}, s{sT0}, v{vF}")
        g.e(f"s_mov_b32 s{sT0}, 0")
        g.label(f"{name}_fpoll")
        g.e(f"buffer_load_dword v{vG}, v{vF}, {sr(SDB)}, 0 offen sc1")
        g.e(f"s_add_u32 s{sT0}, s{sT0}, 1")
        g.e(f"s_cmp_gt_u32 s{sT0}, 200000")
        g.e(f"s_cbranch_scc1 {name}_fw")
        g.e("s_waitcnt vmcnt(0)")
        g.e(f"v_cmp_ne_u32 vcc, s3, v{vG}")
        g.e("s_nop 4")
        g.e("s_and_b64 vcc, vcc, s[94:95]")
        g.e(f"s_cbranch_scc1 {name}_fpoll")
        g.label(f"{name}_fw")
        g.e("s_barrier")
        st()
        dt(g, 9); dt(g, 10, True)

    def Hreg(s_, j): return HB + s_*24 + j*4
    def HIreg(s_, r): return HIB + s_*16 + r*4
    def Wreg(s_, t): return WB + s_*40 + t*4
    def stage_loads(k):
        s_ = k % NST
        so_h = "0" if k < 4 else f"s{C4K}"
        so_hi = f"s{C2M}" if k < 4 else f"s{C2M4K}"
        io = (k % 4) * 1024
        def ldH(j): return (f"buffer_load_dwordx4 {vr(Hreg(s_,j))}, v{vH[j]}, {sr(SA)}, {so_h} offen offset:{io}{lf}", ("H", k, j))
        def ldHI(r): return (f"buffer_load_dwordx4 {vr(HIreg(s_,r))}, v{vH[r+1]}, {sr(SA)}, {so_hi} offen offset:{io}{lf}", ("HI", k, r))
        def ldW(t):
            so = ["0", f"s{C4K}", f"s{C8K}"][t // 4]
            return (f"buffer_load_dwordx4 {ar(Wreg(s_,t))}, v{vW}, {sr(SWP)}, {so} offen offset:{(t%4)*1024}{lf}", ("W", k, t))
        L = [ldW(1), ldH(0), ldH(1), ldH(2), ldH(3), ldW(4), ldH(4), ldW(7), ldH(5), ldW(9)]
        L += [ldHI(r) for r in range(4)]
        L += [ldW(0), ldW(3), ldW(6), ldW(2), ldW(5), ldW(8)]
        L.append(("BUMP", None))
        return L
    queue = []
    for k in range(8):
        for it in stage_loads(k): queue.append((k, it))
        if k == 3 and not fused:
            queue.append((k, (f"buffer_load_dwordx4 {vr(vXF)}, v{vO}, {sr(SX)}, 0 offen{xfl}", ("XF", 0))))
            queue.append((k, (f"buffer_load_dwordx4 {vr(vXF+4)}, v{vO}, {sr(SX)}, s{sT1} offen{xfl}", ("XF", 1))))
    def issue(item):
        s, tok = item
        if s == "BUMP": g.e(f"v_add_u32 v{vW}, 10240, v{vW}")
        else: g.vmem(s, tok)
    def issue_next(cur_k):
        if not queue: return False
        k, it = queue[0]
        if k - NST >= cur_k or len(g.vm) >= 62: return False
        queue.pop(0); issue(it)
        if queue and queue[0][1][0] == "BUMP": issue(queue.pop(0)[1])
        return True
    for _ in range(PRE): issue_next(0)
    for k in range(8):
        s_ = k % NST
        g.c(f"---- k-step {k}")
        if not fused or k in (1,): st()
        dpp0 = [(j, i) for j in range(6) for i in range(4)]
        dpp2 = list(dpp0)
        mf = []
        for di in range(3):
            for r in range(4): mf.append((r, ("W", k, di*3+1), Wreg(s_, di*3+1), [("H", k, r+di)], Hreg(s_, r+di), "A"))
        for r in range(4): mf.append((r, ("W", k, 9), Wreg(s_, 9), [("HI", k, r)], HIreg(s_, r), "B"))
        for di in range(3):
            for r in range(4): mf.append((r, ("W", k, di*3+0), Wreg(s_, di*3), [], T0 + (r+di)*4, "C"))
        for di in range(3):
            for r in range(4): mf.append((r, ("W", k, di*3+2), Wreg(s_, di*3+2), [], T2 + (r+di)*4, "D"))
        for n, (r, wt, wreg, ht, hreg, grp) in enumerate(mf):
            for tok in [wt] + ht:
                while any(it[1] == tok for _, it in queue): assert issue_next(k)
            g.wait_vm([wt] + ht)
            c = "0" if (k == 0 and n < 4) else ar(ACC+16*r, 16)
            g.e(f"v_mfma_f32_32x32x16_bf16 {ar(ACC+16*r,16)}, {ar(wreg)}, {vr(hreg)}, {c}")
            if grp in "AB" and n >= 2:
                for _ in range(2):
                    if dpp0:
                        j, i = dpp0.pop(0)
                        while any(it[1] == ("H", k, j) for _, it in queue): assert issue_next(k)
                        g.wait_vm([("H", k, j)])
                        g.e(f"v_and_b32_dpp v{T0+j*4+i}, v{Hreg(s_,j)+i}, v{vMR} wave_shr:1 row_mask:0xf bank_mask:0xf bound_ctrl:0")
            if grp == "C":
                for _ in range(3):
                    if dpp2:
                        j, i = dpp2.pop(0)
                        g.e(f"v_and_b32_dpp v{T2+j*4+i}, v{Hreg(s_,j)+i}, v{vML} wave_shl:1 row_mask:0xf bank_mask:0xf bound_ctrl:0")
            if n % EVERY == EVERY - 1: issue_next(k)
        assert not dpp0 and not dpp2
    assert not queue
    g.c("---- epilogue")
    st()
    dt(g, 11)
    vA = HB
    g.e(f"v_lshlrev_b32 v{vA}, 4, v{vLane}")
    g.e(f"s_lshl_b32 s{sT0}, s{sW}, 12")
    g.e(f"v_add_u32 v{vA}, s{sT0}, v{vA}")
    g.e(f"v_and_b32 v{vA+1}, 3, v{vLane}")
    g.e(f"v_lshlrev_b32 v{vA+1}, 10, v{vA+1}")
    g.e(f"v_lshrrev_b32 v{vA+2}, 2, v{vLane}")
    g.e(f"v_lshl_add_u32 v{vA+1}, v{vA+2}, 4, v{vA+1}")
    g.e(f"s_lshl_b32 s{sT0}, s{sW}, 14")
    g.e(f"v_add_u32 v{vA+1}, s{sT0}, v{vA+1}")
    g.e("s_nop 4")
    for r in range(4):
        for q in range(4):
            g.e(f"ds_write_b128 v{vA}, {ar(ACC+16*r+4*q)} offset:{r*16384 + q*1024}")
    g.e("s_waitcnt lgkmcnt(0)")
    g.e("s_barrier")
    R = vA + 8
    for i in range(2):
        for src in range(4):
            for hf in range(2):
                g.lds(f"ds_read_b128 {vr(R + ((i*4+src)*2+hf)*4)}, v{vA+1} offset:{src*4096 + hf*512 + i*256}", ("R", i, src))
    g.wait_vm([("XF", 0), ("XF", 1)])
    for i in range(2):
        base = R + i*32
        g.wait_lg([("R", i, 1)])
        for e_ in range(8): g.e(f"v_add_f32 v{base+e_}, v{base+e_}, v{base+8+e_}")
        g.wait_lg([("R", i, 3)])
        for e_ in range(8): g.e(f"v_add_f32 v{base+16+e_}, v{base+16+e_}, v{base+24+e_}")
        for e_ in range(4):
            x = vXF + 4*i + e_
            g.e(f"v_lshlrev_b32 v{vA+2}, 16, v{x}")
            g.e(f"v_and_b32 v{vA+3}, 0xffff0000, v{x}")
            g.e(f"v_add_f32 v{base+2*e_}, v{base+2*e_}, v{vA+2}")
            g.e(f"v_add_f32 v{base+2*e_+1}, v{base+2*e_+1}, v{vA+3}")
        for e_ in range(8): g.e(f"v_add_f32 v{base+e_}, v{base+e_}, v{base+16+e_}")
        for e_ in range(4): g.e(f"v_cvt_pk_bf16_f32 v{vXF+4*i+e_}, v{base+2*e_}, v{base+2*e_+1}")
        g.vmem(f"buffer_store_dwordx4 {vr(vXF+4*i)}, v{vO}, {sr(SO)}, {'0' if i==0 else 's%d'%sT1} offen{o.get('ostf','')}")
    dt_finish(g)
    st.finish(st.n + 2)
    return AEND

def gen_all(out, o):
    fused = o.get("fused", 1)
    DT[0] = bool(o.get("dt", 0))
    if fused:
        name = "standalone__controlnet__diffusion_kernel" if o.get("single", 0) else "fused_kernel"
        g = Gen(); st = Stamper(g, o.get("st", 0))
        entry(g, name, st)
        phase1(g, name, st, True, o)
        aend = phase2(g, name, st, True, o)
        g.label(f"{name}_end"); g.e("s_endpgm")
        build([(name, g.text(), kd(name, 256 + max(aend, 144), 256, 100), 256, 256, 160*1024)], out)
    else:
        g = Gen(); st = Stamper(g, o.get("st", 0) == 1)
        entry(g, "prep_kernel", st); phase1(g, "prep_kernel", st, False, o)
        g.label("prep_kernel_end"); g.e("s_endpgm")
        g2 = Gen(); st2 = Stamper(g2, o.get("st", 0) == 2)
        entry(g2, "conv_kernel", st2); aend = phase2(g2, "conv_kernel", st2, False, o)
        g2.label("conv_kernel_end"); g2.e("s_endpgm")
        build([("prep_kernel", g.text(), kd("prep_kernel", 256+144, 256, 100), 256, 256, 160*1024),
               ("conv_kernel", g2.text(), kd("conv_kernel", 256+aend, 256, 100), 256, 256, 65536)], out)

if __name__ == "__main__":
    o = {}
    for a in sys.argv[2:]:
        k, v = a.split("=")
        o[k] = int(v) if v.lstrip("-").isdigit() else " " + v.replace("+", " ")
    gen_all(sys.argv[1], o)
```

```python
import sys, struct
from gen import Gen, vr, ar, sr, srd, kd, build, WS_H, WS_HI, WS_WP, WS_ST, WP_BYTES

LOG2E = 1.4426950408889634
def f2u(x): return struct.unpack("<I", struct.pack("<f", x))[0]

sW = 32
WS_MB = 11 << 20

class Stamper:
    def __init__(self, g, on): self.g, self.on, self.n = g, on, 0
    def __call__(self):
        if self.on:
            assert self.n < 21
            self.g.e(f"s_memtime s[{52+2*self.n}:{53+2*self.n}]"); self.n += 1
    def start(self):
        if self.on:
            self(); self.g.e("s_memrealtime s[98:99]")
    def finish(self, total):
        if not self.on: return
        g = self.g
        while self.n < total - 1: self()
        g.e("s_waitcnt vmcnt(0)")
        self()
        n = self.n
        g.e(f"s_memrealtime s[{52+2*n}:{53+2*n}]")
        g.e("s_waitcnt lgkmcnt(0)")
        g.e(f"s_sub_u32 s{52+2*n}, s{52+2*n}, s98")
        g.e(f"s_add_u32 s{52+2*n}, s{52+2*n}, s52")
        srd(g, 20, 50, 51, 16 << 20)
        g.e(f"s_lshl_b32 s35, s2, 2")
        g.e(f"s_add_u32 s35, s35, s{sW}")
        g.e(f"s_lshl_b32 s35, s35, 7")
        g.e(f"s_add_u32 s35, s35, {12 << 20}")
        g.e(f"v_mov_b32 v2, s35")
        for i in range(n + 1):
            g.e(f"v_mov_b32 v3, s{52+2*i}")
            g.e(f"buffer_store_dword v3, v2, s[20:23], 0 offen offset:{4*i}")
        g.e(f"v_mov_b32 v3, s98")
        g.e(f"buffer_store_dword v3, v2, s[20:23], 0 offen offset:{4*(n+1)}")

DT = [False]
CPF = [0, 0]
def dt(g, i, neg=False):
    if not DT[0] or neg: return
    g.e(f"s_memrealtime s[{52+2*i}:{53+2*i}]")
def dt_finish(g):
    if not DT[0]: return
    g.e("s_waitcnt vmcnt(0)")
    g.e("s_memrealtime s[76:77]")
    g.e("s_mov_b32 s84, s48")
    g.e("s_and_b32 s85, s49, 0xffff")
    g.e("s_movk_i32 s86, 0x100")
    g.e("s_mov_b32 s87, 0x00020000")
    g.e("s_waitcnt lgkmcnt(0)")
    g.e(f"s_cmp_lg_u32 s{sW}, 0")
    g.e("s_cbranch_scc1 dt_done")
    g.e("s_cmp_eq_u32 s2, 8")
    g.e("s_cbranch_scc1 dt_g")
    g.e("s_cmp_eq_u32 s2, 12")
    g.e("s_cbranch_scc0 dt_done")
    for j, i in enumerate([2, 4, 6, 8, 9, 11, 12]):
        g.e(f"s_sub_u32 s88, s{52+2*i}, s52")
        g.e("v_mov_b32 v250, s88")
        g.e(f"v_mov_b32 v251, {4*(8+j)}")
        g.e("buffer_store_dword v250, v251, s[84:87], 0 offen")
    g.e("s_branch dt_done")
    g.label("dt_g")
    for j, i in enumerate([2, 3, 5, 7, 9, 11, 12]):
        g.e(f"s_sub_u32 s88, s{52+2*i}, s52")
        g.e("v_mov_b32 v250, s88")
        g.e(f"v_mov_b32 v251, {4*(1+j)}")
        g.e("buffer_store_dword v250, v251, s[84:87], 0 offen")
    g.label("dt_done")

def entry(g, name, st):
    g.raw(f".globl {name}\n.p2align 8\n.type {name},@function\n{name}:")
    g.e("s_cmp_ge_u32 s2, 256")
    g.e(f"s_cbranch_scc1 {name}_end")
    st.start()
    dt(g, 0)
    g.e("s_load_dwordx8 s[4:11], s[0:1], 8")
    g.e("s_load_dwordx8 s[44:51], s[0:1], 40")
    g.e("s_load_dwordx2 s[40:41], s[0:1], 0")
    g.e(f"v_and_b32 v1, 63, v0")
    g.e(f"v_lshrrev_b32 v2, 6, v0")
    g.e("s_nop 0")
    g.e(f"v_readfirstlane_b32 s{sW}, v2")
    if CPF[0]:
        g.e("s_getpc_b64 s[12:13]")
        g.e("s_and_b32 s12, s12, 0xffffff00")
        g.e("s_and_b32 s13, s13, 0xffff")
        g.e(f"s_mov_b32 s14, {name}_end-{name}")
        g.e("s_mov_b32 s15, 0x00020000")
        g.e("s_lshr_b32 s35, s2, 3")
        g.e(f"s_sub_u32 s35, s35, {CPF[1]}")
        g.e(f"s_cmp_ge_u32 s35, {CPF[0]}")
        g.e(f"s_cbranch_scc1 {name}_cpf")
        g.e("s_lshl_b32 s35, s35, 15")
        g.e("v_lshlrev_b32 v2, 7, v0")
        g.e("buffer_load_dword v255, v2, s[12:15], s35 offen")
        g.label(f"{name}_cpf")

def phase1(g, name, st, fused, o):
    stf = o.get("stf", " sc1") if fused else o.get("stf", "")
    ldf = " nt" if o.get("nt", 1) else ""
    SX, SWT, SWS, SXI, SDB = 12, 16, 20, 24, 28
    sCT, sU, sT0, sT1, sT2, sXROW, sM0X = 33, 34, 35, 36, 37, 38, 39
    sSOX, sSOW, sNONCE = 42, 43, 3
    vLane, vT, vT2, vXD, vWD, vWA, vPX, vHF, vL16 = 1, 2, 3, 4, 5, 6, 7, 8, 9
    vXA = [10, 11, 12, 13]; vXAs = [14, 15, 16, 17]
    vWAs, vST, vWR, vNC, vZ, vWRs = 18, 19, 20, 21, 22, 23
    XF, WF, ACC, TMP = 24, 64, 80, 160
    g.e(f"s_and_b32 s{sT0}, s2, 7")
    g.e(f"s_lshr_b32 s{sT1}, s2, 3")
    g.e(f"s_and_b32 s{sCT}, s{sT1}, 3")
    g.e(f"s_lshr_b32 s{sT1}, s{sT1}, 2")
    g.e(f"s_and_b32 s{sU}, s{sT0}, 3")
    g.e(f"s_lshl_b32 s{sU}, s{sU}, 3")
    g.e(f"s_add_u32 s{sU}, s{sU}, s{sT1}")
    g.e(f"v_lshrrev_b32 v{vT}, 3, v{vLane}")
    g.e(f"s_lshl_b32 s{sT2}, s{sW}, 3")
    g.e(f"v_add_u32 v{vXD}, s{sT2}, v{vT}")
    g.e(f"v_lshrrev_b32 v{vT}, 1, v{vXD}")
    g.e(f"v_and_b32 v{vT}, 7, v{vT}")
    g.e(f"v_and_b32 v{vT2}, 7, v{vLane}")
    g.e(f"v_xor_b32 v{vT}, v{vT}, v{vT2}")
    g.e(f"v_lshlrev_b32 v{vT}, 4, v{vT}")
    g.e(f"v_lshl_add_u32 v{vXD}, v{vXD}, 10, v{vT}")
    g.e(f"v_lshrrev_b32 v{vT}, 4, v{vLane}")
    g.e(f"v_lshlrev_b32 v{vT2}, 2, v{vT}")
    g.e(f"v_and_b32 v{vWD}, 15, v{vLane}")
    g.e(f"v_xor_b32 v{vWD}, v{vWD}, v{vT2}")
    g.e(f"v_lshlrev_b32 v{vWD}, 4, v{vWD}")
    g.e(f"s_lshl_b32 s{sT2}, s{sW}, 2")
    g.e(f"v_add_u32 v{vT}, s{sT2}, v{vT}")
    g.e(f"v_lshl_add_u32 v{vWD}, v{vT}, 10, v{vWD}")
    g.e(f"s_lshl_b32 s{sT2}, s{sCT}, 8")
    g.e(f"v_add_u32 v{vWD}, s{sT2}, v{vWD}")
    g.e(f"s_lshl_b32 s{sM0X}, s{sW}, 10")
    g.e(f"v_mov_b32 v{vZ}, 0")
    g.e(f"s_cmp_lt_u32 s{sT0}, 4")
    g.e(f"s_cbranch_scc1 {name}_G")
    g.e(f"s_cmp_lt_u32 s{sU}, 28")
    g.e(f"s_cbranch_scc1 {name}_P")
    g.e(f"s_cmp_eq_u32 s{sU}, 28")
    g.e(f"s_cbranch_scc1 {name}_PL")
    st_n0 = st.n
    IDLE = True

    def nonce_wait(role):
        g.wait_vm([("NC",)])
        g.e(f"s_mov_b32 s{sT2}, 0")
        g.label(f"{name}_ncpoll{role}")
        g.e(f"v_readfirstlane_b32 s{sNONCE}, v{vNC}")
        g.e(f"s_add_u32 s{sT2}, s{sT2}, 1")
        g.e(f"s_cmp_gt_u32 s{sT2}, 100000")
        g.e(f"s_cbranch_scc1 {name}_ncok{role}")
        g.e(f"s_cmp_lg_u32 s{sNONCE}, 0")
        g.e(f"s_cbranch_scc1 {name}_ncok{role}")
        g.e("s_sleep 4")
        g.e(f"buffer_load_dword v{vNC}, v{vZ}, {sr(SDB)}, 0 offen sc1")
        g.e("s_waitcnt vmcnt(0)")
        g.e(f"s_branch {name}_ncpoll{role}")
        g.label(f"{name}_ncok{role}")

    def body(role):
        G = role == "G"
        NX = {"G": 2, "P": 5, "PL": 4}[role]
        S = {"G": 6, "P": 4, "PL": 4}[role]
        XB = NX * 4096
        STG = XB + 16384
        NI = NX + 4
        PRE1 = o.get("PREG", 2) if G else o.get("PRE1", 2)
        g.vm = []; g.lg = []
        st.n = st_n0
        g.label(f"{name}_{role}")
        if G: g.e(f"s_lshl_b32 s{sXROW}, s{sU}, 16")
        else: g.e(f"s_mul_i32 s{sXROW}, s{sU}, {160*1024}")
        vPFX, vPFW = vXAs[0], vXAs[1]
        if G:
            g.e(f"v_lshrrev_b32 v{vT}, 2, v{vLane}")
            g.e(f"v_and_b32 v{vT2}, 3, v{vLane}")
            g.e(f"v_lshlrev_b32 v{vT2}, 6, v{vT2}")
            g.e(f"v_lshl_add_u32 v{vPFX}, v{vT}, 10, v{vT2}")
            g.e(f"s_lshl_b32 s{sT2}, s{sW}, 14")
        else:
            g.e(f"v_lshrrev_b32 v{vT}, 1, v{vLane}")
            g.e(f"v_and_b32 v{vT2}, 1, v{vLane}")
            g.e(f"v_lshlrev_b32 v{vT2}, 7, v{vT2}")
            g.e(f"v_lshl_add_u32 v{vPFX}, v{vT}, 10, v{vT2}")
            g.e(f"s_mul_i32 s{sT2}, s{sW}, {40*1024}")
        g.e(f"s_add_u32 s{sT2}, s{sT2}, s{sXROW}")
        g.e(f"s_lshl_b32 s{sT0}, s{sCT}, 8")
        g.e(f"s_add_u32 s{sT2}, s{sT2}, s{sT0}")
        g.e(f"v_add_u32 v{vPFX}, s{sT2}, v{vPFX}")
        g.e(f"s_lshr_b32 s{sT0}, s2, 3")
        g.e(f"s_lshl_b32 s{sT0}, s{sT0}, 14")
        g.e(f"s_lshl_b32 s{sT2}, s{sW}, 12")
        g.e(f"s_add_u32 s{sT0}, s{sT0}, s{sT2}")
        g.e(f"v_lshlrev_b32 v{vPFW}, 6, v{vLane}")
        g.e(f"v_add_u32 v{vPFW}, s{sT0}, v{vPFW}")
        g.e("s_waitcnt lgkmcnt(0)")
        st()
        dt(g, 1, True); dt(g, 2)
        if G:
            srd(g, SX, 6, 7, 2 << 20); srd(g, SWT, 8, 9, 512 << 10)
        else:
            srd(g, SX, 44, 45, 4608*1024); srd(g, SWT, 10, 11, 512 << 10)
        srd(g, SDB, 48, 49, 256)
        def ld1(kc, m):
            sb = (kc % S) * STG
            isx = m < NX
            mm = m if isx else m - NX
            g.e(f"s_add_u32 m0, s{sM0X}, {sb + m*4096}")
            if isx: g.e(f"s_add_u32 s{sSOX}, s{sXROW}, {mm*32768 + kc*128}")
            else:   g.e(f"s_mov_b32 s{sSOW}, {(kc*64 + 16*mm)*1024}")
            va, sd, so = (vXD, SX, sSOX) if isx else (vWD, SWT, sSOW)
            g.vmem(f"buffer_load_dwordx4 v{va}, {sr(sd)}, s{so} offen{ldf} lds", ("D", kc))
        if G:
            g.e(f"s_or_b32 s{sT0}, s2, s{sW}")
            g.e(f"s_cmp_lg_u32 s{sT0}, 0")
            g.e(f"s_cbranch_scc1 {name}_nn")
            g.e("s_memrealtime s[96:97]")
            g.e("s_waitcnt lgkmcnt(0)")
            g.e(f"s_or_b32 s96, s96, 1")
            g.e(f"v_mov_b32 v{vT}, s96")
            g.e(f"buffer_store_dword v{vT}, v{vZ}, {sr(SDB)}, 0 offen sc1")
            g.label(f"{name}_nn")
        def prefetch():
            if not o.get("pf", 1): return
            g.vmem(f"buffer_load_dword v{TMP}, v{vPFX}, {sr(SX)}, 0 offen{ldf}")
            if not G:
                g.e(f"s_mov_b32 s{sSOX}, 0x8000")
                g.vmem(f"buffer_load_dword v{TMP+1}, v{vPFX}, {sr(SX)}, s{sSOX} offen{ldf}")
            g.vmem(f"buffer_load_dword v{TMP+2}, v{vPFW}, {sr(SWT)}, 0 offen{ldf}")
        if o.get("pf", 1) in (2, 3): prefetch()
        if o.get("pf", 1) == 3:
            g.e("s_waitcnt vmcnt(0)"); g.vm = []
        for m in range(NI): ld1(0, m)
        if o.get("pf", 1) == 1: prefetch()
        for kc in range(1, PRE1):
            for m in range(NI): ld1(kc, m)
        ldq = [(kc, m) for kc in range(PRE1, 8) for m in range(NI)]
        if G:
            srd(g, SXI, 4, 5, 2 << 20)
            g.e(f"v_lshrrev_b32 v{vT}, 4, v{vLane}")
            g.e(f"s_lshl_b32 s{sT2}, s{sW}, 2")
            g.e(f"v_add_u32 v{vT}, s{sT2}, v{vT}")
            g.e(f"v_and_b32 v{vT2}, 15, v{vLane}")
            g.e(f"v_xor_b32 v{vT2}, v{vT2}, v{vT}")
            g.e(f"v_lshlrev_b32 v{vT2}, 4, v{vT2}")
            g.e(f"v_lshl_add_u32 v{vT}, v{vT}, 10, v{vT2}")
            g.e(f"s_lshl_b32 s{sT2}, s{sCT}, 8")
            g.e(f"v_add_u32 v{vWR}, s{sT2}, v{vT}")
            k6 = [i for i, (kc, m) in enumerate(ldq) if kc >= S][0]
            ldq[k6:k6] = [("X", m) for m in range(4)]
        freed = [0]
        def ldnext():
            if not ldq: return False
            kc, m = ldq[0]
            if kc == "X":
                ldq.pop(0)
                g.e(f"s_add_u32 m0, s{sM0X}, {6*STG + m*4096}")
                g.e(f"s_add_u32 s{sSOX}, s{sXROW}, {m*16384}")
                g.vmem(f"buffer_load_dwordx4 v{vWR}, {sr(SXI)}, s{sSOX} offen{ldf} lds", ("XI",))
                return True
            if kc - S >= freed[0]: return False
            ldq.pop(0); ld1(kc, m); return True
        g.e(f"v_and_b32 v{vPX}, 31, v{vLane}")
        g.e(f"v_lshrrev_b32 v{vHF}, 5, v{vLane}")
        g.e(f"v_lshlrev_b32 v{vL16}, 4, v{vLane}")
        g.e(f"v_lshrrev_b32 v{vT}, 1, v{vPX}")
        g.e(f"v_and_b32 v{vT}, 7, v{vT}")
        g.e(f"v_xor_b32 v{vT}, v{vT}, v{vHF}")
        g.e(f"v_lshlrev_b32 v{vT}, 4, v{vT}")
        g.e(f"v_lshl_add_u32 v{vXA[0]}, v{vPX}, 7, v{vT}")
        if G:
            g.e(f"s_lshr_b32 s{sT2}, s{sW}, 1")
            g.e(f"s_lshl_b32 s{sT2}, s{sT2}, 12")
            g.e(f"v_add_u32 v{vXA[0]}, s{sT2}, v{vXA[0]}")
        for s in range(1, 4):
            g.e(f"v_xor_b32 v{vXA[s]}, {s*32}, v{vXA[0]}")
        g.e(f"v_bfe_u32 v{vT}, v{vLane}, 2, 2")
        g.e(f"v_lshl_add_u32 v{vT2}, v{vHF}, 3, v{vT}")
        g.e(f"v_lshlrev_b32 v{vWA}, 8, v{vT2}")
        if G:
            g.e(f"s_and_b32 s{sT2}, s{sW}, 1")
            g.e(f"s_lshl_b32 s{sT2}, s{sT2}, 1")
            g.e(f"v_xor_b32 v{vT}, s{sT2}, v{vT}")
        else:
            g.e(f"v_xor_b32 v{vT}, s{sW}, v{vT}")
        g.e(f"v_lshl_add_u32 v{vWA}, v{vT}, 6, v{vWA}")
        g.e(f"v_bfe_u32 v{vT}, v{vLane}, 4, 1")
        g.e(f"v_lshl_add_u32 v{vWA}, v{vT}, 5, v{vWA}")
        g.e(f"v_and_b32 v{vT}, 3, v{vLane}")
        g.e(f"v_lshl_add_u32 v{vWA}, v{vT}, 3, v{vWA}")
        srd(g, SWS, 50, 51, 16 << 20)
        if o.get("tlb", 0):
            g.e(f"v_lshlrev_b32 v{vT}, {o['tlb']}, v{vLane}")
            g.vmem(f"buffer_load_dword v{TMP+3}, v{vT}, {sr(SWS)}, 0 offen")
        if not G:
            g.e(f"s_lshl_b32 s{sT0}, s{sCT}, 2")
            g.e(f"s_add_u32 s{sT0}, s{sT0}, s{sW}")
            g.e(f"s_mul_i32 s{sT0}, s{sT0}, {32*10240}")
            g.e(f"s_add_u32 s{sT0}, s{sT0}, {WS_WP}")
            g.e(f"v_add_u32 v{vST}, s{sT0}, v{vL16}")
        if role == "PL":
            g.e(f"v_lshlrev_b32 v{vWR}, 10, v{vHF}")
        NACC = 2 if G else NX
        vWAs2 = vST if G else vWRs
        def stage_addr(kc):
            sb = (kc % S) * STG
            for s in range(4):
                g.e(f"v_add_u32 v{vXAs[s]}, {sb}, v{vXA[s]}")
            g.e(f"v_add_u32 v{vWAs}, {sb + XB}, v{vWA}")
            if G: g.e(f"v_xor_b32 v{vWAs2}, 64, v{vWAs}")
            if role == "PL": g.e(f"v_sub_u32 v{vWAs2}, v{vWAs}, v{vWR}")
        def read_list(kc, s):
            p = (kc*4 + s) % 2
            L = []
            if G:
                L.append((f"ds_read_b128 {vr(XF+p*20)}, v{vXAs[s]}", 0))
                for cb in range(2):
                    for h in range(2):
                        L.append((f"ds_read_b64_tr_b16 {vr(WF+p*8+cb*4+h*2,2)}, v{vWAs if cb==0 else vWAs2} offset:{s*4096+h*1024}", cb))
            else:
                for h in range(2):
                    L.append((f"ds_read_b64_tr_b16 {vr(WF+p*8+h*2,2)}, v{vWAs} offset:{s*4096+h*1024}", 0))
                for b in range(NX):
                    L.append((f"ds_read_b128 {vr(XF+p*20+b*4)}, v{vXAs[s]} offset:{b*4096}", b))
                if role == "PL":
                    for h in range(2):
                        L.append((f"ds_read_b64_tr_b16 {vr(WF+p*8+4+h*2,2)}, v{vWAs2} offset:{s*4096+h*2048}", NX-1))
            return [(r, ("R", kc, s, b)) for r, b in L]
        def mfma_list(kc, s):
            p = (kc*4 + s) % 2
            first = kc == 0 and s == 0
            L = []
            for b in range(NACC):
                ac = vr(ACC+16*b, 16); c = "0" if first else ac
                if G: L.append(f"v_mfma_f32_32x32x16_bf16 {ac}, {vr(WF+p*8+b*4)}, {vr(XF+p*20)}, {c}")
                else: L.append(f"v_mfma_f32_32x32x16_bf16 {ac}, {vr(XF+p*20+b*4)}, {vr(WF+p*8)}, {c}")
            return L
        st()
        g.wait_vm([("D", 0)])
        g.e("s_barrier")
        st()
        stage_addr(0)
        for r, t in read_list(0, 0): g.lds(r, t)
        LPM = o.get("LPG", 3) if G else o.get("LPP", 2)
        slot = [0]
        for kc in range(8):
            for s in range(4):
                if s < 3:
                    nxt = read_list(kc, s+1)
                else:
                    nxt = []
                    if kc < 7:
                        g.wait_lg([("R", kc, 3, b) for b in range(NACC)])
                        while any(c_ == kc+1 for c_, _ in ldq): assert ldnext()
                        g.wait_vm([("D", kc+1)])
                        if G and kc == 6: g.wait_vm([("XI",)])
                        g.e("s_barrier")
                        st()
                        freed[0] = kc + 1
                        stage_addr(kc+1)
                        nxt = read_list(kc+1, 0)
                mfl = mfma_list(kc, s)
                per = -(-len(nxt) // len(mfl))
                for mi, mf in enumerate(mfl):
                    g.wait_lg([("R", kc, s, b) for b in range(mi+1)])
                    g.e(mf)
                    for _ in range(per):
                        if nxt:
                            r, t = nxt.pop(0); g.lds(r, t)
                    if LPM > 0:
                        for _ in range(LPM): ldnext()
                    else:
                        slot[0] += 1
                        if slot[0] % (-LPM) == 0: ldnext()
                if role == "PL":
                    p = (kc*4 + s) % 2
                    g.e(f"s_mov_b32 s{sT2}, {((kc*4+s)*10+9)*1024}")
                    g.vmem(f"buffer_store_dwordx4 {vr(WF+p*8+4)}, v{vST}, {sr(SWS)}, s{sT2} offen{stf}")
            if kc == 4 and (G or fused):
                g.vmem(f"buffer_load_dword v{vNC}, v{vZ}, {sr(SDB)}, 0 offen sc1", ("NC",))
        assert not ldq
        st()
        dt(g, 3 if G else 4)
        if not G:
            g.e("s_nop 7")
            for b in range(NX):
                g.e(f"s_mul_i32 s{sT0}, s{sU}, 160")
                g.e(f"s_add_u32 s{sT0}, s{sT0}, {32*b}")
                g.e(f"s_lshr_b32 s{sT1}, s{sT0}, 9")
                g.e(f"s_and_b32 s{sT0}, s{sT0}, 511")
                g.e(f"s_lshr_b32 s{sT0}, s{sT0}, 4")
                g.e(f"s_mul_i32 s{sT0}, s{sT0}, 10")
                g.e(f"s_add_u32 s{sT0}, s{sT0}, s{sT1}")
                g.e(f"s_lshl_b32 s{sT0}, s{sT0}, 10")
                g.e(f"s_add_u32 s{sT1}, s{sT0}, 10240")
                for hh in range(2):
                    d = TMP + (b*2+hh)*4
                    for i in range(4):
                        g.e(f"v_cvt_pk_bf16_f32 v{d+i}, v{ACC+16*b+8*hh+2*i}, v{ACC+16*b+8*hh+2*i+1}")
                    g.vmem(f"buffer_store_dwordx4 {vr(d)}, v{vST}, {sr(SWS)}, s{sT0 if hh==0 else sT1} offen{stf}")
        else:
            XT = 6*STG
            XR = TMP
            g.e(f"s_lshr_b32 s{sT0}, s{sW}, 1")
            g.e(f"s_and_b32 s{sT1}, s{sW}, 1")
            g.e(f"s_lshl_b32 s{sT2}, s{sT0}, 13")
            g.e(f"s_add_u32 s{sT2}, s{sT2}, {XT}")
            g.e(f"v_and_b32 v{vT}, 15, v{vPX}")
            g.e(f"s_lshl_b32 s{sSOX}, s{sT1}, 3")
            g.e(f"v_xor_b32 v{vT}, s{sSOX}, v{vT}")
            g.e(f"v_lshlrev_b32 v{vT}, 4, v{vT}")
            g.e(f"v_lshl_add_u32 v{vT}, v{vPX}, 8, v{vT}")
            g.e(f"v_lshl_add_u32 v{vT}, v{vHF}, 3, v{vT}")
            g.e(f"v_add_u32 v{vT}, s{sT2}, v{vT}")
            for j in range(8):
                g.e(f"v_xor_b32 v{vT2}, {j*16}, v{vT}")
                g.lds(f"ds_read_b64 {vr(XR+2*j,2)}, v{vT2}", ("XR", j))
            g.e(f"s_lshl_b32 s{sT2}, s{sT0}, 15")
            g.e(f"s_add_u32 s{sT2}, s{sT2}, s{sXROW}")
            g.e(f"s_lshl_b32 s{sSOX}, s{sCT}, 13")
            g.e(f"s_add_u32 s{sT2}, s{sT2}, s{sSOX}")
            g.e(f"s_lshl_b32 s{sSOX}, s{sT1}, 12")
            g.e(f"s_add_u32 s{sT2}, s{sT2}, s{sSOX}")
            g.e(f"v_add_u32 v{vST}, s{sT2}, v{vL16}")
            vGA, vGO = vXAs[0], vXAs[1]
            g.e(f"s_lshl_b32 s{sSOX}, s{sU}, 1")
            g.e(f"s_add_u32 s{sSOX}, s{sSOX}, s{sT0}")
            g.e(f"s_lshl_b32 s{sSOX}, s{sSOX}, 12")
            g.e(f"s_add_u32 s{sSOX}, s{sSOX}, {WS_ST}")
            g.e(f"v_lshlrev_b32 v{vGO}, 4, v{vPX}")
            g.e(f"v_add_u32 v{vGO}, s{sSOX}, v{vGO}")
            g.e(f"v_lshl_add_u32 v{vGA}, v{vHF}, 11, v{vGO}")
            g.e(f"s_lshl_b32 s{sSOW}, s{sCT}, 1")
            g.e(f"s_add_u32 s{sSOW}, s{sSOW}, s{sT1}")
            g.e(f"s_lshl_b32 s{sSOW}, s{sSOW}, 9")
            S1, S2 = TMP+16, TMP+18
            S1b, S2b = TMP+20, TMP+21
            for j in range(8):
                g.wait_lg([("XR", j)])
                for i in range(2):
                    x = XR+2*j+i; a = ACC+4*j+2*i
                    g.e(f"v_lshlrev_b32 v{vT}, 16, v{x}")
                    g.e(f"v_and_b32 v{vT2}, 0xffff0000, v{x}")
                    g.e(f"v_add_f32 v{a}, v{a}, v{vT}")
                    g.e(f"v_add_f32 v{a+1}, v{a+1}, v{vT2}")
                    if j == 0 and i == 0:
                        g.e(f"v_mov_b32 v{S1}, v{a}")
                        g.e(f"v_mov_b32 v{S1b}, v{a+1}")
                        g.e(f"v_mul_f32 v{S2}, v{a}, v{a}")
                        g.e(f"v_mul_f32 v{S2b}, v{a+1}, v{a+1}")
                    else:
                        g.e(f"v_add_f32 v{S1}, v{S1}, v{a}")
                        g.e(f"v_add_f32 v{S1b}, v{S1b}, v{a+1}")
                        g.e(f"v_fmac_f32 v{S2}, v{a}, v{a}")
                        g.e(f"v_fmac_f32 v{S2b}, v{a+1}, v{a+1}")
            g.e(f"v_add_f32 v{S1}, v{S1}, v{S1b}")
            g.e(f"v_add_f32 v{S2}, v{S2}, v{S2b}")
            g.e(f"v_mov_b32 v{vT}, v{S1}")
            g.e(f"v_mov_b32 v{vT2}, v{S2}")
            g.e("s_nop 1")
            g.e(f"v_permlane32_swap_b32 v{S1}, v{vT}")
            g.e(f"v_permlane32_swap_b32 v{S2}, v{vT2}")
            g.e(f"v_add_f32 v{S1}, v{S1}, v{vT}")
            g.e(f"v_add_f32 v{S2}, v{S2}, v{vT2}")
            nonce_wait(role)
            g.e(f"v_mov_b32 v{S1+1}, v{vNC}")
            g.e(f"v_mov_b32 v{S2+1}, v{vNC}")
            g.e("s_mov_b64 exec, 0xffffffff")
            g.e(f"buffer_store_dwordx4 {vr(S1)}, v{vGO}, {sr(SWS)}, s{sSOW} offen sc1")
            g.e("s_mov_b64 exec, -1")
            st()
            E = TMP + 24
            g.e(f"s_mov_b32 s{sT1}, {WS_HI}")
            for j in range(16):
                g.e(f"v_cvt_pk_bf16_f32 v{XR+j}, v{ACC+2*j}, v{ACC+2*j+1}")
            g.e(f"s_mov_b32 s{sT2}, 0")
            g.label(f"{name}_poll")
            for e_ in range(4):
                g.e(f"buffer_load_dwordx4 {vr(E+4*e_)}, v{vGA}, {sr(SWS)}, 0 offen offset:{e_*512} sc1")
            g.e(f"s_add_u32 s{sT2}, s{sT2}, 1")
            g.e(f"s_cmp_gt_u32 s{sT2}, 100000")
            g.e(f"s_cbranch_scc1 {name}_pollx")
            g.e("s_waitcnt vmcnt(0)")
            g.e(f"v_xor_b32 v{vT}, v{E+1}, v{vNC}")
            for e_ in range(4):
                for o_ in (1, 3):
                    if e_ == 0 and o_ == 1: continue
                    g.e(f"v_xor_b32 v{vT2}, v{E+4*e_+o_}, v{vNC}")
                    g.e(f"v_or_b32 v{vT}, v{vT}, v{vT2}")
            g.e(f"v_cmp_ne_u32 vcc, 0, v{vT}")
            g.e("s_nop 4")
            g.e(f"s_cbranch_vccnz {name}_poll")
            g.label(f"{name}_pollx")
            g.e("s_waitcnt vmcnt(0)")
            st()
            for hh in range(4):
                g.e(f"buffer_store_dwordx4 {vr(XR+4*hh)}, v{vST}, {sr(SWS)}, s{sT1} offen offset:{hh*1024}{stf}")
            for e_ in range(1, 4):
                g.e(f"v_add_f32 v{E}, v{E}, v{E+4*e_}")
                g.e(f"v_add_f32 v{E+2}, v{E+2}, v{E+4*e_+2}")
            g.e(f"v_mov_b32 v{vT}, v{E}")
            g.e(f"v_mov_b32 v{vT2}, v{E+2}")
            g.e("s_nop 1")
            g.e(f"v_permlane32_swap_b32 v{E}, v{vT}")
            g.e(f"v_permlane32_swap_b32 v{E+2}, v{vT2}")
            g.e(f"v_add_f32 v{E}, v{E}, v{vT}")
            g.e(f"v_add_f32 v{E+2}, v{E+2}, v{vT2}")
            g.e(f"v_mul_f32 v{E}, {f2u(1/512):#x}, v{E}")
            g.e(f"v_mul_f32 v{E+2}, {f2u(1/512):#x}, v{E+2}")
            g.e(f"v_fma_f32 v{E+2}, -v{E}, v{E}, v{E+2}")
            g.e(f"v_max_f32 v{E+2}, 0, v{E+2}")
            g.e(f"v_add_f32 v{E+2}, {f2u(1e-5):#x}, v{E+2}")
            A_, B_, A2, B2 = E+4, E+5, E+6, E+7
            g.e(f"v_rsq_f32 v{A_}, v{E+2}")
            g.e("s_nop 0")
            g.e(f"v_mul_f32 v{B_}, v{E}, v{A_}")
            g.e(f"v_sub_f32 v{B_}, 0, v{B_}")
            g.e(f"v_mul_f32 v{A2}, {f2u(-LOG2E):#x}, v{A_}")
            g.e(f"v_mul_f32 v{B2}, {f2u(-LOG2E):#x}, v{B_}")
            Y = E + 8
            for hh in range(4):
                a = ACC + 8*hh
                for i in range(8): g.e(f"v_fma_f32 v{Y+i}, v{a+i}, v{A2}, v{B2}")
                for i in range(8): g.e(f"v_exp_f32 v{Y+i}, v{Y+i}")
                for i in range(8): g.e(f"v_fma_f32 v{a+i}, v{a+i}, v{A_}, v{B_}")
                for i in range(8): g.e(f"v_add_f32 v{Y+i}, 1.0, v{Y+i}")
                for i in range(8): g.e(f"v_rcp_f32 v{Y+i}, v{Y+i}")
                g.e("s_nop 0")
                for i in range(8): g.e(f"v_mul_f32 v{a+i}, v{a+i}, v{Y+i}")
                d = Y + 8 + hh*4
                for i in range(4): g.e(f"v_cvt_pk_bf16_f32 v{d+i}, v{a+2*i}, v{a+2*i+1}")
                g.e(f"buffer_store_dwordx4 {vr(d)}, v{vST}, {sr(SWS)}, 0 offen offset:{hh*1024}{stf}")
        if fused:
            while st.on and st.n < 15: st()
            if not G: nonce_wait(role)
            if G:
                g.e(f"s_lshr_b32 s{sT0}, s{sU}, 1")
                g.e(f"s_and_b32 s{sT1}, s{sU}, 1")
                g.e(f"s_lshl_b32 s{sT2}, s{sT1}, 1")
                g.e(f"s_add_u32 s{sT2}, s{sT2}, s{sT0}")
                g.e(f"s_sub_u32 s{sT2}, s{sT2}, 1")
                g.e(f"s_lshl_b32 s{sSOX}, s{sT0}, 12")
                g.e(f"s_add_u32 s{sSOW}, s{sT1}, 1")
                g.e(f"s_lshl_b32 s{sSOW}, s{sSOW}, 4")
                g.e(f"s_add_u32 s{sSOX}, s{sSOX}, s{sSOW}")
                g.e(f"s_lshl_b32 s{sSOW}, s{sT2}, 12")
                g.e(f"s_cmp_eq_u32 s{sT1}, 0")
                g.e(f"s_cselect_b32 s{sT1}, 48, 0")
                g.e(f"s_add_u32 s{sSOW}, s{sSOW}, s{sT1}")
                g.e(f"s_lshr_b32 s{sT2}, s{sT2}, 3")
                g.e(f"s_lshr_b32 s{sT0}, s{sT0}, 3")
                g.e(f"s_cmp_eq_u32 s{sT2}, s{sT0}")
                g.e(f"s_cselect_b32 s{sSOW}, s{sSOW}, s{sSOX}")
                g.e(f"v_and_b32 v{vT}, 15, v{vLane}")
                g.e(f"v_lshlrev_b32 v{vT}, 8, v{vT}")
                g.e(f"v_mov_b32 v{vT2}, s{sSOW}")
                g.e(f"v_mov_b32 v{vPX}, s{sSOX}")
                g.e(f"v_cmp_gt_u32 vcc, 16, v{vLane}")
                g.e("s_nop 1")
                g.e(f"v_cndmask_b32 v{vT2}, v{vT2}, v{vPX}, vcc")
                g.e(f"v_add_u32 v{vT}, v{vT}, v{vT2}")
                g.e(f"s_lshl_b32 s{sT0}, s{sCT}, 2")
                g.e(f"s_add_u32 s{sT0}, s{sT0}, {WS_MB}")
            else:
                g.e(f"v_lshrrev_b32 v{vT}, 2, v{vLane}")
                g.e(f"v_lshlrev_b32 v{vT}, 12, v{vT}")
                g.e(f"v_and_b32 v{vT2}, 3, v{vLane}")
                g.e(f"v_lshl_add_u32 v{vT}, v{vT2}, 8, v{vT}")
                g.e(f"s_lshl_b32 s{sT0}, s{sCT}, 10")
                g.e(f"s_lshl_b32 s{sT1}, s{sU}, 2")
                g.e(f"s_add_u32 s{sT0}, s{sT0}, s{sT1}")
                g.e(f"s_add_u32 s{sT0}, s{sT0}, {WS_MB + 64}")
            dt(g, 5 if G else 6)
            g.e("s_waitcnt vmcnt(0)")
            g.e("s_barrier")
            dt(g, 7 if G else 8)
            g.e(f"s_cmp_lg_u32 s{sW}, 0")
            g.e(f"s_cbranch_scc1 {name}_ph2")
            if G: g.e("s_mov_b64 exec, 0xffffffff")
            g.e(f"buffer_store_dword v{vNC}, v{vT}, {sr(SWS)}, s{sT0} offen sc1")
            if G: g.e("s_mov_b64 exec, -1")
            g.e(f"s_branch {name}_ph2")
        else:
            st.finish(16)
            g.e("s_endpgm")
    if fused:
        g.e("s_waitcnt lgkmcnt(0)")
        srd(g, SDB, 48, 49, 256)
        g.e("s_sleep 32")
        g.vmem(f"buffer_load_dword v{vNC}, v{vZ}, {sr(SDB)}, 0 offen sc1", ("NC",))
        nonce_wait("I")
        g.e(f"s_branch {name}_ph2")
    else:
        g.e(f"s_branch {name}_end")
    body("G"); body("P"); body("PL")

def phase2(g, name, st, fused, o):
    NST, PRE, EVERY = o.get("NST", 3), o.get("PRE", 20), o.get("EVERY", 2)
    lf = " sc1" if fused else ""
    SA, SWP, SX, SO, SDB = 12, 16, 20, 24, 28
    C4K, C8K, C2M, C2M4K = 33, 34, 42, 43
    sMT, sNT, sB, sT0, sT1, sR0, sBASE = 35, 36, 37, 38, 39, 97, 96
    vLane, vT, vW, vMR, vML, vO, vT2 = 1, 2, 3, 4, 5, 6, 7
    vH = [8+j for j in range(6)]
    vXF = 16
    HB = 24
    HIB = HB + NST*24
    T0 = HIB + NST*16
    T2 = T0 + 24
    VEND = T2 + 24
    assert VEND <= 256
    ACC, WB = 0, 64
    AEND = WB + NST*40
    g.vm = []; g.lg = []
    if fused:
        g.label(f"{name}_ph2")
        if st.on: st.n = 15
        st()
    g.e(f"s_and_b32 s{sT0}, s2, 7")
    g.e(f"s_lshr_b32 s{sT1}, s2, 3")
    g.e(f"s_and_b32 s{sB}, s{sT0}, 1")
    g.e(f"s_lshr_b32 s{sT0}, s{sT0}, 1")
    g.e(f"s_and_b32 s{sMT}, s{sT1}, 7")
    g.e(f"s_lshr_b32 s{sT1}, s{sT1}, 3")
    g.e(f"s_lshl_b32 s{sNT}, s{sT0}, 2")
    g.e(f"s_add_u32 s{sNT}, s{sNT}, s{sT1}")
    g.e(f"s_movk_i32 s{C4K}, 0x1000")
    g.e(f"s_movk_i32 s{C8K}, 0x2000")
    g.e(f"s_mov_b32 s{C2M}, 0x200000")
    g.e(f"s_mov_b32 s{C2M4K}, 0x201000")
    g.e(f"s_lshl_b32 s{sT0}, s{sB}, 5")
    g.e(f"s_lshl_b32 s{sT1}, s{sMT}, 2")
    g.e(f"s_add_u32 s{sR0}, s{sT0}, s{sT1}")
    g.e(f"s_lshl_b32 s{sBASE}, s{sR0}, 15")
    g.e(f"s_lshl_b32 s{sT0}, s{sW}, 13")
    g.e(f"s_add_u32 s{sBASE}, s{sBASE}, s{sT0}")
    g.e(f"v_lshlrev_b32 v{vT}, 4, v{vLane}")
    for j in range(1, 5):
        g.e(f"s_add_u32 s{sT0}, s{sBASE}, {(j-1)*32768}")
        g.e(f"v_add_u32 v{vH[j]}, s{sT0}, v{vT}")
    g.e(f"s_sub_u32 s{sT0}, s{sBASE}, 32768")
    g.e(f"s_cmp_eq_u32 s{sMT}, 0")
    g.e(f"s_cselect_b32 s{sT0}, 0x40000000, s{sT0}")
    g.e(f"v_add_u32 v{vH[0]}, s{sT0}, v{vT}")
    g.e(f"s_add_u32 s{sT0}, s{sBASE}, {4*32768}")
    g.e(f"s_cmp_eq_u32 s{sMT}, 7")
    g.e(f"s_cselect_b32 s{sT0}, 0x40000000, s{sT0}")
    g.e(f"v_add_u32 v{vH[5]}, s{sT0}, v{vT}")
    g.e(f"s_lshl_b32 s{sT0}, s{sNT}, 5")
    g.e(f"s_lshl_b32 s{sT1}, s{sW}, 3")
    g.e(f"s_add_u32 s{sT0}, s{sT0}, s{sT1}")
    g.e(f"s_mul_i32 s{sT0}, s{sT0}, 10240")
    g.e(f"v_add_u32 v{vW}, s{sT0}, v{vT}")
    if not fused:
        g.e("s_waitcnt lgkmcnt(0)")
        st()
    srd(g, SA, 50, 51, 4 << 20)
    srd(g, SWP, 50, 51, WP_BYTES, add=WS_WP)
    srd(g, SX, 40, 41, 2 << 20)
    srd(g, SO, 46, 47, 2 << 20)
    g.e(f"s_add_u32 s{sT0}, s{sR0}, s{sW}")
    g.e(f"s_lshl_b32 s{sT0}, s{sT0}, 15")
    g.e(f"s_lshl_b32 s{sT1}, s{sNT}, 6")
    g.e(f"s_add_u32 s{sT0}, s{sT0}, s{sT1}")
    g.e(f"v_lshrrev_b32 v{vO}, 2, v{vLane}")
    g.e(f"v_lshlrev_b32 v{vO}, 10, v{vO}")
    g.e(f"v_and_b32 v{vT2}, 3, v{vLane}")
    g.e(f"v_lshlrev_b32 v{vT2}, 4, v{vT2}")
    g.e(f"v_add3_u32 v{vO}, v{vO}, v{vT2}, s{sT0}")
    g.e(f"s_movk_i32 s{sT1}, 0x4000")
    xfl = " nt" if o.get("nt", 1) else ""
    if fused:
        g.vmem(f"buffer_load_dwordx4 {vr(vXF)}, v{vO}, {sr(SX)}, 0 offen{xfl}", ("XF", 0))
        g.vmem(f"buffer_load_dwordx4 {vr(vXF+4)}, v{vO}, {sr(SX)}, s{sT1} offen{xfl}", ("XF", 1))
    g.e(f"v_and_b32 v{vT}, 31, v{vLane}")
    g.e(f"v_cmp_ne_u32 vcc, 0, v{vT}")
    g.e("s_nop 1")
    g.e(f"v_cndmask_b32 v{vMR}, 0, -1, vcc")
    g.e(f"v_cmp_ne_u32 vcc, 31, v{vT}")
    g.e("s_nop 1")
    g.e(f"v_cndmask_b32 v{vML}, 0, -1, vcc")
    if fused:
        g.e(f"s_cmp_lg_u32 s{sW}, 0")
        g.e(f"s_cbranch_scc1 {name}_fw")
        srd(g, SDB, 50, 51, 16 << 20)
        vF, vG = HB, HB+1
        g.e(f"s_mov_b32 s{sT0}, -1")
        g.e(f"s_cmp_eq_u32 s{sMT}, 0")
        g.e(f"s_cselect_b32 s{sT0}, 0xfffffff0, s{sT0}")
        g.e(f"s_cmp_eq_u32 s{sMT}, 7")
        g.e(f"s_cselect_b32 s94, 0xffff0fff, s{sT0}")
        g.e(f"s_movk_i32 s95, 0x1fff")
        g.e(f"s_lshr_b32 s{sT0}, s{sR0}, 2")
        g.e(f"s_lshl_b32 s{sT0}, s{sT0}, 4")
        g.e(f"s_add_u32 s{sT0}, s{sT0}, s{sNT}")
        g.e(f"s_lshl_b32 s{sT0}, s{sT0}, 8")
        g.e(f"s_add_u32 s{sT0}, s{sT0}, {WS_MB}")
        g.e(f"v_lshlrev_b32 v{vF}, 2, v{vLane}")
        g.e(f"v_add_u32 v{vF}, s{sT0}, v{vF}")
        g.e(f"s_mov_b32 s{sT0}, 0")
        g.label(f"{name}_fpoll")
        g.e(f"buffer_load_dword v{vG}, v{vF}, {sr(SDB)}, 0 offen sc1")
        g.e(f"s_add_u32 s{sT0}, s{sT0}, 1")
        g.e(f"s_cmp_gt_u32 s{sT0}, 200000")
        g.e(f"s_cbranch_scc1 {name}_fw")
        g.e("s_waitcnt vmcnt(0)")
        g.e(f"v_cmp_ne_u32 vcc, s3, v{vG}")
        g.e("s_nop 4")
        g.e("s_and_b64 vcc, vcc, s[94:95]")
        g.e(f"s_cbranch_scc1 {name}_fpoll")
        g.label(f"{name}_fw")
        g.e("s_barrier")
        st()
        dt(g, 9); dt(g, 10, True)

    def Hreg(s_, j): return HB + s_*24 + j*4
    def HIreg(s_, r): return HIB + s_*16 + r*4
    def Wreg(s_, t): return WB + s_*40 + t*4
    def stage_loads(k):
        s_ = k % NST
        so_h = "0" if k < 4 else f"s{C4K}"
        so_hi = f"s{C2M}" if k < 4 else f"s{C2M4K}"
        io = (k % 4) * 1024
        def ldH(j): return (f"buffer_load_dwordx4 {vr(Hreg(s_,j))}, v{vH[j]}, {sr(SA)}, {so_h} offen offset:{io}{lf}", ("H", k, j))
        def ldHI(r): return (f"buffer_load_dwordx4 {vr(HIreg(s_,r))}, v{vH[r+1]}, {sr(SA)}, {so_hi} offen offset:{io}{lf}", ("HI", k, r))
        def ldW(t):
            so = ["0", f"s{C4K}", f"s{C8K}"][t // 4]
            return (f"buffer_load_dwordx4 {ar(Wreg(s_,t))}, v{vW}, {sr(SWP)}, {so} offen offset:{(t%4)*1024}{lf}", ("W", k, t))
        L = [ldW(1), ldH(0), ldH(1), ldH(2), ldH(3), ldW(4), ldH(4), ldW(7), ldH(5), ldW(9)]
        L += [ldHI(r) for r in range(4)]
        L += [ldW(0), ldW(3), ldW(6), ldW(2), ldW(5), ldW(8)]
        L.append(("BUMP", None))
        return L
    queue = []
    for k in range(8):
        for it in stage_loads(k): queue.append((k, it))
        if k == 3 and not fused:
            queue.append((k, (f"buffer_load_dwordx4 {vr(vXF)}, v{vO}, {sr(SX)}, 0 offen{xfl}", ("XF", 0))))
            queue.append((k, (f"buffer_load_dwordx4 {vr(vXF+4)}, v{vO}, {sr(SX)}, s{sT1} offen{xfl}", ("XF", 1))))
    def issue(item):
        s, tok = item
        if s == "BUMP": g.e(f"v_add_u32 v{vW}, 10240, v{vW}")
        else: g.vmem(s, tok)
    def issue_next(cur_k):
        if not queue: return False
        k, it = queue[0]
        if k - NST >= cur_k or len(g.vm) >= 62: return False
        queue.pop(0); issue(it)
        if queue and queue[0][1][0] == "BUMP": issue(queue.pop(0)[1])
        return True
    for _ in range(PRE): issue_next(0)
    for k in range(8):
        s_ = k % NST
        g.c(f"---- k-step {k}")
        if not fused or k in (1,): st()
        dpp0 = [(j, i) for j in range(6) for i in range(4)]
        dpp2 = list(dpp0)
        mf = []
        for di in range(3):
            for r in range(4): mf.append((r, ("W", k, di*3+1), Wreg(s_, di*3+1), [("H", k, r+di)], Hreg(s_, r+di), "A"))
        for r in range(4): mf.append((r, ("W", k, 9), Wreg(s_, 9), [("HI", k, r)], HIreg(s_, r), "B"))
        for di in range(3):
            for r in range(4): mf.append((r, ("W", k, di*3+0), Wreg(s_, di*3), [], T0 + (r+di)*4, "C"))
        for di in range(3):
            for r in range(4): mf.append((r, ("W", k, di*3+2), Wreg(s_, di*3+2), [], T2 + (r+di)*4, "D"))
        for n, (r, wt, wreg, ht, hreg, grp) in enumerate(mf):
            for tok in [wt] + ht:
                while any(it[1] == tok for _, it in queue): assert issue_next(k)
            g.wait_vm([wt] + ht)
            c = "0" if (k == 0 and n < 4) else ar(ACC+16*r, 16)
            g.e(f"v_mfma_f32_32x32x16_bf16 {ar(ACC+16*r,16)}, {ar(wreg)}, {vr(hreg)}, {c}")
            if grp in "AB" and n >= 2:
                for _ in range(2):
                    if dpp0:
                        j, i = dpp0.pop(0)
                        while any(it[1] == ("H", k, j) for _, it in queue): assert issue_next(k)
                        g.wait_vm([("H", k, j)])
                        g.e(f"v_and_b32_dpp v{T0+j*4+i}, v{Hreg(s_,j)+i}, v{vMR} wave_shr:1 row_mask:0xf bank_mask:0xf bound_ctrl:0")
            if grp == "C":
                for _ in range(3):
                    if dpp2:
                        j, i = dpp2.pop(0)
                        g.e(f"v_and_b32_dpp v{T2+j*4+i}, v{Hreg(s_,j)+i}, v{vML} wave_shl:1 row_mask:0xf bank_mask:0xf bound_ctrl:0")
            if n % EVERY == EVERY - 1: issue_next(k)
        assert not dpp0 and not dpp2
    assert not queue
    g.c("---- epilogue")
    st()
    dt(g, 11)
    vA = HB
    g.e(f"v_lshlrev_b32 v{vA}, 4, v{vLane}")
    g.e(f"s_lshl_b32 s{sT0}, s{sW}, 12")
    g.e(f"v_add_u32 v{vA}, s{sT0}, v{vA}")
    g.e(f"v_and_b32 v{vA+1}, 3, v{vLane}")
    g.e(f"v_lshlrev_b32 v{vA+1}, 10, v{vA+1}")
    g.e(f"v_lshrrev_b32 v{vA+2}, 2, v{vLane}")
    g.e(f"v_lshl_add_u32 v{vA+1}, v{vA+2}, 4, v{vA+1}")
    g.e(f"s_lshl_b32 s{sT0}, s{sW}, 14")
    g.e(f"v_add_u32 v{vA+1}, s{sT0}, v{vA+1}")
    g.e("s_nop 4")
    for r in range(4):
        for q in range(4):
            g.e(f"ds_write_b128 v{vA}, {ar(ACC+16*r+4*q)} offset:{r*16384 + q*1024}")
    g.e("s_waitcnt lgkmcnt(0)")
    g.e("s_barrier")
    R = vA + 8
    for i in range(2):
        for src in range(4):
            for hf in range(2):
                g.lds(f"ds_read_b128 {vr(R + ((i*4+src)*2+hf)*4)}, v{vA+1} offset:{src*4096 + hf*512 + i*256}", ("R", i, src))
    g.wait_vm([("XF", 0), ("XF", 1)])
    for i in range(2):
        base = R + i*32
        g.wait_lg([("R", i, 1)])
        for e_ in range(8): g.e(f"v_add_f32 v{base+e_}, v{base+e_}, v{base+8+e_}")
        g.wait_lg([("R", i, 3)])
        for e_ in range(8): g.e(f"v_add_f32 v{base+16+e_}, v{base+16+e_}, v{base+24+e_}")
        for e_ in range(4):
            x = vXF + 4*i + e_
            g.e(f"v_lshlrev_b32 v{vA+2}, 16, v{x}")
            g.e(f"v_and_b32 v{vA+3}, 0xffff0000, v{x}")
            g.e(f"v_add_f32 v{base+2*e_}, v{base+2*e_}, v{vA+2}")
            g.e(f"v_add_f32 v{base+2*e_+1}, v{base+2*e_+1}, v{vA+3}")
        for e_ in range(8): g.e(f"v_add_f32 v{base+e_}, v{base+e_}, v{base+16+e_}")
        for e_ in range(4): g.e(f"v_cvt_pk_bf16_f32 v{vXF+4*i+e_}, v{base+2*e_}, v{base+2*e_+1}")
        g.vmem(f"buffer_store_dwordx4 {vr(vXF+4*i)}, v{vO}, {sr(SO)}, {'0' if i==0 else 's%d'%sT1} offen{o.get('ostf','')}")
    dt_finish(g)
    st.finish(st.n + 2)
    return AEND

def gen_all(out, o):
    fused = o.get("fused", 1)
    DT[0] = bool(o.get("dt", 0))
    CPF[0] = o.get("cpf", 0)
    if fused:
        name = "standalone__controlnet__diffusion_kernel" if o.get("single", 0) else "fused_kernel"
        g = Gen(); st = Stamper(g, o.get("st", 0))
        entry(g, name, st)
        phase1(g, name, st, True, o)
        aend = phase2(g, name, st, True, o)
        g.label(f"{name}_end"); g.e("s_endpgm")
        build([(name, g.text(), kd(name, 256 + max(aend, 144), 256, 100), 256, 256, 160*1024)], out)
    else:
        g = Gen(); st = Stamper(g, o.get("st", 0) == 1)
        entry(g, "prep_kernel", st); phase1(g, "prep_kernel", st, False, o)
        g.label("prep_kernel_end"); g.e("s_endpgm")
        g2 = Gen(); st2 = Stamper(g2, o.get("st", 0) == 2)
        entry(g2, "conv_kernel", st2); aend = phase2(g2, "conv_kernel", st2, False, o)
        g2.label("conv_kernel_end"); g2.e("s_endpgm")
        build([("prep_kernel", g.text(), kd("prep_kernel", 256+144, 256, 100), 256, 256, 160*1024),
               ("conv_kernel", g2.text(), kd("conv_kernel", 256+aend, 256, 100), 256, 256, 65536)], out)

if __name__ == "__main__":
    o = {}
    for a in sys.argv[2:]:
        k, v = a.split("=")
        o[k] = int(v) if v.lstrip("-").isdigit() else " " + v.replace("+", " ")
    gen_all(sys.argv[1], o)
```

```python
import sys, struct
from gen import Gen, vr, ar, sr, srd, kd, build, WS_H, WS_HI, WS_WP, WS_ST, WP_BYTES
import gen4
from gen4 import Stamper, f2u, LOG2E, sW, WS_MB, dt, dt_finish, DT, CPF, entry

def phase1(g, name, st, o):
    stf = o.get("stf", " sc1")
    ldf = " nt" if o.get("nt", 0) else ""
    SX, SWT, SWS, SXI, SDB = 12, 16, 20, 24, 28
    sCT, sU, sT0, sT1, sT2, sXROW, sM0X = 33, 34, 35, 36, 37, 38, 39
    sSOX, sSOW, sNONCE = 42, 43, 3
    sODD, sKC = 94, 95
    vLane, vT, vT2, vXD, vWD, vWA, vPX, vHF, vL16 = 1, 2, 3, 4, 5, 6, 7, 8, 9
    vXA = [10, 11, 12, 13]; vXAs = [14, 15, 16, 17]
    vWAs, vST, vWR, vNC, vZ, vWAs2 = 18, 19, 20, 21, 22, 23
    XF, WF, ACC, TMP = 24, 64, 80, 160
    g.e(f"s_and_b32 s{sT0}, s2, 7")
    g.e(f"s_lshr_b32 s{sT1}, s2, 3")
    g.e(f"s_and_b32 s{sCT}, s{sT1}, 3")
    g.e(f"s_lshr_b32 s{sT1}, s{sT1}, 2")
    g.e(f"s_and_b32 s{sU}, s{sT0}, 3")
    g.e(f"s_lshl_b32 s{sU}, s{sU}, 3")
    g.e(f"s_add_u32 s{sU}, s{sU}, s{sT1}")
    g.e(f"v_lshrrev_b32 v{vT}, 3, v{vLane}")
    g.e(f"s_lshl_b32 s{sT2}, s{sW}, 3")
    g.e(f"v_add_u32 v{vXD}, s{sT2}, v{vT}")
    g.e(f"v_lshrrev_b32 v{vT}, 1, v{vXD}")
    g.e(f"v_and_b32 v{vT}, 7, v{vT}")
    g.e(f"v_and_b32 v{vT2}, 7, v{vLane}")
    g.e(f"v_xor_b32 v{vT}, v{vT}, v{vT2}")
    g.e(f"v_lshlrev_b32 v{vT}, 4, v{vT}")
    g.e(f"v_lshl_add_u32 v{vXD}, v{vXD}, 10, v{vT}")
    g.e(f"v_lshrrev_b32 v{vT}, 4, v{vLane}")
    g.e(f"v_lshlrev_b32 v{vT2}, 2, v{vT}")
    g.e(f"v_and_b32 v{vWD}, 15, v{vLane}")
    g.e(f"v_xor_b32 v{vWD}, v{vWD}, v{vT2}")
    g.e(f"v_lshlrev_b32 v{vWD}, 4, v{vWD}")
    g.e(f"s_lshl_b32 s{sT2}, s{sW}, 2")
    g.e(f"v_add_u32 v{vT}, s{sT2}, v{vT}")
    g.e(f"v_lshl_add_u32 v{vWD}, v{vT}, 10, v{vWD}")
    g.e(f"s_lshl_b32 s{sT2}, s{sCT}, 8")
    g.e(f"v_add_u32 v{vWD}, s{sT2}, v{vWD}")
    g.e(f"s_lshl_b32 s{sM0X}, s{sW}, 10")
    g.e(f"v_mov_b32 v{vZ}, 0")
    g.e(f"s_cmp_ge_u32 s{sT0}, 4")
    g.e(f"s_cbranch_scc1 {name}_P")
    st_n0 = st.n

    def nonce_wait(role):
        g.wait_vm([("NC",)])
        g.e(f"s_mov_b32 s{sT2}, 0")
        g.label(f"{name}_ncpoll{role}")
        g.e(f"v_readfirstlane_b32 s{sNONCE}, v{vNC}")
        g.e(f"s_add_u32 s{sT2}, s{sT2}, 1")
        g.e(f"s_cmp_gt_u32 s{sT2}, 100000")
        g.e(f"s_cbranch_scc1 {name}_ncok{role}")
        g.e(f"s_cmp_lg_u32 s{sNONCE}, 0")
        g.e(f"s_cbranch_scc1 {name}_ncok{role}")
        g.e(f"buffer_load_dword v{vNC}, v{vZ}, {sr(SDB)}, 0 offen sc1")
        g.e("s_waitcnt vmcnt(0)")
        g.e(f"s_branch {name}_ncpoll{role}")
        g.label(f"{name}_ncok{role}")

    def frag_consts(G):
        g.e(f"v_and_b32 v{vPX}, 31, v{vLane}")
        g.e(f"v_lshrrev_b32 v{vHF}, 5, v{vLane}")
        g.e(f"v_lshlrev_b32 v{vL16}, 4, v{vLane}")
        g.e(f"v_lshrrev_b32 v{vT}, 1, v{vPX}")
        g.e(f"v_and_b32 v{vT}, 7, v{vT}")
        g.e(f"v_xor_b32 v{vT}, v{vT}, v{vHF}")
        g.e(f"v_lshlrev_b32 v{vT}, 4, v{vT}")
        g.e(f"v_lshl_add_u32 v{vXA[0]}, v{vPX}, 7, v{vT}")
        if G:
            g.e(f"s_lshr_b32 s{sT2}, s{sW}, 1")
            g.e(f"s_lshl_b32 s{sT2}, s{sT2}, 12")
            g.e(f"v_add_u32 v{vXA[0]}, s{sT2}, v{vXA[0]}")
        for s in range(1, 4):
            g.e(f"v_xor_b32 v{vXA[s]}, {s*32}, v{vXA[0]}")
        g.e(f"v_bfe_u32 v{vT}, v{vLane}, 2, 2")
        g.e(f"v_lshl_add_u32 v{vT2}, v{vHF}, 3, v{vT}")
        g.e(f"v_lshlrev_b32 v{vWA}, 8, v{vT2}")
        if G:
            g.e(f"s_and_b32 s{sT2}, s{sW}, 1")
            g.e(f"s_lshl_b32 s{sT2}, s{sT2}, 1")
            g.e(f"v_xor_b32 v{vT}, s{sT2}, v{vT}")
        else:
            g.e(f"v_xor_b32 v{vT}, s{sW}, v{vT}")
        g.e(f"v_lshl_add_u32 v{vWA}, v{vT}, 6, v{vWA}")
        g.e(f"v_bfe_u32 v{vT}, v{vLane}, 4, 1")
        g.e(f"v_lshl_add_u32 v{vWA}, v{vT}, 5, v{vWA}")
        g.e(f"v_and_b32 v{vT}, 3, v{vLane}")
        g.e(f"v_lshl_add_u32 v{vWA}, v{vT}, 3, v{vWA}")

    def publish(G):
        while st.on and st.n < 13: st()
        NL = o.get("NL", 8); LG = NL.bit_length() - 1; MS = NL*128
        def slot_off(dst, src):
            g.e(f"s_and_b32 s92, s{src}, {NL-1}")
            g.e(f"s_lshl_b32 s92, s92, 7")
            g.e(f"s_lshr_b32 s{dst}, s{src}, {LG}")
            g.e(f"s_lshl_b32 s{dst}, s{dst}, 2")
            g.e(f"s_add_u32 s{dst}, s{dst}, s92")
        if G:
            g.e(f"s_lshr_b32 s{sT0}, s{sU}, 1")
            g.e(f"s_and_b32 s{sT1}, s{sU}, 1")
            g.e(f"s_lshl_b32 s{sT2}, s{sT1}, 1")
            g.e(f"s_add_u32 s{sT2}, s{sT2}, s{sT0}")
            g.e(f"s_sub_u32 s{sT2}, s{sT2}, 1")
            g.e(f"s_add_u32 s{sSOX}, s{sT1}, 1")
            g.e(f"s_lshl_b32 s{sSOX}, s{sSOX}, 2")
            g.e(f"s_add_u32 s{sSOX}, s{sSOX}, s{sCT}")
            slot_off(sSOX, sSOX)
            g.e(f"s_mul_i32 s93, s{sT0}, {16*MS}")
            g.e(f"s_add_u32 s{sSOX}, s{sSOX}, s93")
            g.e(f"s_cmp_eq_u32 s{sT1}, 0")
            g.e(f"s_cselect_b32 s{sSOW}, 12, 0")
            g.e(f"s_add_u32 s{sSOW}, s{sSOW}, s{sCT}")
            slot_off(sSOW, sSOW)
            g.e(f"s_mul_i32 s93, s{sT2}, {16*MS}")
            g.e(f"s_add_u32 s{sSOW}, s{sSOW}, s93")
            g.e(f"s_lshr_b32 s{sT2}, s{sT2}, 3")
            g.e(f"s_lshr_b32 s{sT0}, s{sT0}, 3")
            g.e(f"s_cmp_eq_u32 s{sT2}, s{sT0}")
            g.e(f"s_cselect_b32 s92, -1, 0xffff")
            g.e(f"s_mov_b32 s93, 0")
            g.e(f"v_and_b32 v{vT}, 15, v{vLane}")
            g.e(f"v_mul_u32_u24 v{vT}, {MS}, v{vT}")
            g.e(f"v_mov_b32 v{vT2}, s{sSOW}")
            g.e(f"v_mov_b32 v{vPX}, s{sSOX}")
            g.e(f"v_cmp_gt_u32 vcc, 16, v{vLane}")
            g.e("s_nop 1")
            g.e(f"v_cndmask_b32 v{vT2}, v{vT2}, v{vPX}, vcc")
            g.e(f"v_add_u32 v{vT}, v{vT}, v{vT2}")
            g.e(f"s_mov_b32 s{sT0}, {WS_MB}")
        else:
            g.e(f"v_lshrrev_b32 v{vT}, 2, v{vLane}")
            g.e(f"v_lshlrev_b32 v{vT}, 4, v{vT}")
            g.e(f"v_and_b32 v{vT2}, 3, v{vLane}")
            g.e(f"v_add_u32 v{vT}, v{vT}, v{vT2}")
            g.e(f"v_mul_u32_u24 v{vT}, {MS}, v{vT}")
            g.e(f"s_add_u32 s{sT1}, s{sU}, 16")
            slot_off(sT1, sT1)
            g.e(f"s_mul_i32 s{sT0}, s{sCT}, {4*MS}")
            g.e(f"s_add_u32 s{sT0}, s{sT0}, s{sT1}")
            g.e(f"s_add_u32 s{sT0}, s{sT0}, {WS_MB}")
            g.e(f"s_mov_b64 s[92:93], -1")
        dt(g, 5 if G else 6)
        if st.on: g.e("s_memrealtime s[78:79]")
        g.e("s_waitcnt vmcnt(0)")
        g.e("s_barrier")
        if st.on: g.e("s_memrealtime s[80:81]")
        dt(g, 7 if G else 8)
        g.e(f"s_cmp_lg_u32 s{sW}, 0")
        g.e(f"s_cbranch_scc1 {name}_ph2")
        g.e(f"s_mov_b64 exec, s[92:93]")
        g.e(f"buffer_store_dword v{vNC}, v{vT}, {sr(SWS)}, s{sT0} offen sc1")
        g.e("s_mov_b64 exec, -1")
        g.e(f"s_branch {name}_ph2")

    def bodyP():
        g.vm = []; g.lg = []
        st.n = st_n0
        g.label(f"{name}_P")
        NA = 3
        S = 3
        STG = 16384 + NA*4096
        XB3, XB4 = S*STG, S*STG + 32768
        PRE = o.get("PREP", 2)
        g.e(f"s_and_b32 s{sODD}, s{sU}, 1")
        g.e(f"s_lshr_b32 s{sT1}, s{sU}, 1")
        g.e(f"s_mul_i32 s{sXROW}, s{sT1}, 288")
        g.e(f"s_mul_i32 s{sT2}, s{sODD}, 160")
        g.e(f"s_add_u32 s{sXROW}, s{sXROW}, s{sT2}")
        g.e(f"s_lshr_b32 s{sKC}, s{sT1}, 1")
        g.e(f"s_lshl_b32 s{sKC}, s{sKC}, 16")
        g.e(f"s_lshl_b32 s93, s{sXROW}, 10")
        g.e(f"s_lshr_b32 s92, s{sKC}, 9")
        g.e("s_waitcnt lgkmcnt(0)")
        st(); dt(g, 2)
        srd(g, SX, 44, 45, 4608*1024); srd(g, SWT, 10, 11, 512 << 10)
        cur = [None]
        def kofs(kc):
            if cur[0] == kc: return
            cur[0] = kc
            g.e(f"s_add_u32 s{sT2}, s92, {kc*128}")
            g.e(f"s_and_b32 s{sT2}, s{sT2}, 0x3ff")
            g.e(f"s_add_u32 s91, s{sT2}, s93")
            g.e(f"s_lshl_b32 s90, s{sT2}, 9")
        def ldW(kc, m):
            kofs(kc)
            g.e(f"s_add_u32 m0, s{sM0X}, {(kc % S)*STG + m*4096}")
            g.e(f"s_add_u32 s{sSOW}, s90, {m*16384}")
            g.vmem(f"buffer_load_dwordx4 v{vWD}, {sr(SWT)}, s{sSOW} offen{ldf} lds", ("D", kc))
        def ldX(b, kc):
            kofs(kc)
            dst = (kc % S)*STG + 16384 + b*4096 if b < NA else [XB3, XB4][b-NA] + kc*4096
            g.e(f"s_add_u32 m0, s{sM0X}, {dst}")
            g.e(f"s_add_u32 s{sSOX}, s91, {b*32768}")
            g.vmem(f"buffer_load_dwordx4 v{vXD}, {sr(SX)}, s{sSOX} offen{ldf} lds", ("D", kc) if b < NA else ("XB", b))
        ldq = []
        for kc in range(8):
            for m in range(4): ldq.append(("W", kc, m, kc - S))
            for b in range(NA): ldq.append(("X", b, kc, kc - S))
            if kc >= 2:
                for b in (3, 4): ldq.append(("X", b, kc - 2, -1))
        for kc in (6, 7):
            for b in (3, 4): ldq.append(("X", b, kc, -1))
        freed = [-1]
        def ldnext():
            if not ldq or len(g.vm) >= 60: return False
            t, a, b_, need = ldq[0]
            if need > freed[0]: return False
            ldq.pop(0)
            if t == "W": ldW(a, b_)
            else: ldX(a, b_)
            return True
        for _ in range(7*PRE): ldnext()
        srd(g, SDB, 48, 49, 256)
        frag_consts(False)
        srd(g, SWS, 50, 51, 16 << 20)
        g.e(f"s_lshl_b32 s{sT0}, s{sCT}, 2")
        g.e(f"s_add_u32 s{sT0}, s{sT0}, s{sW}")
        g.e(f"s_mul_i32 s{sT0}, s{sT0}, {32*10240}")
        g.e(f"s_add_u32 s{sT0}, s{sT0}, {WS_WP}")
        g.e(f"v_add_u32 v{vST}, s{sT0}, v{vL16}")
        XRB = TMP + 40
        def read_list(kc, s):
            p = (kc*4 + s) % 2
            ks = 4*kc + s
            L = []
            for h in range(2):
                L.append((f"ds_read_b64_tr_b16 {ar(4*ks+2*h,2)}, v{vWAs} offset:{s*4096+h*1024}", 0))
            for b in range(NA):
                L.append((f"ds_read_b128 {vr(XF+p*20+b*4)}, v{vXAs[s]} offset:{b*4096}", b))
            return [(r, ("R", kc, s, b)) for r, b in L]
        def stage_addr(kc):
            sb = (kc % S) * STG
            for s in range(4): g.e(f"v_add_u32 v{vXAs[s]}, {sb + 16384}, v{vXA[s]}")
            g.e(f"v_add_u32 v{vWAs}, {sb}, v{vWA}")
        stage_addr(0)
        st()
        g.wait_vm([("D", 0)])
        g.e("s_barrier")
        st()
        for r, t in read_list(0, 0): g.lds(r, t)
        LPA = o.get("LPA", 1)
        for kc in range(8):
            for s in range(4):
                if s < 3:
                    nxt = read_list(kc, s+1)
                else:
                    nxt = []
                    if kc < 7:
                        g.wait_lg([("R", kc, 3, b) for b in range(NA)])
                        while any(t[3] == kc+1-S and t[3] >= -10 and ((t[0] == "W" and t[1] == kc+1) or (t[0] == "X" and t[1] < NA and t[2] == kc+1)) for t in ldq): assert ldnext()
                        g.wait_vm([("D", kc+1)])
                        g.e("s_barrier")
                        if kc in (1, 3, 5): st()
                        freed[0] = kc
                        stage_addr(kc+1)
                        nxt = read_list(kc+1, 0)
                p = (kc*4 + s) % 2
                ks = 4*kc + s
                for b in range(NA):
                    g.wait_lg([("R", kc, s, bb) for bb in range(b+1)])
                    ac = vr(ACC+16*b, 16)
                    g.e(f"v_mfma_f32_32x32x16_bf16 {ac}, {vr(XF+p*20+b*4)}, {ar(4*ks)}, {'0' if ks == 0 else ac}")
                    for _ in range(2):
                        if nxt:
                            r, t = nxt.pop(0); g.lds(r, t)
                    for _ in range(LPA): ldnext()
            if kc == 4:
                g.vmem(f"buffer_load_dword v{vNC}, v{vZ}, {sr(SDB)}, 0 offen sc1", ("NC",))
        while ldq: assert ldnext()
        st()
        def store_block(b):
            a = ACC + 16*b
            L = []
            L.append(f"s_add_u32 s{sT0}, s{sXROW}, {32*b}")
            L.append(f"s_lshr_b32 s{sT1}, s{sT0}, 9")
            L.append(f"s_and_b32 s{sT0}, s{sT0}, 511")
            L.append(f"s_lshr_b32 s{sT0}, s{sT0}, 4")
            L.append(f"s_mul_i32 s{sT0}, s{sT0}, 10")
            L.append(f"s_add_u32 s{sT0}, s{sT0}, s{sT1}")
            L.append(f"s_lshl_b32 s{sT0}, s{sT0}, 10")
            L.append(f"s_add_u32 s{sT1}, s{sT0}, 10240")
            for hh in range(2):
                d = TMP + b*8 + hh*4
                for i in range(4):
                    L.append(f"v_cvt_pk_bf16_f32 v{d+i}, v{a+8*hh+2*i}, v{a+8*hh+2*i+1}")
                L.append(("ST", f"buffer_store_dwordx4 {vr(d)}, v{vST}, {sr(SWS)}, s{sT0 if hh==0 else sT1} offen{stf}"))
            return L
        def emit(x):
            if isinstance(x, tuple): g.vmem(x[1])
            else: g.e(x)
        xr = [0]; xreg = {}
        def xread(b, ks):
            r = XRB + (xr[0] % 8)*4; xr[0] += 1
            g.lds(f"ds_read_b128 {vr(r)}, v{vXAs[ks%4]} offset:{(ks//4)*4096}", ("R2", b, ks))
            return r
        g.wait_vm([("XB", 3), ("XB", 4)])
        g.e("s_barrier")
        def blockB(b, pend):
            for s in range(4): g.e(f"v_add_u32 v{vXAs[s]}, {[XB3, XB4][b-3]}, v{vXA[s]}")
            AH = 6
            for ks in range(AH): xreg[(b, ks)] = xread(b, ks)
            for ks in range(32):
                g.wait_lg([("R2", b, ks)])
                ac = vr(ACC + 16*b, 16)
                g.e(f"v_mfma_f32_32x32x16_bf16 {ac}, {vr(xreg[(b,ks)])}, {ar(4*ks)}, {'0' if ks == 0 else ac}")
                if ks + AH < 32: xreg[(b, ks+AH)] = xread(b, ks+AH)
                if ks >= 1:
                    for _ in range(2):
                        if pend: emit(pend.pop(0))
            assert not pend
        blockB(3, store_block(0) + store_block(1) + store_block(2))
        st()
        g.e(f"s_cmp_lg_u32 s{sODD}, 0")
        g.e(f"s_cbranch_scc1 {name}_P4")
        saved = (list(g.vm), list(g.lg))
        blockB(4, store_block(3))
        st(); dt(g, 4)
        g.e("s_nop 3")
        for x in store_block(4): emit(x)
        g.e(f"s_branch {name}_Pdone")
        g.label(f"{name}_P4")
        g.vm, g.lg = saved
        g.e(f"s_lshr_b32 s{sT0}, s{sU}, 1")
        g.e(f"s_and_b32 s{sT2}, s{sT0}, 1")
        g.e(f"s_mul_i32 s{sT0}, s{sT0}, 20480")
        g.e(f"s_add_u32 s{sT0}, s{sT0}, 9216")
        g.e(f"s_add_u32 s{sT1}, s{sT0}, 10240")
        g.e(f"s_cmp_eq_u32 s{sT2}, 0")
        g.e(f"s_cbranch_scc0 {name}_rp1")
        g.e(f"buffer_store_dwordx4 {ar(0)}, v{vST}, {sr(SWS)}, s{sT0} offen{stf}")
        g.e(f"buffer_store_dwordx4 {ar(4)}, v{vST}, {sr(SWS)}, s{sT1} offen{stf}")
        g.e(f"s_branch {name}_rp2")
        g.label(f"{name}_rp1")
        g.e(f"buffer_store_dwordx4 {ar(8)}, v{vST}, {sr(SWS)}, s{sT0} offen{stf}")
        g.e(f"buffer_store_dwordx4 {ar(12)}, v{vST}, {sr(SWS)}, s{sT1} offen{stf}")
        g.label(f"{name}_rp2")
        g.e("s_nop 3")
        for x in store_block(3): emit(x)
        g.label(f"{name}_Pdone")
        g.vm = []
        nonce_wait("P")
        publish(False)

    def bodyG():
        NX, S = 2, 6
        XB = NX * 4096
        STG = XB + 16384
        NI = NX + 4
        PRE1 = o.get("PREG", 3)
        XT = 6*STG
        g.vm = []; g.lg = []
        st.n = st_n0
        g.e(f"s_lshl_b32 s{sXROW}, s{sU}, 16")
        g.e(f"v_lshrrev_b32 v{vT}, 4, v{vLane}")
        g.e(f"s_lshl_b32 s{sT2}, s{sW}, 2")
        g.e(f"v_add_u32 v{vT}, s{sT2}, v{vT}")
        g.e(f"v_and_b32 v{vT2}, 15, v{vLane}")
        g.e(f"v_xor_b32 v{vT2}, v{vT2}, v{vT}")
        g.e(f"v_lshlrev_b32 v{vT2}, 4, v{vT2}")
        g.e(f"v_lshl_add_u32 v{vT}, v{vT}, 10, v{vT2}")
        g.e(f"s_lshl_b32 s{sT2}, s{sCT}, 8")
        g.e(f"v_add_u32 v{vWR}, s{sT2}, v{vT}")
        g.e("s_waitcnt lgkmcnt(0)")
        st(); dt(g, 2)
        srd(g, SX, 6, 7, 2 << 20); srd(g, SWT, 8, 9, 512 << 10); srd(g, SXI, 4, 5, 2 << 20)
        def ld1(kc, m):
            sb = (kc % S) * STG
            isx = m < NX
            mm = m if isx else m - NX
            g.e(f"s_add_u32 m0, s{sM0X}, {sb + m*4096}")
            if isx: g.e(f"s_add_u32 s{sSOX}, s{sXROW}, {mm*32768 + kc*128}")
            else:   g.e(f"s_mov_b32 s{sSOW}, {(kc*64 + 16*mm)*1024}")
            va, sd, so = (vXD, SX, sSOX) if isx else (vWD, SWT, sSOW)
            g.vmem(f"buffer_load_dwordx4 v{va}, {sr(sd)}, s{so} offen{ldf} lds", ("D", kc))
        for m in range(NI): ld1(0, m)
        srd(g, SDB, 48, 49, 256)
        g.e(f"s_or_b32 s{sT0}, s2, s{sW}")
        g.e(f"s_cmp_lg_u32 s{sT0}, 0")
        g.e(f"s_cbranch_scc1 {name}_nn")
        g.e("s_memrealtime s[96:97]")
        g.e("s_waitcnt lgkmcnt(0)")
        g.e(f"s_or_b32 s96, s96, 1")
        g.e(f"v_mov_b32 v{vT}, s96")
        g.e(f"buffer_store_dword v{vT}, v{vZ}, {sr(SDB)}, 0 offen sc1")
        g.label(f"{name}_nn")
        for kc in range(1, PRE1):
            for m in range(NI): ld1(kc, m)
        ldq = [(kc, m) for kc in range(PRE1, 8) for m in range(NI)]
        k6 = [i for i, (kc, m) in enumerate(ldq) if kc >= 5][0]
        ldq[k6:k6] = [("X", m) for m in range(4)]
        freed = [0]
        def ldnext():
            if not ldq: return False
            kc, m = ldq[0]
            if kc == "X":
                ldq.pop(0)
                g.e(f"s_add_u32 m0, s{sM0X}, {XT + m*4096}")
                g.e(f"s_add_u32 s{sSOX}, s{sXROW}, {m*16384}")
                g.vmem(f"buffer_load_dwordx4 v{vWR}, {sr(SXI)}, s{sSOX} offen{ldf} lds", ("D", 5))
                return True
            if kc - S >= freed[0]: return False
            ldq.pop(0); ld1(kc, m); return True
        frag_consts(True)
        srd(g, SWS, 50, 51, 16 << 20)
        mk = len(g.lines)
        vXR, vGA, vGO = TMP+60, TMP+61, TMP+62
        g.e(f"s_lshr_b32 s{sT0}, s{sW}, 1")
        g.e(f"s_and_b32 s{sT1}, s{sW}, 1")
        g.e(f"s_lshl_b32 s{sT2}, s{sT0}, 13")
        g.e(f"s_add_u32 s{sT2}, s{sT2}, {XT}")
        g.e(f"v_and_b32 v{vT}, 15, v{vPX}")
        g.e(f"s_lshl_b32 s{sSOX}, s{sT1}, 3")
        g.e(f"v_xor_b32 v{vT}, s{sSOX}, v{vT}")
        g.e(f"v_lshlrev_b32 v{vT}, 4, v{vT}")
        g.e(f"v_lshl_add_u32 v{vT}, v{vPX}, 8, v{vT}")
        g.e(f"v_lshl_add_u32 v{vT}, v{vHF}, 3, v{vT}")
        g.e(f"v_add_u32 v{vXR}, s{sT2}, v{vT}")
        g.e(f"s_lshl_b32 s{sT2}, s{sT0}, 15")
        g.e(f"s_add_u32 s{sT2}, s{sT2}, s{sXROW}")
        g.e(f"s_lshl_b32 s{sSOX}, s{sCT}, 13")
        g.e(f"s_add_u32 s{sT2}, s{sT2}, s{sSOX}")
        g.e(f"s_lshl_b32 s{sSOX}, s{sT1}, 12")
        g.e(f"s_add_u32 s{sT2}, s{sT2}, s{sSOX}")
        g.e(f"v_add_u32 v{vST}, s{sT2}, v{vL16}")
        g.e(f"s_lshl_b32 s{sSOX}, s{sU}, 1")
        g.e(f"s_add_u32 s{sSOX}, s{sSOX}, s{sT0}")
        g.e(f"s_lshl_b32 s{sSOX}, s{sSOX}, 12")
        g.e(f"s_add_u32 s{sSOX}, s{sSOX}, {WS_ST}")
        g.e(f"v_lshlrev_b32 v{vGO}, 4, v{vPX}")
        g.e(f"v_add_u32 v{vGO}, s{sSOX}, v{vGO}")
        g.e(f"v_lshl_add_u32 v{vGA}, v{vHF}, 11, v{vGO}")
        g.e(f"s_lshl_b32 s93, s{sCT}, 1")
        g.e(f"s_add_u32 s93, s93, s{sT1}")
        g.e(f"s_lshl_b32 s93, s93, 9")
        deferG = g.lines[mk:]; del g.lines[mk:]
        def stage_addr(kc):
            sb = (kc % S) * STG
            for s in range(4): g.e(f"v_add_u32 v{vXAs[s]}, {sb}, v{vXA[s]}")
            g.e(f"v_add_u32 v{vWAs}, {sb + XB}, v{vWA}")
            g.e(f"v_xor_b32 v{vWAs2}, 64, v{vWAs}")
        def read_list(kc, s):
            p = (kc*4 + s) % 2
            L = [(f"ds_read_b128 {vr(XF+p*20)}, v{vXAs[s]}", 0)]
            for cb in range(2):
                for h in range(2):
                    L.append((f"ds_read_b64_tr_b16 {vr(WF+p*8+cb*4+h*2,2)}, v{vWAs if cb==0 else vWAs2} offset:{s*4096+h*1024}", cb))
            return [(r, ("R", kc, s, b)) for r, b in L]
        stage_addr(0)
        st()
        g.wait_vm([("D", 0)])
        g.e("s_barrier")
        st()
        XR = TMP
        XU = ACC + 32
        for r, t in read_list(0, 0): g.lds(r, t)
        LPM = o.get("LPG", 1)
        for kc in range(8):
            for s in range(4):
                if s < 3:
                    nxt = read_list(kc, s+1)
                else:
                    nxt = []
                    if kc < 7:
                        g.wait_lg([("R", kc, 3, b) for b in range(2)])
                        while any(c_ == kc+1 for c_, _ in ldq): assert ldnext()
                        g.wait_vm([("D", kc+1)])
                        g.e("s_barrier")
                        if kc in (0, 2, 4, 6): st()
                        freed[0] = kc + 1
                        stage_addr(kc+1)
                        nxt = read_list(kc+1, 0)
                p = (kc*4 + s) % 2
                for b in range(2):
                    g.wait_lg([("R", kc, s, bb) for bb in range(b+1)])
                    ac = vr(ACC+16*b, 16)
                    g.e(f"v_mfma_f32_32x32x16_bf16 {ac}, {vr(WF+p*8+b*4)}, {vr(XF+p*20)}, {'0' if kc == 0 and s == 0 else ac}")
                    for _ in range(3):
                        if nxt:
                            r, t = nxt.pop(0); g.lds(r, t)
                    for _ in range(LPM): ldnext()
            if kc == 4:
                g.vmem(f"buffer_load_dword v{vNC}, v{vZ}, {sr(SDB)}, 0 offen sc1", ("NC",))
            if kc == 0: g.lines += deferG
            if kc == 5:
                for j in range(8):
                    g.e(f"v_xor_b32 v{vT2}, {j*16}, v{vXR}")
                    g.lds(f"ds_read_b64 {vr(XR+2*j,2)}, v{vT2}", ("XR", j))
            if kc == 6:
                g.wait_lg([("XR", 7)])
                for j in range(16):
                    g.e(f"v_lshlrev_b32 v{XU+2*j}, 16, v{XR+j}")
                    g.e(f"v_and_b32 v{XU+2*j+1}, 0xffff0000, v{XR+j}")
        assert not ldq
        st(); dt(g, 3)
        nonce_wait("G")
        g.e("s_nop 7")
        S1, S2 = TMP+16, TMP+18
        P1, P2 = TMP+20, TMP+22
        for i in range(16): g.e(f"v_pk_add_f32 {vr(ACC+2*i,2)}, {vr(ACC+2*i,2)}, {vr(XU+2*i,2)}")
        g.e(f"v_pk_add_f32 {vr(P1,2)}, {vr(ACC,2)}, {vr(ACC+2,2)}")
        g.e(f"v_pk_mul_f32 {vr(P2,2)}, {vr(ACC,2)}, {vr(ACC,2)}")
        g.e(f"v_pk_fma_f32 {vr(P2,2)}, {vr(ACC+2,2)}, {vr(ACC+2,2)}, {vr(P2,2)}")
        for i in range(2, 16):
            g.e(f"v_pk_add_f32 {vr(P1,2)}, {vr(P1,2)}, {vr(ACC+2*i,2)}")
            g.e(f"v_pk_fma_f32 {vr(P2,2)}, {vr(ACC+2*i,2)}, {vr(ACC+2*i,2)}, {vr(P2,2)}")
        g.e(f"v_add_f32 v{S1}, v{P1}, v{P1+1}")
        g.e(f"v_add_f32 v{S2}, v{P2}, v{P2+1}")
        g.e(f"v_mov_b32 v{vT}, v{S1}")
        g.e(f"v_mov_b32 v{vT2}, v{S2}")
        g.e(f"v_mov_b32 v{S1+1}, v{vNC}")
        g.e(f"v_mov_b32 v{S2+1}, v{vNC}")
        g.e(f"v_permlane32_swap_b32 v{S1}, v{vT}")
        g.e(f"v_permlane32_swap_b32 v{S2}, v{vT2}")
        g.e(f"v_add_f32 v{S1}, v{S1}, v{vT}")
        g.e(f"v_add_f32 v{S2}, v{S2}, v{vT2}")
        g.e("s_mov_b64 exec, 0xffffffff")
        g.e(f"buffer_store_dwordx4 {vr(S1)}, v{vGO}, {sr(SWS)}, s93 offen sc1")
        g.e("s_mov_b64 exec, -1")
        st()
        for j in range(16):
            g.e(f"v_cvt_pk_bf16_f32 v{XR+j}, v{ACC+2*j}, v{ACC+2*j+1}")
        g.e("s_nop 1")
        for hh in range(4):
            g.e(f"v_permlane32_swap_b32 v{XR+4*hh}, v{XR+4*hh+2}")
            g.e(f"v_permlane32_swap_b32 v{XR+4*hh+1}, v{XR+4*hh+3}")
        EA, EB = TMP + 24, TMP + 40
        def poll_issue(E):
            for e_ in range(4):
                g.e(f"buffer_load_dwordx4 {vr(E+4*e_)}, v{vGA}, {sr(SWS)}, 0 offen offset:{e_*512} sc1")
        def poll_check(E):
            g.e(f"v_xor_b32 v{vT}, v{E+1}, v{vNC}")
            for e_ in range(4):
                for o_ in (1, 3):
                    if e_ == 0 and o_ == 1: continue
                    g.e(f"v_xor_b32 v{vT2}, v{E+4*e_+o_}, v{vNC}")
                    g.e(f"v_or_b32 v{vT}, v{vT}, v{vT2}")
            g.e(f"v_cmp_ne_u32 vcc, 0, v{vT}")
            g.e("s_nop 4")
        g.e(f"s_mov_b32 s{sT2}, 0")
        poll_issue(EA)
        g.label(f"{name}_poll")
        g.e(f"s_add_u32 s{sT2}, s{sT2}, 1")
        g.e(f"s_cmp_gt_u32 s{sT2}, 100000")
        g.e(f"s_cbranch_scc1 {name}_pollx")
        if o.get("pp", 1):
            g.e("s_sleep 4")
            poll_issue(EB)
            g.e("s_waitcnt vmcnt(4)")
            poll_check(EA)
            g.e(f"s_cbranch_vccz {name}_pollx")
            poll_issue(EA)
            g.e("s_waitcnt vmcnt(4)")
            poll_check(EB)
            g.e(f"s_cbranch_vccnz {name}_poll")
            g.e("s_waitcnt vmcnt(0)")
        else:
            g.e("s_waitcnt vmcnt(0)")
            poll_check(EA)
            g.e(f"s_cbranch_vccz {name}_pollx")
            poll_issue(EA)
            g.e(f"s_branch {name}_poll")
        g.label(f"{name}_pollx")
        st()
        E = EA
        g.e(f"s_mov_b32 s{sT1}, {WS_HI}")
        for e_ in range(1, 4):
            g.e(f"v_add_f32 v{E}, v{E}, v{E+4*e_}")
            g.e(f"v_add_f32 v{E+2}, v{E+2}, v{E+4*e_+2}")
        g.e(f"v_mov_b32 v{vT}, v{E}")
        g.e(f"v_mov_b32 v{vT2}, v{E+2}")
        for hh in range(4):
            g.e(f"buffer_store_dwordx4 {vr(XR+4*hh)}, v{vST}, {sr(SWS)}, s{sT1} offen offset:{hh*1024}{stf}")
        g.e(f"v_permlane32_swap_b32 v{E}, v{vT}")
        g.e(f"v_permlane32_swap_b32 v{E+2}, v{vT2}")
        g.e(f"v_add_f32 v{E}, v{E}, v{vT}")
        g.e(f"v_add_f32 v{E+2}, v{E+2}, v{vT2}")
        g.e(f"v_mul_f32 v{E}, {f2u(1/512):#x}, v{E}")
        g.e(f"v_mul_f32 v{E+2}, {f2u(1/512):#x}, v{E+2}")
        g.e(f"v_fma_f32 v{E+2}, -v{E}, v{E}, v{E+2}")
        g.e(f"v_max_f32 v{E+2}, 0, v{E+2}")
        g.e(f"v_add_f32 v{E+2}, {f2u(1e-5):#x}, v{E+2}")
        A_, B_, A2, B2 = E+4, E+6, E+8, E+10
        g.e(f"v_rsq_f32 v{A_}, v{E+2}")
        g.e("s_nop 0")
        g.e(f"v_mul_f32 v{B_}, v{E}, v{A_}")
        g.e(f"v_sub_f32 v{B_}, 0, v{B_}")
        g.e(f"v_mul_f32 v{A2}, {f2u(-LOG2E):#x}, v{A_}")
        g.e(f"v_mul_f32 v{B2}, {f2u(-LOG2E):#x}, v{B_}")
        Y = XF
        D = WF
        for hh in range(4):
            a = ACC + 8*hh; y = Y + (hh % 2)*8
            for i in range(4): g.e(f"v_pk_fma_f32 {vr(y+2*i,2)}, {vr(a+2*i,2)}, {vr(A2,2)}, {vr(B2,2)} op_sel_hi:[1,0,0]")
            for i in range(8): g.e(f"v_exp_f32 v{y+i}, v{y+i}")
            for i in range(4): g.e(f"v_pk_fma_f32 {vr(a+2*i,2)}, {vr(a+2*i,2)}, {vr(A_,2)}, {vr(B_,2)} op_sel_hi:[1,0,0]")
            for i in range(4): g.e(f"v_pk_add_f32 {vr(y+2*i,2)}, {vr(y+2*i,2)}, 1.0 op_sel_hi:[1,0]")
            for i in range(8): g.e(f"v_rcp_f32 v{y+i}, v{y+i}")
            g.e("s_nop 0")
            for i in range(4): g.e(f"v_pk_mul_f32 {vr(a+2*i,2)}, {vr(a+2*i,2)}, {vr(y+2*i,2)}")
            d = D + hh*4
            for i in range(4): g.e(f"v_cvt_pk_bf16_f32 v{d+i}, v{a+2*i}, v{a+2*i+1}")
            g.e(f"buffer_store_dwordx4 {vr(d)}, v{vST}, {sr(SWS)}, 0 offen offset:{hh*1024}{stf}")
        publish(True)
    bodyG(); bodyP()

def phase2(g, name, st, o):
    NST, PRE, EVERY = o.get("NST", 3), o.get("PRE", 20), o.get("EVERY", 2)
    lf = o.get("lf", " sc1").replace(" none", "")
    SA, SWP, SX, SO, SDB = 12, 16, 20, 24, 28
    C4K, C8K, C2M, C2M4K = 33, 34, 42, 43
    sMT, sNT, sB, sT0, sT1, sR0, sBASE = 35, 36, 37, 38, 39, 97, 96
    vLane, vT, vW, vMR, vML, vO, vT2 = 1, 2, 3, 4, 5, 6, 7
    vH = [8+j for j in range(6)]
    vA, vA1 = 14, 15
    vXF = 16
    HB = 24
    HIB = HB + NST*24
    T0 = HIB + NST*16
    T2 = T0 + 24
    VEND = T2 + 24
    vF, vG, vPF = VEND, VEND+1, VEND+2
    assert VEND + 8 <= 250
    ACC, WB = 0, 64
    AEND = WB + NST*40
    g.vm = []; g.lg = []
    g.label(f"{name}_ph2")
    if st.on: st.n = 15
    st()
    g.e(f"s_and_b32 s{sT0}, s2, 7")
    g.e(f"s_lshr_b32 s{sT1}, s2, 3")
    g.e(f"s_and_b32 s{sB}, s{sT0}, 1")
    g.e(f"s_lshr_b32 s{sT0}, s{sT0}, 1")
    g.e(f"s_and_b32 s{sMT}, s{sT1}, 7")
    g.e(f"s_lshr_b32 s{sT1}, s{sT1}, 3")
    g.e(f"s_lshl_b32 s{sNT}, s{sT0}, 2")
    g.e(f"s_add_u32 s{sNT}, s{sNT}, s{sT1}")
    g.e(f"s_lshl_b32 s{sT0}, s{sB}, 5")
    g.e(f"s_lshl_b32 s{sT1}, s{sMT}, 2")
    g.e(f"s_add_u32 s{sR0}, s{sT0}, s{sT1}")
    srd(g, SDB, 50, 51, 16 << 20)
    NL = o.get("NL", 8); LG = NL.bit_length() - 1; MS = NL*128
    g.e(f"s_lshr_b32 s{sT0}, s{sR0}, 2")
    g.e(f"s_lshl_b32 s{sT0}, s{sT0}, 4")
    g.e(f"s_add_u32 s{sT0}, s{sT0}, s{sNT}")
    g.e(f"s_mul_i32 s{sT0}, s{sT0}, {MS}")
    g.e(f"s_add_u32 s{sT0}, s{sT0}, {WS_MB}")
    g.e(f"v_and_b32 v{vF}, {NL-1}, v{vLane}")
    g.e(f"v_lshlrev_b32 v{vF}, 7, v{vF}")
    g.e(f"v_lshrrev_b32 v{vG}, {LG}, v{vLane}")
    g.e(f"v_lshl_add_u32 v{vF}, v{vG}, 2, v{vF}")
    g.e(f"v_add_u32 v{vF}, s{sT0}, v{vF}")
    g.e(f"s_movk_i32 s{C4K}, 0x1000")
    g.e(f"s_movk_i32 s{C8K}, 0x2000")
    g.e(f"s_mov_b32 s{C2M}, 0x200000")
    g.e(f"s_mov_b32 s{C2M4K}, 0x201000")
    g.e(f"s_lshl_b32 s{sBASE}, s{sR0}, 15")
    g.e(f"s_lshl_b32 s{sT0}, s{sW}, 13")
    g.e(f"s_add_u32 s{sBASE}, s{sBASE}, s{sT0}")
    g.e(f"v_lshlrev_b32 v{vT}, 4, v{vLane}")
    for j in range(1, 5):
        g.e(f"s_add_u32 s{sT0}, s{sBASE}, {(j-1)*32768}")
        g.e(f"v_add_u32 v{vH[j]}, s{sT0}, v{vT}")
    g.e(f"s_sub_u32 s{sT0}, s{sBASE}, 32768")
    g.e(f"s_cmp_eq_u32 s{sMT}, 0")
    g.e(f"s_cselect_b32 s{sT0}, 0x40000000, s{sT0}")
    g.e(f"v_add_u32 v{vH[0]}, s{sT0}, v{vT}")
    g.e(f"s_add_u32 s{sT0}, s{sBASE}, {4*32768}")
    g.e(f"s_cmp_eq_u32 s{sMT}, 7")
    g.e(f"s_cselect_b32 s{sT0}, 0x40000000, s{sT0}")
    g.e(f"v_add_u32 v{vH[5]}, s{sT0}, v{vT}")
    g.e(f"s_lshl_b32 s{sT0}, s{sNT}, 5")
    g.e(f"s_lshl_b32 s{sT1}, s{sW}, 3")
    g.e(f"s_add_u32 s{sT0}, s{sT0}, s{sT1}")
    g.e(f"s_mul_i32 s92, s{sT0}, 10240")
    g.e(f"v_add_u32 v{vW}, s92, v{vT}")
    srd(g, SA, 50, 51, 4 << 20)
    srd(g, SWP, 50, 51, WP_BYTES, add=WS_WP)
    srd(g, SX, 40, 41, 2 << 20)
    srd(g, SO, 46, 47, 2 << 20)
    g.e(f"s_add_u32 s{sT0}, s{sR0}, s{sW}")
    g.e(f"s_lshl_b32 s{sT0}, s{sT0}, 15")
    g.e(f"s_lshl_b32 s{sT1}, s{sNT}, 6")
    g.e(f"s_add_u32 s{sT0}, s{sT0}, s{sT1}")
    g.e(f"v_lshrrev_b32 v{vO}, 2, v{vLane}")
    g.e(f"v_lshlrev_b32 v{vO}, 10, v{vO}")
    g.e(f"v_and_b32 v{vT2}, 3, v{vLane}")
    g.e(f"v_lshlrev_b32 v{vT2}, 4, v{vT2}")
    g.e(f"v_add3_u32 v{vO}, v{vO}, v{vT2}, s{sT0}")
    g.e(f"s_movk_i32 s{sT1}, 0x4000")
    g.e(f"buffer_load_dwordx4 {vr(vXF)}, v{vO}, {sr(SX)}, 0 offen")
    g.e(f"buffer_load_dwordx4 {vr(vXF+4)}, v{vO}, {sr(SX)}, s{sT1} offen")
    g.e(f"v_and_b32 v{vT}, 31, v{vLane}")
    g.e(f"v_cmp_ne_u32 vcc, 0, v{vT}")
    g.e("s_nop 1")
    g.e(f"v_cndmask_b32 v{vMR}, 0, -1, vcc")
    g.e(f"v_cmp_ne_u32 vcc, 31, v{vT}")
    g.e("s_nop 1")
    g.e(f"v_cndmask_b32 v{vML}, 0, -1, vcc")
    g.e(f"v_lshlrev_b32 v{vA}, 4, v{vLane}")
    g.e(f"s_lshl_b32 s{sT0}, s{sW}, 12")
    g.e(f"v_add_u32 v{vA}, s{sT0}, v{vA}")
    g.e(f"v_and_b32 v{vA1}, 3, v{vLane}")
    g.e(f"v_lshlrev_b32 v{vA1}, 10, v{vA1}")
    g.e(f"v_lshrrev_b32 v{vT}, 2, v{vLane}")
    g.e(f"v_lshl_add_u32 v{vA1}, v{vT}, 4, v{vA1}")
    g.e(f"s_lshl_b32 s{sT0}, s{sW}, 14")
    g.e(f"v_add_u32 v{vA1}, s{sT0}, v{vA1}")
    g.e("s_mov_b32 s90, 0xffff0000")
    g.e("s_mov_b32 s91, 0xffff")
    g.e(f"s_movk_i32 s{sT0}, 0x1111")
    g.e(f"s_cmp_eq_u32 s{sMT}, 0")
    g.e(f"s_cselect_b32 s{sT0}, 0x1110, s{sT0}")
    g.e(f"s_cmp_eq_u32 s{sMT}, 7")
    g.e(f"s_cselect_b32 s{sT0}, 0x0111, s{sT0}")
    g.e(f"s_lshl_b32 s94, s{sT0}, s{sW}")
    g.e("s_mov_b32 s95, 0")
    def poll(tag, mask, first_issued):
        g.e(f"s_mov_b32 s{sT0}, 0")
        if first_issued: g.e(f"s_branch {name}_fchk{tag}")
        g.label(f"{name}_fpoll{tag}")
        if o.get("fs", 0): g.e(f"s_sleep {o['fs']}")
        g.e(f"buffer_load_dword v{vG}, v{vF}, {sr(SDB)}, 0 offen sc1")
        g.label(f"{name}_fchk{tag}")
        g.e(f"s_add_u32 s{sT0}, s{sT0}, 1")
        g.e(f"s_cmp_gt_u32 s{sT0}, 200000")
        g.e(f"s_cbranch_scc1 {name}_fw{tag}")
        g.e("s_waitcnt vmcnt(0)")
        g.e(f"v_cmp_ne_u32 vcc, s3, v{vG}")
        g.e("s_nop 4")
        g.e(f"s_and_b64 vcc, vcc, {mask}")
        g.e(f"s_cbranch_scc1 {name}_fpoll{tag}")
        g.label(f"{name}_fw{tag}")

    def Hreg(s_, j): return HB + s_*24 + j*4
    def HIreg(s_, r): return HIB + s_*16 + r*4
    def Wreg(s_, t): return WB + s_*40 + t*4
    def ldW(k, t):
        s_ = k % NST
        off = (k*10 + t)*1024
        return ("W", k, t, s_, off)
    def emitW(k, t):
        s_ = k % NST
        off = (k*10 + t)*1024
        g.e(f"s_mov_b32 s{sT0}, {off & ~4095}")
        g.vmem(f"buffer_load_dwordx4 {ar(Wreg(s_,t))}, v{vW}, {sr(SWP)}, s{sT0} offen offset:{off & 4095}{lf}", ("W", k, t))
    def emitH(k, j):
        s_ = k % NST
        so_h = "0" if k < 4 else f"s{C4K}"
        g.vmem(f"buffer_load_dwordx4 {vr(Hreg(s_,j))}, v{vH[j]}, {sr(SA)}, {so_h} offen offset:{(k%4)*1024}{lf}", ("H", k, j))
    def emitHI(k, r):
        s_ = k % NST
        so = f"s{C2M}" if k < 4 else f"s{C2M4K}"
        g.vmem(f"buffer_load_dwordx4 {vr(HIreg(s_,r))}, v{vH[r+1]}, {sr(SA)}, {so} offen offset:{(k%4)*1024}{lf}", ("HI", k, r))
    def order(k):
        return [("W",1),("H",0),("H",1),("H",2),("H",3),("W",4),("H",4),("W",7),("H",5),("W",9),
                ("HI",0),("HI",1),("HI",2),("HI",3),("W",0),("W",3),("W",6),("W",2),("W",5),("W",8)]
    queue = [(k, t, i) for k in range(8) for (t, i) in order(k)]
    def emit_item(it):
        k, t, i = it
        {"W": emitW, "H": emitH, "HI": emitHI}[t](k, i)
    WPRE = o.get("WPRE", 2)
    split = 0
    if split:
        poll("P", "s[90:91]", False)
        st(); dt(g, 9)
        pre = [it for it in queue if it[1] == "W" and it[0] < WPRE]
        for it in pre:
            queue.remove(it); emit_item(it)
        if o.get("pfw", 0):
            g.e(f"s_mul_i32 s{sT0}, s{sMT}, 10240")
            g.e(f"s_add_u32 s{sT0}, s{sT0}, s92")
            g.e(f"v_lshlrev_b32 v{vPF}, 7, v{vLane}")
            g.e(f"buffer_load_dword v{vPF+1}, v{vPF}, {sr(SWP)}, s{sT0} offen{lf}")
            g.e(f"s_add_u32 s{sT0}, s{sT0}, 2048")
            g.e(f"buffer_load_dword v{vPF+2}, v{vPF}, {sr(SWP)}, s{sT0} offen{lf}")
        g.e(f"v_cmp_ne_u32 vcc, s3, v{vG}")
        g.e("s_nop 4")
        g.e("s_and_b64 vcc, vcc, s[94:95]")
        g.e(f"s_cbranch_scc0 {name}_fwG")
        poll("G", "s[94:95]", False)
    else:
        if o.get("w0", 1):
            g.e(f"s_mov_b32 s{sT0}, 0xffff")
            g.e(f"s_cmp_eq_u32 s{sMT}, 0")
            g.e(f"s_cselect_b32 s{sT0}, 0xfff0, s{sT0}")
            g.e(f"s_cmp_eq_u32 s{sMT}, 7")
            g.e(f"s_cselect_b32 s94, 0x0fff, s{sT0}")
            g.e("s_or_b64 s[90:91], s[90:91], s[94:95]")
            g.e(f"s_cmp_lg_u32 s{sW}, 0")
            g.e(f"s_cbranch_scc1 {name}_fwP")
            poll("P", "s[90:91]", False)
            g.e("s_waitcnt vmcnt(0)")
            g.e("s_barrier")
        else:
            g.e("s_or_b64 s[90:91], s[90:91], s[94:95]")
            poll("P", "s[90:91]", False)
        st(); dt(g, 9)
    if st.on:
        g.e(f"s_memrealtime s[{52+2*st.n}:{53+2*st.n}]"); st.n += 1
    def issue_next(cur_k):
        if not queue: return False
        it = queue[0]
        if it[0] - NST >= cur_k or len(g.vm) >= 60: return False
        queue.pop(0); emit_item(it); return True
    def need(tok, k):
        while any((it[1], it[0], it[2]) == tok for it in queue): assert issue_next(k)
    for _ in range(PRE): issue_next(0)
    if o.get("pfh", 0):
        g.e(f"s_and_b32 s{sT0}, s{sNT}, 3")
        g.e(f"s_lshl_b32 s{sT0}, s{sT0}, 11")
        g.e(f"s_add_u32 s{sT0}, s{sT0}, s{sBASE}")
        g.e(f"v_lshrrev_b32 v{vPF}, 4, v{vLane}")
        g.e(f"v_lshlrev_b32 v{vPF}, 15, v{vPF}")
        g.e(f"v_and_b32 v{vPF+1}, 15, v{vLane}")
        g.e(f"v_lshl_add_u32 v{vPF}, v{vPF+1}, 7, v{vPF}")
        g.vmem(f"buffer_load_dword v{vPF+1}, v{vPF}, {sr(SA)}, s{sT0} offen{lf}")
        g.e(f"s_add_u32 s{sT0}, s{sT0}, 0x200000")
        g.vmem(f"buffer_load_dword v{vPF+2}, v{vPF}, {sr(SA)}, s{sT0} offen{lf}")
    wr_pending = []
    for k in range(8):
        s_ = k % NST
        last = k == 7
        g.c(f"---- k-step {k}")
        if k == 1: st()
        dpp = [(T0, vMR, "wave_shr:1", j, i) for j in range(6) for i in range(4)]
        dpp2 = [(T2, vML, "wave_shl:1", j, i) for j in range(6) for i in range(4)]
        mf = []
        for di in range(3):
            for r in range(4): mf.append((r, di*3+1, ("H", k, r+di), Hreg(s_, r+di), "A"))
        for r in range(4): mf.append((r, 9, ("HI", k, r), HIreg(s_, r), "B"))
        if not last:
            for di in range(3):
                for r in range(4): mf.append((r, di*3, None, T0 + (r+di)*4, "C"))
            for di in range(3):
                for r in range(4): mf.append((r, di*3+2, None, T2 + (r+di)*4, "D"))
        else:
            dpp = [x for pair in zip(dpp, dpp2) for x in pair]; dpp2 = []
            for r in range(4):
                for di in range(3): mf.append((r, di*3, None, T0 + (r+di)*4, "E"))
                for di in range(3): mf.append((r, di*3+2, None, T2 + (r+di)*4, "E" if di < 2 else "F"))
        since = 0
        for n, (r, t, ht, hreg, grp) in enumerate(mf):
            toks = [("W", k, t)] + ([ht] if ht else [])
            for tok in toks: need(tok, k)
            g.wait_vm(toks)
            c = "0" if (k == 0 and n < 4) else ar(ACC+16*r, 16)
            g.e(f"v_mfma_f32_32x32x16_bf16 {ar(ACC+16*r,16)}, {ar(Wreg(s_,t))}, {vr(hreg)}, {c}")
            if grp in "AB" and n >= 2:
                for _ in range(4 if last else 2):
                    if dpp:
                        T, vm_, sh, j, i = dpp.pop(0)
                        need(("H", k, j), k); g.wait_vm([("H", k, j)])
                        g.e(f"v_and_b32_dpp v{T+j*4+i}, v{Hreg(s_,j)+i}, v{vm_} {sh} row_mask:0xf bank_mask:0xf bound_ctrl:0")
            if grp == "C":
                for _ in range(3):
                    if dpp2:
                        T, vm_, sh, j, i = dpp2.pop(0)
                        g.e(f"v_and_b32_dpp v{T+j*4+i}, v{Hreg(s_,j)+i}, v{vm_} {sh} row_mask:0xf bank_mask:0xf bound_ctrl:0")
            if n % EVERY == EVERY - 1: issue_next(k)
            if wr_pending:
                since += 1
                if since == 2: g.e("s_nop 9")
                if since >= 2:
                    g.e(wr_pending.pop(0))
            if grp == "F":
                assert not wr_pending
                wr_pending = [f"ds_write_b128 v{vA}, {ar(ACC+16*r+4*q)} offset:{r*16384 + q*1024}" for q in range(4)]
                since = 0
        assert not dpp and not dpp2
    assert not queue
    g.c("---- epilogue")
    st(); dt(g, 11)
    g.e("s_nop 11")
    for w_ in wr_pending: g.e(w_)
    g.e("s_waitcnt lgkmcnt(0)")
    g.e("s_barrier")
    R = HB
    for i in range(2):
        for src in range(4):
            for hf in range(2):
                g.lds(f"ds_read_b128 {vr(R + ((i*4+src)*2+hf)*4)}, v{vA1} offset:{src*4096 + hf*512 + i*256}", ("R", i, src))
    XU = R + 64
    for i in range(2):
        for e_ in range(4):
            x = vXF + 4*i + e_
            g.e(f"v_lshlrev_b32 v{XU+8*i+2*e_}, 16, v{x}")
            g.e(f"v_and_b32 v{XU+8*i+2*e_+1}, 0xffff0000, v{x}")
    for i in range(2):
        base = R + i*32
        for src in range(4):
            g.wait_lg([("R", i, src)])
            for e_ in range(4):
                g.e(f"v_pk_add_f32 {vr(XU+8*i+2*e_,2)}, {vr(XU+8*i+2*e_,2)}, {vr(base+8*src+2*e_,2)}")
        for e_ in range(4): g.e(f"v_cvt_pk_bf16_f32 v{vXF+4*i+e_}, v{XU+8*i+2*e_}, v{XU+8*i+2*e_+1}")
        g.vmem(f"buffer_store_dwordx4 {vr(vXF+4*i)}, v{vO}, {sr(SO)}, {'0' if i==0 else 's%d'%sT1} offen{o.get('ostf','')}")
    dt_finish(g)
    st.finish(st.n + 1)
    return AEND

def gen_all(out, o):
    DT[0] = bool(o.get("dt", 0)); CPF[0] = o.get("cpf", 2)
    name = "fused_kernel"
    g = Gen(); st = Stamper(g, o.get("st", 0))
    entry(g, name, st)
    phase1(g, name, st, o)
    aend = phase2(g, name, st, o)
    g.label(f"{name}_end"); g.e("s_endpgm")
    build([(name, g.text(), kd(name, 256 + max(aend, 128), 256, 100), 256, 256, 160*1024)], out)

if __name__ == "__main__":
    o = {}
    for a in sys.argv[2:]:
        k, v = a.split("=")
        o[k] = int(v) if v.lstrip("-").isdigit() else " " + v.replace("+", " ")
    gen_all(sys.argv[1], o)
```

```python
import sys, struct
from gen import Gen, vr, ar, sr, srd, kd, build, WS_H, WS_HI, WS_WP, WS_ST, WP_BYTES
import gen4
from gen4 import Stamper, f2u, LOG2E, sW, WS_MB, dt, dt_finish, DT, CPF, entry

def phase1(g, name, st, o):
    stf = o.get("stf", " sc1")
    ldf = " nt" if o.get("nt", 0) else ""
    SX, SWT, SWS, SXI, SDB = 12, 16, 20, 24, 28
    sCT, sU, sT0, sT1, sT2, sXROW, sM0X = 33, 34, 35, 36, 37, 38, 39
    sSOX, sSOW, sNONCE = 42, 43, 3
    sODD, sKC = 94, 95
    vLane, vT, vT2, vXD, vWD, vWA, vPX, vHF, vL16 = 1, 2, 3, 4, 5, 6, 7, 8, 9
    vXA = [10, 11, 12, 13]; vXAs = [14, 15, 16, 17]
    vWAs, vST, vWR, vNC, vZ, vWAs2 = 18, 19, 20, 21, 22, 23
    XF, WF, ACC, TMP = 24, 64, 80, 160
    g.e(f"s_and_b32 s{sT0}, s2, 7")
    g.e(f"s_lshr_b32 s{sT1}, s2, 3")
    g.e(f"s_and_b32 s{sCT}, s{sT1}, 3")
    g.e(f"s_lshr_b32 s{sT1}, s{sT1}, 2")
    if o.get("mix", 1):
        g.e(f"s_lshl_b32 s{sU}, s{sT0}, 2")
        g.e(f"s_lshr_b32 s{sT2}, s{sT1}, 1")
        g.e(f"s_add_u32 s{sU}, s{sU}, s{sT2}")
        g.e(f"s_and_b32 s{sT0}, s{sT1}, 1")
        g.e(f"s_lshl_b32 s{sT0}, s{sT0}, 2")
    else:
        g.e(f"s_and_b32 s{sU}, s{sT0}, 3")
        g.e(f"s_lshl_b32 s{sU}, s{sU}, 3")
        g.e(f"s_add_u32 s{sU}, s{sU}, s{sT1}")
    g.e(f"v_lshrrev_b32 v{vT}, 3, v{vLane}")
    g.e(f"s_lshl_b32 s{sT2}, s{sW}, 3")
    g.e(f"v_add_u32 v{vXD}, s{sT2}, v{vT}")
    g.e(f"v_lshrrev_b32 v{vT}, 1, v{vXD}")
    g.e(f"v_and_b32 v{vT}, 7, v{vT}")
    g.e(f"v_and_b32 v{vT2}, 7, v{vLane}")
    g.e(f"v_xor_b32 v{vT}, v{vT}, v{vT2}")
    g.e(f"v_lshlrev_b32 v{vT}, 4, v{vT}")
    g.e(f"v_lshl_add_u32 v{vXD}, v{vXD}, 10, v{vT}")
    g.e(f"v_lshrrev_b32 v{vT}, 4, v{vLane}")
    g.e(f"v_lshlrev_b32 v{vT2}, 2, v{vT}")
    g.e(f"v_and_b32 v{vWD}, 15, v{vLane}")
    g.e(f"v_xor_b32 v{vWD}, v{vWD}, v{vT2}")
    g.e(f"v_lshlrev_b32 v{vWD}, 4, v{vWD}")
    g.e(f"s_lshl_b32 s{sT2}, s{sW}, 2")
    g.e(f"v_add_u32 v{vT}, s{sT2}, v{vT}")
    g.e(f"v_lshl_add_u32 v{vWD}, v{vT}, 10, v{vWD}")
    g.e(f"s_lshl_b32 s{sT2}, s{sCT}, 8")
    g.e(f"v_add_u32 v{vWD}, s{sT2}, v{vWD}")
    g.e(f"s_lshl_b32 s{sM0X}, s{sW}, 10")
    g.e(f"v_mov_b32 v{vZ}, 0")
    g.e(f"s_cmp_ge_u32 s{sT0}, 4")
    g.e(f"s_cbranch_scc1 {name}_P")
    st_n0 = st.n

    def nonce_wait(role):
        g.wait_vm([("NC",)])
        g.e(f"s_mov_b32 s{sT2}, 0")
        g.label(f"{name}_ncpoll{role}")
        g.e(f"v_readfirstlane_b32 s{sNONCE}, v{vNC}")
        g.e(f"s_add_u32 s{sT2}, s{sT2}, 1")
        g.e(f"s_cmp_gt_u32 s{sT2}, 100000")
        g.e(f"s_cbranch_scc1 {name}_ncok{role}")
        g.e(f"s_cmp_lg_u32 s{sNONCE}, 0")
        g.e(f"s_cbranch_scc1 {name}_ncok{role}")
        g.e(f"buffer_load_dword v{vNC}, v{vZ}, {sr(SDB)}, 0 offen sc1")
        g.e("s_waitcnt vmcnt(0)")
        g.e(f"s_branch {name}_ncpoll{role}")
        g.label(f"{name}_ncok{role}")

    def pretouch():
        if not o.get("tlb", 0): return
        lab = f"{name}_pt{len(g.lines)}"
        g.e(f"s_cmp_lg_u32 s{sW}, 3")
        g.e(f"s_cbranch_scc1 {lab}")
        srd(g, 84, 50, 51, 12 << 20)
        g.e(f"v_lshlrev_b32 v{vT}, 18, v{vLane}")
        g.e(f"buffer_load_dword v252, v{vT}, s[84:87], 0 offen")
        srd(g, 84, 46, 47, 2 << 20)
        g.e(f"v_lshlrev_b32 v{vT}, 16, v{vLane}")
        g.e(f"buffer_load_dword v253, v{vT}, s[84:87], 0 offen")
        srd(g, 84, 40, 41, 2 << 20)
        g.e(f"buffer_load_dword v254, v{vT}, s[84:87], 0 offen")
        g.e(f"buffer_load_dword v251, v{vZ}, {sr(SDB)}, 0 offen sc1")
        g.label(lab)

    def frag_consts(G):
        pretouch()
        g.e(f"v_and_b32 v{vPX}, 31, v{vLane}")
        g.e(f"v_lshrrev_b32 v{vHF}, 5, v{vLane}")
        g.e(f"v_lshlrev_b32 v{vL16}, 4, v{vLane}")
        g.e(f"v_lshrrev_b32 v{vT}, 1, v{vPX}")
        g.e(f"v_and_b32 v{vT}, 7, v{vT}")
        g.e(f"v_xor_b32 v{vT}, v{vT}, v{vHF}")
        g.e(f"v_lshlrev_b32 v{vT}, 4, v{vT}")
        g.e(f"v_lshl_add_u32 v{vXA[0]}, v{vPX}, 7, v{vT}")
        if G:
            g.e(f"s_lshr_b32 s{sT2}, s{sW}, 1")
            g.e(f"s_lshl_b32 s{sT2}, s{sT2}, 12")
            g.e(f"v_add_u32 v{vXA[0]}, s{sT2}, v{vXA[0]}")
        for s in range(1, 4):
            g.e(f"v_xor_b32 v{vXA[s]}, {s*32}, v{vXA[0]}")
        g.e(f"v_bfe_u32 v{vT}, v{vLane}, 2, 2")
        g.e(f"v_lshl_add_u32 v{vT2}, v{vHF}, 3, v{vT}")
        g.e(f"v_lshlrev_b32 v{vWA}, 8, v{vT2}")
        if G:
            g.e(f"s_and_b32 s{sT2}, s{sW}, 1")
            g.e(f"s_lshl_b32 s{sT2}, s{sT2}, 1")
            g.e(f"v_xor_b32 v{vT}, s{sT2}, v{vT}")
        else:
            g.e(f"v_xor_b32 v{vT}, s{sW}, v{vT}")
        g.e(f"v_lshl_add_u32 v{vWA}, v{vT}, 6, v{vWA}")
        g.e(f"v_bfe_u32 v{vT}, v{vLane}, 4, 1")
        g.e(f"v_lshl_add_u32 v{vWA}, v{vT}, 5, v{vWA}")
        g.e(f"v_and_b32 v{vT}, 3, v{vLane}")
        g.e(f"v_lshl_add_u32 v{vWA}, v{vT}, 3, v{vWA}")

    def publish(G):
        while st.on and st.n < 13: st()
        NL = o.get("NL", 8); LG = NL.bit_length() - 1; MS = NL*128
        def slot_off(dst, src):
            g.e(f"s_and_b32 s92, s{src}, {NL-1}")
            g.e(f"s_lshl_b32 s92, s92, 7")
            g.e(f"s_lshr_b32 s{dst}, s{src}, {LG}")
            g.e(f"s_lshl_b32 s{dst}, s{dst}, 2")
            g.e(f"s_add_u32 s{dst}, s{dst}, s92")
        if G:
            g.e(f"s_lshr_b32 s{sT0}, s{sU}, 1")
            g.e(f"s_and_b32 s{sT1}, s{sU}, 1")
            g.e(f"s_lshl_b32 s{sT2}, s{sT1}, 1")
            g.e(f"s_add_u32 s{sT2}, s{sT2}, s{sT0}")
            g.e(f"s_sub_u32 s{sT2}, s{sT2}, 1")
            g.e(f"s_add_u32 s{sSOX}, s{sT1}, 1")
            g.e(f"s_lshl_b32 s{sSOX}, s{sSOX}, 2")
            g.e(f"s_add_u32 s{sSOX}, s{sSOX}, s{sCT}")
            slot_off(sSOX, sSOX)
            g.e(f"s_mul_i32 s93, s{sT0}, {16*MS}")
            g.e(f"s_add_u32 s{sSOX}, s{sSOX}, s93")
            g.e(f"s_cmp_eq_u32 s{sT1}, 0")
            g.e(f"s_cselect_b32 s{sSOW}, 12, 0")
            g.e(f"s_add_u32 s{sSOW}, s{sSOW}, s{sCT}")
            slot_off(sSOW, sSOW)
            g.e(f"s_mul_i32 s93, s{sT2}, {16*MS}")
            g.e(f"s_add_u32 s{sSOW}, s{sSOW}, s93")
            g.e(f"s_lshr_b32 s{sT2}, s{sT2}, 3")
            g.e(f"s_lshr_b32 s{sT0}, s{sT0}, 3")
            g.e(f"s_cmp_eq_u32 s{sT2}, s{sT0}")
            g.e(f"s_cselect_b32 s92, -1, 0xffff")
            g.e(f"s_mov_b32 s93, 0")
            g.e(f"v_and_b32 v{vT}, 15, v{vLane}")
            g.e(f"v_mul_u32_u24 v{vT}, {MS}, v{vT}")
            g.e(f"v_mov_b32 v{vT2}, s{sSOW}")
            g.e(f"v_mov_b32 v{vPX}, s{sSOX}")
            g.e(f"v_cmp_gt_u32 vcc, 16, v{vLane}")
            g.e("s_nop 1")
            g.e(f"v_cndmask_b32 v{vT2}, v{vT2}, v{vPX}, vcc")
            g.e(f"v_add_u32 v{vT}, v{vT}, v{vT2}")
            g.e(f"s_mov_b32 s{sT0}, {WS_MB}")
        else:
            g.e(f"v_lshrrev_b32 v{vT}, 2, v{vLane}")
            g.e(f"v_lshlrev_b32 v{vT}, 4, v{vT}")
            g.e(f"v_and_b32 v{vT2}, 3, v{vLane}")
            g.e(f"v_add_u32 v{vT}, v{vT}, v{vT2}")
            g.e(f"v_mul_u32_u24 v{vT}, {MS}, v{vT}")
            g.e(f"s_add_u32 s{sT1}, s{sU}, 16")
            slot_off(sT1, sT1)
            g.e(f"s_mul_i32 s{sT0}, s{sCT}, {4*MS}")
            g.e(f"s_add_u32 s{sT0}, s{sT0}, s{sT1}")
            g.e(f"s_add_u32 s{sT0}, s{sT0}, {WS_MB}")
            g.e(f"s_mov_b64 s[92:93], -1")
        dt(g, 5 if G else 6)
        if st.on: g.e("s_memrealtime s[78:79]")
        g.e("s_waitcnt vmcnt(0)")
        g.e("s_barrier")
        if st.on: g.e("s_memrealtime s[80:81]")
        dt(g, 7 if G else 8)
        g.e(f"s_cmp_lg_u32 s{sW}, 0")
        g.e(f"s_cbranch_scc1 {name}_ph2")
        g.e(f"s_mov_b64 exec, s[92:93]")
        g.e(f"buffer_store_dword v{vNC}, v{vT}, {sr(SWS)}, s{sT0} offen sc1")
        g.e("s_mov_b64 exec, -1")
        g.e(f"s_branch {name}_ph2")

    def bodyP():
        g.vm = []; g.lg = []
        st.n = st_n0
        g.label(f"{name}_P")
        NA = 3
        S = o.get("SP", 3)
        STG = 16384 + NA*4096
        XB3, XB4 = S*STG, (S*STG + 32768 if S == 3 else 0)
        PRE = o.get("PREP", 2)
        g.e(f"s_and_b32 s{sODD}, s{sU}, 1")
        g.e(f"s_lshr_b32 s{sT1}, s{sU}, 1")
        g.e(f"s_mul_i32 s{sXROW}, s{sT1}, 288")
        g.e(f"s_mul_i32 s{sT2}, s{sODD}, 160")
        g.e(f"s_add_u32 s{sXROW}, s{sXROW}, s{sT2}")
        g.e(f"s_lshr_b32 s{sKC}, s{sT1}, 1")
        g.e(f"s_lshl_b32 s{sKC}, s{sKC}, 16")
        g.e(f"s_lshl_b32 s93, s{sXROW}, 10")
        g.e(f"s_lshr_b32 s92, s{sKC}, 9")
        g.e("s_waitcnt lgkmcnt(0)")
        st(); dt(g, 2)
        srd(g, SX, 44, 45, 4608*1024); srd(g, SWT, 10, 11, 512 << 10)
        cur = [None]
        def kofs(kc):
            if cur[0] == kc: return
            cur[0] = kc
            g.e(f"s_add_u32 s{sT2}, s92, {kc*128}")
            g.e(f"s_and_b32 s{sT2}, s{sT2}, 0x3ff")
            g.e(f"s_add_u32 s91, s{sT2}, s93")
            g.e(f"s_lshl_b32 s90, s{sT2}, 9")
        def ldW(kc, m):
            kofs(kc)
            g.e(f"s_add_u32 m0, s{sM0X}, {(kc % S)*STG + m*4096}")
            g.e(f"s_add_u32 s{sSOW}, s90, {m*16384}")
            g.vmem(f"buffer_load_dwordx4 v{vWD}, {sr(SWT)}, s{sSOW} offen{ldf} lds", ("D", kc))
        def ldX(b, kc):
            kofs(kc)
            dst = (kc % S)*STG + 16384 + b*4096 if b < NA else [XB3, XB4][b-NA] + kc*4096
            g.e(f"s_add_u32 m0, s{sM0X}, {dst}")
            g.e(f"s_add_u32 s{sSOX}, s91, {b*32768}")
            g.vmem(f"buffer_load_dwordx4 v{vXD}, {sr(SX)}, s{sSOX} offen{ldf} lds", ("D", kc) if b < NA else ("XB", b))
        ldq = []
        for kc in range(8):
            for m in range(4): ldq.append(("W", kc, m, kc - S))
            for b in range(NA): ldq.append(("X", b, kc, kc - S))
            if not o.get("late", 0) and kc >= 2:
                for b in (3, 4): ldq.append(("X", b, kc - 2, -1))
        if o.get("late", 0):
            for b in (3, 4):
                for kc in range(8): ldq.append(("X", b, kc, 5 if (b == 4 and S == 4) else -1))
        else:
            for kc in (6, 7):
                for b in (3, 4): ldq.append(("X", b, kc, -1))
        freed = [-1]
        def ldnext():
            if not ldq or len(g.vm) >= 60: return False
            t, a, b_, need = ldq[0]
            if need > freed[0]: return False
            ldq.pop(0)
            if t == "W": ldW(a, b_)
            else: ldX(a, b_)
            return True
        for _ in range(7*PRE): ldnext()
        slotc = [0]
        srd(g, SDB, 48, 49, 256)
        frag_consts(False)
        srd(g, SWS, 50, 51, 16 << 20)
        g.e(f"s_lshl_b32 s{sT0}, s{sCT}, 2")
        g.e(f"s_add_u32 s{sT0}, s{sT0}, s{sW}")
        g.e(f"s_mul_i32 s{sT0}, s{sT0}, {32*10240}")
        g.e(f"s_add_u32 s{sT0}, s{sT0}, {WS_WP}")
        g.e(f"v_add_u32 v{vST}, s{sT0}, v{vL16}")
        XRB = TMP + 40
        def read_list(kc, s):
            p = (kc*4 + s) % 2
            ks = 4*kc + s
            L = []
            for h in range(2):
                L.append((f"ds_read_b64_tr_b16 {ar(4*ks+2*h,2)}, v{vWAs} offset:{s*4096+h*1024}", 0))
            for b in range(NA):
                L.append((f"ds_read_b128 {vr(XF+p*20+b*4)}, v{vXAs[s]} offset:{b*4096}", b))
            return [(r, ("R", kc, s, b)) for r, b in L]
        def stage_addr(kc):
            sb = (kc % S) * STG
            for s in range(4): g.e(f"v_add_u32 v{vXAs[s]}, {sb + 16384}, v{vXA[s]}")
            g.e(f"v_add_u32 v{vWAs}, {sb}, v{vWA}")
        stage_addr(0)
        st()
        g.wait_vm([("D", 0)])
        g.e("s_barrier")
        st()
        for r, t in read_list(0, 0): g.lds(r, t)
        LPA = o.get("LPA", 1)
        for kc in range(8):
            for s in range(4):
                if s < 3:
                    nxt = read_list(kc, s+1)
                else:
                    nxt = []
                    if kc < 7:
                        g.wait_lg([("R", kc, 3, b) for b in range(NA)])
                        while any(t[3] == kc+1-S and t[3] >= -10 and ((t[0] == "W" and t[1] == kc+1) or (t[0] == "X" and t[1] < NA and t[2] == kc+1)) for t in ldq): assert ldnext()
                        g.wait_vm([("D", kc+1)])
                        g.e("s_barrier")
                        if kc in (1, 3, 5): st()
                        freed[0] = kc
                        stage_addr(kc+1)
                        nxt = read_list(kc+1, 0)
                p = (kc*4 + s) % 2
                ks = 4*kc + s
                for b in range(NA):
                    g.wait_lg([("R", kc, s, bb) for bb in range(b+1)])
                    ac = vr(ACC+16*b, 16)
                    g.e(f"v_mfma_f32_32x32x16_bf16 {ac}, {vr(XF+p*20+b*4)}, {ar(4*ks)}, {'0' if ks == 0 else ac}")
                    for _ in range(2):
                        if nxt:
                            r, t = nxt.pop(0); g.lds(r, t)
                    slotc[0] += 1
                    if (slotc[0] * o.get("PN", 12)) % 12 < o.get("PN", 12): ldnext()
            if kc == 4:
                g.vmem(f"buffer_load_dword v{vNC}, v{vZ}, {sr(SDB)}, 0 offen sc1", ("NC",))
        while ldq: assert ldnext()
        st()
        def store_block(b):
            a = ACC + 16*b
            L = []
            L.append(f"s_add_u32 s{sT0}, s{sXROW}, {32*b}")
            L.append(f"s_lshr_b32 s{sT1}, s{sT0}, 9")
            L.append(f"s_and_b32 s{sT0}, s{sT0}, 511")
            L.append(f"s_lshr_b32 s{sT0}, s{sT0}, 4")
            L.append(f"s_mul_i32 s{sT0}, s{sT0}, 10")
            L.append(f"s_add_u32 s{sT0}, s{sT0}, s{sT1}")
            L.append(f"s_lshl_b32 s{sT0}, s{sT0}, 10")
            L.append(f"s_add_u32 s{sT1}, s{sT0}, 10240")
            for hh in range(2):
                d = TMP + b*8 + hh*4
                for i in range(4):
                    L.append(f"v_cvt_pk_bf16_f32 v{d+i}, v{a+8*hh+2*i}, v{a+8*hh+2*i+1}")
                L.append(("ST", f"buffer_store_dwordx4 {vr(d)}, v{vST}, {sr(SWS)}, s{sT0 if hh==0 else sT1} offen{stf}"))
            return L
        def emit(x):
            if isinstance(x, tuple): g.vmem(x[1])
            else: g.e(x)
        xr = [0]; xreg = {}
        def xread(b, ks):
            r = XRB + (xr[0] % 8)*4; xr[0] += 1
            g.lds(f"ds_read_b128 {vr(r)}, v{vXAs[ks%4]} offset:{(ks//4)*4096}", ("R2", b, ks))
            return r
        g.wait_vm([("XB", 3)] if o.get("late", 0) else [("XB", 3), ("XB", 4)])
        g.e("s_barrier")
        def blockB(b, pend):
            for s in range(4): g.e(f"v_add_u32 v{vXAs[s]}, {[XB3, XB4][b-3]}, v{vXA[s]}")
            AH = 6
            for ks in range(AH): xreg[(b, ks)] = xread(b, ks)
            for ks in range(32):
                g.wait_lg([("R2", b, ks)])
                ac = vr(ACC + 16*b, 16)
                g.e(f"v_mfma_f32_32x32x16_bf16 {ac}, {vr(xreg[(b,ks)])}, {ar(4*ks)}, {'0' if ks == 0 else ac}")
                if ks + AH < 32: xreg[(b, ks+AH)] = xread(b, ks+AH)
                if ks >= 1:
                    for _ in range(2):
                        if pend: emit(pend.pop(0))
            assert not pend
        blockB(3, store_block(0) + store_block(1) + store_block(2))
        st()
        g.e(f"s_cmp_lg_u32 s{sODD}, 0")
        g.e(f"s_cbranch_scc1 {name}_P4")
        saved = (list(g.vm), list(g.lg))
        if o.get("late", 0):
            g.wait_vm([("XB", 4)])
            g.e("s_barrier")
        blockB(4, store_block(3))
        st(); dt(g, 4)
        g.e("s_nop 3")
        for x in store_block(4): emit(x)
        g.e(f"s_branch {name}_Pdone")
        g.label(f"{name}_P4")
        g.vm, g.lg = saved
        g.e(f"s_lshr_b32 s{sT0}, s{sU}, 1")
        g.e(f"s_and_b32 s{sT2}, s{sT0}, 1")
        g.e(f"s_mul_i32 s{sT0}, s{sT0}, 20480")
        g.e(f"s_add_u32 s{sT0}, s{sT0}, 9216")
        g.e(f"s_add_u32 s{sT1}, s{sT0}, 10240")
        g.e(f"s_cmp_eq_u32 s{sT2}, 0")
        g.e(f"s_cbranch_scc0 {name}_rp1")
        g.e(f"buffer_store_dwordx4 {ar(0)}, v{vST}, {sr(SWS)}, s{sT0} offen{stf}")
        g.e(f"buffer_store_dwordx4 {ar(4)}, v{vST}, {sr(SWS)}, s{sT1} offen{stf}")
        g.e(f"s_branch {name}_rp2")
        g.label(f"{name}_rp1")
        g.e(f"buffer_store_dwordx4 {ar(8)}, v{vST}, {sr(SWS)}, s{sT0} offen{stf}")
        g.e(f"buffer_store_dwordx4 {ar(12)}, v{vST}, {sr(SWS)}, s{sT1} offen{stf}")
        g.label(f"{name}_rp2")
        g.e("s_nop 3")
        for x in store_block(3): emit(x)
        g.label(f"{name}_Pdone")
        g.vm = []
        nonce_wait("P")
        publish(False)

    def bodyG():
        NX, S = 2, 6
        XB = NX * 4096
        STG = XB + 16384
        NI = NX + 4
        PRE1 = o.get("PREG", 3)
        XT = 6*STG
        g.vm = []; g.lg = []
        st.n = st_n0
        g.e(f"s_lshl_b32 s{sXROW}, s{sU}, 16")
        g.e(f"v_lshrrev_b32 v{vT}, 4, v{vLane}")
        g.e(f"s_lshl_b32 s{sT2}, s{sW}, 2")
        g.e(f"v_add_u32 v{vT}, s{sT2}, v{vT}")
        g.e(f"v_and_b32 v{vT2}, 15, v{vLane}")
        g.e(f"v_xor_b32 v{vT2}, v{vT2}, v{vT}")
        g.e(f"v_lshlrev_b32 v{vT2}, 4, v{vT2}")
        g.e(f"v_lshl_add_u32 v{vT}, v{vT}, 10, v{vT2}")
        g.e(f"s_lshl_b32 s{sT2}, s{sCT}, 8")
        g.e(f"v_add_u32 v{vWR}, s{sT2}, v{vT}")
        g.e("s_waitcnt lgkmcnt(0)")
        st(); dt(g, 2)
        srd(g, SX, 6, 7, 2 << 20); srd(g, SWT, 8, 9, 512 << 10); srd(g, SXI, 4, 5, 2 << 20)
        def ld1(kc, m):
            sb = (kc % S) * STG
            isx = m < NX
            mm = m if isx else m - NX
            g.e(f"s_add_u32 m0, s{sM0X}, {sb + m*4096}")
            if isx: g.e(f"s_add_u32 s{sSOX}, s{sXROW}, {mm*32768 + kc*128}")
            else:   g.e(f"s_mov_b32 s{sSOW}, {(kc*64 + 16*mm)*1024}")
            va, sd, so = (vXD, SX, sSOX) if isx else (vWD, SWT, sSOW)
            g.vmem(f"buffer_load_dwordx4 v{va}, {sr(sd)}, s{so} offen{ldf} lds", ("D", kc))
        for m in range(NI): ld1(0, m)
        srd(g, SDB, 48, 49, 256)
        g.e(f"s_or_b32 s{sT0}, s2, s{sW}")
        g.e(f"s_cmp_lg_u32 s{sT0}, 0")
        g.e(f"s_cbranch_scc1 {name}_nn")
        g.e("s_memrealtime s[96:97]")
        g.e("s_waitcnt lgkmcnt(0)")
        g.e(f"s_or_b32 s96, s96, 1")
        g.e(f"v_mov_b32 v{vT}, s96")
        g.e(f"buffer_store_dword v{vT}, v{vZ}, {sr(SDB)}, 0 offen sc1")
        g.label(f"{name}_nn")
        for kc in range(1, PRE1):
            for m in range(NI): ld1(kc, m)
        ldq = [(kc, m) for kc in range(PRE1, 8) for m in range(NI)]
        k6 = [i for i, (kc, m) in enumerate(ldq) if kc >= 5][0]
        ldq[k6:k6] = [("X", m) for m in range(4)]
        freed = [0]
        def ldnext():
            if not ldq: return False
            kc, m = ldq[0]
            if kc == "X":
                ldq.pop(0)
                g.e(f"s_add_u32 m0, s{sM0X}, {XT + m*4096}")
                g.e(f"s_add_u32 s{sSOX}, s{sXROW}, {m*16384}")
                g.vmem(f"buffer_load_dwordx4 v{vWR}, {sr(SXI)}, s{sSOX} offen{ldf} lds", ("D", 5))
                return True
            if kc - S >= freed[0]: return False
            ldq.pop(0); ld1(kc, m); return True
        frag_consts(True)
        srd(g, SWS, 50, 51, 16 << 20)
        mk = len(g.lines)
        vXR, vGA, vGO = TMP+60, TMP+61, TMP+62
        g.e(f"s_lshr_b32 s{sT0}, s{sW}, 1")
        g.e(f"s_and_b32 s{sT1}, s{sW}, 1")
        g.e(f"s_lshl_b32 s{sT2}, s{sT0}, 13")
        g.e(f"s_add_u32 s{sT2}, s{sT2}, {XT}")
        g.e(f"v_and_b32 v{vT}, 15, v{vPX}")
        g.e(f"s_lshl_b32 s{sSOX}, s{sT1}, 3")
        g.e(f"v_xor_b32 v{vT}, s{sSOX}, v{vT}")
        g.e(f"v_lshlrev_b32 v{vT}, 4, v{vT}")
        g.e(f"v_lshl_add_u32 v{vT}, v{vPX}, 8, v{vT}")
        g.e(f"v_lshl_add_u32 v{vT}, v{vHF}, 3, v{vT}")
        g.e(f"v_add_u32 v{vXR}, s{sT2}, v{vT}")
        g.e(f"s_lshl_b32 s{sT2}, s{sT0}, 15")
        g.e(f"s_add_u32 s{sT2}, s{sT2}, s{sXROW}")
        g.e(f"s_lshl_b32 s{sSOX}, s{sCT}, 13")
        g.e(f"s_add_u32 s{sT2}, s{sT2}, s{sSOX}")
        g.e(f"s_lshl_b32 s{sSOX}, s{sT1}, 12")
        g.e(f"s_add_u32 s{sT2}, s{sT2}, s{sSOX}")
        g.e(f"v_add_u32 v{vST}, s{sT2}, v{vL16}")
        g.e(f"s_lshl_b32 s{sSOX}, s{sU}, 1")
        g.e(f"s_add_u32 s{sSOX}, s{sSOX}, s{sT0}")
        g.e(f"s_lshl_b32 s{sSOX}, s{sSOX}, 12")
        g.e(f"s_add_u32 s{sSOX}, s{sSOX}, {WS_ST}")
        g.e(f"v_lshlrev_b32 v{vGO}, 4, v{vPX}")
        g.e(f"v_add_u32 v{vGO}, s{sSOX}, v{vGO}")
        g.e(f"v_lshl_add_u32 v{vGA}, v{vHF}, 11, v{vGO}")
        g.e(f"s_lshl_b32 s93, s{sCT}, 1")
        g.e(f"s_add_u32 s93, s93, s{sT1}")
        g.e(f"s_lshl_b32 s93, s93, 9")
        deferG = g.lines[mk:]; del g.lines[mk:]
        def stage_addr(kc):
            sb = (kc % S) * STG
            for s in range(4): g.e(f"v_add_u32 v{vXAs[s]}, {sb}, v{vXA[s]}")
            g.e(f"v_add_u32 v{vWAs}, {sb + XB}, v{vWA}")
            g.e(f"v_xor_b32 v{vWAs2}, 64, v{vWAs}")
        def read_list(kc, s):
            p = (kc*4 + s) % 2
            L = [(f"ds_read_b128 {vr(XF+p*20)}, v{vXAs[s]}", 0)]
            for cb in range(2):
                for h in range(2):
                    L.append((f"ds_read_b64_tr_b16 {vr(WF+p*8+cb*4+h*2,2)}, v{vWAs if cb==0 else vWAs2} offset:{s*4096+h*1024}", cb))
            return [(r, ("R", kc, s, b)) for r, b in L]
        stage_addr(0)
        st()
        g.wait_vm([("D", 0)])
        g.e("s_barrier")
        st()
        XR = TMP
        XU = ACC + 32
        for r, t in read_list(0, 0): g.lds(r, t)
        LPM = o.get("LPG", 1)
        for kc in range(8):
            for s in range(4):
                if s < 3:
                    nxt = read_list(kc, s+1)
                else:
                    nxt = []
                    if kc < 7:
                        g.wait_lg([("R", kc, 3, b) for b in range(2)])
                        while any(c_ == kc+1 for c_, _ in ldq): assert ldnext()
                        g.wait_vm([("D", kc+1)])
                        g.e("s_barrier")
                        if kc in (0, 2, 4, 6): st()
                        freed[0] = kc + 1
                        stage_addr(kc+1)
                        nxt = read_list(kc+1, 0)
                p = (kc*4 + s) % 2
                for b in range(2):
                    g.wait_lg([("R", kc, s, bb) for bb in range(b+1)])
                    ac = vr(ACC+16*b, 16)
                    g.e(f"v_mfma_f32_32x32x16_bf16 {ac}, {vr(WF+p*8+b*4)}, {vr(XF+p*20)}, {'0' if kc == 0 and s == 0 else ac}")
                    for _ in range(3):
                        if nxt:
                            r, t = nxt.pop(0); g.lds(r, t)
                    for _ in range(LPM): ldnext()
            if kc == 4:
                g.vmem(f"buffer_load_dword v{vNC}, v{vZ}, {sr(SDB)}, 0 offen sc1", ("NC",))
            if kc == 0: g.lines += deferG
            if kc == 5:
                for j in range(8):
                    g.e(f"v_xor_b32 v{vT2}, {j*16}, v{vXR}")
                    g.lds(f"ds_read_b64 {vr(XR+2*j,2)}, v{vT2}", ("XR", j))
            if kc == 6:
                g.wait_lg([("XR", 7)])
                for j in range(16):
                    g.e(f"v_lshlrev_b32 v{XU+2*j}, 16, v{XR+j}")
                    g.e(f"v_and_b32 v{XU+2*j+1}, 0xffff0000, v{XR+j}")
        assert not ldq
        st(); dt(g, 3)
        nonce_wait("G")
        g.e("s_nop 7")
        S1, S2 = TMP+16, TMP+18
        P1, P2 = TMP+20, TMP+22
        for i in range(16): g.e(f"v_pk_add_f32 {vr(ACC+2*i,2)}, {vr(ACC+2*i,2)}, {vr(XU+2*i,2)}")
        g.e(f"v_pk_add_f32 {vr(P1,2)}, {vr(ACC,2)}, {vr(ACC+2,2)}")
        g.e(f"v_pk_mul_f32 {vr(P2,2)}, {vr(ACC,2)}, {vr(ACC,2)}")
        g.e(f"v_pk_fma_f32 {vr(P2,2)}, {vr(ACC+2,2)}, {vr(ACC+2,2)}, {vr(P2,2)}")
        for i in range(2, 16):
            g.e(f"v_pk_add_f32 {vr(P1,2)}, {vr(P1,2)}, {vr(ACC+2*i,2)}")
            g.e(f"v_pk_fma_f32 {vr(P2,2)}, {vr(ACC+2*i,2)}, {vr(ACC+2*i,2)}, {vr(P2,2)}")
        g.e(f"v_add_f32 v{S1}, v{P1}, v{P1+1}")
        g.e(f"v_add_f32 v{S2}, v{P2}, v{P2+1}")
        g.e(f"v_mov_b32 v{vT}, v{S1}")
        g.e(f"v_mov_b32 v{vT2}, v{S2}")
        g.e(f"v_mov_b32 v{S1+1}, v{vNC}")
        g.e(f"v_mov_b32 v{S2+1}, v{vNC}")
        g.e(f"v_permlane32_swap_b32 v{S1}, v{vT}")
        g.e(f"v_permlane32_swap_b32 v{S2}, v{vT2}")
        g.e(f"v_add_f32 v{S1}, v{S1}, v{vT}")
        g.e(f"v_add_f32 v{S2}, v{S2}, v{vT2}")
        g.e("s_mov_b64 exec, 0xffffffff")
        g.e(f"buffer_store_dwordx4 {vr(S1)}, v{vGO}, {sr(SWS)}, s93 offen sc1")
        g.e("s_mov_b64 exec, -1")
        st()
        for j in range(16):
            g.e(f"v_cvt_pk_bf16_f32 v{XR+j}, v{ACC+2*j}, v{ACC+2*j+1}")
        g.e("s_nop 1")
        for hh in range(4):
            g.e(f"v_permlane32_swap_b32 v{XR+4*hh}, v{XR+4*hh+2}")
            g.e(f"v_permlane32_swap_b32 v{XR+4*hh+1}, v{XR+4*hh+3}")
        EA, EB = TMP + 24, TMP + 40
        def poll_issue(E):
            for e_ in range(4):
                g.e(f"buffer_load_dwordx4 {vr(E+4*e_)}, v{vGA}, {sr(SWS)}, 0 offen offset:{e_*512} sc1")
        def poll_check(E):
            g.e(f"v_xor_b32 v{vT}, v{E+1}, v{vNC}")
            for e_ in range(4):
                for o_ in (1, 3):
                    if e_ == 0 and o_ == 1: continue
                    g.e(f"v_xor_b32 v{vT2}, v{E+4*e_+o_}, v{vNC}")
                    g.e(f"v_or_b32 v{vT}, v{vT}, v{vT2}")
            g.e(f"v_cmp_ne_u32 vcc, 0, v{vT}")
            g.e("s_nop 4")
        g.e(f"s_mov_b32 s{sT2}, 0")
        poll_issue(EA)
        g.label(f"{name}_poll")
        g.e(f"s_add_u32 s{sT2}, s{sT2}, 1")
        g.e(f"s_cmp_gt_u32 s{sT2}, 100000")
        g.e(f"s_cbranch_scc1 {name}_pollx")
        if o.get("pp", 1):
            g.e("s_sleep 4")
            poll_issue(EB)
            g.e("s_waitcnt vmcnt(4)")
            poll_check(EA)
            g.e(f"s_cbranch_vccz {name}_pollx")
            poll_issue(EA)
            g.e("s_waitcnt vmcnt(4)")
            poll_check(EB)
            g.e(f"s_cbranch_vccnz {name}_poll")
            g.e("s_waitcnt vmcnt(0)")
        else:
            g.e("s_waitcnt vmcnt(0)")
            poll_check(EA)
            g.e(f"s_cbranch_vccz {name}_pollx")
            poll_issue(EA)
            g.e(f"s_branch {name}_poll")
        g.label(f"{name}_pollx")
        st()
        E = EA
        g.e(f"s_mov_b32 s{sT1}, {WS_HI}")
        for e_ in range(1, 4):
            g.e(f"v_add_f32 v{E}, v{E}, v{E+4*e_}")
            g.e(f"v_add_f32 v{E+2}, v{E+2}, v{E+4*e_+2}")
        g.e(f"v_mov_b32 v{vT}, v{E}")
        g.e(f"v_mov_b32 v{vT2}, v{E+2}")
        for hh in range(4):
            g.e(f"buffer_store_dwordx4 {vr(XR+4*hh)}, v{vST}, {sr(SWS)}, s{sT1} offen offset:{hh*1024}{stf}")
        g.e(f"v_permlane32_swap_b32 v{E}, v{vT}")
        g.e(f"v_permlane32_swap_b32 v{E+2}, v{vT2}")
        g.e(f"v_add_f32 v{E}, v{E}, v{vT}")
        g.e(f"v_add_f32 v{E+2}, v{E+2}, v{vT2}")
        g.e(f"v_mul_f32 v{E}, {f2u(1/512):#x}, v{E}")
        g.e(f"v_mul_f32 v{E+2}, {f2u(1/512):#x}, v{E+2}")
        g.e(f"v_fma_f32 v{E+2}, -v{E}, v{E}, v{E+2}")
        g.e(f"v_max_f32 v{E+2}, 0, v{E+2}")
        g.e(f"v_add_f32 v{E+2}, {f2u(1e-5):#x}, v{E+2}")
        A_, B_, A2, B2 = E+4, E+6, E+8, E+10
        g.e(f"v_rsq_f32 v{A_}, v{E+2}")
        g.e("s_nop 0")
        g.e(f"v_mul_f32 v{B_}, v{E}, v{A_}")
        g.e(f"v_sub_f32 v{B_}, 0, v{B_}")
        g.e(f"v_mul_f32 v{A2}, {f2u(-LOG2E):#x}, v{A_}")
        g.e(f"v_mul_f32 v{B2}, {f2u(-LOG2E):#x}, v{B_}")
        Y = XF
        D = WF
        for hh in range(4):
            a = ACC + 8*hh; y = Y + (hh % 2)*8
            for i in range(4): g.e(f"v_pk_fma_f32 {vr(y+2*i,2)}, {vr(a+2*i,2)}, {vr(A2,2)}, {vr(B2,2)} op_sel_hi:[1,0,0]")
            for i in range(8): g.e(f"v_exp_f32 v{y+i}, v{y+i}")
            for i in range(4): g.e(f"v_pk_fma_f32 {vr(a+2*i,2)}, {vr(a+2*i,2)}, {vr(A_,2)}, {vr(B_,2)} op_sel_hi:[1,0,0]")
            for i in range(4): g.e(f"v_pk_add_f32 {vr(y+2*i,2)}, {vr(y+2*i,2)}, 1.0 op_sel_hi:[1,0]")
            for i in range(8): g.e(f"v_rcp_f32 v{y+i}, v{y+i}")
            g.e("s_nop 0")
            for i in range(4): g.e(f"v_pk_mul_f32 {vr(a+2*i,2)}, {vr(a+2*i,2)}, {vr(y+2*i,2)}")
            d = D + hh*4
            for i in range(4): g.e(f"v_cvt_pk_bf16_f32 v{d+i}, v{a+2*i}, v{a+2*i+1}")
            g.e(f"buffer_store_dwordx4 {vr(d)}, v{vST}, {sr(SWS)}, 0 offen offset:{hh*1024}{stf}")
        publish(True)
    bodyG(); bodyP()

def phase2(g, name, st, o):
    NST, PRE, EVERY = o.get("NST", 3), o.get("PRE", 20), o.get("EVERY", 2)
    lf = o.get("lf", " sc1").replace(" none", "")
    SA, SWP, SX, SO, SDB = 12, 16, 20, 24, 28
    C4K, C8K, C2M, C2M4K = 33, 34, 42, 43
    sMT, sNT, sB, sT0, sT1, sR0, sBASE = 35, 36, 37, 38, 39, 97, 96
    vLane, vT, vW, vMR, vML, vO, vT2 = 1, 2, 3, 4, 5, 6, 7
    vH = [8+j for j in range(6)]
    vA, vA1 = 14, 15
    vXF = 16
    HB = 24
    HIB = HB + NST*24
    T0 = HIB + NST*16
    T2 = T0 + 24
    VEND = T2 + 24
    vF, vG, vPF = VEND, VEND+1, VEND+2
    assert VEND + 8 <= 250
    ACC, WB = 0, 64
    AEND = WB + NST*40
    g.vm = []; g.lg = []
    g.label(f"{name}_ph2")
    if st.on: st.n = 15
    st()
    g.e(f"s_and_b32 s{sT0}, s2, 7")
    g.e(f"s_lshr_b32 s{sT1}, s2, 3")
    g.e(f"s_and_b32 s{sB}, s{sT0}, 1")
    g.e(f"s_lshr_b32 s{sT0}, s{sT0}, 1")
    g.e(f"s_and_b32 s{sMT}, s{sT1}, 7")
    g.e(f"s_lshr_b32 s{sT1}, s{sT1}, 3")
    g.e(f"s_lshl_b32 s{sNT}, s{sT0}, 2")
    g.e(f"s_add_u32 s{sNT}, s{sNT}, s{sT1}")
    g.e(f"s_lshl_b32 s{sT0}, s{sB}, 5")
    g.e(f"s_lshl_b32 s{sT1}, s{sMT}, 2")
    g.e(f"s_add_u32 s{sR0}, s{sT0}, s{sT1}")
    srd(g, SDB, 50, 51, 16 << 20)
    NL = o.get("NL", 8); LG = NL.bit_length() - 1; MS = NL*128
    g.e(f"s_lshr_b32 s{sT0}, s{sR0}, 2")
    g.e(f"s_lshl_b32 s{sT0}, s{sT0}, 4")
    g.e(f"s_add_u32 s{sT0}, s{sT0}, s{sNT}")
    g.e(f"s_mul_i32 s{sT0}, s{sT0}, {MS}")
    g.e(f"s_add_u32 s{sT0}, s{sT0}, {WS_MB}")
    g.e(f"v_and_b32 v{vF}, {NL-1}, v{vLane}")
    g.e(f"v_lshlrev_b32 v{vF}, 7, v{vF}")
    g.e(f"v_lshrrev_b32 v{vG}, {LG}, v{vLane}")
    g.e(f"v_lshl_add_u32 v{vF}, v{vG}, 2, v{vF}")
    g.e(f"v_add_u32 v{vF}, s{sT0}, v{vF}")
    g.e(f"s_movk_i32 s{C4K}, 0x1000")
    g.e(f"s_movk_i32 s{C8K}, 0x2000")
    g.e(f"s_mov_b32 s{C2M}, 0x200000")
    g.e(f"s_mov_b32 s{C2M4K}, 0x201000")
    g.e(f"s_lshl_b32 s{sBASE}, s{sR0}, 15")
    g.e(f"s_lshl_b32 s{sT0}, s{sW}, 13")
    g.e(f"s_add_u32 s{sBASE}, s{sBASE}, s{sT0}")
    g.e(f"v_lshlrev_b32 v{vT}, 4, v{vLane}")
    for j in range(1, 5):
        g.e(f"s_add_u32 s{sT0}, s{sBASE}, {(j-1)*32768}")
        g.e(f"v_add_u32 v{vH[j]}, s{sT0}, v{vT}")
    g.e(f"s_sub_u32 s{sT0}, s{sBASE}, 32768")
    g.e(f"s_cmp_eq_u32 s{sMT}, 0")
    g.e(f"s_cselect_b32 s{sT0}, 0x40000000, s{sT0}")
    g.e(f"v_add_u32 v{vH[0]}, s{sT0}, v{vT}")
    g.e(f"s_add_u32 s{sT0}, s{sBASE}, {4*32768}")
    g.e(f"s_cmp_eq_u32 s{sMT}, 7")
    g.e(f"s_cselect_b32 s{sT0}, 0x40000000, s{sT0}")
    g.e(f"v_add_u32 v{vH[5]}, s{sT0}, v{vT}")
    g.e(f"s_lshl_b32 s{sT0}, s{sNT}, 5")
    g.e(f"s_lshl_b32 s{sT1}, s{sW}, 3")
    g.e(f"s_add_u32 s{sT0}, s{sT0}, s{sT1}")
    g.e(f"s_mul_i32 s92, s{sT0}, 10240")
    g.e(f"v_add_u32 v{vW}, s92, v{vT}")
    srd(g, SA, 50, 51, 4 << 20)
    srd(g, SWP, 50, 51, WP_BYTES, add=WS_WP)
    srd(g, SX, 40, 41, 2 << 20)
    srd(g, SO, 46, 47, 2 << 20)
    g.e(f"s_add_u32 s{sT0}, s{sR0}, s{sW}")
    g.e(f"s_lshl_b32 s{sT0}, s{sT0}, 15")
    g.e(f"s_lshl_b32 s{sT1}, s{sNT}, 6")
    g.e(f"s_add_u32 s{sT0}, s{sT0}, s{sT1}")
    g.e(f"v_lshrrev_b32 v{vO}, 2, v{vLane}")
    g.e(f"v_lshlrev_b32 v{vO}, 10, v{vO}")
    g.e(f"v_and_b32 v{vT2}, 3, v{vLane}")
    g.e(f"v_lshlrev_b32 v{vT2}, 4, v{vT2}")
    g.e(f"v_add3_u32 v{vO}, v{vO}, v{vT2}, s{sT0}")
    g.e(f"s_movk_i32 s{sT1}, 0x4000")
    g.e(f"buffer_load_dwordx4 {vr(vXF)}, v{vO}, {sr(SX)}, 0 offen")
    g.e(f"buffer_load_dwordx4 {vr(vXF+4)}, v{vO}, {sr(SX)}, s{sT1} offen")
    g.e(f"v_and_b32 v{vT}, 31, v{vLane}")
    g.e(f"v_cmp_ne_u32 vcc, 0, v{vT}")
    g.e("s_nop 1")
    g.e(f"v_cndmask_b32 v{vMR}, 0, -1, vcc")
    g.e(f"v_cmp_ne_u32 vcc, 31, v{vT}")
    g.e("s_nop 1")
    g.e(f"v_cndmask_b32 v{vML}, 0, -1, vcc")
    g.e(f"v_lshlrev_b32 v{vA}, 4, v{vLane}")
    g.e(f"s_mul_i32 s{sT0}, s{sW}, 4352")
    g.e(f"v_add_u32 v{vA}, s{sT0}, v{vA}")
    g.e(f"v_and_b32 v{vA1}, 3, v{vLane}")
    g.e(f"v_mul_u32_u24 v{vA1}, 1088, v{vA1}")
    g.e(f"v_lshrrev_b32 v{vT}, 2, v{vLane}")
    g.e(f"v_lshl_add_u32 v{vA1}, v{vT}, 4, v{vA1}")
    g.e(f"s_mul_i32 s{sT0}, s{sW}, 17408")
    g.e(f"v_add_u32 v{vA1}, s{sT0}, v{vA1}")
    g.e("s_mov_b32 s90, 0xffff0000")
    g.e("s_mov_b32 s91, 0xffff")
    g.e(f"s_movk_i32 s{sT0}, 0x1111")
    g.e(f"s_cmp_eq_u32 s{sMT}, 0")
    g.e(f"s_cselect_b32 s{sT0}, 0x1110, s{sT0}")
    g.e(f"s_cmp_eq_u32 s{sMT}, 7")
    g.e(f"s_cselect_b32 s{sT0}, 0x0111, s{sT0}")
    g.e(f"s_lshl_b32 s94, s{sT0}, s{sW}")
    g.e("s_mov_b32 s95, 0")
    def poll(tag, mask, first_issued):
        g.e(f"s_mov_b32 s{sT0}, 0")
        if first_issued: g.e(f"s_branch {name}_fchk{tag}")
        g.label(f"{name}_fpoll{tag}")
        if o.get("fs", 0): g.e(f"s_sleep {o['fs']}")
        g.e(f"buffer_load_dword v{vG}, v{vF}, {sr(SDB)}, 0 offen sc1")
        g.label(f"{name}_fchk{tag}")
        g.e(f"s_add_u32 s{sT0}, s{sT0}, 1")
        g.e(f"s_cmp_gt_u32 s{sT0}, 200000")
        g.e(f"s_cbranch_scc1 {name}_fw{tag}")
        g.e("s_waitcnt vmcnt(0)")
        g.e(f"v_cmp_ne_u32 vcc, s3, v{vG}")
        g.e("s_nop 4")
        g.e(f"s_and_b64 vcc, vcc, {mask}")
        g.e(f"s_cbranch_scc1 {name}_fpoll{tag}")
        g.label(f"{name}_fw{tag}")

    SPF = o.get("spf", 0)
    if SPF:
        g.e(f"s_mul_i32 s{sT0}, s{sMT}, 1280")
        g.e(f"s_add_u32 s{sT0}, s{sT0}, s92")
        g.e(f"s_add_u32 s{sT0}, s{sT0}, {WS_WP}")
        g.e(f"s_add_u32 s4, s50, s{sT0}")
        g.e(f"s_addc_u32 s5, s51, 0")
        g.e(f"s_and_b32 s{sT0}, s{sNT}, 3")
        g.e(f"s_lshl_b32 s{sT0}, s{sT0}, 8")
        g.e(f"s_add_u32 s{sT0}, s{sT0}, s{sBASE}")
        g.e(f"s_add_u32 s6, s50, s{sT0}")
        g.e(f"s_addc_u32 s7, s51, 0")
        g.e(f"s_add_u32 s8, s6, 0x200000")
        g.e(f"s_addc_u32 s9, s7, 0")
    def spf_list(k):
        if not SPF or k > 7: return []
        L = [f"s_load_dword s10, s[4:5], {k*10240 + i*128:#x}" for i in range(10)]
        if o.get("spfh", 1):
            for r in range(4):
                for i in range(2):
                    L.append(f"s_load_dword s10, s[6:7], {r*32768 + k*1024 + i*128:#x}")
                    L.append(f"s_load_dword s10, s[8:9], {r*32768 + k*1024 + i*128:#x}")
        return L
    def Hreg(s_, j): return HB + s_*24 + j*4
    def HIreg(s_, r): return HIB + s_*16 + r*4
    def Wreg(s_, t): return WB + s_*40 + t*4
    def ldW(k, t):
        s_ = k % NST
        off = (k*10 + t)*1024
        return ("W", k, t, s_, off)
    def emitW(k, t):
        s_ = k % NST
        off = (k*10 + t)*1024
        g.e(f"s_mov_b32 s{sT0}, {off & ~4095}")
        g.vmem(f"buffer_load_dwordx4 {ar(Wreg(s_,t))}, v{vW}, {sr(SWP)}, s{sT0} offen offset:{off & 4095}{lf}", ("W", k, t))
    def emitH(k, j):
        s_ = k % NST
        so_h = "0" if k < 4 else f"s{C4K}"
        g.vmem(f"buffer_load_dwordx4 {vr(Hreg(s_,j))}, v{vH[j]}, {sr(SA)}, {so_h} offen offset:{(k%4)*1024}{lf}", ("H", k, j))
    def emitHI(k, r):
        s_ = k % NST
        so = f"s{C2M}" if k < 4 else f"s{C2M4K}"
        g.vmem(f"buffer_load_dwordx4 {vr(HIreg(s_,r))}, v{vH[r+1]}, {sr(SA)}, {so} offen offset:{(k%4)*1024}{lf}", ("HI", k, r))
    def order(k):
        return [("W",1),("H",0),("H",1),("H",2),("H",3),("W",4),("H",4),("W",7),("H",5),("W",9),
                ("HI",0),("HI",1),("HI",2),("HI",3),("W",0),("W",3),("W",6),("W",2),("W",5),("W",8)]
    queue = [(k, t, i) for k in range(8) for (t, i) in order(k)]
    def emit_item(it):
        k, t, i = it
        {"W": emitW, "H": emitH, "HI": emitHI}[t](k, i)
    WPRE = o.get("WPRE", 2)
    split = 0
    if split:
        poll("P", "s[90:91]", False)
        st(); dt(g, 9)
        pre = [it for it in queue if it[1] == "W" and it[0] < WPRE]
        for it in pre:
            queue.remove(it); emit_item(it)
        if o.get("pfw", 0):
            g.e(f"s_mul_i32 s{sT0}, s{sMT}, 10240")
            g.e(f"s_add_u32 s{sT0}, s{sT0}, s92")
            g.e(f"v_lshlrev_b32 v{vPF}, 7, v{vLane}")
            g.e(f"buffer_load_dword v{vPF+1}, v{vPF}, {sr(SWP)}, s{sT0} offen{lf}")
            g.e(f"s_add_u32 s{sT0}, s{sT0}, 2048")
            g.e(f"buffer_load_dword v{vPF+2}, v{vPF}, {sr(SWP)}, s{sT0} offen{lf}")
        g.e(f"v_cmp_ne_u32 vcc, s3, v{vG}")
        g.e("s_nop 4")
        g.e("s_and_b64 vcc, vcc, s[94:95]")
        g.e(f"s_cbranch_scc0 {name}_fwG")
        poll("G", "s[94:95]", False)
    else:
        if o.get("w0", 1):
            g.e(f"s_mov_b32 s{sT0}, 0xffff")
            g.e(f"s_cmp_eq_u32 s{sMT}, 0")
            g.e(f"s_cselect_b32 s{sT0}, 0xfff0, s{sT0}")
            g.e(f"s_cmp_eq_u32 s{sMT}, 7")
            g.e(f"s_cselect_b32 s94, 0x0fff, s{sT0}")
            g.e("s_or_b64 s[90:91], s[90:91], s[94:95]")
            g.e(f"s_cmp_lg_u32 s{sW}, 0")
            g.e(f"s_cbranch_scc1 {name}_fwP")
            poll("P", "s[90:91]", False)
            g.e("s_waitcnt vmcnt(0)")
            g.e("s_barrier")
        else:
            g.e("s_or_b64 s[90:91], s[90:91], s[94:95]")
            poll("P", "s[90:91]", False)
        st(); dt(g, 9)
    if st.on:
        g.e(f"s_memrealtime s[{52+2*st.n}:{53+2*st.n}]"); st.n += 1
    def issue_next(cur_k):
        if not queue: return False
        it = queue[0]
        if it[0] - NST >= cur_k or len(g.vm) >= 60: return False
        queue.pop(0); emit_item(it); return True
    def need(tok, k):
        while any((it[1], it[0], it[2]) == tok for it in queue): assert issue_next(k)
    for _ in range(PRE): issue_next(0)
    if o.get("pfh", 0):
        g.e(f"s_and_b32 s{sT0}, s{sNT}, 3")
        g.e(f"s_lshl_b32 s{sT0}, s{sT0}, 11")
        g.e(f"s_add_u32 s{sT0}, s{sT0}, s{sBASE}")
        g.e(f"v_lshrrev_b32 v{vPF}, 4, v{vLane}")
        g.e(f"v_lshlrev_b32 v{vPF}, 15, v{vPF}")
        g.e(f"v_and_b32 v{vPF+1}, 15, v{vLane}")
        g.e(f"v_lshl_add_u32 v{vPF}, v{vPF+1}, 7, v{vPF}")
        g.vmem(f"buffer_load_dword v{vPF+1}, v{vPF}, {sr(SA)}, s{sT0} offen{lf}")
        g.e(f"s_add_u32 s{sT0}, s{sT0}, 0x200000")
        g.vmem(f"buffer_load_dword v{vPF+2}, v{vPF}, {sr(SA)}, s{sT0} offen{lf}")
    wr_pending = []
    for k in range(8):
        s_ = k % NST
        last = k == 7
        g.c(f"---- k-step {k}")
        if k == 1: st()
        if o.get("ste") and k >= 2: g.e(f"s_memtime s[{60+2*(k-2)}:{61+2*(k-2)}]")
        dpp = [(T0, vMR, "wave_shr:1", j, i) for j in range(6) for i in range(4)]
        dpp2 = [(T2, vML, "wave_shl:1", j, i) for j in range(6) for i in range(4)]
        mf = []
        for di in range(3):
            for r in range(4): mf.append((r, di*3+1, ("H", k, r+di), Hreg(s_, r+di), "A"))
        for r in range(4): mf.append((r, 9, ("HI", k, r), HIreg(s_, r), "B"))
        if not last:
            for di in range(3):
                for r in range(4): mf.append((r, di*3, None, T0 + (r+di)*4, "C"))
            for di in range(3):
                for r in range(4): mf.append((r, di*3+2, None, T2 + (r+di)*4, "D"))
        else:
            dpp = [x for pair in zip(dpp, dpp2) for x in pair]; dpp2 = []
            for r in range(4):
                for di in range(3): mf.append((r, di*3, None, T0 + (r+di)*4, "E"))
                for di in range(3): mf.append((r, di*3+2, None, T2 + (r+di)*4, "E" if di < 2 else "F"))
        since = 0
        spl = spf_list(k + SPF) if k > 0 else [x for kk in range(2, SPF+1) for x in spf_list(kk)]
        for n, (r, t, ht, hreg, grp) in enumerate(mf):
            toks = [("W", k, t)] + ([ht] if ht else [])
            for tok in toks: need(tok, k)
            g.wait_vm(toks)
            c = "0" if (k == 0 and n < 4) else ar(ACC+16*r, 16)
            if o.get("fake16"):
                for u_ in range(2):
                    q_ = ACC + 16*r + 4*((2*n + u_) % 4)
                    g.e(f"v_mfma_f32_16x16x32_bf16 {ar(q_)}, {ar(Wreg(s_,t))}, {vr(hreg)}, {'0' if k == 0 and n < 8 else ar(q_)}")
            else:
                g.e(f"v_mfma_f32_32x32x16_bf16 {ar(ACC+16*r,16)}, {ar(Wreg(s_,t))}, {vr(hreg)}, {c}")
            if grp in "AB" and n >= 2:
                for _ in range(4 if last else 2):
                    if dpp:
                        T, vm_, sh, j, i = dpp.pop(0)
                        need(("H", k, j), k); g.wait_vm([("H", k, j)])
                        g.e(f"v_and_b32_dpp v{T+j*4+i}, v{Hreg(s_,j)+i}, v{vm_} {sh} row_mask:0xf bank_mask:0xf bound_ctrl:0")
            if grp == "C":
                for _ in range(3):
                    if dpp2:
                        T, vm_, sh, j, i = dpp2.pop(0)
                        g.e(f"v_and_b32_dpp v{T+j*4+i}, v{Hreg(s_,j)+i}, v{vm_} {sh} row_mask:0xf bank_mask:0xf bound_ctrl:0")
            if o.get("RN"):
                if (n * o["RN"]) % o["RD"] < o["RN"]: issue_next(k)
            elif n % EVERY == EVERY - 1: issue_next(k)
            for _ in range(2 if k == 0 else 1):
                if spl: g.e(spl.pop(0))
            if wr_pending:
                since += 1
                if since == 2: g.e("s_nop 9")
                if since >= 2:
                    g.e(wr_pending.pop(0))
            if grp == "F":
                assert not wr_pending
                wr_pending = [f"ds_write_b128 v{vA}, {ar(ACC+16*r+4*q)} offset:{r*17408 + q*1088}" for q in range(4)]
                since = 0
        assert not dpp and not dpp2
    assert not queue
    g.c("---- epilogue")
    st(); dt(g, 11)
    g.e("s_nop 11")
    for w_ in wr_pending: g.e(w_)
    g.e("s_waitcnt lgkmcnt(0)")
    if o.get("ste"): g.e("s_memtime s[54:55]")
    g.e("s_barrier")
    if o.get("ste"): g.e("s_memtime s[56:57]")
    R = HB
    for i in range(2):
        for src in range(4):
            for hf in range(2):
                g.lds(f"ds_read_b128 {vr(R + ((i*4+src)*2+hf)*4)}, v{vA1} offset:{src*4352 + hf*512 + i*256}", ("R", i, src))
    XU = R + 64
    for i in range(2):
        for e_ in range(4):
            x = vXF + 4*i + e_
            g.e(f"v_lshlrev_b32 v{XU+8*i+2*e_}, 16, v{x}")
            g.e(f"v_and_b32 v{XU+8*i+2*e_+1}, 0xffff0000, v{x}")
    for i in range(2):
        base = R + i*32
        for src in range(4):
            g.wait_lg([("R", i, src)])
            for e_ in range(4):
                g.e(f"v_pk_add_f32 {vr(XU+8*i+2*e_,2)}, {vr(XU+8*i+2*e_,2)}, {vr(base+8*src+2*e_,2)}")
        for e_ in range(4): g.e(f"v_cvt_pk_bf16_f32 v{vXF+4*i+e_}, v{XU+8*i+2*e_}, v{XU+8*i+2*e_+1}")
        g.vmem(f"buffer_store_dwordx4 {vr(vXF+4*i)}, v{vO}, {sr(SO)}, {'0' if i==0 else 's%d'%sT1} offen{o.get('ostf',' sc1')}")
    if o.get("ste"): g.e("s_memtime s[58:59]")
    dt_finish(g)
    st.finish(st.n + 1)
    return AEND

def gen_all(out, o):
    DT[0] = bool(o.get("dt", 0)); CPF[0] = o.get("cpf", 2)
    name = "fused_kernel"
    g = Gen(); st = Stamper(g, o.get("st", 0))
    entry(g, name, st)
    phase1(g, name, st, o)
    aend = phase2(g, name, st, o)
    g.label(f"{name}_end"); g.e("s_endpgm")
    build([(name, g.text(), kd(name, 256 + max(aend, 128), 256, 100), 256, 256, 160*1024)], out)

if __name__ == "__main__":
    o = {}
    for a in sys.argv[2:]:
        k, v = a.split("=")
        o[k] = int(v) if v.lstrip("-").isdigit() else " " + v.replace("+", " ")
    gen_all(sys.argv[1], o)
```

```python
import sys, struct
from gen import Gen, vr, ar, sr, srd, kd, build, WS_H, WS_HI, WS_WP, WS_ST, WP_BYTES
import gen4
from gen4 import Stamper, f2u, LOG2E, sW, WS_MB, dt, dt_finish, DT, CPF, entry

def phase1(g, name, st, o):
    stf = o.get("stf", " sc1")
    ldf = " nt" if o.get("nt", 0) else ""
    SX, SWT, SWS, SXI, SDB = 12, 16, 20, 24, 28
    sCT, sU, sT0, sT1, sT2, sXROW, sM0X = 33, 34, 35, 36, 37, 38, 39
    sSOX, sSOW, sNONCE = 42, 43, 3
    sODD, sKC = 94, 95
    vLane, vT, vT2, vXD, vWD, vWA, vPX, vHF, vL16 = 1, 2, 3, 4, 5, 6, 7, 8, 9
    vXA = [10, 11, 12, 13]; vXAs = [14, 15, 16, 17]
    vWAs, vST, vWR, vNC, vZ, vWAs2 = 18, 19, 20, 21, 22, 23
    XF, WF, ACC, TMP = 24, 64, 80, 160
    g.e(f"s_and_b32 s{sT0}, s2, 7")
    g.e(f"s_lshr_b32 s{sT1}, s2, 3")
    g.e(f"s_and_b32 s{sCT}, s{sT1}, 3")
    g.e(f"s_lshr_b32 s{sT1}, s{sT1}, 2")
    if o.get("mix", 1):
        g.e(f"s_lshl_b32 s{sU}, s{sT0}, 2")
        g.e(f"s_lshr_b32 s{sT2}, s{sT1}, 1")
        g.e(f"s_add_u32 s{sU}, s{sU}, s{sT2}")
        g.e(f"s_and_b32 s{sT0}, s{sT1}, 1")
        g.e(f"s_lshl_b32 s{sT0}, s{sT0}, 2")
    else:
        g.e(f"s_and_b32 s{sU}, s{sT0}, 3")
        g.e(f"s_lshl_b32 s{sU}, s{sU}, 3")
        g.e(f"s_add_u32 s{sU}, s{sU}, s{sT1}")
    g.e(f"v_lshrrev_b32 v{vT}, 3, v{vLane}")
    g.e(f"s_lshl_b32 s{sT2}, s{sW}, 3")
    g.e(f"v_add_u32 v{vXD}, s{sT2}, v{vT}")
    g.e(f"v_lshrrev_b32 v{vT}, 1, v{vXD}")
    g.e(f"v_and_b32 v{vT}, 7, v{vT}")
    g.e(f"v_and_b32 v{vT2}, 7, v{vLane}")
    g.e(f"v_xor_b32 v{vT}, v{vT}, v{vT2}")
    g.e(f"v_lshlrev_b32 v{vT}, 4, v{vT}")
    g.e(f"v_lshl_add_u32 v{vXD}, v{vXD}, 10, v{vT}")
    g.e(f"v_lshrrev_b32 v{vT}, 4, v{vLane}")
    g.e(f"v_lshlrev_b32 v{vT2}, 2, v{vT}")
    g.e(f"v_and_b32 v{vWD}, 15, v{vLane}")
    g.e(f"v_xor_b32 v{vWD}, v{vWD}, v{vT2}")
    g.e(f"v_lshlrev_b32 v{vWD}, 4, v{vWD}")
    g.e(f"s_lshl_b32 s{sT2}, s{sW}, 2")
    g.e(f"v_add_u32 v{vT}, s{sT2}, v{vT}")
    g.e(f"v_lshl_add_u32 v{vWD}, v{vT}, 10, v{vWD}")
    g.e(f"s_lshl_b32 s{sT2}, s{sCT}, 8")
    g.e(f"v_add_u32 v{vWD}, s{sT2}, v{vWD}")
    g.e(f"s_lshl_b32 s{sM0X}, s{sW}, 10")
    g.e(f"v_mov_b32 v{vZ}, 0")
    g.e(f"s_cmp_ge_u32 s{sT0}, 4")
    g.e(f"s_cbranch_scc1 {name}_P")
    st_n0 = st.n

    def nonce_wait(role):
        g.wait_vm([("NC",)])
        g.e(f"s_mov_b32 s{sT2}, 0")
        g.label(f"{name}_ncpoll{role}")
        g.e(f"v_readfirstlane_b32 s{sNONCE}, v{vNC}")
        g.e(f"s_add_u32 s{sT2}, s{sT2}, 1")
        g.e(f"s_cmp_gt_u32 s{sT2}, 100000")
        g.e(f"s_cbranch_scc1 {name}_ncok{role}")
        g.e(f"s_cmp_lg_u32 s{sNONCE}, 0")
        g.e(f"s_cbranch_scc1 {name}_ncok{role}")
        g.e(f"buffer_load_dword v{vNC}, v{vZ}, {sr(SDB)}, 0 offen sc1")
        g.e("s_waitcnt vmcnt(0)")
        g.e(f"s_branch {name}_ncpoll{role}")
        g.label(f"{name}_ncok{role}")

    def pretouch():
        if not o.get("tlb", 0): return
        lab = f"{name}_pt{len(g.lines)}"
        g.e(f"s_cmp_lg_u32 s{sW}, 3")
        g.e(f"s_cbranch_scc1 {lab}")
        srd(g, 84, 50, 51, 12 << 20)
        g.e(f"v_lshlrev_b32 v{vT}, 18, v{vLane}")
        g.e(f"buffer_load_dword v252, v{vT}, s[84:87], 0 offen")
        srd(g, 84, 46, 47, 2 << 20)
        g.e(f"v_lshlrev_b32 v{vT}, 16, v{vLane}")
        g.e(f"buffer_load_dword v253, v{vT}, s[84:87], 0 offen")
        srd(g, 84, 40, 41, 2 << 20)
        g.e(f"buffer_load_dword v254, v{vT}, s[84:87], 0 offen")
        g.e(f"buffer_load_dword v251, v{vZ}, {sr(SDB)}, 0 offen sc1")
        g.label(lab)

    def frag_consts(G):
        pretouch()
        g.e(f"v_and_b32 v{vPX}, 31, v{vLane}")
        g.e(f"v_lshrrev_b32 v{vHF}, 5, v{vLane}")
        g.e(f"v_lshlrev_b32 v{vL16}, 4, v{vLane}")
        g.e(f"v_lshrrev_b32 v{vT}, 1, v{vPX}")
        g.e(f"v_and_b32 v{vT}, 7, v{vT}")
        g.e(f"v_xor_b32 v{vT}, v{vT}, v{vHF}")
        g.e(f"v_lshlrev_b32 v{vT}, 4, v{vT}")
        g.e(f"v_lshl_add_u32 v{vXA[0]}, v{vPX}, 7, v{vT}")
        if G:
            g.e(f"s_lshr_b32 s{sT2}, s{sW}, 1")
            g.e(f"s_lshl_b32 s{sT2}, s{sT2}, 12")
            g.e(f"v_add_u32 v{vXA[0]}, s{sT2}, v{vXA[0]}")
        for s in range(1, 4):
            g.e(f"v_xor_b32 v{vXA[s]}, {s*32}, v{vXA[0]}")
        g.e(f"v_bfe_u32 v{vT}, v{vLane}, 2, 2")
        g.e(f"v_lshl_add_u32 v{vT2}, v{vHF}, 3, v{vT}")
        g.e(f"v_lshlrev_b32 v{vWA}, 8, v{vT2}")
        if G:
            g.e(f"s_and_b32 s{sT2}, s{sW}, 1")
            g.e(f"s_lshl_b32 s{sT2}, s{sT2}, 1")
            g.e(f"v_xor_b32 v{vT}, s{sT2}, v{vT}")
        else:
            g.e(f"v_xor_b32 v{vT}, s{sW}, v{vT}")
        g.e(f"v_lshl_add_u32 v{vWA}, v{vT}, 6, v{vWA}")
        g.e(f"v_bfe_u32 v{vT}, v{vLane}, 4, 1")
        g.e(f"v_lshl_add_u32 v{vWA}, v{vT}, 5, v{vWA}")
        g.e(f"v_and_b32 v{vT}, 3, v{vLane}")
        g.e(f"v_lshl_add_u32 v{vWA}, v{vT}, 3, v{vWA}")

    def publish(G):
        while st.on and st.n < 13: st()
        NL = o.get("NL", 8); LG = NL.bit_length() - 1; MS = NL*128
        def slot_off(dst, src):
            g.e(f"s_and_b32 s92, s{src}, {NL-1}")
            g.e(f"s_lshl_b32 s92, s92, 7")
            g.e(f"s_lshr_b32 s{dst}, s{src}, {LG}")
            g.e(f"s_lshl_b32 s{dst}, s{dst}, 2")
            g.e(f"s_add_u32 s{dst}, s{dst}, s92")
        if G:
            g.e(f"s_lshr_b32 s{sT0}, s{sU}, 1")
            g.e(f"s_and_b32 s{sT1}, s{sU}, 1")
            g.e(f"s_lshl_b32 s{sT2}, s{sT1}, 1")
            g.e(f"s_add_u32 s{sT2}, s{sT2}, s{sT0}")
            g.e(f"s_sub_u32 s{sT2}, s{sT2}, 1")
            g.e(f"s_add_u32 s{sSOX}, s{sT1}, 1")
            g.e(f"s_lshl_b32 s{sSOX}, s{sSOX}, 2")
            g.e(f"s_add_u32 s{sSOX}, s{sSOX}, s{sCT}")
            slot_off(sSOX, sSOX)
            g.e(f"s_mul_i32 s93, s{sT0}, {16*MS}")
            g.e(f"s_add_u32 s{sSOX}, s{sSOX}, s93")
            g.e(f"s_cmp_eq_u32 s{sT1}, 0")
            g.e(f"s_cselect_b32 s{sSOW}, 12, 0")
            g.e(f"s_add_u32 s{sSOW}, s{sSOW}, s{sCT}")
            slot_off(sSOW, sSOW)
            g.e(f"s_mul_i32 s93, s{sT2}, {16*MS}")
            g.e(f"s_add_u32 s{sSOW}, s{sSOW}, s93")
            g.e(f"s_lshr_b32 s{sT2}, s{sT2}, 3")
            g.e(f"s_lshr_b32 s{sT0}, s{sT0}, 3")
            g.e(f"s_cmp_eq_u32 s{sT2}, s{sT0}")
            g.e(f"s_cselect_b32 s92, -1, 0xffff")
            g.e(f"s_mov_b32 s93, 0")
            g.e(f"v_and_b32 v{vT}, 15, v{vLane}")
            g.e(f"v_mul_u32_u24 v{vT}, {MS}, v{vT}")
            g.e(f"v_mov_b32 v{vT2}, s{sSOW}")
            g.e(f"v_mov_b32 v{vPX}, s{sSOX}")
            g.e(f"v_cmp_gt_u32 vcc, 16, v{vLane}")
            g.e("s_nop 1")
            g.e(f"v_cndmask_b32 v{vT2}, v{vT2}, v{vPX}, vcc")
            g.e(f"v_add_u32 v{vT}, v{vT}, v{vT2}")
            g.e(f"s_mov_b32 s{sT0}, {WS_MB}")
        else:
            g.e(f"v_lshrrev_b32 v{vT}, 2, v{vLane}")
            g.e(f"v_lshlrev_b32 v{vT}, 4, v{vT}")
            g.e(f"v_and_b32 v{vT2}, 3, v{vLane}")
            g.e(f"v_add_u32 v{vT}, v{vT}, v{vT2}")
            g.e(f"v_mul_u32_u24 v{vT}, {MS}, v{vT}")
            g.e(f"s_add_u32 s{sT1}, s{sU}, 16")
            slot_off(sT1, sT1)
            g.e(f"s_mul_i32 s{sT0}, s{sCT}, {4*MS}")
            g.e(f"s_add_u32 s{sT0}, s{sT0}, s{sT1}")
            g.e(f"s_add_u32 s{sT0}, s{sT0}, {WS_MB}")
            g.e(f"s_mov_b64 s[92:93], -1")
        dt(g, 5 if G else 6)
        if st.on: g.e("s_memrealtime s[78:79]")
        g.e("s_waitcnt vmcnt(0)")
        g.e("s_barrier")
        if st.on: g.e("s_memrealtime s[80:81]")
        dt(g, 7 if G else 8)
        g.e(f"s_cmp_lg_u32 s{sW}, 0")
        g.e(f"s_cbranch_scc1 {name}_ph2")
        g.e(f"s_mov_b64 exec, s[92:93]")
        g.e(f"buffer_store_dword v{vNC}, v{vT}, {sr(SWS)}, s{sT0} offen sc1")
        g.e("s_mov_b64 exec, -1")
        g.e(f"s_branch {name}_ph2")

    def bodyP():
        g.vm = []; g.lg = []
        st.n = st_n0
        g.label(f"{name}_P")
        NA = 3
        S = o.get("SP", 3)
        STG = 16384 + NA*4096
        XB3, XB4 = S*STG, (S*STG + 32768 if S == 3 else 0)
        PRE = o.get("PREP", 2)
        g.e(f"s_and_b32 s{sODD}, s{sU}, 1")
        g.e(f"s_lshr_b32 s{sT1}, s{sU}, 1")
        g.e(f"s_mul_i32 s{sXROW}, s{sT1}, 288")
        g.e(f"s_mul_i32 s{sT2}, s{sODD}, 160")
        g.e(f"s_add_u32 s{sXROW}, s{sXROW}, s{sT2}")
        g.e(f"s_lshr_b32 s{sKC}, s{sT1}, 1")
        g.e(f"s_lshl_b32 s{sKC}, s{sKC}, 16")
        g.e(f"s_lshl_b32 s93, s{sXROW}, 10")
        g.e(f"s_lshr_b32 s92, s{sKC}, 9")
        g.e("s_waitcnt lgkmcnt(0)")
        if o.get("wsoff", 0):
            g.e(f"s_add_u32 s50, s50, {o['wsoff'] << 20:#x}")
            g.e("s_addc_u32 s51, s51, 0")
        st(); dt(g, 2)
        srd(g, SX, 44, 45, 4608*1024); srd(g, SWT, 10, 11, 512 << 10)
        cur = [None]
        def kofs(kc):
            if cur[0] == kc: return
            cur[0] = kc
            g.e(f"s_add_u32 s{sT2}, s92, {kc*128}")
            g.e(f"s_and_b32 s{sT2}, s{sT2}, 0x3ff")
            g.e(f"s_add_u32 s91, s{sT2}, s93")
            g.e(f"s_lshl_b32 s90, s{sT2}, 9")
        def ldW(kc, m):
            kofs(kc)
            g.e(f"s_add_u32 m0, s{sM0X}, {(kc % S)*STG + m*4096}")
            g.e(f"s_add_u32 s{sSOW}, s90, {m*16384}")
            g.vmem(f"buffer_load_dwordx4 v{vWD}, {sr(SWT)}, s{sSOW} offen{ldf} lds", ("D", kc))
        def ldX(b, kc):
            kofs(kc)
            dst = (kc % S)*STG + 16384 + b*4096 if b < NA else [XB3, XB4][b-NA] + kc*4096
            g.e(f"s_add_u32 m0, s{sM0X}, {dst}")
            g.e(f"s_add_u32 s{sSOX}, s91, {b*32768}")
            g.vmem(f"buffer_load_dwordx4 v{vXD}, {sr(SX)}, s{sSOX} offen{ldf} lds", ("D", kc) if b < NA else ("XB", b))
        ldq = []
        for kc in range(8):
            for m in range(4): ldq.append(("W", kc, m, kc - S))
            for b in range(NA): ldq.append(("X", b, kc, kc - S))
            if not o.get("late", 0) and kc >= 2:
                for b in (3, 4): ldq.append(("X", b, kc - 2, -1))
        if o.get("late", 0):
            for b in (3, 4):
                for kc in range(8): ldq.append(("X", b, kc, 5 if (b == 4 and S == 4) else -1))
        else:
            for kc in (6, 7):
                for b in (3, 4): ldq.append(("X", b, kc, -1))
        freed = [-1]
        def ldnext():
            if not ldq or len(g.vm) >= 60: return False
            t, a, b_, need = ldq[0]
            if need > freed[0]: return False
            ldq.pop(0)
            if t == "W": ldW(a, b_)
            else: ldX(a, b_)
            return True
        for _ in range(7*PRE): ldnext()
        slotc = [0]
        srd(g, SDB, 48, 49, 256)
        frag_consts(False)
        srd(g, SWS, 50, 51, 16 << 20)
        g.e(f"s_lshl_b32 s{sT0}, s{sCT}, 2")
        g.e(f"s_add_u32 s{sT0}, s{sT0}, s{sW}")
        g.e(f"s_mul_i32 s{sT0}, s{sT0}, {32*10240}")
        g.e(f"s_add_u32 s{sT0}, s{sT0}, {WS_WP}")
        g.e(f"v_add_u32 v{vST}, s{sT0}, v{vL16}")
        XRB = TMP + 40
        def read_list(kc, s):
            p = (kc*4 + s) % 2
            ks = 4*kc + s
            L = []
            for h in range(2):
                L.append((f"ds_read_b64_tr_b16 {ar(4*ks+2*h,2)}, v{vWAs} offset:{s*4096+h*1024}", 0))
            for b in range(NA):
                L.append((f"ds_read_b128 {vr(XF+p*20+b*4)}, v{vXAs[s]} offset:{b*4096}", b))
            return [(r, ("R", kc, s, b)) for r, b in L]
        def stage_addr(kc):
            sb = (kc % S) * STG
            for s in range(4): g.e(f"v_add_u32 v{vXAs[s]}, {sb + 16384}, v{vXA[s]}")
            g.e(f"v_add_u32 v{vWAs}, {sb}, v{vWA}")
        stage_addr(0)
        st()
        g.wait_vm([("D", 0)])
        g.e("s_barrier")
        st()
        for r, t in read_list(0, 0): g.lds(r, t)
        LPA = o.get("LPA", 1)
        for kc in range(8):
            for s in range(4):
                if s < 3:
                    nxt = read_list(kc, s+1)
                else:
                    nxt = []
                    if kc < 7:
                        g.wait_lg([("R", kc, 3, b) for b in range(NA)])
                        while any(t[3] == kc+1-S and t[3] >= -10 and ((t[0] == "W" and t[1] == kc+1) or (t[0] == "X" and t[1] < NA and t[2] == kc+1)) for t in ldq): assert ldnext()
                        g.wait_vm([("D", kc+1)])
                        g.e("s_barrier")
                        if kc in (1, 3, 5): st()
                        freed[0] = kc
                        stage_addr(kc+1)
                        nxt = read_list(kc+1, 0)
                p = (kc*4 + s) % 2
                ks = 4*kc + s
                for b in range(NA):
                    g.wait_lg([("R", kc, s, bb) for bb in range(b+1)])
                    ac = vr(ACC+16*b, 16)
                    g.e(f"v_mfma_f32_32x32x16_bf16 {ac}, {vr(XF+p*20+b*4)}, {ar(4*ks)}, {'0' if ks == 0 else ac}")
                    for _ in range(2):
                        if nxt:
                            r, t = nxt.pop(0); g.lds(r, t)
                    slotc[0] += 1
                    if (slotc[0] * o.get("PN", 12)) % 12 < o.get("PN", 12): ldnext()
            if kc == 4:
                g.vmem(f"buffer_load_dword v{vNC}, v{vZ}, {sr(SDB)}, 0 offen sc1", ("NC",))
        while ldq: assert ldnext()
        st()
        def store_block(b):
            a = ACC + 16*b
            L = []
            L.append(f"s_add_u32 s{sT0}, s{sXROW}, {32*b}")
            L.append(f"s_lshr_b32 s{sT1}, s{sT0}, 9")
            L.append(f"s_and_b32 s{sT0}, s{sT0}, 511")
            L.append(f"s_lshr_b32 s{sT0}, s{sT0}, 4")
            L.append(f"s_mul_i32 s{sT0}, s{sT0}, 10")
            L.append(f"s_add_u32 s{sT0}, s{sT0}, s{sT1}")
            L.append(f"s_lshl_b32 s{sT0}, s{sT0}, 10")
            L.append(f"s_add_u32 s{sT1}, s{sT0}, 10240")
            for hh in range(2):
                d = TMP + b*8 + hh*4
                for i in range(4):
                    L.append(f"v_cvt_pk_bf16_f32 v{d+i}, v{a+8*hh+2*i}, v{a+8*hh+2*i+1}")
                L.append(("ST", f"buffer_store_dwordx4 {vr(d)}, v{vST}, {sr(SWS)}, s{sT0 if hh==0 else sT1} offen{stf}"))
            return L
        def emit(x):
            if isinstance(x, tuple): g.vmem(x[1])
            else: g.e(x)
        xr = [0]; xreg = {}
        def xread(b, ks):
            r = XRB + (xr[0] % 8)*4; xr[0] += 1
            g.lds(f"ds_read_b128 {vr(r)}, v{vXAs[ks%4]} offset:{(ks//4)*4096}", ("R2", b, ks))
            return r
        g.wait_vm([("XB", 3)] if o.get("late", 0) else [("XB", 3), ("XB", 4)])
        g.e("s_barrier")
        def blockB(b, pend):
            for s in range(4): g.e(f"v_add_u32 v{vXAs[s]}, {[XB3, XB4][b-3]}, v{vXA[s]}")
            AH = 6
            for ks in range(AH): xreg[(b, ks)] = xread(b, ks)
            for ks in range(32):
                g.wait_lg([("R2", b, ks)])
                ac = vr(ACC + 16*b, 16)
                g.e(f"v_mfma_f32_32x32x16_bf16 {ac}, {vr(xreg[(b,ks)])}, {ar(4*ks)}, {'0' if ks == 0 else ac}")
                if ks + AH < 32: xreg[(b, ks+AH)] = xread(b, ks+AH)
                if ks >= 1:
                    for _ in range(2):
                        if pend: emit(pend.pop(0))
            assert not pend
        blockB(3, store_block(0) + store_block(1) + store_block(2))
        st()
        g.e(f"s_cmp_lg_u32 s{sODD}, 0")
        g.e(f"s_cbranch_scc1 {name}_P4")
        saved = (list(g.vm), list(g.lg))
        if o.get("late", 0):
            g.wait_vm([("XB", 4)])
            g.e("s_barrier")
        blockB(4, store_block(3))
        st(); dt(g, 4)
        g.e("s_nop 3")
        for x in store_block(4): emit(x)
        g.e(f"s_branch {name}_Pdone")
        g.label(f"{name}_P4")
        g.vm, g.lg = saved
        g.e(f"s_lshr_b32 s{sT0}, s{sU}, 1")
        g.e(f"s_and_b32 s{sT2}, s{sT0}, 1")
        g.e(f"s_mul_i32 s{sT0}, s{sT0}, 20480")
        g.e(f"s_add_u32 s{sT0}, s{sT0}, 9216")
        g.e(f"s_add_u32 s{sT1}, s{sT0}, 10240")
        g.e(f"s_cmp_eq_u32 s{sT2}, 0")
        g.e(f"s_cbranch_scc0 {name}_rp1")
        g.e(f"buffer_store_dwordx4 {ar(0)}, v{vST}, {sr(SWS)}, s{sT0} offen{stf}")
        g.e(f"buffer_store_dwordx4 {ar(4)}, v{vST}, {sr(SWS)}, s{sT1} offen{stf}")
        g.e(f"s_branch {name}_rp2")
        g.label(f"{name}_rp1")
        g.e(f"buffer_store_dwordx4 {ar(8)}, v{vST}, {sr(SWS)}, s{sT0} offen{stf}")
        g.e(f"buffer_store_dwordx4 {ar(12)}, v{vST}, {sr(SWS)}, s{sT1} offen{stf}")
        g.label(f"{name}_rp2")
        g.e("s_nop 3")
        for x in store_block(3): emit(x)
        g.label(f"{name}_Pdone")
        g.vm = []
        nonce_wait("P")
        publish(False)

    def bodyG():
        NX, S = 2, 6
        XB = NX * 4096
        STG = XB + 16384
        NI = NX + 4
        PRE1 = o.get("PREG", 3)
        XT = 6*STG
        g.vm = []; g.lg = []
        st.n = st_n0
        g.e(f"s_lshl_b32 s{sXROW}, s{sU}, 16")
        g.e(f"v_lshrrev_b32 v{vT}, 4, v{vLane}")
        g.e(f"s_lshl_b32 s{sT2}, s{sW}, 2")
        g.e(f"v_add_u32 v{vT}, s{sT2}, v{vT}")
        g.e(f"v_and_b32 v{vT2}, 15, v{vLane}")
        g.e(f"v_xor_b32 v{vT2}, v{vT2}, v{vT}")
        g.e(f"v_lshlrev_b32 v{vT2}, 4, v{vT2}")
        g.e(f"v_lshl_add_u32 v{vT}, v{vT}, 10, v{vT2}")
        g.e(f"s_lshl_b32 s{sT2}, s{sCT}, 8")
        g.e(f"v_add_u32 v{vWR}, s{sT2}, v{vT}")
        g.e("s_waitcnt lgkmcnt(0)")
        if o.get("wsoff", 0):
            g.e(f"s_add_u32 s50, s50, {o['wsoff'] << 20:#x}")
            g.e("s_addc_u32 s51, s51, 0")
        st(); dt(g, 2)
        srd(g, SX, 6, 7, 2 << 20); srd(g, SWT, 8, 9, 512 << 10); srd(g, SXI, 4, 5, 2 << 20)
        def ld1(kc, m):
            sb = (kc % S) * STG
            isx = m < NX
            mm = m if isx else m - NX
            g.e(f"s_add_u32 m0, s{sM0X}, {sb + m*4096}")
            if isx: g.e(f"s_add_u32 s{sSOX}, s{sXROW}, {mm*32768 + kc*128}")
            else:   g.e(f"s_mov_b32 s{sSOW}, {(kc*64 + 16*mm)*1024}")
            va, sd, so = (vXD, SX, sSOX) if isx else (vWD, SWT, sSOW)
            g.vmem(f"buffer_load_dwordx4 v{va}, {sr(sd)}, s{so} offen{ldf} lds", ("D", kc))
        for m in range(NI): ld1(0, m)
        srd(g, SDB, 48, 49, 256)
        g.e(f"s_or_b32 s{sT0}, s2, s{sW}")
        g.e(f"s_cmp_lg_u32 s{sT0}, 0")
        g.e(f"s_cbranch_scc1 {name}_nn")
        g.e("s_memrealtime s[96:97]")
        g.e("s_waitcnt lgkmcnt(0)")
        g.e(f"s_or_b32 s96, s96, 1")
        g.e(f"v_mov_b32 v{vT}, s96")
        g.e(f"buffer_store_dword v{vT}, v{vZ}, {sr(SDB)}, 0 offen sc1")
        g.label(f"{name}_nn")
        for kc in range(1, PRE1):
            for m in range(NI): ld1(kc, m)
        ldq = [(kc, m) for kc in range(PRE1, 8) for m in range(NI)]
        k6 = [i for i, (kc, m) in enumerate(ldq) if kc >= 5][0]
        ldq[k6:k6] = [("X", m) for m in range(4)]
        freed = [0]
        def ldnext():
            if not ldq: return False
            kc, m = ldq[0]
            if kc == "X":
                ldq.pop(0)
                g.e(f"s_add_u32 m0, s{sM0X}, {XT + m*4096}")
                g.e(f"s_add_u32 s{sSOX}, s{sXROW}, {m*16384}")
                g.vmem(f"buffer_load_dwordx4 v{vWR}, {sr(SXI)}, s{sSOX} offen{ldf} lds", ("D", 5))
                return True
            if kc - S >= freed[0]: return False
            ldq.pop(0); ld1(kc, m); return True
        frag_consts(True)
        srd(g, SWS, 50, 51, 16 << 20)
        mk = len(g.lines)
        vXR, vGA, vGO = TMP+60, TMP+61, TMP+62
        g.e(f"s_lshr_b32 s{sT0}, s{sW}, 1")
        g.e(f"s_and_b32 s{sT1}, s{sW}, 1")
        g.e(f"s_lshl_b32 s{sT2}, s{sT0}, 13")
        g.e(f"s_add_u32 s{sT2}, s{sT2}, {XT}")
        g.e(f"v_and_b32 v{vT}, 15, v{vPX}")
        g.e(f"s_lshl_b32 s{sSOX}, s{sT1}, 3")
        g.e(f"v_xor_b32 v{vT}, s{sSOX}, v{vT}")
        g.e(f"v_lshlrev_b32 v{vT}, 4, v{vT}")
        g.e(f"v_lshl_add_u32 v{vT}, v{vPX}, 8, v{vT}")
        g.e(f"v_lshl_add_u32 v{vT}, v{vHF}, 3, v{vT}")
        g.e(f"v_add_u32 v{vXR}, s{sT2}, v{vT}")
        g.e(f"s_lshl_b32 s{sT2}, s{sT0}, 15")
        g.e(f"s_add_u32 s{sT2}, s{sT2}, s{sXROW}")
        g.e(f"s_lshl_b32 s{sSOX}, s{sCT}, 13")
        g.e(f"s_add_u32 s{sT2}, s{sT2}, s{sSOX}")
        g.e(f"s_lshl_b32 s{sSOX}, s{sT1}, 12")
        g.e(f"s_add_u32 s{sT2}, s{sT2}, s{sSOX}")
        g.e(f"v_add_u32 v{vST}, s{sT2}, v{vL16}")
        g.e(f"s_lshl_b32 s{sSOX}, s{sU}, 1")
        g.e(f"s_add_u32 s{sSOX}, s{sSOX}, s{sT0}")
        g.e(f"s_lshl_b32 s{sSOX}, s{sSOX}, 12")
        g.e(f"s_add_u32 s{sSOX}, s{sSOX}, {WS_ST}")
        g.e(f"v_lshlrev_b32 v{vGO}, 4, v{vPX}")
        g.e(f"v_add_u32 v{vGO}, s{sSOX}, v{vGO}")
        g.e(f"v_lshl_add_u32 v{vGA}, v{vHF}, 11, v{vGO}")
        g.e(f"s_lshl_b32 s93, s{sCT}, 1")
        g.e(f"s_add_u32 s93, s93, s{sT1}")
        g.e(f"s_lshl_b32 s93, s93, 9")
        deferG = g.lines[mk:]; del g.lines[mk:]
        def stage_addr(kc):
            sb = (kc % S) * STG
            for s in range(4): g.e(f"v_add_u32 v{vXAs[s]}, {sb}, v{vXA[s]}")
            g.e(f"v_add_u32 v{vWAs}, {sb + XB}, v{vWA}")
            g.e(f"v_xor_b32 v{vWAs2}, 64, v{vWAs}")
        def read_list(kc, s):
            p = (kc*4 + s) % 2
            L = [(f"ds_read_b128 {vr(XF+p*20)}, v{vXAs[s]}", 0)]
            for cb in range(2):
                for h in range(2):
                    L.append((f"ds_read_b64_tr_b16 {vr(WF+p*8+cb*4+h*2,2)}, v{vWAs if cb==0 else vWAs2} offset:{s*4096+h*1024}", cb))
            return [(r, ("R", kc, s, b)) for r, b in L]
        stage_addr(0)
        st()
        g.wait_vm([("D", 0)])
        g.e("s_barrier")
        st()
        XR = TMP
        XU = ACC + 32
        for r, t in read_list(0, 0): g.lds(r, t)
        LPM = o.get("LPG", 1)
        for kc in range(8):
            for s in range(4):
                if s < 3:
                    nxt = read_list(kc, s+1)
                else:
                    nxt = []
                    if kc < 7:
                        g.wait_lg([("R", kc, 3, b) for b in range(2)])
                        while any(c_ == kc+1 for c_, _ in ldq): assert ldnext()
                        g.wait_vm([("D", kc+1)])
                        g.e("s_barrier")
                        if kc in (0, 2, 4, 6): st()
                        freed[0] = kc + 1
                        stage_addr(kc+1)
                        nxt = read_list(kc+1, 0)
                p = (kc*4 + s) % 2
                for b in range(2):
                    g.wait_lg([("R", kc, s, bb) for bb in range(b+1)])
                    ac = vr(ACC+16*b, 16)
                    g.e(f"v_mfma_f32_32x32x16_bf16 {ac}, {vr(WF+p*8+b*4)}, {vr(XF+p*20)}, {'0' if kc == 0 and s == 0 else ac}")
                    for _ in range(3):
                        if nxt:
                            r, t = nxt.pop(0); g.lds(r, t)
                    for _ in range(LPM): ldnext()
            if kc == 4:
                g.vmem(f"buffer_load_dword v{vNC}, v{vZ}, {sr(SDB)}, 0 offen sc1", ("NC",))
            if kc == 0: g.lines += deferG
            if kc == 5:
                for j in range(8):
                    g.e(f"v_xor_b32 v{vT2}, {j*16}, v{vXR}")
                    g.lds(f"ds_read_b64 {vr(XR+2*j,2)}, v{vT2}", ("XR", j))
            if kc == 6:
                g.wait_lg([("XR", 7)])
                for j in range(16):
                    g.e(f"v_lshlrev_b32 v{XU+2*j}, 16, v{XR+j}")
                    g.e(f"v_and_b32 v{XU+2*j+1}, 0xffff0000, v{XR+j}")
        assert not ldq
        st(); dt(g, 3)
        nonce_wait("G")
        g.e("s_nop 7")
        S1, S2 = TMP+16, TMP+18
        P1, P2 = TMP+20, TMP+22
        for i in range(16): g.e(f"v_pk_add_f32 {vr(ACC+2*i,2)}, {vr(ACC+2*i,2)}, {vr(XU+2*i,2)}")
        g.e(f"v_pk_add_f32 {vr(P1,2)}, {vr(ACC,2)}, {vr(ACC+2,2)}")
        g.e(f"v_pk_mul_f32 {vr(P2,2)}, {vr(ACC,2)}, {vr(ACC,2)}")
        g.e(f"v_pk_fma_f32 {vr(P2,2)}, {vr(ACC+2,2)}, {vr(ACC+2,2)}, {vr(P2,2)}")
        for i in range(2, 16):
            g.e(f"v_pk_add_f32 {vr(P1,2)}, {vr(P1,2)}, {vr(ACC+2*i,2)}")
            g.e(f"v_pk_fma_f32 {vr(P2,2)}, {vr(ACC+2*i,2)}, {vr(ACC+2*i,2)}, {vr(P2,2)}")
        g.e(f"v_add_f32 v{S1}, v{P1}, v{P1+1}")
        g.e(f"v_add_f32 v{S2}, v{P2}, v{P2+1}")
        g.e(f"v_mov_b32 v{vT}, v{S1}")
        g.e(f"v_mov_b32 v{vT2}, v{S2}")
        g.e(f"v_mov_b32 v{S1+1}, v{vNC}")
        g.e(f"v_mov_b32 v{S2+1}, v{vNC}")
        g.e(f"v_permlane32_swap_b32 v{S1}, v{vT}")
        g.e(f"v_permlane32_swap_b32 v{S2}, v{vT2}")
        g.e(f"v_add_f32 v{S1}, v{S1}, v{vT}")
        g.e(f"v_add_f32 v{S2}, v{S2}, v{vT2}")
        g.e("s_mov_b64 exec, 0xffffffff")
        g.e(f"buffer_store_dwordx4 {vr(S1)}, v{vGO}, {sr(SWS)}, s93 offen sc1")
        g.e("s_mov_b64 exec, -1")
        st()
        for j in range(16):
            g.e(f"v_cvt_pk_bf16_f32 v{XR+j}, v{ACC+2*j}, v{ACC+2*j+1}")
        g.e("s_nop 1")
        for hh in range(4):
            g.e(f"v_permlane32_swap_b32 v{XR+4*hh}, v{XR+4*hh+2}")
            g.e(f"v_permlane32_swap_b32 v{XR+4*hh+1}, v{XR+4*hh+3}")
        EA, EB = TMP + 24, TMP + 40
        def poll_issue(E):
            for e_ in range(4):
                g.e(f"buffer_load_dwordx4 {vr(E+4*e_)}, v{vGA}, {sr(SWS)}, 0 offen offset:{e_*512} sc1")
        def poll_check(E):
            g.e(f"v_xor_b32 v{vT}, v{E+1}, v{vNC}")
            for e_ in range(4):
                for o_ in (1, 3):
                    if e_ == 0 and o_ == 1: continue
                    g.e(f"v_xor_b32 v{vT2}, v{E+4*e_+o_}, v{vNC}")
                    g.e(f"v_or_b32 v{vT}, v{vT}, v{vT2}")
            g.e(f"v_cmp_ne_u32 vcc, 0, v{vT}")
            g.e("s_nop 4")
        g.e(f"s_mov_b32 s{sT2}, 0")
        poll_issue(EA)
        g.label(f"{name}_poll")
        g.e(f"s_add_u32 s{sT2}, s{sT2}, 1")
        g.e(f"s_cmp_gt_u32 s{sT2}, 100000")
        g.e(f"s_cbranch_scc1 {name}_pollx")
        if o.get("pp", 1):
            g.e("s_sleep 4")
            poll_issue(EB)
            g.e("s_waitcnt vmcnt(4)")
            poll_check(EA)
            g.e(f"s_cbranch_vccz {name}_pollx")
            poll_issue(EA)
            g.e("s_waitcnt vmcnt(4)")
            poll_check(EB)
            g.e(f"s_cbranch_vccnz {name}_poll")
            g.e("s_waitcnt vmcnt(0)")
        else:
            g.e("s_waitcnt vmcnt(0)")
            poll_check(EA)
            g.e(f"s_cbranch_vccz {name}_pollx")
            poll_issue(EA)
            g.e(f"s_branch {name}_poll")
        g.label(f"{name}_pollx")
        st()
        E = EA
        g.e(f"s_mov_b32 s{sT1}, {WS_HI}")
        for e_ in range(1, 4):
            g.e(f"v_add_f32 v{E}, v{E}, v{E+4*e_}")
            g.e(f"v_add_f32 v{E+2}, v{E+2}, v{E+4*e_+2}")
        g.e(f"v_mov_b32 v{vT}, v{E}")
        g.e(f"v_mov_b32 v{vT2}, v{E+2}")
        for hh in range(4):
            g.e(f"buffer_store_dwordx4 {vr(XR+4*hh)}, v{vST}, {sr(SWS)}, s{sT1} offen offset:{hh*1024}{stf}")
        g.e(f"v_permlane32_swap_b32 v{E}, v{vT}")
        g.e(f"v_permlane32_swap_b32 v{E+2}, v{vT2}")
        g.e(f"v_add_f32 v{E}, v{E}, v{vT}")
        g.e(f"v_add_f32 v{E+2}, v{E+2}, v{vT2}")
        g.e(f"v_mul_f32 v{E}, {f2u(1/512):#x}, v{E}")
        g.e(f"v_mul_f32 v{E+2}, {f2u(1/512):#x}, v{E+2}")
        g.e(f"v_fma_f32 v{E+2}, -v{E}, v{E}, v{E+2}")
        g.e(f"v_max_f32 v{E+2}, 0, v{E+2}")
        g.e(f"v_add_f32 v{E+2}, {f2u(1e-5):#x}, v{E+2}")
        A_, B_, A2, B2 = E+4, E+6, E+8, E+10
        g.e(f"v_rsq_f32 v{A_}, v{E+2}")
        g.e("s_nop 0")
        g.e(f"v_mul_f32 v{B_}, v{E}, v{A_}")
        g.e(f"v_sub_f32 v{B_}, 0, v{B_}")
        g.e(f"v_mul_f32 v{A2}, {f2u(-LOG2E):#x}, v{A_}")
        g.e(f"v_mul_f32 v{B2}, {f2u(-LOG2E):#x}, v{B_}")
        Y = XF
        D = WF
        for hh in range(4):
            a = ACC + 8*hh; y = Y + (hh % 2)*8
            for i in range(4): g.e(f"v_pk_fma_f32 {vr(y+2*i,2)}, {vr(a+2*i,2)}, {vr(A2,2)}, {vr(B2,2)} op_sel_hi:[1,0,0]")
            for i in range(8): g.e(f"v_exp_f32 v{y+i}, v{y+i}")
            for i in range(4): g.e(f"v_pk_fma_f32 {vr(a+2*i,2)}, {vr(a+2*i,2)}, {vr(A_,2)}, {vr(B_,2)} op_sel_hi:[1,0,0]")
            for i in range(4): g.e(f"v_pk_add_f32 {vr(y+2*i,2)}, {vr(y+2*i,2)}, 1.0 op_sel_hi:[1,0]")
            for i in range(8): g.e(f"v_rcp_f32 v{y+i}, v{y+i}")
            g.e("s_nop 0")
            for i in range(4): g.e(f"v_pk_mul_f32 {vr(a+2*i,2)}, {vr(a+2*i,2)}, {vr(y+2*i,2)}")
            d = D + hh*4
            for i in range(4): g.e(f"v_cvt_pk_bf16_f32 v{d+i}, v{a+2*i}, v{a+2*i+1}")
            g.e(f"buffer_store_dwordx4 {vr(d)}, v{vST}, {sr(SWS)}, 0 offen offset:{hh*1024}{stf}")
        publish(True)
    bodyG(); bodyP()

def phase2(g, name, st, o):
    NST, PRE, EVERY = o.get("NST", 3), o.get("PRE", 20), o.get("EVERY", 2)
    lf = o.get("lf", " sc1").replace(" none", "")
    SA, SWP, SX, SO, SDB = 12, 16, 20, 24, 28
    C4K, C8K, C2M, C2M4K = 33, 34, 42, 43
    sMT, sNT, sB, sT0, sT1, sR0, sBASE = 35, 36, 37, 38, 39, 97, 96
    vLane, vT, vW, vMR, vML, vO, vT2 = 1, 2, 3, 4, 5, 6, 7
    vH = [8+j for j in range(6)]
    vA, vA1 = 14, 15
    vXF = 16
    HB = 24
    HIB = HB + NST*24
    T0 = HIB + NST*16
    T2 = T0 + 24
    VEND = T2 + 24
    vF, vG, vPF = VEND, VEND+1, VEND+2
    assert VEND + 8 <= 250
    ACC, WB = 0, 64
    AEND = WB + NST*40
    g.vm = []; g.lg = []
    g.label(f"{name}_ph2")
    if st.on: st.n = 15
    st()
    g.e(f"s_and_b32 s{sT0}, s2, 7")
    g.e(f"s_lshr_b32 s{sT1}, s2, 3")
    g.e(f"s_and_b32 s{sB}, s{sT0}, 1")
    g.e(f"s_lshr_b32 s{sT0}, s{sT0}, 1")
    g.e(f"s_and_b32 s{sMT}, s{sT1}, 7")
    g.e(f"s_lshr_b32 s{sT1}, s{sT1}, 3")
    g.e(f"s_lshl_b32 s{sNT}, s{sT0}, 2")
    g.e(f"s_add_u32 s{sNT}, s{sNT}, s{sT1}")
    g.e(f"s_lshl_b32 s{sT0}, s{sB}, 5")
    g.e(f"s_lshl_b32 s{sT1}, s{sMT}, 2")
    g.e(f"s_add_u32 s{sR0}, s{sT0}, s{sT1}")
    srd(g, SDB, 50, 51, 16 << 20)
    NL = o.get("NL", 8); LG = NL.bit_length() - 1; MS = NL*128
    g.e(f"s_lshr_b32 s{sT0}, s{sR0}, 2")
    g.e(f"s_lshl_b32 s{sT0}, s{sT0}, 4")
    g.e(f"s_add_u32 s{sT0}, s{sT0}, s{sNT}")
    g.e(f"s_mul_i32 s{sT0}, s{sT0}, {MS}")
    g.e(f"s_add_u32 s{sT0}, s{sT0}, {WS_MB}")
    g.e(f"v_and_b32 v{vF}, {NL-1}, v{vLane}")
    g.e(f"v_lshlrev_b32 v{vF}, 7, v{vF}")
    g.e(f"v_lshrrev_b32 v{vG}, {LG}, v{vLane}")
    g.e(f"v_lshl_add_u32 v{vF}, v{vG}, 2, v{vF}")
    g.e(f"v_add_u32 v{vF}, s{sT0}, v{vF}")
    g.e(f"s_movk_i32 s{C4K}, 0x1000")
    g.e(f"s_movk_i32 s{C8K}, 0x2000")
    g.e(f"s_mov_b32 s{C2M}, 0x200000")
    g.e(f"s_mov_b32 s{C2M4K}, 0x201000")
    g.e(f"s_lshl_b32 s{sBASE}, s{sR0}, 15")
    g.e(f"s_lshl_b32 s{sT0}, s{sW}, 13")
    g.e(f"s_add_u32 s{sBASE}, s{sBASE}, s{sT0}")
    g.e(f"v_lshlrev_b32 v{vT}, 4, v{vLane}")
    for j in range(1, 5):
        g.e(f"s_add_u32 s{sT0}, s{sBASE}, {(j-1)*32768}")
        g.e(f"v_add_u32 v{vH[j]}, s{sT0}, v{vT}")
    g.e(f"s_sub_u32 s{sT0}, s{sBASE}, 32768")
    g.e(f"s_cmp_eq_u32 s{sMT}, 0")
    g.e(f"s_cselect_b32 s{sT0}, 0x40000000, s{sT0}")
    g.e(f"v_add_u32 v{vH[0]}, s{sT0}, v{vT}")
    g.e(f"s_add_u32 s{sT0}, s{sBASE}, {4*32768}")
    g.e(f"s_cmp_eq_u32 s{sMT}, 7")
    g.e(f"s_cselect_b32 s{sT0}, 0x40000000, s{sT0}")
    g.e(f"v_add_u32 v{vH[5]}, s{sT0}, v{vT}")
    g.e(f"s_lshl_b32 s{sT0}, s{sNT}, 5")
    g.e(f"s_lshl_b32 s{sT1}, s{sW}, 3")
    g.e(f"s_add_u32 s{sT0}, s{sT0}, s{sT1}")
    g.e(f"s_mul_i32 s92, s{sT0}, 10240")
    g.e(f"v_add_u32 v{vW}, s92, v{vT}")
    srd(g, SA, 50, 51, 4 << 20)
    srd(g, SWP, 50, 51, WP_BYTES, add=WS_WP)
    srd(g, SX, 40, 41, 2 << 20)
    srd(g, SO, 46, 47, 2 << 20)
    g.e(f"s_add_u32 s{sT0}, s{sR0}, s{sW}")
    g.e(f"s_lshl_b32 s{sT0}, s{sT0}, 15")
    g.e(f"s_lshl_b32 s{sT1}, s{sNT}, 6")
    g.e(f"s_add_u32 s{sT0}, s{sT0}, s{sT1}")
    g.e(f"v_lshrrev_b32 v{vO}, 2, v{vLane}")
    g.e(f"v_lshlrev_b32 v{vO}, 10, v{vO}")
    g.e(f"v_and_b32 v{vT2}, 3, v{vLane}")
    g.e(f"v_lshlrev_b32 v{vT2}, 4, v{vT2}")
    g.e(f"v_add3_u32 v{vO}, v{vO}, v{vT2}, s{sT0}")
    g.e(f"s_movk_i32 s{sT1}, 0x4000")
    g.e(f"buffer_load_dwordx4 {vr(vXF)}, v{vO}, {sr(SX)}, 0 offen")
    g.e(f"buffer_load_dwordx4 {vr(vXF+4)}, v{vO}, {sr(SX)}, s{sT1} offen")
    g.e(f"v_and_b32 v{vT}, 31, v{vLane}")
    g.e(f"v_cmp_ne_u32 vcc, 0, v{vT}")
    g.e("s_nop 1")
    g.e(f"v_cndmask_b32 v{vMR}, 0, -1, vcc")
    g.e(f"v_cmp_ne_u32 vcc, 31, v{vT}")
    g.e("s_nop 1")
    g.e(f"v_cndmask_b32 v{vML}, 0, -1, vcc")
    g.e(f"v_lshlrev_b32 v{vA}, 4, v{vLane}")
    g.e(f"s_mul_i32 s{sT0}, s{sW}, 4352")
    g.e(f"v_add_u32 v{vA}, s{sT0}, v{vA}")
    g.e(f"v_and_b32 v{vA1}, 3, v{vLane}")
    g.e(f"v_mul_u32_u24 v{vA1}, 1088, v{vA1}")
    g.e(f"v_lshrrev_b32 v{vT}, 2, v{vLane}")
    g.e(f"v_lshl_add_u32 v{vA1}, v{vT}, 4, v{vA1}")
    g.e(f"s_mul_i32 s{sT0}, s{sW}, 17408")
    g.e(f"v_add_u32 v{vA1}, s{sT0}, v{vA1}")
    g.e("s_mov_b32 s90, 0xffff0000")
    g.e("s_mov_b32 s91, 0xffff")
    g.e(f"s_movk_i32 s{sT0}, 0x1111")
    g.e(f"s_cmp_eq_u32 s{sMT}, 0")
    g.e(f"s_cselect_b32 s{sT0}, 0x1110, s{sT0}")
    g.e(f"s_cmp_eq_u32 s{sMT}, 7")
    g.e(f"s_cselect_b32 s{sT0}, 0x0111, s{sT0}")
    g.e(f"s_lshl_b32 s94, s{sT0}, s{sW}")
    g.e("s_mov_b32 s95, 0")
    def poll(tag, mask, first_issued):
        g.e(f"s_mov_b32 s{sT0}, 0")
        if first_issued: g.e(f"s_branch {name}_fchk{tag}")
        g.label(f"{name}_fpoll{tag}")
        if o.get("fs", 0): g.e(f"s_sleep {o['fs']}")
        g.e(f"buffer_load_dword v{vG}, v{vF}, {sr(SDB)}, 0 offen sc1")
        g.label(f"{name}_fchk{tag}")
        g.e(f"s_add_u32 s{sT0}, s{sT0}, 1")
        g.e(f"s_cmp_gt_u32 s{sT0}, 200000")
        g.e(f"s_cbranch_scc1 {name}_fw{tag}")
        g.e("s_waitcnt vmcnt(0)")
        g.e(f"v_cmp_ne_u32 vcc, s3, v{vG}")
        g.e("s_nop 4")
        g.e(f"s_and_b64 vcc, vcc, {mask}")
        g.e(f"s_cbranch_scc1 {name}_fpoll{tag}")
        g.label(f"{name}_fw{tag}")

    SPF = o.get("spf", 0)
    if SPF:
        g.e(f"s_mul_i32 s{sT0}, s{sMT}, 1280")
        g.e(f"s_add_u32 s{sT0}, s{sT0}, s92")
        g.e(f"s_add_u32 s{sT0}, s{sT0}, {WS_WP}")
        g.e(f"s_add_u32 s4, s50, s{sT0}")
        g.e(f"s_addc_u32 s5, s51, 0")
        g.e(f"s_and_b32 s{sT0}, s{sNT}, 3")
        g.e(f"s_lshl_b32 s{sT0}, s{sT0}, 8")
        g.e(f"s_add_u32 s{sT0}, s{sT0}, s{sBASE}")
        g.e(f"s_add_u32 s6, s50, s{sT0}")
        g.e(f"s_addc_u32 s7, s51, 0")
        g.e(f"s_add_u32 s8, s6, 0x200000")
        g.e(f"s_addc_u32 s9, s7, 0")
    def spf_list(k):
        if not SPF or k > 7: return []
        L = [f"s_load_dword s10, s[4:5], {k*10240 + i*128:#x}" for i in range(10)]
        if o.get("spfh", 1):
            for r in range(4):
                for i in range(2):
                    L.append(f"s_load_dword s10, s[6:7], {r*32768 + k*1024 + i*128:#x}")
                    L.append(f"s_load_dword s10, s[8:9], {r*32768 + k*1024 + i*128:#x}")
        return L
    def Hreg(s_, j): return HB + s_*24 + j*4
    def HIreg(s_, r): return HIB + s_*16 + r*4
    def Wreg(s_, t): return WB + s_*40 + t*4
    def ldW(k, t):
        s_ = k % NST
        off = (k*10 + t)*1024
        return ("W", k, t, s_, off)
    def emitW(k, t):
        s_ = k % NST
        off = (k*10 + t)*1024
        g.e(f"s_mov_b32 s{sT0}, {off & ~4095}")
        g.vmem(f"buffer_load_dwordx4 {ar(Wreg(s_,t))}, v{vW}, {sr(SWP)}, s{sT0} offen offset:{off & 4095}{lf}", ("W", k, t))
    def emitH(k, j):
        s_ = k % NST
        so_h = "0" if k < 4 else f"s{C4K}"
        g.vmem(f"buffer_load_dwordx4 {vr(Hreg(s_,j))}, v{vH[j]}, {sr(SA)}, {so_h} offen offset:{(k%4)*1024}{lf}", ("H", k, j))
    def emitHI(k, r):
        s_ = k % NST
        so = f"s{C2M}" if k < 4 else f"s{C2M4K}"
        g.vmem(f"buffer_load_dwordx4 {vr(HIreg(s_,r))}, v{vH[r+1]}, {sr(SA)}, {so} offen offset:{(k%4)*1024}{lf}", ("HI", k, r))
    def order(k):
        return [("W",1),("H",0),("H",1),("H",2),("H",3),("W",4),("H",4),("W",7),("H",5),("W",9),
                ("HI",0),("HI",1),("HI",2),("HI",3),("W",0),("W",3),("W",6),("W",2),("W",5),("W",8)]
    queue = [(k, t, i) for k in range(8) for (t, i) in order(k)]
    def emit_item(it):
        k, t, i = it
        {"W": emitW, "H": emitH, "HI": emitHI}[t](k, i)
    WPRE = o.get("WPRE", 2)
    split = 0
    if split:
        poll("P", "s[90:91]", False)
        st(); dt(g, 9)
        pre = [it for it in queue if it[1] == "W" and it[0] < WPRE]
        for it in pre:
            queue.remove(it); emit_item(it)
        if o.get("pfw", 0):
            g.e(f"s_mul_i32 s{sT0}, s{sMT}, 10240")
            g.e(f"s_add_u32 s{sT0}, s{sT0}, s92")
            g.e(f"v_lshlrev_b32 v{vPF}, 7, v{vLane}")
            g.e(f"buffer_load_dword v{vPF+1}, v{vPF}, {sr(SWP)}, s{sT0} offen{lf}")
            g.e(f"s_add_u32 s{sT0}, s{sT0}, 2048")
            g.e(f"buffer_load_dword v{vPF+2}, v{vPF}, {sr(SWP)}, s{sT0} offen{lf}")
        g.e(f"v_cmp_ne_u32 vcc, s3, v{vG}")
        g.e("s_nop 4")
        g.e("s_and_b64 vcc, vcc, s[94:95]")
        g.e(f"s_cbranch_scc0 {name}_fwG")
        poll("G", "s[94:95]", False)
    else:
        if o.get("w0", 1):
            g.e(f"s_mov_b32 s{sT0}, 0xffff")
            g.e(f"s_cmp_eq_u32 s{sMT}, 0")
            g.e(f"s_cselect_b32 s{sT0}, 0xfff0, s{sT0}")
            g.e(f"s_cmp_eq_u32 s{sMT}, 7")
            g.e(f"s_cselect_b32 s94, 0x0fff, s{sT0}")
            g.e("s_or_b64 s[90:91], s[90:91], s[94:95]")
            g.e(f"s_cmp_lg_u32 s{sW}, 0")
            g.e(f"s_cbranch_scc1 {name}_fwP")
            poll("P", "s[90:91]", False)
            g.e("s_waitcnt vmcnt(0)")
            g.e("s_barrier")
        else:
            g.e("s_or_b64 s[90:91], s[90:91], s[94:95]")
            poll("P", "s[90:91]", False)
        st(); dt(g, 9)
    if st.on:
        g.e(f"s_memrealtime s[{52+2*st.n}:{53+2*st.n}]"); st.n += 1
    def issue_next(cur_k):
        if not queue: return False
        it = queue[0]
        if it[0] - NST >= cur_k or len(g.vm) >= 60: return False
        queue.pop(0); emit_item(it); return True
    def need(tok, k):
        while any((it[1], it[0], it[2]) == tok for it in queue): assert issue_next(k)
    for _ in range(PRE): issue_next(0)
    if o.get("pfh", 0):
        g.e(f"s_and_b32 s{sT0}, s{sNT}, 3")
        g.e(f"s_lshl_b32 s{sT0}, s{sT0}, 11")
        g.e(f"s_add_u32 s{sT0}, s{sT0}, s{sBASE}")
        g.e(f"v_lshrrev_b32 v{vPF}, 4, v{vLane}")
        g.e(f"v_lshlrev_b32 v{vPF}, 15, v{vPF}")
        g.e(f"v_and_b32 v{vPF+1}, 15, v{vLane}")
        g.e(f"v_lshl_add_u32 v{vPF}, v{vPF+1}, 7, v{vPF}")
        g.vmem(f"buffer_load_dword v{vPF+1}, v{vPF}, {sr(SA)}, s{sT0} offen{lf}")
        g.e(f"s_add_u32 s{sT0}, s{sT0}, 0x200000")
        g.vmem(f"buffer_load_dword v{vPF+2}, v{vPF}, {sr(SA)}, s{sT0} offen{lf}")
    wr_pending = []
    for k in range(8):
        s_ = k % NST
        last = k == 7
        g.c(f"---- k-step {k}")
        if k == 1: st()
        if o.get("ste") and k >= 2: g.e(f"s_memtime s[{60+2*(k-2)}:{61+2*(k-2)}]")
        dpp = [(T0, vMR, "wave_shr:1", j, i) for j in range(6) for i in range(4)]
        dpp2 = [(T2, vML, "wave_shl:1", j, i) for j in range(6) for i in range(4)]
        mf = []
        for di in range(3):
            for r in range(4): mf.append((r, di*3+1, ("H", k, r+di), Hreg(s_, r+di), "A"))
        for r in range(4): mf.append((r, 9, ("HI", k, r), HIreg(s_, r), "B"))
        if not last:
            for di in range(3):
                for r in range(4): mf.append((r, di*3, None, T0 + (r+di)*4, "C"))
            for di in range(3):
                for r in range(4): mf.append((r, di*3+2, None, T2 + (r+di)*4, "D"))
        else:
            dpp = [x for pair in zip(dpp, dpp2) for x in pair]; dpp2 = []
            for r in range(4):
                for di in range(3): mf.append((r, di*3, None, T0 + (r+di)*4, "E"))
                for di in range(3): mf.append((r, di*3+2, None, T2 + (r+di)*4, "E" if di < 2 else "F"))
        since = 0
        spl = spf_list(k + SPF) if k > 0 else [x for kk in range(2, SPF+1) for x in spf_list(kk)]
        for n, (r, t, ht, hreg, grp) in enumerate(mf):
            toks = [("W", k, t)] + ([ht] if ht else [])
            for tok in toks: need(tok, k)
            g.wait_vm(toks)
            c = "0" if (k == 0 and n < 4) else ar(ACC+16*r, 16)
            if o.get("fake16"):
                for u_ in range(2):
                    q_ = ACC + 16*r + 4*((2*n + u_) % 4)
                    g.e(f"v_mfma_f32_16x16x32_bf16 {ar(q_)}, {ar(Wreg(s_,t))}, {vr(hreg)}, {'0' if k == 0 and n < 8 else ar(q_)}")
            else:
                g.e(f"v_mfma_f32_32x32x16_bf16 {ar(ACC+16*r,16)}, {ar(Wreg(s_,t))}, {vr(hreg)}, {c}")
            if grp in "AB" and n >= 2:
                for _ in range(4 if last else 2):
                    if dpp:
                        T, vm_, sh, j, i = dpp.pop(0)
                        need(("H", k, j), k); g.wait_vm([("H", k, j)])
                        g.e(f"v_and_b32_dpp v{T+j*4+i}, v{Hreg(s_,j)+i}, v{vm_} {sh} row_mask:0xf bank_mask:0xf bound_ctrl:0")
            if grp == "C":
                for _ in range(3):
                    if dpp2:
                        T, vm_, sh, j, i = dpp2.pop(0)
                        g.e(f"v_and_b32_dpp v{T+j*4+i}, v{Hreg(s_,j)+i}, v{vm_} {sh} row_mask:0xf bank_mask:0xf bound_ctrl:0")
            if o.get("RN"):
                if (n * o["RN"]) % o["RD"] < o["RN"]: issue_next(k)
            elif n % EVERY == EVERY - 1: issue_next(k)
            for _ in range(2 if k == 0 else 1):
                if spl: g.e(spl.pop(0))
            if wr_pending:
                since += 1
                if since == 2: g.e("s_nop 9")
                if since >= 2:
                    g.e(wr_pending.pop(0))
            if grp == "F":
                assert not wr_pending
                wr_pending = [f"ds_write_b128 v{vA}, {ar(ACC+16*r+4*q)} offset:{r*17408 + q*1088}" for q in range(4)]
                since = 0
        assert not dpp and not dpp2
    assert not queue
    g.c("---- epilogue")
    st(); dt(g, 11)
    g.e("s_nop 11")
    for w_ in wr_pending: g.e(w_)
    g.e("s_waitcnt lgkmcnt(0)")
    if o.get("ste"): g.e("s_memtime s[54:55]")
    g.e("s_barrier")
    if o.get("ste"): g.e("s_memtime s[56:57]")
    R = HB
    for i in range(2):
        for src in range(4):
            for hf in range(2):
                g.lds(f"ds_read_b128 {vr(R + ((i*4+src)*2+hf)*4)}, v{vA1} offset:{src*4352 + hf*512 + i*256}", ("R", i, src))
    XU = R + 64
    for i in range(2):
        for e_ in range(4):
            x = vXF + 4*i + e_
            g.e(f"v_lshlrev_b32 v{XU+8*i+2*e_}, 16, v{x}")
            g.e(f"v_and_b32 v{XU+8*i+2*e_+1}, 0xffff0000, v{x}")
    for i in range(2):
        base = R + i*32
        for src in range(4):
            g.wait_lg([("R", i, src)])
            for e_ in range(4):
                g.e(f"v_pk_add_f32 {vr(XU+8*i+2*e_,2)}, {vr(XU+8*i+2*e_,2)}, {vr(base+8*src+2*e_,2)}")
        for e_ in range(4): g.e(f"v_cvt_pk_bf16_f32 v{vXF+4*i+e_}, v{XU+8*i+2*e_}, v{XU+8*i+2*e_+1}")
        g.vmem(f"buffer_store_dwordx4 {vr(vXF+4*i)}, v{vO}, {sr(SO)}, {'0' if i==0 else 's%d'%sT1} offen{o.get('ostf',' sc1')}")
    if o.get("ste"): g.e("s_memtime s[58:59]")
    if o.get("enc"):
        i = o["enc"]
        g.e("s_waitcnt vmcnt(0)")
        g.e("s_memrealtime s[76:77]")
        g.e(f"s_cmp_lg_u32 s2, {o.get('encwg', 8)}")
        g.e("s_cbranch_scc1 enc_done")
        g.e(f"s_cmp_lg_u32 s{sW}, 0")
        g.e("s_cbranch_scc1 enc_done")
        g.e("s_waitcnt lgkmcnt(0)")
        g.e(f"s_sub_u32 s84, s{52+2*i}, s52")
        g.e("s_mul_i32 s84, s84, 20")
        g.label("enc_loop")
        g.e("s_memrealtime s[86:87]")
        g.e("s_waitcnt lgkmcnt(0)")
        g.e("s_sub_u32 s85, s86, s76")
        g.e("s_cmp_lt_u32 s85, s84")
        g.e("s_cbranch_scc1 enc_loop")
        g.label("enc_done")
    else:
        dt_finish(g)
    st.finish(st.n + 1)
    return AEND

def gen_all(out, o):
    DT[0] = bool(o.get("dt", 0)); CPF[0] = o.get("cpf", 2)
    name = "fused_kernel"
    g = Gen(); st = Stamper(g, o.get("st", 0))
    entry(g, name, st)
    phase1(g, name, st, o)
    aend = phase2(g, name, st, o)
    g.label(f"{name}_end"); g.e("s_endpgm")
    build([(name, g.text(), kd(name, 256 + max(aend, 128), 256, 100), 256, 256, 160*1024)], out)

if __name__ == "__main__":
    o = {}
    for a in sys.argv[2:]:
        k, v = a.split("=")
        o[k] = int(v) if v.lstrip("-").isdigit() else " " + v.replace("+", " ")
    gen_all(sys.argv[1], o)
```

```python
import sys, struct
from gen import Gen, vr, ar, sr, srd, kd, build, WS_H, WS_HI, WS_WP, WS_ST, WP_BYTES
import gen4
from gen4 import Stamper, f2u, LOG2E, sW, WS_MB, dt, dt_finish, DT, CPF, entry

def phase1(g, name, st, o):
    stf = o.get("stf", " sc1")
    ldf = " nt" if o.get("nt", 0) else ""
    ldw = " nt" if o.get("ntw", 0) else ""
    SX, SWT, SWS, SXI, SDB = 12, 16, 20, 24, 28
    sCT, sU, sT0, sT1, sT2, sXROW, sM0X = 33, 34, 35, 36, 37, 38, 39
    sSOX, sSOW, sNONCE = 42, 43, 3
    sODD, sKC = 94, 95
    vLane, vT, vT2, vXD, vWD, vWA, vPX, vHF, vL16 = 1, 2, 3, 4, 5, 6, 7, 8, 9
    vXA = [10, 11, 12, 13]; vXAs = [14, 15, 16, 17]
    vWAs, vST, vWR, vNC, vZ, vWAs2 = 18, 19, 20, 21, 22, 23
    XF, WF, ACC, TMP = 24, 64, 80, 160
    g.e(f"s_and_b32 s{sT0}, s2, 7")
    g.e(f"s_lshr_b32 s{sT1}, s2, 3")
    g.e(f"s_and_b32 s{sCT}, s{sT1}, 3")
    g.e(f"s_lshr_b32 s{sT1}, s{sT1}, 2")
    if o.get("mix", 1):
        g.e(f"s_lshl_b32 s{sU}, s{sT0}, 2")
        g.e(f"s_lshr_b32 s{sT2}, s{sT1}, 1")
        g.e(f"s_add_u32 s{sU}, s{sU}, s{sT2}")
        g.e(f"s_and_b32 s{sT0}, s{sT1}, 1")
        g.e(f"s_lshl_b32 s{sT0}, s{sT0}, 2")
    else:
        g.e(f"s_and_b32 s{sU}, s{sT0}, 3")
        g.e(f"s_lshl_b32 s{sU}, s{sU}, 3")
        g.e(f"s_add_u32 s{sU}, s{sU}, s{sT1}")
    g.e(f"v_lshrrev_b32 v{vT}, 3, v{vLane}")
    g.e(f"s_lshl_b32 s{sT2}, s{sW}, 3")
    g.e(f"v_add_u32 v{vXD}, s{sT2}, v{vT}")
    g.e(f"v_lshrrev_b32 v{vT}, 1, v{vXD}")
    g.e(f"v_and_b32 v{vT}, 7, v{vT}")
    g.e(f"v_and_b32 v{vT2}, 7, v{vLane}")
    g.e(f"v_xor_b32 v{vT}, v{vT}, v{vT2}")
    g.e(f"v_lshlrev_b32 v{vT}, 4, v{vT}")
    g.e(f"v_lshl_add_u32 v{vXD}, v{vXD}, 10, v{vT}")
    g.e(f"v_lshrrev_b32 v{vT}, 4, v{vLane}")
    g.e(f"v_lshlrev_b32 v{vT2}, 2, v{vT}")
    g.e(f"v_and_b32 v{vWD}, 15, v{vLane}")
    g.e(f"v_xor_b32 v{vWD}, v{vWD}, v{vT2}")
    g.e(f"v_lshlrev_b32 v{vWD}, 4, v{vWD}")
    g.e(f"s_lshl_b32 s{sT2}, s{sW}, 2")
    g.e(f"v_add_u32 v{vT}, s{sT2}, v{vT}")
    g.e(f"v_lshl_add_u32 v{vWD}, v{vT}, 10, v{vWD}")
    g.e(f"s_lshl_b32 s{sT2}, s{sCT}, 8")
    g.e(f"v_add_u32 v{vWD}, s{sT2}, v{vWD}")
    g.e(f"s_lshl_b32 s{sM0X}, s{sW}, 10")
    g.e(f"v_mov_b32 v{vZ}, 0")
    g.e(f"s_cmp_ge_u32 s{sT0}, 4")
    g.e(f"s_cbranch_scc1 {name}_P")
    st_n0 = st.n

    def nonce_wait(role):
        g.wait_vm([("NC",)])
        g.e(f"s_mov_b32 s{sT2}, 0")
        g.label(f"{name}_ncpoll{role}")
        g.e(f"v_readfirstlane_b32 s{sNONCE}, v{vNC}")
        g.e(f"s_add_u32 s{sT2}, s{sT2}, 1")
        g.e(f"s_cmp_gt_u32 s{sT2}, 100000")
        g.e(f"s_cbranch_scc1 {name}_ncok{role}")
        g.e(f"s_cmp_lg_u32 s{sNONCE}, 0")
        g.e(f"s_cbranch_scc1 {name}_ncok{role}")
        g.e(f"buffer_load_dword v{vNC}, v{vZ}, {sr(SDB)}, 0 offen sc1")
        g.e("s_waitcnt vmcnt(0)")
        g.e(f"s_branch {name}_ncpoll{role}")
        g.label(f"{name}_ncok{role}")

    def pretouch():
        if not o.get("tlb", 0): return
        lab = f"{name}_pt{len(g.lines)}"
        g.e(f"s_cmp_lg_u32 s{sW}, 3")
        g.e(f"s_cbranch_scc1 {lab}")
        srd(g, 84, 50, 51, 12 << 20)
        g.e(f"v_lshlrev_b32 v{vT}, 18, v{vLane}")
        g.e(f"buffer_load_dword v252, v{vT}, s[84:87], 0 offen")
        srd(g, 84, 46, 47, 2 << 20)
        g.e(f"v_lshlrev_b32 v{vT}, 16, v{vLane}")
        g.e(f"buffer_load_dword v253, v{vT}, s[84:87], 0 offen")
        srd(g, 84, 40, 41, 2 << 20)
        g.e(f"buffer_load_dword v254, v{vT}, s[84:87], 0 offen")
        g.e(f"buffer_load_dword v251, v{vZ}, {sr(SDB)}, 0 offen sc1")
        g.label(lab)

    def frag_consts(G):
        pretouch()
        g.e(f"v_and_b32 v{vPX}, 31, v{vLane}")
        g.e(f"v_lshrrev_b32 v{vHF}, 5, v{vLane}")
        g.e(f"v_lshlrev_b32 v{vL16}, 4, v{vLane}")
        g.e(f"v_lshrrev_b32 v{vT}, 1, v{vPX}")
        g.e(f"v_and_b32 v{vT}, 7, v{vT}")
        g.e(f"v_xor_b32 v{vT}, v{vT}, v{vHF}")
        g.e(f"v_lshlrev_b32 v{vT}, 4, v{vT}")
        g.e(f"v_lshl_add_u32 v{vXA[0]}, v{vPX}, 7, v{vT}")
        if G:
            g.e(f"s_lshr_b32 s{sT2}, s{sW}, 1")
            g.e(f"s_lshl_b32 s{sT2}, s{sT2}, 12")
            g.e(f"v_add_u32 v{vXA[0]}, s{sT2}, v{vXA[0]}")
        for s in range(1, 4):
            g.e(f"v_xor_b32 v{vXA[s]}, {s*32}, v{vXA[0]}")
        g.e(f"v_bfe_u32 v{vT}, v{vLane}, 2, 2")
        g.e(f"v_lshl_add_u32 v{vT2}, v{vHF}, 3, v{vT}")
        g.e(f"v_lshlrev_b32 v{vWA}, 8, v{vT2}")
        if G:
            g.e(f"s_and_b32 s{sT2}, s{sW}, 1")
            g.e(f"s_lshl_b32 s{sT2}, s{sT2}, 1")
            g.e(f"v_xor_b32 v{vT}, s{sT2}, v{vT}")
        else:
            g.e(f"v_xor_b32 v{vT}, s{sW}, v{vT}")
        g.e(f"v_lshl_add_u32 v{vWA}, v{vT}, 6, v{vWA}")
        g.e(f"v_bfe_u32 v{vT}, v{vLane}, 4, 1")
        g.e(f"v_lshl_add_u32 v{vWA}, v{vT}, 5, v{vWA}")
        g.e(f"v_and_b32 v{vT}, 3, v{vLane}")
        g.e(f"v_lshl_add_u32 v{vWA}, v{vT}, 3, v{vWA}")

    def publish(G):
        while st.on and st.n < 13: st()
        NL = o.get("NL", 8); LG = NL.bit_length() - 1; MS = NL*128
        def slot_off(dst, src):
            g.e(f"s_and_b32 s92, s{src}, {NL-1}")
            g.e(f"s_lshl_b32 s92, s92, 7")
            g.e(f"s_lshr_b32 s{dst}, s{src}, {LG}")
            g.e(f"s_lshl_b32 s{dst}, s{dst}, 2")
            g.e(f"s_add_u32 s{dst}, s{dst}, s92")
        if G:
            g.e(f"s_lshr_b32 s{sT0}, s{sU}, 1")
            g.e(f"s_and_b32 s{sT1}, s{sU}, 1")
            g.e(f"s_lshl_b32 s{sT2}, s{sT1}, 1")
            g.e(f"s_add_u32 s{sT2}, s{sT2}, s{sT0}")
            g.e(f"s_sub_u32 s{sT2}, s{sT2}, 1")
            g.e(f"s_add_u32 s{sSOX}, s{sT1}, 1")
            g.e(f"s_lshl_b32 s{sSOX}, s{sSOX}, 2")
            g.e(f"s_add_u32 s{sSOX}, s{sSOX}, s{sCT}")
            slot_off(sSOX, sSOX)
            g.e(f"s_mul_i32 s93, s{sT0}, {16*MS}")
            g.e(f"s_add_u32 s{sSOX}, s{sSOX}, s93")
            g.e(f"s_cmp_eq_u32 s{sT1}, 0")
            g.e(f"s_cselect_b32 s{sSOW}, 12, 0")
            g.e(f"s_add_u32 s{sSOW}, s{sSOW}, s{sCT}")
            slot_off(sSOW, sSOW)
            g.e(f"s_mul_i32 s93, s{sT2}, {16*MS}")
            g.e(f"s_add_u32 s{sSOW}, s{sSOW}, s93")
            g.e(f"s_lshr_b32 s{sT2}, s{sT2}, 3")
            g.e(f"s_lshr_b32 s{sT0}, s{sT0}, 3")
            g.e(f"s_cmp_eq_u32 s{sT2}, s{sT0}")
            g.e(f"s_cselect_b32 s92, -1, 0xffff")
            g.e(f"s_mov_b32 s93, 0")
            g.e(f"v_and_b32 v{vT}, 15, v{vLane}")
            g.e(f"v_mul_u32_u24 v{vT}, {MS}, v{vT}")
            g.e(f"v_mov_b32 v{vT2}, s{sSOW}")
            g.e(f"v_mov_b32 v{vPX}, s{sSOX}")
            g.e(f"v_cmp_gt_u32 vcc, 16, v{vLane}")
            g.e("s_nop 1")
            g.e(f"v_cndmask_b32 v{vT2}, v{vT2}, v{vPX}, vcc")
            g.e(f"v_add_u32 v{vT}, v{vT}, v{vT2}")
            g.e(f"s_mov_b32 s{sT0}, {WS_MB}")
        else:
            g.e(f"v_lshrrev_b32 v{vT}, 2, v{vLane}")
            g.e(f"v_lshlrev_b32 v{vT}, 4, v{vT}")
            g.e(f"v_and_b32 v{vT2}, 3, v{vLane}")
            g.e(f"v_add_u32 v{vT}, v{vT}, v{vT2}")
            g.e(f"v_mul_u32_u24 v{vT}, {MS}, v{vT}")
            g.e(f"s_add_u32 s{sT1}, s{sU}, 16")
            slot_off(sT1, sT1)
            g.e(f"s_mul_i32 s{sT0}, s{sCT}, {4*MS}")
            g.e(f"s_add_u32 s{sT0}, s{sT0}, s{sT1}")
            g.e(f"s_add_u32 s{sT0}, s{sT0}, {WS_MB}")
            g.e(f"s_mov_b64 s[92:93], -1")
        dt(g, 5 if G else 6)
        if st.on: g.e("s_memrealtime s[78:79]")
        g.e("s_waitcnt vmcnt(0)")
        g.e("s_barrier")
        if st.on: g.e("s_memrealtime s[80:81]")
        dt(g, 7 if G else 8)
        g.e(f"s_cmp_lg_u32 s{sW}, 0")
        g.e(f"s_cbranch_scc1 {name}_ph2")
        g.e(f"s_mov_b64 exec, s[92:93]")
        g.e(f"buffer_store_dword v{vNC}, v{vT}, {sr(SWS)}, s{sT0} offen sc1")
        g.e("s_mov_b64 exec, -1")
        g.e(f"s_branch {name}_ph2")

    def bodyP():
        g.vm = []; g.lg = []
        st.n = st_n0
        g.label(f"{name}_P")
        NA = 3
        S = o.get("SP", 3)
        STG = 16384 + NA*4096
        XB3, XB4 = S*STG, (S*STG + 32768 if S == 3 else 0)
        PRE = o.get("PREP", 2)
        g.e(f"s_and_b32 s{sODD}, s{sU}, 1")
        g.e(f"s_lshr_b32 s{sT1}, s{sU}, 1")
        g.e(f"s_mul_i32 s{sXROW}, s{sT1}, 288")
        g.e(f"s_mul_i32 s{sT2}, s{sODD}, 160")
        g.e(f"s_add_u32 s{sXROW}, s{sXROW}, s{sT2}")
        g.e(f"s_lshr_b32 s{sKC}, s{sT1}, 1")
        g.e(f"s_lshl_b32 s{sKC}, s{sKC}, 16")
        g.e(f"s_lshl_b32 s93, s{sXROW}, 10")
        g.e(f"s_lshr_b32 s92, s{sKC}, 9")
        g.e("s_waitcnt lgkmcnt(0)")
        if o.get("wsoff", 0):
            g.e(f"s_add_u32 s50, s50, {o['wsoff'] << 20:#x}")
            g.e("s_addc_u32 s51, s51, 0")
        st(); dt(g, 2)
        srd(g, SX, 44, 45, 4608*1024); srd(g, SWT, 10, 11, 512 << 10)
        cur = [None]
        def kofs(kc):
            if cur[0] == kc: return
            cur[0] = kc
            g.e(f"s_add_u32 s{sT2}, s92, {kc*128}")
            g.e(f"s_and_b32 s{sT2}, s{sT2}, 0x3ff")
            g.e(f"s_add_u32 s91, s{sT2}, s93")
            g.e(f"s_lshl_b32 s90, s{sT2}, 9")
        def ldW(kc, m):
            kofs(kc)
            g.e(f"s_add_u32 m0, s{sM0X}, {(kc % S)*STG + m*4096}")
            g.e(f"s_add_u32 s{sSOW}, s90, {m*16384}")
            g.vmem(f"buffer_load_dwordx4 v{vWD}, {sr(SWT)}, s{sSOW} offen{ldw} lds", ("D", kc))
        def ldX(b, kc):
            kofs(kc)
            dst = (kc % S)*STG + 16384 + b*4096 if b < NA else [XB3, XB4][b-NA] + kc*4096
            g.e(f"s_add_u32 m0, s{sM0X}, {dst}")
            g.e(f"s_add_u32 s{sSOX}, s91, {b*32768}")
            g.vmem(f"buffer_load_dwordx4 v{vXD}, {sr(SX)}, s{sSOX} offen{ldf} lds", ("D", kc) if b < NA else ("XB", b))
        ldq = []
        for kc in range(8):
            for m in range(4): ldq.append(("W", kc, m, kc - S))
            for b in range(NA): ldq.append(("X", b, kc, kc - S))
            if not o.get("late", 0) and kc >= 2:
                for b in (3, 4): ldq.append(("X", b, kc - 2, -1))
        if o.get("late", 0):
            for b in (3, 4):
                for kc in range(8): ldq.append(("X", b, kc, 5 if (b == 4 and S == 4) else -1))
        else:
            for kc in (6, 7):
                for b in (3, 4): ldq.append(("X", b, kc, -1))
        freed = [-1]
        def ldnext():
            if not ldq or len(g.vm) >= 60: return False
            t, a, b_, need = ldq[0]
            if need > freed[0]: return False
            ldq.pop(0)
            if t == "W": ldW(a, b_)
            else: ldX(a, b_)
            return True
        for _ in range(7*PRE): ldnext()
        slotc = [0]
        srd(g, SDB, 48, 49, 256)
        frag_consts(False)
        srd(g, SWS, 50, 51, 16 << 20)
        g.e(f"s_lshl_b32 s{sT0}, s{sCT}, 2")
        g.e(f"s_add_u32 s{sT0}, s{sT0}, s{sW}")
        g.e(f"s_mul_i32 s{sT0}, s{sT0}, {32*10240}")
        g.e(f"s_add_u32 s{sT0}, s{sT0}, {WS_WP}")
        g.e(f"v_add_u32 v{vST}, s{sT0}, v{vL16}")
        XRB = TMP + 40
        def read_list(kc, s):
            p = (kc*4 + s) % 2
            ks = 4*kc + s
            L = []
            for h in range(2):
                L.append((f"ds_read_b64_tr_b16 {ar(4*ks+2*h,2)}, v{vWAs} offset:{s*4096+h*1024}", 0))
            for b in range(NA):
                L.append((f"ds_read_b128 {vr(XF+p*20+b*4)}, v{vXAs[s]} offset:{b*4096}", b))
            return [(r, ("R", kc, s, b)) for r, b in L]
        def stage_addr(kc):
            sb = (kc % S) * STG
            for s in range(4): g.e(f"v_add_u32 v{vXAs[s]}, {sb + 16384}, v{vXA[s]}")
            g.e(f"v_add_u32 v{vWAs}, {sb}, v{vWA}")
        stage_addr(0)
        st()
        g.wait_vm([("D", 0)])
        g.e("s_barrier")
        st()
        for r, t in read_list(0, 0): g.lds(r, t)
        LPA = o.get("LPA", 1)
        for kc in range(8):
            for s in range(4):
                if s < 3:
                    nxt = read_list(kc, s+1)
                else:
                    nxt = []
                    if kc < 7:
                        g.wait_lg([("R", kc, 3, b) for b in range(NA)])
                        while any(t[3] == kc+1-S and t[3] >= -10 and ((t[0] == "W" and t[1] == kc+1) or (t[0] == "X" and t[1] < NA and t[2] == kc+1)) for t in ldq): assert ldnext()
                        g.wait_vm([("D", kc+1)])
                        g.e("s_barrier")
                        if kc in (1, 3, 5): st()
                        freed[0] = kc
                        stage_addr(kc+1)
                        nxt = read_list(kc+1, 0)
                p = (kc*4 + s) % 2
                ks = 4*kc + s
                for b in range(NA):
                    g.wait_lg([("R", kc, s, bb) for bb in range(b+1)])
                    ac = vr(ACC+16*b, 16)
                    g.e(f"v_mfma_f32_32x32x16_bf16 {ac}, {vr(XF+p*20+b*4)}, {ar(4*ks)}, {'0' if ks == 0 else ac}")
                    for _ in range(2):
                        if nxt:
                            r, t = nxt.pop(0); g.lds(r, t)
                    slotc[0] += 1
                    if (slotc[0] * o.get("PN", 12)) % 12 < o.get("PN", 12): ldnext()
            if kc == 4:
                g.vmem(f"buffer_load_dword v{vNC}, v{vZ}, {sr(SDB)}, 0 offen sc1", ("NC",))
        while ldq: assert ldnext()
        st()
        def store_block(b):
            a = ACC + 16*b
            L = []
            L.append(f"s_add_u32 s{sT0}, s{sXROW}, {32*b}")
            L.append(f"s_lshr_b32 s{sT1}, s{sT0}, 9")
            L.append(f"s_and_b32 s{sT0}, s{sT0}, 511")
            L.append(f"s_lshr_b32 s{sT0}, s{sT0}, 4")
            L.append(f"s_mul_i32 s{sT0}, s{sT0}, 10")
            L.append(f"s_add_u32 s{sT0}, s{sT0}, s{sT1}")
            L.append(f"s_lshl_b32 s{sT0}, s{sT0}, 10")
            L.append(f"s_add_u32 s{sT1}, s{sT0}, 10240")
            for hh in range(2):
                d = TMP + b*8 + hh*4
                for i in range(4):
                    L.append(f"v_cvt_pk_bf16_f32 v{d+i}, v{a+8*hh+2*i}, v{a+8*hh+2*i+1}")
                L.append(("ST", f"buffer_store_dwordx4 {vr(d)}, v{vST}, {sr(SWS)}, s{sT0 if hh==0 else sT1} offen{stf}"))
            return L
        def emit(x):
            if isinstance(x, tuple): g.vmem(x[1])
            else: g.e(x)
        xr = [0]; xreg = {}
        def xread(b, ks):
            r = XRB + (xr[0] % 8)*4; xr[0] += 1
            g.lds(f"ds_read_b128 {vr(r)}, v{vXAs[ks%4]} offset:{(ks//4)*4096}", ("R2", b, ks))
            return r
        g.wait_vm([("XB", 3)] if o.get("late", 0) else [("XB", 3), ("XB", 4)])
        g.e("s_barrier")
        def blockB(b, pend):
            for s in range(4): g.e(f"v_add_u32 v{vXAs[s]}, {[XB3, XB4][b-3]}, v{vXA[s]}")
            AH = 6
            for ks in range(AH): xreg[(b, ks)] = xread(b, ks)
            for ks in range(32):
                g.wait_lg([("R2", b, ks)])
                ac = vr(ACC + 16*b, 16)
                g.e(f"v_mfma_f32_32x32x16_bf16 {ac}, {vr(xreg[(b,ks)])}, {ar(4*ks)}, {'0' if ks == 0 else ac}")
                if ks + AH < 32: xreg[(b, ks+AH)] = xread(b, ks+AH)
                if ks >= 1:
                    for _ in range(2):
                        if pend: emit(pend.pop(0))
            assert not pend
        blockB(3, store_block(0) + store_block(1) + store_block(2))
        st()
        g.e(f"s_cmp_lg_u32 s{sODD}, 0")
        g.e(f"s_cbranch_scc1 {name}_P4")
        saved = (list(g.vm), list(g.lg))
        if o.get("late", 0):
            g.wait_vm([("XB", 4)])
            g.e("s_barrier")
        blockB(4, store_block(3))
        st(); dt(g, 4)
        g.e("s_nop 3")
        for x in store_block(4): emit(x)
        g.e(f"s_branch {name}_Pdone")
        g.label(f"{name}_P4")
        g.vm, g.lg = saved
        g.e(f"s_lshr_b32 s{sT0}, s{sU}, 1")
        g.e(f"s_and_b32 s{sT2}, s{sT0}, 1")
        g.e(f"s_mul_i32 s{sT0}, s{sT0}, 20480")
        g.e(f"s_add_u32 s{sT0}, s{sT0}, 9216")
        g.e(f"s_add_u32 s{sT1}, s{sT0}, 10240")
        g.e(f"s_cmp_eq_u32 s{sT2}, 0")
        g.e(f"s_cbranch_scc0 {name}_rp1")
        g.e(f"buffer_store_dwordx4 {ar(0)}, v{vST}, {sr(SWS)}, s{sT0} offen{stf}")
        g.e(f"buffer_store_dwordx4 {ar(4)}, v{vST}, {sr(SWS)}, s{sT1} offen{stf}")
        g.e(f"s_branch {name}_rp2")
        g.label(f"{name}_rp1")
        g.e(f"buffer_store_dwordx4 {ar(8)}, v{vST}, {sr(SWS)}, s{sT0} offen{stf}")
        g.e(f"buffer_store_dwordx4 {ar(12)}, v{vST}, {sr(SWS)}, s{sT1} offen{stf}")
        g.label(f"{name}_rp2")
        g.e("s_nop 3")
        for x in store_block(3): emit(x)
        g.label(f"{name}_Pdone")
        g.vm = []
        nonce_wait("P")
        publish(False)

    def bodyG():
        NX, S = 2, 6
        XB = NX * 4096
        STG = XB + 16384
        NI = NX + 4
        PRE1 = o.get("PREG", 3)
        XT = 6*STG
        g.vm = []; g.lg = []
        st.n = st_n0
        g.e(f"s_lshl_b32 s{sXROW}, s{sU}, 16")
        g.e(f"v_lshrrev_b32 v{vT}, 4, v{vLane}")
        g.e(f"s_lshl_b32 s{sT2}, s{sW}, 2")
        g.e(f"v_add_u32 v{vT}, s{sT2}, v{vT}")
        g.e(f"v_and_b32 v{vT2}, 15, v{vLane}")
        g.e(f"v_xor_b32 v{vT2}, v{vT2}, v{vT}")
        g.e(f"v_lshlrev_b32 v{vT2}, 4, v{vT2}")
        g.e(f"v_lshl_add_u32 v{vT}, v{vT}, 10, v{vT2}")
        g.e(f"s_lshl_b32 s{sT2}, s{sCT}, 8")
        g.e(f"v_add_u32 v{vWR}, s{sT2}, v{vT}")
        g.e("s_waitcnt lgkmcnt(0)")
        if o.get("wsoff", 0):
            g.e(f"s_add_u32 s50, s50, {o['wsoff'] << 20:#x}")
            g.e("s_addc_u32 s51, s51, 0")
        st(); dt(g, 2)
        srd(g, SX, 6, 7, 2 << 20); srd(g, SWT, 8, 9, 512 << 10); srd(g, SXI, 4, 5, 2 << 20)
        def ld1(kc, m):
            sb = (kc % S) * STG
            isx = m < NX
            mm = m if isx else m - NX
            g.e(f"s_add_u32 m0, s{sM0X}, {sb + m*4096}")
            if isx: g.e(f"s_add_u32 s{sSOX}, s{sXROW}, {mm*32768 + kc*128}")
            else:   g.e(f"s_mov_b32 s{sSOW}, {(kc*64 + 16*mm)*1024}")
            va, sd, so = (vXD, SX, sSOX) if isx else (vWD, SWT, sSOW)
            g.vmem(f"buffer_load_dwordx4 v{va}, {sr(sd)}, s{so} offen{ldf if isx else ldw} lds", ("D", kc))
        for m in range(NI): ld1(0, m)
        srd(g, SDB, 48, 49, 256)
        g.e(f"s_or_b32 s{sT0}, s2, s{sW}")
        g.e(f"s_cmp_lg_u32 s{sT0}, 0")
        g.e(f"s_cbranch_scc1 {name}_nn")
        g.e("s_memrealtime s[96:97]")
        g.e("s_waitcnt lgkmcnt(0)")
        g.e(f"s_or_b32 s96, s96, 1")
        g.e(f"v_mov_b32 v{vT}, s96")
        g.e(f"buffer_store_dword v{vT}, v{vZ}, {sr(SDB)}, 0 offen sc1")
        g.label(f"{name}_nn")
        for kc in range(1, PRE1):
            for m in range(NI): ld1(kc, m)
        ldq = [(kc, m) for kc in range(PRE1, 8) for m in range(NI)]
        k6 = [i for i, (kc, m) in enumerate(ldq) if kc >= 5][0]
        ldq[k6:k6] = [("X", m) for m in range(4)]
        freed = [0]
        def ldnext():
            if not ldq: return False
            kc, m = ldq[0]
            if kc == "X":
                ldq.pop(0)
                g.e(f"s_add_u32 m0, s{sM0X}, {XT + m*4096}")
                g.e(f"s_add_u32 s{sSOX}, s{sXROW}, {m*16384}")
                g.vmem(f"buffer_load_dwordx4 v{vWR}, {sr(SXI)}, s{sSOX} offen{ldf} lds", ("D", 5))
                return True
            if kc - S >= freed[0]: return False
            ldq.pop(0); ld1(kc, m); return True
        frag_consts(True)
        srd(g, SWS, 50, 51, 16 << 20)
        mk = len(g.lines)
        vXR, vGA, vGO = TMP+60, TMP+61, TMP+62
        g.e(f"s_lshr_b32 s{sT0}, s{sW}, 1")
        g.e(f"s_and_b32 s{sT1}, s{sW}, 1")
        g.e(f"s_lshl_b32 s{sT2}, s{sT0}, 13")
        g.e(f"s_add_u32 s{sT2}, s{sT2}, {XT}")
        g.e(f"v_and_b32 v{vT}, 15, v{vPX}")
        g.e(f"s_lshl_b32 s{sSOX}, s{sT1}, 3")
        g.e(f"v_xor_b32 v{vT}, s{sSOX}, v{vT}")
        g.e(f"v_lshlrev_b32 v{vT}, 4, v{vT}")
        g.e(f"v_lshl_add_u32 v{vT}, v{vPX}, 8, v{vT}")
        g.e(f"v_lshl_add_u32 v{vT}, v{vHF}, 3, v{vT}")
        g.e(f"v_add_u32 v{vXR}, s{sT2}, v{vT}")
        g.e(f"s_lshl_b32 s{sT2}, s{sT0}, 15")
        g.e(f"s_add_u32 s{sT2}, s{sT2}, s{sXROW}")
        g.e(f"s_lshl_b32 s{sSOX}, s{sCT}, 13")
        g.e(f"s_add_u32 s{sT2}, s{sT2}, s{sSOX}")
        g.e(f"s_lshl_b32 s{sSOX}, s{sT1}, 12")
        g.e(f"s_add_u32 s{sT2}, s{sT2}, s{sSOX}")
        g.e(f"v_add_u32 v{vST}, s{sT2}, v{vL16}")
        g.e(f"s_lshl_b32 s{sSOX}, s{sU}, 1")
        g.e(f"s_add_u32 s{sSOX}, s{sSOX}, s{sT0}")
        g.e(f"s_lshl_b32 s{sSOX}, s{sSOX}, 12")
        g.e(f"s_add_u32 s{sSOX}, s{sSOX}, {WS_ST}")
        g.e(f"v_lshlrev_b32 v{vGO}, 4, v{vPX}")
        g.e(f"v_add_u32 v{vGO}, s{sSOX}, v{vGO}")
        g.e(f"v_lshl_add_u32 v{vGA}, v{vHF}, 11, v{vGO}")
        g.e(f"s_lshl_b32 s93, s{sCT}, 1")
        g.e(f"s_add_u32 s93, s93, s{sT1}")
        g.e(f"s_lshl_b32 s93, s93, 9")
        deferG = g.lines[mk:]; del g.lines[mk:]
        def stage_addr(kc):
            sb = (kc % S) * STG
            for s in range(4): g.e(f"v_add_u32 v{vXAs[s]}, {sb}, v{vXA[s]}")
            g.e(f"v_add_u32 v{vWAs}, {sb + XB}, v{vWA}")
            g.e(f"v_xor_b32 v{vWAs2}, 64, v{vWAs}")
        def read_list(kc, s):
            p = (kc*4 + s) % 2
            L = [(f"ds_read_b128 {vr(XF+p*20)}, v{vXAs[s]}", 0)]
            for cb in range(2):
                for h in range(2):
                    L.append((f"ds_read_b64_tr_b16 {vr(WF+p*8+cb*4+h*2,2)}, v{vWAs if cb==0 else vWAs2} offset:{s*4096+h*1024}", cb))
            return [(r, ("R", kc, s, b)) for r, b in L]
        stage_addr(0)
        st()
        g.wait_vm([("D", 0)])
        g.e("s_barrier")
        st()
        XR = TMP
        XU = ACC + 32
        for r, t in read_list(0, 0): g.lds(r, t)
        LPM = o.get("LPG", 1)
        for kc in range(8):
            for s in range(4):
                if s < 3:
                    nxt = read_list(kc, s+1)
                else:
                    nxt = []
                    if kc < 7:
                        g.wait_lg([("R", kc, 3, b) for b in range(2)])
                        while any(c_ == kc+1 for c_, _ in ldq): assert ldnext()
                        g.wait_vm([("D", kc+1)])
                        g.e("s_barrier")
                        if kc in (0, 2, 4, 6): st()
                        freed[0] = kc + 1
                        stage_addr(kc+1)
                        nxt = read_list(kc+1, 0)
                p = (kc*4 + s) % 2
                for b in range(2):
                    g.wait_lg([("R", kc, s, bb) for bb in range(b+1)])
                    ac = vr(ACC+16*b, 16)
                    g.e(f"v_mfma_f32_32x32x16_bf16 {ac}, {vr(WF+p*8+b*4)}, {vr(XF+p*20)}, {'0' if kc == 0 and s == 0 else ac}")
                    for _ in range(3):
                        if nxt:
                            r, t = nxt.pop(0); g.lds(r, t)
                    for _ in range(LPM): ldnext()
            if kc == 4:
                g.vmem(f"buffer_load_dword v{vNC}, v{vZ}, {sr(SDB)}, 0 offen sc1", ("NC",))
            if kc == 0: g.lines += deferG
            if kc == 5:
                for j in range(8):
                    g.e(f"v_xor_b32 v{vT2}, {j*16}, v{vXR}")
                    g.lds(f"ds_read_b64 {vr(XR+2*j,2)}, v{vT2}", ("XR", j))
            if kc == 6:
                g.wait_lg([("XR", 7)])
                for j in range(16):
                    g.e(f"v_lshlrev_b32 v{XU+2*j}, 16, v{XR+j}")
                    g.e(f"v_and_b32 v{XU+2*j+1}, 0xffff0000, v{XR+j}")
        assert not ldq
        st(); dt(g, 3)
        nonce_wait("G")
        g.e("s_nop 7")
        S1, S2 = TMP+16, TMP+18
        P1, P2 = TMP+20, TMP+22
        for i in range(16): g.e(f"v_pk_add_f32 {vr(ACC+2*i,2)}, {vr(ACC+2*i,2)}, {vr(XU+2*i,2)}")
        g.e(f"v_pk_add_f32 {vr(P1,2)}, {vr(ACC,2)}, {vr(ACC+2,2)}")
        g.e(f"v_pk_mul_f32 {vr(P2,2)}, {vr(ACC,2)}, {vr(ACC,2)}")
        g.e(f"v_pk_fma_f32 {vr(P2,2)}, {vr(ACC+2,2)}, {vr(ACC+2,2)}, {vr(P2,2)}")
        for i in range(2, 16):
            g.e(f"v_pk_add_f32 {vr(P1,2)}, {vr(P1,2)}, {vr(ACC+2*i,2)}")
            g.e(f"v_pk_fma_f32 {vr(P2,2)}, {vr(ACC+2*i,2)}, {vr(ACC+2*i,2)}, {vr(P2,2)}")
        g.e(f"v_add_f32 v{S1}, v{P1}, v{P1+1}")
        g.e(f"v_add_f32 v{S2}, v{P2}, v{P2+1}")
        g.e(f"v_mov_b32 v{vT}, v{S1}")
        g.e(f"v_mov_b32 v{vT2}, v{S2}")
        g.e(f"v_mov_b32 v{S1+1}, v{vNC}")
        g.e(f"v_mov_b32 v{S2+1}, v{vNC}")
        g.e(f"v_permlane32_swap_b32 v{S1}, v{vT}")
        g.e(f"v_permlane32_swap_b32 v{S2}, v{vT2}")
        g.e(f"v_add_f32 v{S1}, v{S1}, v{vT}")
        g.e(f"v_add_f32 v{S2}, v{S2}, v{vT2}")
        g.e("s_mov_b64 exec, 0xffffffff")
        g.e(f"buffer_store_dwordx4 {vr(S1)}, v{vGO}, {sr(SWS)}, s93 offen sc1")
        g.e("s_mov_b64 exec, -1")
        st()
        for j in range(16):
            g.e(f"v_cvt_pk_bf16_f32 v{XR+j}, v{ACC+2*j}, v{ACC+2*j+1}")
        g.e("s_nop 1")
        for hh in range(4):
            g.e(f"v_permlane32_swap_b32 v{XR+4*hh}, v{XR+4*hh+2}")
            g.e(f"v_permlane32_swap_b32 v{XR+4*hh+1}, v{XR+4*hh+3}")
        EA, EB = TMP + 24, TMP + 40
        def poll_issue(E):
            for e_ in range(4):
                g.e(f"buffer_load_dwordx4 {vr(E+4*e_)}, v{vGA}, {sr(SWS)}, 0 offen offset:{e_*512} sc1")
        def poll_check(E):
            g.e(f"v_xor_b32 v{vT}, v{E+1}, v{vNC}")
            for e_ in range(4):
                for o_ in (1, 3):
                    if e_ == 0 and o_ == 1: continue
                    g.e(f"v_xor_b32 v{vT2}, v{E+4*e_+o_}, v{vNC}")
                    g.e(f"v_or_b32 v{vT}, v{vT}, v{vT2}")
            g.e(f"v_cmp_ne_u32 vcc, 0, v{vT}")
            g.e("s_nop 4")
        g.e(f"s_mov_b32 s{sT2}, 0")
        poll_issue(EA)
        g.label(f"{name}_poll")
        g.e(f"s_add_u32 s{sT2}, s{sT2}, 1")
        g.e(f"s_cmp_gt_u32 s{sT2}, 100000")
        g.e(f"s_cbranch_scc1 {name}_pollx")
        if o.get("pp", 1):
            g.e("s_sleep 4")
            poll_issue(EB)
            g.e("s_waitcnt vmcnt(4)")
            poll_check(EA)
            g.e(f"s_cbranch_vccz {name}_pollx")
            poll_issue(EA)
            g.e("s_waitcnt vmcnt(4)")
            poll_check(EB)
            g.e(f"s_cbranch_vccnz {name}_poll")
            g.e("s_waitcnt vmcnt(0)")
        else:
            g.e("s_waitcnt vmcnt(0)")
            poll_check(EA)
            g.e(f"s_cbranch_vccz {name}_pollx")
            poll_issue(EA)
            g.e(f"s_branch {name}_poll")
        g.label(f"{name}_pollx")
        st()
        E = EA
        g.e(f"s_mov_b32 s{sT1}, {WS_HI}")
        for e_ in range(1, 4):
            g.e(f"v_add_f32 v{E}, v{E}, v{E+4*e_}")
            g.e(f"v_add_f32 v{E+2}, v{E+2}, v{E+4*e_+2}")
        g.e(f"v_mov_b32 v{vT}, v{E}")
        g.e(f"v_mov_b32 v{vT2}, v{E+2}")
        for hh in range(4):
            g.e(f"buffer_store_dwordx4 {vr(XR+4*hh)}, v{vST}, {sr(SWS)}, s{sT1} offen offset:{hh*1024}{stf}")
        g.e(f"v_permlane32_swap_b32 v{E}, v{vT}")
        g.e(f"v_permlane32_swap_b32 v{E+2}, v{vT2}")
        g.e(f"v_add_f32 v{E}, v{E}, v{vT}")
        g.e(f"v_add_f32 v{E+2}, v{E+2}, v{vT2}")
        g.e(f"v_mul_f32 v{E}, {f2u(1/512):#x}, v{E}")
        g.e(f"v_mul_f32 v{E+2}, {f2u(1/512):#x}, v{E+2}")
        g.e(f"v_fma_f32 v{E+2}, -v{E}, v{E}, v{E+2}")
        g.e(f"v_max_f32 v{E+2}, 0, v{E+2}")
        g.e(f"v_add_f32 v{E+2}, {f2u(1e-5):#x}, v{E+2}")
        A_, B_, A2, B2 = E+4, E+6, E+8, E+10
        g.e(f"v_rsq_f32 v{A_}, v{E+2}")
        g.e("s_nop 0")
        g.e(f"v_mul_f32 v{B_}, v{E}, v{A_}")
        g.e(f"v_sub_f32 v{B_}, 0, v{B_}")
        g.e(f"v_mul_f32 v{A2}, {f2u(-LOG2E):#x}, v{A_}")
        g.e(f"v_mul_f32 v{B2}, {f2u(-LOG2E):#x}, v{B_}")
        Y = XF
        D = WF
        for hh in range(4):
            a = ACC + 8*hh; y = Y + (hh % 2)*8
            for i in range(4): g.e(f"v_pk_fma_f32 {vr(y+2*i,2)}, {vr(a+2*i,2)}, {vr(A2,2)}, {vr(B2,2)} op_sel_hi:[1,0,0]")
            for i in range(8): g.e(f"v_exp_f32 v{y+i}, v{y+i}")
            for i in range(4): g.e(f"v_pk_fma_f32 {vr(a+2*i,2)}, {vr(a+2*i,2)}, {vr(A_,2)}, {vr(B_,2)} op_sel_hi:[1,0,0]")
            for i in range(4): g.e(f"v_pk_add_f32 {vr(y+2*i,2)}, {vr(y+2*i,2)}, 1.0 op_sel_hi:[1,0]")
            for i in range(8): g.e(f"v_rcp_f32 v{y+i}, v{y+i}")
            g.e("s_nop 0")
            for i in range(4): g.e(f"v_pk_mul_f32 {vr(a+2*i,2)}, {vr(a+2*i,2)}, {vr(y+2*i,2)}")
            d = D + hh*4
            for i in range(4): g.e(f"v_cvt_pk_bf16_f32 v{d+i}, v{a+2*i}, v{a+2*i+1}")
            g.e(f"buffer_store_dwordx4 {vr(d)}, v{vST}, {sr(SWS)}, 0 offen offset:{hh*1024}{stf}")
        publish(True)
    bodyG(); bodyP()

def phase2(g, name, st, o):
    NST, PRE, EVERY = o.get("NST", 3), o.get("PRE", 20), o.get("EVERY", 2)
    lf = o.get("lf", " sc1").replace(" none", "")
    SA, SWP, SX, SO, SDB = 12, 16, 20, 24, 28
    C4K, C8K, C2M, C2M4K = 33, 34, 42, 43
    sMT, sNT, sB, sT0, sT1, sR0, sBASE = 35, 36, 37, 38, 39, 97, 96
    vLane, vT, vW, vMR, vML, vO, vT2 = 1, 2, 3, 4, 5, 6, 7
    vH = [8+j for j in range(6)]
    vA, vA1 = 14, 15
    vXF = 16
    HB = 24
    HIB = HB + NST*24
    T0 = HIB + NST*16
    T2 = T0 + 24
    VEND = T2 + 24
    vF, vG, vPF = VEND, VEND+1, VEND+2
    assert VEND + 8 <= 250
    ACC, WB = 0, 64
    AEND = WB + NST*40
    g.vm = []; g.lg = []
    g.label(f"{name}_ph2")
    if st.on: st.n = 15
    st()
    g.e(f"s_and_b32 s{sT0}, s2, 7")
    g.e(f"s_lshr_b32 s{sT1}, s2, 3")
    g.e(f"s_and_b32 s{sB}, s{sT0}, 1")
    g.e(f"s_lshr_b32 s{sT0}, s{sT0}, 1")
    g.e(f"s_and_b32 s{sMT}, s{sT1}, 7")
    g.e(f"s_lshr_b32 s{sT1}, s{sT1}, 3")
    g.e(f"s_lshl_b32 s{sNT}, s{sT0}, 2")
    g.e(f"s_add_u32 s{sNT}, s{sNT}, s{sT1}")
    g.e(f"s_lshl_b32 s{sT0}, s{sB}, 5")
    g.e(f"s_lshl_b32 s{sT1}, s{sMT}, 2")
    g.e(f"s_add_u32 s{sR0}, s{sT0}, s{sT1}")
    srd(g, SDB, 50, 51, 16 << 20)
    NL = o.get("NL", 8); LG = NL.bit_length() - 1; MS = NL*128
    g.e(f"s_lshr_b32 s{sT0}, s{sR0}, 2")
    g.e(f"s_lshl_b32 s{sT0}, s{sT0}, 4")
    g.e(f"s_add_u32 s{sT0}, s{sT0}, s{sNT}")
    g.e(f"s_mul_i32 s{sT0}, s{sT0}, {MS}")
    g.e(f"s_add_u32 s{sT0}, s{sT0}, {WS_MB}")
    g.e(f"v_and_b32 v{vF}, {NL-1}, v{vLane}")
    g.e(f"v_lshlrev_b32 v{vF}, 7, v{vF}")
    g.e(f"v_lshrrev_b32 v{vG}, {LG}, v{vLane}")
    g.e(f"v_lshl_add_u32 v{vF}, v{vG}, 2, v{vF}")
    g.e(f"v_add_u32 v{vF}, s{sT0}, v{vF}")
    g.e(f"s_movk_i32 s{C4K}, 0x1000")
    g.e(f"s_movk_i32 s{C8K}, 0x2000")
    g.e(f"s_mov_b32 s{C2M}, 0x200000")
    g.e(f"s_mov_b32 s{C2M4K}, 0x201000")
    g.e(f"s_lshl_b32 s{sBASE}, s{sR0}, 15")
    g.e(f"s_lshl_b32 s{sT0}, s{sW}, 13")
    g.e(f"s_add_u32 s{sBASE}, s{sBASE}, s{sT0}")
    g.e(f"v_lshlrev_b32 v{vT}, 4, v{vLane}")
    for j in range(1, 5):
        g.e(f"s_add_u32 s{sT0}, s{sBASE}, {(j-1)*32768}")
        g.e(f"v_add_u32 v{vH[j]}, s{sT0}, v{vT}")
    g.e(f"s_sub_u32 s{sT0}, s{sBASE}, 32768")
    g.e(f"s_cmp_eq_u32 s{sMT}, 0")
    g.e(f"s_cselect_b32 s{sT0}, 0x40000000, s{sT0}")
    g.e(f"v_add_u32 v{vH[0]}, s{sT0}, v{vT}")
    g.e(f"s_add_u32 s{sT0}, s{sBASE}, {4*32768}")
    g.e(f"s_cmp_eq_u32 s{sMT}, 7")
    g.e(f"s_cselect_b32 s{sT0}, 0x40000000, s{sT0}")
    g.e(f"v_add_u32 v{vH[5]}, s{sT0}, v{vT}")
    g.e(f"s_lshl_b32 s{sT0}, s{sNT}, 5")
    g.e(f"s_lshl_b32 s{sT1}, s{sW}, 3")
    g.e(f"s_add_u32 s{sT0}, s{sT0}, s{sT1}")
    g.e(f"s_mul_i32 s92, s{sT0}, 10240")
    g.e(f"v_add_u32 v{vW}, s92, v{vT}")
    srd(g, SA, 50, 51, 4 << 20)
    srd(g, SWP, 50, 51, WP_BYTES, add=WS_WP)
    srd(g, SX, 40, 41, 2 << 20)
    srd(g, SO, 46, 47, 2 << 20)
    g.e(f"s_add_u32 s{sT0}, s{sR0}, s{sW}")
    g.e(f"s_lshl_b32 s{sT0}, s{sT0}, 15")
    g.e(f"s_lshl_b32 s{sT1}, s{sNT}, 6")
    g.e(f"s_add_u32 s{sT0}, s{sT0}, s{sT1}")
    g.e(f"v_lshrrev_b32 v{vO}, 2, v{vLane}")
    g.e(f"v_lshlrev_b32 v{vO}, 10, v{vO}")
    g.e(f"v_and_b32 v{vT2}, 3, v{vLane}")
    g.e(f"v_lshlrev_b32 v{vT2}, 4, v{vT2}")
    g.e(f"v_add3_u32 v{vO}, v{vO}, v{vT2}, s{sT0}")
    g.e(f"s_movk_i32 s{sT1}, 0x4000")
    xfl = " nt" if o.get("nt", 0) else ""
    g.e(f"buffer_load_dwordx4 {vr(vXF)}, v{vO}, {sr(SX)}, 0 offen{xfl}")
    g.e(f"buffer_load_dwordx4 {vr(vXF+4)}, v{vO}, {sr(SX)}, s{sT1} offen{xfl}")
    g.e(f"v_and_b32 v{vT}, 31, v{vLane}")
    g.e(f"v_cmp_ne_u32 vcc, 0, v{vT}")
    g.e("s_nop 1")
    g.e(f"v_cndmask_b32 v{vMR}, 0, -1, vcc")
    g.e(f"v_cmp_ne_u32 vcc, 31, v{vT}")
    g.e("s_nop 1")
    g.e(f"v_cndmask_b32 v{vML}, 0, -1, vcc")
    g.e(f"v_lshlrev_b32 v{vA}, 4, v{vLane}")
    g.e(f"s_mul_i32 s{sT0}, s{sW}, 4352")
    g.e(f"v_add_u32 v{vA}, s{sT0}, v{vA}")
    g.e(f"v_and_b32 v{vA1}, 3, v{vLane}")
    g.e(f"v_mul_u32_u24 v{vA1}, 1088, v{vA1}")
    g.e(f"v_lshrrev_b32 v{vT}, 2, v{vLane}")
    g.e(f"v_lshl_add_u32 v{vA1}, v{vT}, 4, v{vA1}")
    g.e(f"s_mul_i32 s{sT0}, s{sW}, 17408")
    g.e(f"v_add_u32 v{vA1}, s{sT0}, v{vA1}")
    g.e("s_mov_b32 s90, 0xffff0000")
    g.e("s_mov_b32 s91, 0xffff")
    g.e(f"s_movk_i32 s{sT0}, 0x1111")
    g.e(f"s_cmp_eq_u32 s{sMT}, 0")
    g.e(f"s_cselect_b32 s{sT0}, 0x1110, s{sT0}")
    g.e(f"s_cmp_eq_u32 s{sMT}, 7")
    g.e(f"s_cselect_b32 s{sT0}, 0x0111, s{sT0}")
    g.e(f"s_lshl_b32 s94, s{sT0}, s{sW}")
    g.e("s_mov_b32 s95, 0")
    def poll(tag, mask, first_issued):
        g.e(f"s_mov_b32 s{sT0}, 0")
        if first_issued: g.e(f"s_branch {name}_fchk{tag}")
        g.label(f"{name}_fpoll{tag}")
        if o.get("fs", 0): g.e(f"s_sleep {o['fs']}")
        g.e(f"buffer_load_dword v{vG}, v{vF}, {sr(SDB)}, 0 offen sc1")
        g.label(f"{name}_fchk{tag}")
        g.e(f"s_add_u32 s{sT0}, s{sT0}, 1")
        g.e(f"s_cmp_gt_u32 s{sT0}, 200000")
        g.e(f"s_cbranch_scc1 {name}_fw{tag}")
        g.e("s_waitcnt vmcnt(0)")
        g.e(f"v_cmp_ne_u32 vcc, s3, v{vG}")
        g.e("s_nop 4")
        g.e(f"s_and_b64 vcc, vcc, {mask}")
        g.e(f"s_cbranch_scc1 {name}_fpoll{tag}")
        g.label(f"{name}_fw{tag}")

    SPF = o.get("spf", 0)
    if SPF:
        g.e(f"s_mul_i32 s{sT0}, s{sMT}, 1280")
        g.e(f"s_add_u32 s{sT0}, s{sT0}, s92")
        g.e(f"s_add_u32 s{sT0}, s{sT0}, {WS_WP}")
        g.e(f"s_add_u32 s4, s50, s{sT0}")
        g.e(f"s_addc_u32 s5, s51, 0")
        g.e(f"s_and_b32 s{sT0}, s{sNT}, 3")
        g.e(f"s_lshl_b32 s{sT0}, s{sT0}, 8")
        g.e(f"s_add_u32 s{sT0}, s{sT0}, s{sBASE}")
        g.e(f"s_add_u32 s6, s50, s{sT0}")
        g.e(f"s_addc_u32 s7, s51, 0")
        g.e(f"s_add_u32 s8, s6, 0x200000")
        g.e(f"s_addc_u32 s9, s7, 0")
    def spf_list(k):
        if not SPF or k > 7: return []
        L = [f"s_load_dword s10, s[4:5], {k*10240 + i*128:#x}" for i in range(10)]
        if o.get("spfh", 1):
            for r in range(4):
                for i in range(2):
                    L.append(f"s_load_dword s10, s[6:7], {r*32768 + k*1024 + i*128:#x}")
                    L.append(f"s_load_dword s10, s[8:9], {r*32768 + k*1024 + i*128:#x}")
        return L
    def Hreg(s_, j): return HB + s_*24 + j*4
    def HIreg(s_, r): return HIB + s_*16 + r*4
    def Wreg(s_, t): return WB + s_*40 + t*4
    def ldW(k, t):
        s_ = k % NST
        off = (k*10 + t)*1024
        return ("W", k, t, s_, off)
    def emitW(k, t):
        s_ = k % NST
        off = (k*10 + t)*1024
        g.e(f"s_mov_b32 s{sT0}, {off & ~4095}")
        g.vmem(f"buffer_load_dwordx4 {ar(Wreg(s_,t))}, v{vW}, {sr(SWP)}, s{sT0} offen offset:{off & 4095}{lf}", ("W", k, t))
    def emitH(k, j):
        s_ = k % NST
        so_h = "0" if k < 4 else f"s{C4K}"
        g.vmem(f"buffer_load_dwordx4 {vr(Hreg(s_,j))}, v{vH[j]}, {sr(SA)}, {so_h} offen offset:{(k%4)*1024}{lf}", ("H", k, j))
    def emitHI(k, r):
        s_ = k % NST
        so = f"s{C2M}" if k < 4 else f"s{C2M4K}"
        g.vmem(f"buffer_load_dwordx4 {vr(HIreg(s_,r))}, v{vH[r+1]}, {sr(SA)}, {so} offen offset:{(k%4)*1024}{lf}", ("HI", k, r))
    def order(k):
        return [("W",1),("H",0),("H",1),("H",2),("H",3),("W",4),("H",4),("W",7),("H",5),("W",9),
                ("HI",0),("HI",1),("HI",2),("HI",3),("W",0),("W",3),("W",6),("W",2),("W",5),("W",8)]
    queue = [(k, t, i) for k in range(8) for (t, i) in order(k)]
    def emit_item(it):
        k, t, i = it
        {"W": emitW, "H": emitH, "HI": emitHI}[t](k, i)
    WPRE = o.get("WPRE", 2)
    split = 0
    if split:
        poll("P", "s[90:91]", False)
        st(); dt(g, 9)
        pre = [it for it in queue if it[1] == "W" and it[0] < WPRE]
        for it in pre:
            queue.remove(it); emit_item(it)
        if o.get("pfw", 0):
            g.e(f"s_mul_i32 s{sT0}, s{sMT}, 10240")
            g.e(f"s_add_u32 s{sT0}, s{sT0}, s92")
            g.e(f"v_lshlrev_b32 v{vPF}, 7, v{vLane}")
            g.e(f"buffer_load_dword v{vPF+1}, v{vPF}, {sr(SWP)}, s{sT0} offen{lf}")
            g.e(f"s_add_u32 s{sT0}, s{sT0}, 2048")
            g.e(f"buffer_load_dword v{vPF+2}, v{vPF}, {sr(SWP)}, s{sT0} offen{lf}")
        g.e(f"v_cmp_ne_u32 vcc, s3, v{vG}")
        g.e("s_nop 4")
        g.e("s_and_b64 vcc, vcc, s[94:95]")
        g.e(f"s_cbranch_scc0 {name}_fwG")
        poll("G", "s[94:95]", False)
    else:
        if o.get("w0", 1):
            g.e(f"s_mov_b32 s{sT0}, 0xffff")
            g.e(f"s_cmp_eq_u32 s{sMT}, 0")
            g.e(f"s_cselect_b32 s{sT0}, 0xfff0, s{sT0}")
            g.e(f"s_cmp_eq_u32 s{sMT}, 7")
            g.e(f"s_cselect_b32 s94, 0x0fff, s{sT0}")
            g.e("s_or_b64 s[90:91], s[90:91], s[94:95]")
            g.e(f"s_cmp_lg_u32 s{sW}, 0")
            g.e(f"s_cbranch_scc1 {name}_fwP")
            poll("P", "s[90:91]", False)
            g.e("s_waitcnt vmcnt(0)")
            g.e("s_barrier")
        else:
            g.e("s_or_b64 s[90:91], s[90:91], s[94:95]")
            poll("P", "s[90:91]", False)
        st(); dt(g, 9)
    if st.on:
        g.e(f"s_memrealtime s[{52+2*st.n}:{53+2*st.n}]"); st.n += 1
    def issue_next(cur_k):
        if not queue: return False
        it = queue[0]
        if it[0] - NST >= cur_k or len(g.vm) >= 60: return False
        queue.pop(0); emit_item(it); return True
    def need(tok, k):
        while any((it[1], it[0], it[2]) == tok for it in queue): assert issue_next(k)
    for _ in range(PRE): issue_next(0)
    if o.get("pfh", 0):
        g.e(f"s_and_b32 s{sT0}, s{sNT}, 3")
        g.e(f"s_lshl_b32 s{sT0}, s{sT0}, 11")
        g.e(f"s_add_u32 s{sT0}, s{sT0}, s{sBASE}")
        g.e(f"v_lshrrev_b32 v{vPF}, 4, v{vLane}")
        g.e(f"v_lshlrev_b32 v{vPF}, 15, v{vPF}")
        g.e(f"v_and_b32 v{vPF+1}, 15, v{vLane}")
        g.e(f"v_lshl_add_u32 v{vPF}, v{vPF+1}, 7, v{vPF}")
        g.vmem(f"buffer_load_dword v{vPF+1}, v{vPF}, {sr(SA)}, s{sT0} offen{lf}")
        g.e(f"s_add_u32 s{sT0}, s{sT0}, 0x200000")
        g.vmem(f"buffer_load_dword v{vPF+2}, v{vPF}, {sr(SA)}, s{sT0} offen{lf}")
    wr_pending = []
    for k in range(8):
        s_ = k % NST
        last = k == 7
        g.c(f"---- k-step {k}")
        if k == 1: st()
        if o.get("ste") and k >= 2: g.e(f"s_memtime s[{60+2*(k-2)}:{61+2*(k-2)}]")
        dpp = [(T0, vMR, "wave_shr:1", j, i) for j in range(6) for i in range(4)]
        dpp2 = [(T2, vML, "wave_shl:1", j, i) for j in range(6) for i in range(4)]
        mf = []
        for di in range(3):
            for r in range(4): mf.append((r, di*3+1, ("H", k, r+di), Hreg(s_, r+di), "A"))
        for r in range(4): mf.append((r, 9, ("HI", k, r), HIreg(s_, r), "B"))
        if not last:
            for di in range(3):
                for r in range(4): mf.append((r, di*3, None, T0 + (r+di)*4, "C"))
            for di in range(3):
                for r in range(4): mf.append((r, di*3+2, None, T2 + (r+di)*4, "D"))
        else:
            dpp = [x for pair in zip(dpp, dpp2) for x in pair]; dpp2 = []
            for r in range(4):
                for di in range(3): mf.append((r, di*3, None, T0 + (r+di)*4, "E"))
                for di in range(3): mf.append((r, di*3+2, None, T2 + (r+di)*4, "E" if di < 2 else "F"))
        since = 0
        spl = spf_list(k + SPF) if k > 0 else [x for kk in range(2, SPF+1) for x in spf_list(kk)]
        for n, (r, t, ht, hreg, grp) in enumerate(mf):
            toks = [("W", k, t)] + ([ht] if ht else [])
            for tok in toks: need(tok, k)
            g.wait_vm(toks)
            c = "0" if (k == 0 and n < 4) else ar(ACC+16*r, 16)
            if o.get("fake16"):
                for u_ in range(2):
                    q_ = ACC + 16*r + 4*((2*n + u_) % 4)
                    g.e(f"v_mfma_f32_16x16x32_bf16 {ar(q_)}, {ar(Wreg(s_,t))}, {vr(hreg)}, {'0' if k == 0 and n < 8 else ar(q_)}")
            else:
                g.e(f"v_mfma_f32_32x32x16_bf16 {ar(ACC+16*r,16)}, {ar(Wreg(s_,t))}, {vr(hreg)}, {c}")
            if grp in "AB" and n >= 2:
                for _ in range(4 if last else 2):
                    if dpp:
                        T, vm_, sh, j, i = dpp.pop(0)
                        need(("H", k, j), k); g.wait_vm([("H", k, j)])
                        g.e(f"v_and_b32_dpp v{T+j*4+i}, v{Hreg(s_,j)+i}, v{vm_} {sh} row_mask:0xf bank_mask:0xf bound_ctrl:0")
            if grp == "C":
                for _ in range(3):
                    if dpp2:
                        T, vm_, sh, j, i = dpp2.pop(0)
                        g.e(f"v_and_b32_dpp v{T+j*4+i}, v{Hreg(s_,j)+i}, v{vm_} {sh} row_mask:0xf bank_mask:0xf bound_ctrl:0")
            if o.get("RN"):
                if (n * o["RN"]) % o["RD"] < o["RN"]: issue_next(k)
            elif n % EVERY == EVERY - 1: issue_next(k)
            for _ in range(2 if k == 0 else 1):
                if spl: g.e(spl.pop(0))
            if wr_pending:
                since += 1
                if since == 2: g.e("s_nop 9")
                if since >= 2:
                    g.e(wr_pending.pop(0))
            if grp == "F":
                assert not wr_pending
                wr_pending = [f"ds_write_b128 v{vA}, {ar(ACC+16*r+4*q)} offset:{r*17408 + q*1088}" for q in range(4)]
                since = 0
        assert not dpp and not dpp2
    assert not queue
    g.c("---- epilogue")
    st(); dt(g, 11)
    g.e("s_nop 11")
    for w_ in wr_pending: g.e(w_)
    g.e("s_waitcnt lgkmcnt(0)")
    if o.get("ste"): g.e("s_memtime s[54:55]")
    g.e("s_barrier")
    if o.get("ste"): g.e("s_memtime s[56:57]")
    R = HB
    for i in range(2):
        for src in range(4):
            for hf in range(2):
                g.lds(f"ds_read_b128 {vr(R + ((i*4+src)*2+hf)*4)}, v{vA1} offset:{src*4352 + hf*512 + i*256}", ("R", i, src))
    XU = R + 64
    for i in range(2):
        for e_ in range(4):
            x = vXF + 4*i + e_
            g.e(f"v_lshlrev_b32 v{XU+8*i+2*e_}, 16, v{x}")
            g.e(f"v_and_b32 v{XU+8*i+2*e_+1}, 0xffff0000, v{x}")
    for i in range(2):
        base = R + i*32
        for src in range(4):
            g.wait_lg([("R", i, src)])
            for e_ in range(4):
                g.e(f"v_pk_add_f32 {vr(XU+8*i+2*e_,2)}, {vr(XU+8*i+2*e_,2)}, {vr(base+8*src+2*e_,2)}")
        for e_ in range(4): g.e(f"v_cvt_pk_bf16_f32 v{vXF+4*i+e_}, v{XU+8*i+2*e_}, v{XU+8*i+2*e_+1}")
        g.vmem(f"buffer_store_dwordx4 {vr(vXF+4*i)}, v{vO}, {sr(SO)}, {'0' if i==0 else 's%d'%sT1} offen{o.get('ostf',' sc1')}")
    if o.get("ste"): g.e("s_memtime s[58:59]")
    if o.get("enc"):
        i = o["enc"]
        g.e("s_waitcnt vmcnt(0)")
        g.e("s_memrealtime s[76:77]")
        g.e(f"s_cmp_lg_u32 s2, {o.get('encwg', 8)}")
        g.e("s_cbranch_scc1 enc_done")
        g.e(f"s_cmp_lg_u32 s{sW}, 0")
        g.e("s_cbranch_scc1 enc_done")
        g.e("s_waitcnt lgkmcnt(0)")
        g.e(f"s_sub_u32 s84, s{52+2*i}, s52")
        g.e("s_mul_i32 s84, s84, 20")
        g.label("enc_loop")
        g.e("s_memrealtime s[86:87]")
        g.e("s_waitcnt lgkmcnt(0)")
        g.e("s_sub_u32 s85, s86, s76")
        g.e("s_cmp_lt_u32 s85, s84")
        g.e("s_cbranch_scc1 enc_loop")
        g.label("enc_done")
    else:
        dt_finish(g)
    st.finish(st.n + 1)
    return AEND

def gen_all(out, o):
    DT[0] = bool(o.get("dt", 0)); CPF[0] = o.get("cpf", 2)
    name = "fused_kernel"
    g = Gen(); st = Stamper(g, o.get("st", 0))
    entry(g, name, st)
    phase1(g, name, st, o)
    aend = phase2(g, name, st, o)
    g.label(f"{name}_end"); g.e("s_endpgm")
    build([(name, g.text(), kd(name, 256 + max(aend, 128), 256, 100), 256, 256, 160*1024)], out)

if __name__ == "__main__":
    o = {}
    for a in sys.argv[2:]:
        k, v = a.split("=")
        o[k] = int(v) if v.lstrip("-").isdigit() else " " + v.replace("+", " ")
    gen_all(sys.argv[1], o)
```

```python
import sys, struct
from gen import Gen, vr, ar, sr, srd, kd, build, WS_H, WS_HI, WS_WP, WS_ST, WP_BYTES
import gen4
from gen4 import Stamper, f2u, LOG2E, sW, WS_MB, dt, dt_finish, DT, CPF, entry

def phase1(g, name, st, o):
    stf = o.get("stf", " sc1")
    ldf = " nt" if o.get("nt", 0) else ""
    ldw = " nt" if o.get("ntw", 0) else ""
    SX, SWT, SWS, SXI, SDB = 12, 16, 20, 24, 28
    sCT, sU, sT0, sT1, sT2, sXROW, sM0X = 33, 34, 35, 36, 37, 38, 39
    sSOX, sSOW, sNONCE = 42, 43, 3
    sODD, sKC = 94, 95
    vLane, vT, vT2, vXD, vWD, vWA, vPX, vHF, vL16 = 1, 2, 3, 4, 5, 6, 7, 8, 9
    vXA = [10, 11, 12, 13]; vXAs = [14, 15, 16, 17]
    vWAs, vST, vWR, vNC, vZ, vWAs2 = 18, 19, 20, 21, 22, 23
    XF, WF, ACC, TMP = 24, 64, 80, 160
    g.e(f"s_and_b32 s{sT0}, s2, 7")
    g.e(f"s_lshr_b32 s{sT1}, s2, 3")
    g.e(f"s_and_b32 s{sCT}, s{sT1}, 3")
    g.e(f"s_lshr_b32 s{sT1}, s{sT1}, 2")
    if o.get("mix", 1):
        g.e(f"s_lshl_b32 s{sU}, s{sT0}, 2")
        g.e(f"s_lshr_b32 s{sT2}, s{sT1}, 1")
        g.e(f"s_add_u32 s{sU}, s{sU}, s{sT2}")
        g.e(f"s_and_b32 s{sT0}, s{sT1}, 1")
        g.e(f"s_lshl_b32 s{sT0}, s{sT0}, 2")
    else:
        g.e(f"s_and_b32 s{sU}, s{sT0}, 3")
        g.e(f"s_lshl_b32 s{sU}, s{sU}, 3")
        g.e(f"s_add_u32 s{sU}, s{sU}, s{sT1}")
    g.e(f"v_lshrrev_b32 v{vT}, 3, v{vLane}")
    g.e(f"s_lshl_b32 s{sT2}, s{sW}, 3")
    g.e(f"v_add_u32 v{vXD}, s{sT2}, v{vT}")
    g.e(f"v_lshrrev_b32 v{vT}, 1, v{vXD}")
    g.e(f"v_and_b32 v{vT}, 7, v{vT}")
    g.e(f"v_and_b32 v{vT2}, 7, v{vLane}")
    g.e(f"v_xor_b32 v{vT}, v{vT}, v{vT2}")
    g.e(f"v_lshlrev_b32 v{vT}, 4, v{vT}")
    g.e(f"v_lshl_add_u32 v{vXD}, v{vXD}, 10, v{vT}")
    g.e(f"v_lshrrev_b32 v{vT}, 4, v{vLane}")
    g.e(f"v_lshlrev_b32 v{vT2}, 2, v{vT}")
    g.e(f"v_and_b32 v{vWD}, 15, v{vLane}")
    g.e(f"v_xor_b32 v{vWD}, v{vWD}, v{vT2}")
    g.e(f"v_lshlrev_b32 v{vWD}, 4, v{vWD}")
    g.e(f"s_lshl_b32 s{sT2}, s{sW}, 2")
    g.e(f"v_add_u32 v{vT}, s{sT2}, v{vT}")
    g.e(f"v_lshl_add_u32 v{vWD}, v{vT}, 10, v{vWD}")
    g.e(f"s_lshl_b32 s{sT2}, s{sCT}, 8")
    g.e(f"v_add_u32 v{vWD}, s{sT2}, v{vWD}")
    g.e(f"s_lshl_b32 s{sM0X}, s{sW}, 10")
    g.e(f"v_mov_b32 v{vZ}, 0")
    g.e(f"s_cmp_ge_u32 s{sT0}, 4")
    g.e(f"s_cbranch_scc1 {name}_P")
    st_n0 = st.n

    def nonce_wait(role):
        g.wait_vm([("NC",)])
        g.e(f"s_mov_b32 s{sT2}, 0")
        g.label(f"{name}_ncpoll{role}")
        g.e(f"v_readfirstlane_b32 s{sNONCE}, v{vNC}")
        g.e(f"s_add_u32 s{sT2}, s{sT2}, 1")
        g.e(f"s_cmp_gt_u32 s{sT2}, 100000")
        g.e(f"s_cbranch_scc1 {name}_ncok{role}")
        g.e(f"s_cmp_lg_u32 s{sNONCE}, 0")
        g.e(f"s_cbranch_scc1 {name}_ncok{role}")
        g.e(f"buffer_load_dword v{vNC}, v{vZ}, {sr(SDB)}, 0 offen sc1")
        g.e("s_waitcnt vmcnt(0)")
        g.e(f"s_branch {name}_ncpoll{role}")
        g.label(f"{name}_ncok{role}")

    def pretouch():
        if not o.get("tlb", 0): return
        lab = f"{name}_pt{len(g.lines)}"
        g.e(f"s_cmp_lg_u32 s{sW}, 3")
        g.e(f"s_cbranch_scc1 {lab}")
        srd(g, 84, 50, 51, 12 << 20)
        g.e(f"v_lshlrev_b32 v{vT}, 18, v{vLane}")
        g.e(f"buffer_load_dword v252, v{vT}, s[84:87], 0 offen")
        srd(g, 84, 46, 47, 2 << 20)
        g.e(f"v_lshlrev_b32 v{vT}, 16, v{vLane}")
        g.e(f"buffer_load_dword v253, v{vT}, s[84:87], 0 offen")
        srd(g, 84, 40, 41, 2 << 20)
        g.e(f"buffer_load_dword v254, v{vT}, s[84:87], 0 offen")
        g.e(f"buffer_load_dword v251, v{vZ}, {sr(SDB)}, 0 offen sc1")
        g.label(lab)

    def l2pf(G):
        pf = o.get("pf", 0)
        if not (pf & (1 if G else 2)): return
        if G:
            g.e(f"v_lshrrev_b32 v{vT}, 2, v{vLane}")
            g.e(f"v_and_b32 v{vT2}, 3, v{vLane}")
            g.e(f"v_lshlrev_b32 v{vT2}, 6, v{vT2}")
            g.e(f"v_lshl_add_u32 v{vT}, v{vT}, 10, v{vT2}")
            g.e(f"s_lshl_b32 s{sT2}, s{sW}, 14")
            g.e(f"s_add_u32 s{sT2}, s{sT2}, s{sXROW}")
        else:
            g.e(f"v_lshrrev_b32 v{vT}, 1, v{vLane}")
            g.e(f"v_and_b32 v{vT2}, 1, v{vLane}")
            g.e(f"v_lshlrev_b32 v{vT2}, 7, v{vT2}")
            g.e(f"v_lshl_add_u32 v{vT}, v{vT}, 10, v{vT2}")
            g.e(f"s_mul_i32 s{sT2}, s{sW}, {40*1024}")
            g.e(f"s_add_u32 s{sT2}, s{sT2}, s93")
        g.e(f"s_lshl_b32 s{sT0}, s{sCT}, 8")
        g.e(f"s_add_u32 s{sT2}, s{sT2}, s{sT0}")
        g.vmem(f"buffer_load_dword v250, v{vT}, {sr(SX)}, s{sT2} offen")
        if not G:
            g.e(f"s_add_u32 s{sT2}, s{sT2}, 0x8000")
            g.vmem(f"buffer_load_dword v251, v{vT}, {sr(SX)}, s{sT2} offen")
        if pf & 4:
            g.e(f"s_and_b32 s{sT0}, s{sU}, 3")
            g.e(f"s_lshl_b32 s{sT0}, s{sT0}, 2")
            g.e(f"s_add_u32 s{sT0}, s{sT0}, s{sCT}")
            g.e(f"s_lshl_b32 s{sT0}, s{sT0}, 2")
            g.e(f"s_add_u32 s{sT0}, s{sT0}, s{sW}")
            g.e(f"s_lshl_b32 s{sT0}, s{sT0}, 13")
            g.e(f"v_lshlrev_b32 v{vT}, 7, v{vLane}")
            g.vmem(f"buffer_load_dword v252, v{vT}, {sr(SWT)}, s{sT0} offen")

    def frag_consts(G):
        pretouch()
        l2pf(G)
        g.e(f"v_and_b32 v{vPX}, 31, v{vLane}")
        g.e(f"v_lshrrev_b32 v{vHF}, 5, v{vLane}")
        g.e(f"v_lshlrev_b32 v{vL16}, 4, v{vLane}")
        g.e(f"v_lshrrev_b32 v{vT}, 1, v{vPX}")
        g.e(f"v_and_b32 v{vT}, 7, v{vT}")
        g.e(f"v_xor_b32 v{vT}, v{vT}, v{vHF}")
        g.e(f"v_lshlrev_b32 v{vT}, 4, v{vT}")
        g.e(f"v_lshl_add_u32 v{vXA[0]}, v{vPX}, 7, v{vT}")
        if G:
            g.e(f"s_lshr_b32 s{sT2}, s{sW}, 1")
            g.e(f"s_lshl_b32 s{sT2}, s{sT2}, 12")
            g.e(f"v_add_u32 v{vXA[0]}, s{sT2}, v{vXA[0]}")
        for s in range(1, 4):
            g.e(f"v_xor_b32 v{vXA[s]}, {s*32}, v{vXA[0]}")
        g.e(f"v_bfe_u32 v{vT}, v{vLane}, 2, 2")
        g.e(f"v_lshl_add_u32 v{vT2}, v{vHF}, 3, v{vT}")
        g.e(f"v_lshlrev_b32 v{vWA}, 8, v{vT2}")
        if G:
            g.e(f"s_and_b32 s{sT2}, s{sW}, 1")
            g.e(f"s_lshl_b32 s{sT2}, s{sT2}, 1")
            g.e(f"v_xor_b32 v{vT}, s{sT2}, v{vT}")
        else:
            g.e(f"v_xor_b32 v{vT}, s{sW}, v{vT}")
        g.e(f"v_lshl_add_u32 v{vWA}, v{vT}, 6, v{vWA}")
        g.e(f"v_bfe_u32 v{vT}, v{vLane}, 4, 1")
        g.e(f"v_lshl_add_u32 v{vWA}, v{vT}, 5, v{vWA}")
        g.e(f"v_and_b32 v{vT}, 3, v{vLane}")
        g.e(f"v_lshl_add_u32 v{vWA}, v{vT}, 3, v{vWA}")

    def publish(G):
        while st.on and st.n < 13: st()
        NL = o.get("NL", 8); LG = NL.bit_length() - 1; MS = NL*128
        def slot_off(dst, src):
            g.e(f"s_and_b32 s92, s{src}, {NL-1}")
            g.e(f"s_lshl_b32 s92, s92, 7")
            g.e(f"s_lshr_b32 s{dst}, s{src}, {LG}")
            g.e(f"s_lshl_b32 s{dst}, s{dst}, 2")
            g.e(f"s_add_u32 s{dst}, s{dst}, s92")
        if G:
            g.e(f"s_lshr_b32 s{sT0}, s{sU}, 1")
            g.e(f"s_and_b32 s{sT1}, s{sU}, 1")
            g.e(f"s_lshl_b32 s{sT2}, s{sT1}, 1")
            g.e(f"s_add_u32 s{sT2}, s{sT2}, s{sT0}")
            g.e(f"s_sub_u32 s{sT2}, s{sT2}, 1")
            g.e(f"s_add_u32 s{sSOX}, s{sT1}, 1")
            g.e(f"s_lshl_b32 s{sSOX}, s{sSOX}, 2")
            g.e(f"s_add_u32 s{sSOX}, s{sSOX}, s{sCT}")
            slot_off(sSOX, sSOX)
            g.e(f"s_mul_i32 s93, s{sT0}, {16*MS}")
            g.e(f"s_add_u32 s{sSOX}, s{sSOX}, s93")
            g.e(f"s_cmp_eq_u32 s{sT1}, 0")
            g.e(f"s_cselect_b32 s{sSOW}, 12, 0")
            g.e(f"s_add_u32 s{sSOW}, s{sSOW}, s{sCT}")
            slot_off(sSOW, sSOW)
            g.e(f"s_mul_i32 s93, s{sT2}, {16*MS}")
            g.e(f"s_add_u32 s{sSOW}, s{sSOW}, s93")
            g.e(f"s_lshr_b32 s{sT2}, s{sT2}, 3")
            g.e(f"s_lshr_b32 s{sT0}, s{sT0}, 3")
            g.e(f"s_cmp_eq_u32 s{sT2}, s{sT0}")
            g.e(f"s_cselect_b32 s92, -1, 0xffff")
            g.e(f"s_mov_b32 s93, 0")
            g.e(f"v_and_b32 v{vT}, 15, v{vLane}")
            g.e(f"v_mul_u32_u24 v{vT}, {MS}, v{vT}")
            g.e(f"v_mov_b32 v{vT2}, s{sSOW}")
            g.e(f"v_mov_b32 v{vPX}, s{sSOX}")
            g.e(f"v_cmp_gt_u32 vcc, 16, v{vLane}")
            g.e("s_nop 1")
            g.e(f"v_cndmask_b32 v{vT2}, v{vT2}, v{vPX}, vcc")
            g.e(f"v_add_u32 v{vT}, v{vT}, v{vT2}")
            g.e(f"s_mov_b32 s{sT0}, {WS_MB}")
        else:
            g.e(f"v_lshrrev_b32 v{vT}, 2, v{vLane}")
            g.e(f"v_lshlrev_b32 v{vT}, 4, v{vT}")
            g.e(f"v_and_b32 v{vT2}, 3, v{vLane}")
            g.e(f"v_add_u32 v{vT}, v{vT}, v{vT2}")
            g.e(f"v_mul_u32_u24 v{vT}, {MS}, v{vT}")
            g.e(f"s_add_u32 s{sT1}, s{sU}, 16")
            slot_off(sT1, sT1)
            g.e(f"s_mul_i32 s{sT0}, s{sCT}, {4*MS}")
            g.e(f"s_add_u32 s{sT0}, s{sT0}, s{sT1}")
            g.e(f"s_add_u32 s{sT0}, s{sT0}, {WS_MB}")
            g.e(f"s_mov_b64 s[92:93], -1")
        dt(g, 5 if G else 6)
        if st.on: g.e("s_memrealtime s[78:79]")
        g.e("s_waitcnt vmcnt(0)")
        g.e("s_barrier")
        if st.on: g.e("s_memrealtime s[80:81]")
        dt(g, 7 if G else 8)
        g.e(f"s_cmp_lg_u32 s{sW}, 0")
        g.e(f"s_cbranch_scc1 {name}_ph2")
        g.e(f"s_mov_b64 exec, s[92:93]")
        g.e(f"buffer_store_dword v{vNC}, v{vT}, {sr(SWS)}, s{sT0} offen sc1")
        g.e("s_mov_b64 exec, -1")
        g.e(f"s_branch {name}_ph2")

    def bodyP():
        g.vm = []; g.lg = []
        st.n = st_n0
        g.label(f"{name}_P")
        NA = 3
        S = o.get("SP", 3)
        STG = 16384 + NA*4096
        XB3, XB4 = S*STG, (S*STG + 32768 if S == 3 else 0)
        PRE = o.get("PREP", 2)
        g.e(f"s_and_b32 s{sODD}, s{sU}, 1")
        g.e(f"s_lshr_b32 s{sT1}, s{sU}, 1")
        g.e(f"s_mul_i32 s{sXROW}, s{sT1}, 288")
        g.e(f"s_mul_i32 s{sT2}, s{sODD}, 160")
        g.e(f"s_add_u32 s{sXROW}, s{sXROW}, s{sT2}")
        g.e(f"s_lshr_b32 s{sKC}, s{sT1}, 1")
        g.e(f"s_lshl_b32 s{sKC}, s{sKC}, 16")
        g.e(f"s_lshl_b32 s93, s{sXROW}, 10")
        g.e(f"s_lshr_b32 s92, s{sKC}, 9")
        g.e("s_waitcnt lgkmcnt(0)")
        if o.get("wsoff", 0):
            g.e(f"s_add_u32 s50, s50, {o['wsoff'] << 20:#x}")
            g.e("s_addc_u32 s51, s51, 0")
        st(); dt(g, 2)
        srd(g, SX, 44, 45, 4608*1024); srd(g, SWT, 10, 11, 512 << 10)
        cur = [None]
        def kofs(kc):
            if cur[0] == kc: return
            cur[0] = kc
            g.e(f"s_add_u32 s{sT2}, s92, {kc*128}")
            g.e(f"s_and_b32 s{sT2}, s{sT2}, 0x3ff")
            g.e(f"s_add_u32 s91, s{sT2}, s93")
            g.e(f"s_lshl_b32 s90, s{sT2}, 9")
        def ldW(kc, m):
            kofs(kc)
            g.e(f"s_add_u32 m0, s{sM0X}, {(kc % S)*STG + m*4096}")
            g.e(f"s_add_u32 s{sSOW}, s90, {m*16384}")
            g.vmem(f"buffer_load_dwordx4 v{vWD}, {sr(SWT)}, s{sSOW} offen{ldw} lds", ("D", kc))
        def ldX(b, kc):
            kofs(kc)
            dst = (kc % S)*STG + 16384 + b*4096 if b < NA else [XB3, XB4][b-NA] + kc*4096
            g.e(f"s_add_u32 m0, s{sM0X}, {dst}")
            g.e(f"s_add_u32 s{sSOX}, s91, {b*32768}")
            g.vmem(f"buffer_load_dwordx4 v{vXD}, {sr(SX)}, s{sSOX} offen{ldf} lds", ("D", kc) if b < NA else ("XB", b))
        ldq = []
        for kc in range(8):
            for m in range(4): ldq.append(("W", kc, m, kc - S))
            for b in range(NA): ldq.append(("X", b, kc, kc - S))
            if not o.get("late", 0) and kc >= 2:
                for b in (3, 4): ldq.append(("X", b, kc - 2, -1))
        if o.get("late", 0):
            for b in (3, 4):
                for kc in range(8): ldq.append(("X", b, kc, 5 if (b == 4 and S == 4) else -1))
        else:
            for kc in (6, 7):
                for b in (3, 4): ldq.append(("X", b, kc, -1))
        freed = [-1]
        def ldnext():
            if not ldq or len(g.vm) >= 60: return False
            t, a, b_, need = ldq[0]
            if need > freed[0]: return False
            ldq.pop(0)
            if t == "W": ldW(a, b_)
            else: ldX(a, b_)
            return True
        for _ in range(7*PRE): ldnext()
        slotc = [0]
        srd(g, SDB, 48, 49, 256)
        frag_consts(False)
        srd(g, SWS, 50, 51, 16 << 20)
        g.e(f"s_lshl_b32 s{sT0}, s{sCT}, 2")
        g.e(f"s_add_u32 s{sT0}, s{sT0}, s{sW}")
        g.e(f"s_mul_i32 s{sT0}, s{sT0}, {32*10240}")
        g.e(f"s_add_u32 s{sT0}, s{sT0}, {WS_WP}")
        g.e(f"v_add_u32 v{vST}, s{sT0}, v{vL16}")
        XRB = TMP + 40
        def read_list(kc, s):
            p = (kc*4 + s) % 2
            ks = 4*kc + s
            L = []
            for h in range(2):
                L.append((f"ds_read_b64_tr_b16 {ar(4*ks+2*h,2)}, v{vWAs} offset:{s*4096+h*1024}", 0))
            for b in range(NA):
                L.append((f"ds_read_b128 {vr(XF+p*20+b*4)}, v{vXAs[s]} offset:{b*4096}", b))
            return [(r, ("R", kc, s, b)) for r, b in L]
        def stage_addr(kc):
            sb = (kc % S) * STG
            for s in range(4): g.e(f"v_add_u32 v{vXAs[s]}, {sb + 16384}, v{vXA[s]}")
            g.e(f"v_add_u32 v{vWAs}, {sb}, v{vWA}")
        stage_addr(0)
        st()
        g.wait_vm([("D", 0)])
        g.e("s_barrier")
        st()
        for r, t in read_list(0, 0): g.lds(r, t)
        LPA = o.get("LPA", 1)
        for kc in range(8):
            for s in range(4):
                if s < 3:
                    nxt = read_list(kc, s+1)
                else:
                    nxt = []
                    if kc < 7:
                        g.wait_lg([("R", kc, 3, b) for b in range(NA)])
                        while any(t[3] == kc+1-S and t[3] >= -10 and ((t[0] == "W" and t[1] == kc+1) or (t[0] == "X" and t[1] < NA and t[2] == kc+1)) for t in ldq): assert ldnext()
                        g.wait_vm([("D", kc+1)])
                        g.e("s_barrier")
                        if kc in (1, 3, 5): st()
                        freed[0] = kc
                        stage_addr(kc+1)
                        nxt = read_list(kc+1, 0)
                p = (kc*4 + s) % 2
                ks = 4*kc + s
                for b in range(NA):
                    g.wait_lg([("R", kc, s, bb) for bb in range(b+1)])
                    ac = vr(ACC+16*b, 16)
                    g.e(f"v_mfma_f32_32x32x16_bf16 {ac}, {vr(XF+p*20+b*4)}, {ar(4*ks)}, {'0' if ks == 0 else ac}")
                    for _ in range(2):
                        if nxt:
                            r, t = nxt.pop(0); g.lds(r, t)
                    slotc[0] += 1
                    if (slotc[0] * o.get("PN", 12)) % 12 < o.get("PN", 12): ldnext()
            if kc == 4:
                g.vmem(f"buffer_load_dword v{vNC}, v{vZ}, {sr(SDB)}, 0 offen sc1", ("NC",))
        while ldq: assert ldnext()
        st()
        def store_block(b):
            a = ACC + 16*b
            L = []
            L.append(f"s_add_u32 s{sT0}, s{sXROW}, {32*b}")
            L.append(f"s_lshr_b32 s{sT1}, s{sT0}, 9")
            L.append(f"s_and_b32 s{sT0}, s{sT0}, 511")
            L.append(f"s_lshr_b32 s{sT0}, s{sT0}, 4")
            L.append(f"s_mul_i32 s{sT0}, s{sT0}, 10")
            L.append(f"s_add_u32 s{sT0}, s{sT0}, s{sT1}")
            L.append(f"s_lshl_b32 s{sT0}, s{sT0}, 10")
            L.append(f"s_add_u32 s{sT1}, s{sT0}, 10240")
            for hh in range(2):
                d = TMP + b*8 + hh*4
                for i in range(4):
                    L.append(f"v_cvt_pk_bf16_f32 v{d+i}, v{a+8*hh+2*i}, v{a+8*hh+2*i+1}")
                L.append(("ST", f"buffer_store_dwordx4 {vr(d)}, v{vST}, {sr(SWS)}, s{sT0 if hh==0 else sT1} offen{stf}"))
            return L
        def emit(x):
            if isinstance(x, tuple): g.vmem(x[1])
            else: g.e(x)
        xr = [0]; xreg = {}
        def xread(b, ks):
            r = XRB + (xr[0] % 8)*4; xr[0] += 1
            g.lds(f"ds_read_b128 {vr(r)}, v{vXAs[ks%4]} offset:{(ks//4)*4096}", ("R2", b, ks))
            return r
        g.wait_vm([("XB", 3)] if o.get("late", 0) else [("XB", 3), ("XB", 4)])
        g.e("s_barrier")
        def blockB(b, pend):
            for s in range(4): g.e(f"v_add_u32 v{vXAs[s]}, {[XB3, XB4][b-3]}, v{vXA[s]}")
            AH = 6
            for ks in range(AH): xreg[(b, ks)] = xread(b, ks)
            for ks in range(32):
                g.wait_lg([("R2", b, ks)])
                ac = vr(ACC + 16*b, 16)
                g.e(f"v_mfma_f32_32x32x16_bf16 {ac}, {vr(xreg[(b,ks)])}, {ar(4*ks)}, {'0' if ks == 0 else ac}")
                if ks + AH < 32: xreg[(b, ks+AH)] = xread(b, ks+AH)
                if ks >= 1:
                    for _ in range(2):
                        if pend: emit(pend.pop(0))
            assert not pend
        blockB(3, store_block(0) + store_block(1) + store_block(2))
        st()
        g.e(f"s_cmp_lg_u32 s{sODD}, 0")
        g.e(f"s_cbranch_scc1 {name}_P4")
        saved = (list(g.vm), list(g.lg))
        if o.get("late", 0):
            g.wait_vm([("XB", 4)])
            g.e("s_barrier")
        blockB(4, store_block(3))
        st(); dt(g, 4)
        g.e("s_nop 3")
        for x in store_block(4): emit(x)
        g.e(f"s_branch {name}_Pdone")
        g.label(f"{name}_P4")
        g.vm, g.lg = saved
        g.e(f"s_lshr_b32 s{sT0}, s{sU}, 1")
        g.e(f"s_and_b32 s{sT2}, s{sT0}, 1")
        g.e(f"s_mul_i32 s{sT0}, s{sT0}, 20480")
        g.e(f"s_add_u32 s{sT0}, s{sT0}, 9216")
        g.e(f"s_add_u32 s{sT1}, s{sT0}, 10240")
        g.e(f"s_cmp_eq_u32 s{sT2}, 0")
        g.e(f"s_cbranch_scc0 {name}_rp1")
        g.e(f"buffer_store_dwordx4 {ar(0)}, v{vST}, {sr(SWS)}, s{sT0} offen{stf}")
        g.e(f"buffer_store_dwordx4 {ar(4)}, v{vST}, {sr(SWS)}, s{sT1} offen{stf}")
        g.e(f"s_branch {name}_rp2")
        g.label(f"{name}_rp1")
        g.e(f"buffer_store_dwordx4 {ar(8)}, v{vST}, {sr(SWS)}, s{sT0} offen{stf}")
        g.e(f"buffer_store_dwordx4 {ar(12)}, v{vST}, {sr(SWS)}, s{sT1} offen{stf}")
        g.label(f"{name}_rp2")
        g.e("s_nop 3")
        for x in store_block(3): emit(x)
        g.label(f"{name}_Pdone")
        g.vm = []
        nonce_wait("P")
        publish(False)

    def bodyG():
        NX, S = 2, 6
        XB = NX * 4096
        STG = XB + 16384
        NI = NX + 4
        PRE1 = o.get("PREG", 3)
        XT = 6*STG
        g.vm = []; g.lg = []
        st.n = st_n0
        g.e(f"s_lshl_b32 s{sXROW}, s{sU}, 16")
        g.e(f"v_lshrrev_b32 v{vT}, 4, v{vLane}")
        g.e(f"s_lshl_b32 s{sT2}, s{sW}, 2")
        g.e(f"v_add_u32 v{vT}, s{sT2}, v{vT}")
        g.e(f"v_and_b32 v{vT2}, 15, v{vLane}")
        g.e(f"v_xor_b32 v{vT2}, v{vT2}, v{vT}")
        g.e(f"v_lshlrev_b32 v{vT2}, 4, v{vT2}")
        g.e(f"v_lshl_add_u32 v{vT}, v{vT}, 10, v{vT2}")
        g.e(f"s_lshl_b32 s{sT2}, s{sCT}, 8")
        g.e(f"v_add_u32 v{vWR}, s{sT2}, v{vT}")
        g.e("s_waitcnt lgkmcnt(0)")
        if o.get("wsoff", 0):
            g.e(f"s_add_u32 s50, s50, {o['wsoff'] << 20:#x}")
            g.e("s_addc_u32 s51, s51, 0")
        st(); dt(g, 2)
        srd(g, SX, 6, 7, 2 << 20); srd(g, SWT, 8, 9, 512 << 10); srd(g, SXI, 4, 5, 2 << 20)
        def ld1(kc, m):
            sb = (kc % S) * STG
            isx = m < NX
            mm = m if isx else m - NX
            g.e(f"s_add_u32 m0, s{sM0X}, {sb + m*4096}")
            if isx: g.e(f"s_add_u32 s{sSOX}, s{sXROW}, {mm*32768 + kc*128}")
            else:   g.e(f"s_mov_b32 s{sSOW}, {(kc*64 + 16*mm)*1024}")
            va, sd, so = (vXD, SX, sSOX) if isx else (vWD, SWT, sSOW)
            g.vmem(f"buffer_load_dwordx4 v{va}, {sr(sd)}, s{so} offen{ldf if isx else ldw} lds", ("D", kc))
        for m in range(NI): ld1(0, m)
        srd(g, SDB, 48, 49, 256)
        g.e(f"s_or_b32 s{sT0}, s2, s{sW}")
        g.e(f"s_cmp_lg_u32 s{sT0}, 0")
        g.e(f"s_cbranch_scc1 {name}_nn")
        g.e("s_memrealtime s[96:97]")
        g.e("s_waitcnt lgkmcnt(0)")
        g.e(f"s_or_b32 s96, s96, 1")
        g.e(f"v_mov_b32 v{vT}, s96")
        g.e(f"buffer_store_dword v{vT}, v{vZ}, {sr(SDB)}, 0 offen sc1")
        g.label(f"{name}_nn")
        for kc in range(1, PRE1):
            for m in range(NI): ld1(kc, m)
        ldq = [(kc, m) for kc in range(PRE1, 8) for m in range(NI)]
        k6 = [i for i, (kc, m) in enumerate(ldq) if kc >= 5][0]
        ldq[k6:k6] = [("X", m) for m in range(4)]
        freed = [0]
        def ldnext():
            if not ldq: return False
            kc, m = ldq[0]
            if kc == "X":
                ldq.pop(0)
                g.e(f"s_add_u32 m0, s{sM0X}, {XT + m*4096}")
                g.e(f"s_add_u32 s{sSOX}, s{sXROW}, {m*16384}")
                g.vmem(f"buffer_load_dwordx4 v{vWR}, {sr(SXI)}, s{sSOX} offen{ldf} lds", ("D", 5))
                return True
            if kc - S >= freed[0]: return False
            ldq.pop(0); ld1(kc, m); return True
        frag_consts(True)
        srd(g, SWS, 50, 51, 16 << 20)
        mk = len(g.lines)
        vXR, vGA, vGO = TMP+60, TMP+61, TMP+62
        g.e(f"s_lshr_b32 s{sT0}, s{sW}, 1")
        g.e(f"s_and_b32 s{sT1}, s{sW}, 1")
        g.e(f"s_lshl_b32 s{sT2}, s{sT0}, 13")
        g.e(f"s_add_u32 s{sT2}, s{sT2}, {XT}")
        g.e(f"v_and_b32 v{vT}, 15, v{vPX}")
        g.e(f"s_lshl_b32 s{sSOX}, s{sT1}, 3")
        g.e(f"v_xor_b32 v{vT}, s{sSOX}, v{vT}")
        g.e(f"v_lshlrev_b32 v{vT}, 4, v{vT}")
        g.e(f"v_lshl_add_u32 v{vT}, v{vPX}, 8, v{vT}")
        g.e(f"v_lshl_add_u32 v{vT}, v{vHF}, 3, v{vT}")
        g.e(f"v_add_u32 v{vXR}, s{sT2}, v{vT}")
        g.e(f"s_lshl_b32 s{sT2}, s{sT0}, 15")
        g.e(f"s_add_u32 s{sT2}, s{sT2}, s{sXROW}")
        g.e(f"s_lshl_b32 s{sSOX}, s{sCT}, 13")
        g.e(f"s_add_u32 s{sT2}, s{sT2}, s{sSOX}")
        g.e(f"s_lshl_b32 s{sSOX}, s{sT1}, 12")
        g.e(f"s_add_u32 s{sT2}, s{sT2}, s{sSOX}")
        g.e(f"v_add_u32 v{vST}, s{sT2}, v{vL16}")
        g.e(f"s_lshl_b32 s{sSOX}, s{sU}, 1")
        g.e(f"s_add_u32 s{sSOX}, s{sSOX}, s{sT0}")
        g.e(f"s_lshl_b32 s{sSOX}, s{sSOX}, 12")
        g.e(f"s_add_u32 s{sSOX}, s{sSOX}, {WS_ST}")
        g.e(f"v_lshlrev_b32 v{vGO}, 4, v{vPX}")
        g.e(f"v_add_u32 v{vGO}, s{sSOX}, v{vGO}")
        g.e(f"v_lshl_add_u32 v{vGA}, v{vHF}, 11, v{vGO}")
        g.e(f"s_lshl_b32 s93, s{sCT}, 1")
        g.e(f"s_add_u32 s93, s93, s{sT1}")
        g.e(f"s_lshl_b32 s93, s93, 9")
        deferG = g.lines[mk:]; del g.lines[mk:]
        def stage_addr(kc):
            sb = (kc % S) * STG
            for s in range(4): g.e(f"v_add_u32 v{vXAs[s]}, {sb}, v{vXA[s]}")
            g.e(f"v_add_u32 v{vWAs}, {sb + XB}, v{vWA}")
            g.e(f"v_xor_b32 v{vWAs2}, 64, v{vWAs}")
        def read_list(kc, s):
            p = (kc*4 + s) % 2
            L = [(f"ds_read_b128 {vr(XF+p*20)}, v{vXAs[s]}", 0)]
            for cb in range(2):
                for h in range(2):
                    L.append((f"ds_read_b64_tr_b16 {vr(WF+p*8+cb*4+h*2,2)}, v{vWAs if cb==0 else vWAs2} offset:{s*4096+h*1024}", cb))
            return [(r, ("R", kc, s, b)) for r, b in L]
        stage_addr(0)
        st()
        g.wait_vm([("D", 0)])
        g.e("s_barrier")
        st()
        XR = TMP
        XU = ACC + 32
        for r, t in read_list(0, 0): g.lds(r, t)
        LPM = o.get("LPG", 1)
        for kc in range(8):
            for s in range(4):
                if s < 3:
                    nxt = read_list(kc, s+1)
                else:
                    nxt = []
                    if kc < 7:
                        g.wait_lg([("R", kc, 3, b) for b in range(2)])
                        while any(c_ == kc+1 for c_, _ in ldq): assert ldnext()
                        g.wait_vm([("D", kc+1)])
                        g.e("s_barrier")
                        if kc in (0, 2, 4, 6): st()
                        freed[0] = kc + 1
                        stage_addr(kc+1)
                        nxt = read_list(kc+1, 0)
                p = (kc*4 + s) % 2
                for b in range(2):
                    g.wait_lg([("R", kc, s, bb) for bb in range(b+1)])
                    ac = vr(ACC+16*b, 16)
                    g.e(f"v_mfma_f32_32x32x16_bf16 {ac}, {vr(WF+p*8+b*4)}, {vr(XF+p*20)}, {'0' if kc == 0 and s == 0 else ac}")
                    for _ in range(3):
                        if nxt:
                            r, t = nxt.pop(0); g.lds(r, t)
                    for _ in range(LPM): ldnext()
            if kc == 4:
                g.vmem(f"buffer_load_dword v{vNC}, v{vZ}, {sr(SDB)}, 0 offen sc1", ("NC",))
            if kc == 0: g.lines += deferG
            if kc == 5:
                for j in range(8):
                    g.e(f"v_xor_b32 v{vT2}, {j*16}, v{vXR}")
                    g.lds(f"ds_read_b64 {vr(XR+2*j,2)}, v{vT2}", ("XR", j))
            if kc == 6:
                g.wait_lg([("XR", 7)])
                for j in range(16):
                    g.e(f"v_lshlrev_b32 v{XU+2*j}, 16, v{XR+j}")
                    g.e(f"v_and_b32 v{XU+2*j+1}, 0xffff0000, v{XR+j}")
        assert not ldq
        st(); dt(g, 3)
        nonce_wait("G")
        g.e("s_nop 7")
        S1, S2 = TMP+16, TMP+18
        P1, P2 = TMP+20, TMP+22
        for i in range(16): g.e(f"v_pk_add_f32 {vr(ACC+2*i,2)}, {vr(ACC+2*i,2)}, {vr(XU+2*i,2)}")
        g.e(f"v_pk_add_f32 {vr(P1,2)}, {vr(ACC,2)}, {vr(ACC+2,2)}")
        g.e(f"v_pk_mul_f32 {vr(P2,2)}, {vr(ACC,2)}, {vr(ACC,2)}")
        g.e(f"v_pk_fma_f32 {vr(P2,2)}, {vr(ACC+2,2)}, {vr(ACC+2,2)}, {vr(P2,2)}")
        for i in range(2, 16):
            g.e(f"v_pk_add_f32 {vr(P1,2)}, {vr(P1,2)}, {vr(ACC+2*i,2)}")
            g.e(f"v_pk_fma_f32 {vr(P2,2)}, {vr(ACC+2*i,2)}, {vr(ACC+2*i,2)}, {vr(P2,2)}")
        g.e(f"v_add_f32 v{S1}, v{P1}, v{P1+1}")
        g.e(f"v_add_f32 v{S2}, v{P2}, v{P2+1}")
        g.e(f"v_mov_b32 v{vT}, v{S1}")
        g.e(f"v_mov_b32 v{vT2}, v{S2}")
        g.e(f"v_mov_b32 v{S1+1}, v{vNC}")
        g.e(f"v_mov_b32 v{S2+1}, v{vNC}")
        g.e(f"v_permlane32_swap_b32 v{S1}, v{vT}")
        g.e(f"v_permlane32_swap_b32 v{S2}, v{vT2}")
        g.e(f"v_add_f32 v{S1}, v{S1}, v{vT}")
        g.e(f"v_add_f32 v{S2}, v{S2}, v{vT2}")
        g.e("s_mov_b64 exec, 0xffffffff")
        g.e(f"buffer_store_dwordx4 {vr(S1)}, v{vGO}, {sr(SWS)}, s93 offen sc1")
        g.e("s_mov_b64 exec, -1")
        st()
        for j in range(16):
            g.e(f"v_cvt_pk_bf16_f32 v{XR+j}, v{ACC+2*j}, v{ACC+2*j+1}")
        g.e("s_nop 1")
        for hh in range(4):
            g.e(f"v_permlane32_swap_b32 v{XR+4*hh}, v{XR+4*hh+2}")
            g.e(f"v_permlane32_swap_b32 v{XR+4*hh+1}, v{XR+4*hh+3}")
        EA, EB = TMP + 24, TMP + 40
        def poll_issue(E):
            for e_ in range(4):
                g.e(f"buffer_load_dwordx4 {vr(E+4*e_)}, v{vGA}, {sr(SWS)}, 0 offen offset:{e_*512} sc1")
        def poll_check(E):
            g.e(f"v_xor_b32 v{vT}, v{E+1}, v{vNC}")
            for e_ in range(4):
                for o_ in (1, 3):
                    if e_ == 0 and o_ == 1: continue
                    g.e(f"v_xor_b32 v{vT2}, v{E+4*e_+o_}, v{vNC}")
                    g.e(f"v_or_b32 v{vT}, v{vT}, v{vT2}")
            g.e(f"v_cmp_ne_u32 vcc, 0, v{vT}")
            g.e("s_nop 4")
        g.e(f"s_mov_b32 s{sT2}, 0")
        poll_issue(EA)
        g.label(f"{name}_poll")
        g.e(f"s_add_u32 s{sT2}, s{sT2}, 1")
        g.e(f"s_cmp_gt_u32 s{sT2}, 100000")
        g.e(f"s_cbranch_scc1 {name}_pollx")
        if o.get("pp", 1):
            g.e("s_sleep 4")
            poll_issue(EB)
            g.e("s_waitcnt vmcnt(4)")
            poll_check(EA)
            g.e(f"s_cbranch_vccz {name}_pollx")
            poll_issue(EA)
            g.e("s_waitcnt vmcnt(4)")
            poll_check(EB)
            g.e(f"s_cbranch_vccnz {name}_poll")
            g.e("s_waitcnt vmcnt(0)")
        else:
            g.e("s_waitcnt vmcnt(0)")
            poll_check(EA)
            g.e(f"s_cbranch_vccz {name}_pollx")
            poll_issue(EA)
            g.e(f"s_branch {name}_poll")
        g.label(f"{name}_pollx")
        st()
        E = EA
        g.e(f"s_mov_b32 s{sT1}, {WS_HI}")
        for e_ in range(1, 4):
            g.e(f"v_add_f32 v{E}, v{E}, v{E+4*e_}")
            g.e(f"v_add_f32 v{E+2}, v{E+2}, v{E+4*e_+2}")
        g.e(f"v_mov_b32 v{vT}, v{E}")
        g.e(f"v_mov_b32 v{vT2}, v{E+2}")
        for hh in range(4):
            g.e(f"buffer_store_dwordx4 {vr(XR+4*hh)}, v{vST}, {sr(SWS)}, s{sT1} offen offset:{hh*1024}{stf}")
        g.e(f"v_permlane32_swap_b32 v{E}, v{vT}")
        g.e(f"v_permlane32_swap_b32 v{E+2}, v{vT2}")
        g.e(f"v_add_f32 v{E}, v{E}, v{vT}")
        g.e(f"v_add_f32 v{E+2}, v{E+2}, v{vT2}")
        g.e(f"v_mul_f32 v{E}, {f2u(1/512):#x}, v{E}")
        g.e(f"v_mul_f32 v{E+2}, {f2u(1/512):#x}, v{E+2}")
        g.e(f"v_fma_f32 v{E+2}, -v{E}, v{E}, v{E+2}")
        g.e(f"v_max_f32 v{E+2}, 0, v{E+2}")
        g.e(f"v_add_f32 v{E+2}, {f2u(1e-5):#x}, v{E+2}")
        A_, B_, A2, B2 = E+4, E+6, E+8, E+10
        g.e(f"v_rsq_f32 v{A_}, v{E+2}")
        g.e("s_nop 0")
        g.e(f"v_mul_f32 v{B_}, v{E}, v{A_}")
        g.e(f"v_sub_f32 v{B_}, 0, v{B_}")
        g.e(f"v_mul_f32 v{A2}, {f2u(-LOG2E):#x}, v{A_}")
        g.e(f"v_mul_f32 v{B2}, {f2u(-LOG2E):#x}, v{B_}")
        Y = XF
        D = WF
        for hh in range(4):
            a = ACC + 8*hh; y = Y + (hh % 2)*8
            for i in range(4): g.e(f"v_pk_fma_f32 {vr(y+2*i,2)}, {vr(a+2*i,2)}, {vr(A2,2)}, {vr(B2,2)} op_sel_hi:[1,0,0]")
            for i in range(8): g.e(f"v_exp_f32 v{y+i}, v{y+i}")
            for i in range(4): g.e(f"v_pk_fma_f32 {vr(a+2*i,2)}, {vr(a+2*i,2)}, {vr(A_,2)}, {vr(B_,2)} op_sel_hi:[1,0,0]")
            for i in range(4): g.e(f"v_pk_add_f32 {vr(y+2*i,2)}, {vr(y+2*i,2)}, 1.0 op_sel_hi:[1,0]")
            for i in range(8): g.e(f"v_rcp_f32 v{y+i}, v{y+i}")
            g.e("s_nop 0")
            for i in range(4): g.e(f"v_pk_mul_f32 {vr(a+2*i,2)}, {vr(a+2*i,2)}, {vr(y+2*i,2)}")
            d = D + hh*4
            for i in range(4): g.e(f"v_cvt_pk_bf16_f32 v{d+i}, v{a+2*i}, v{a+2*i+1}")
            g.e(f"buffer_store_dwordx4 {vr(d)}, v{vST}, {sr(SWS)}, 0 offen offset:{hh*1024}{stf}")
        publish(True)
    bodyG(); bodyP()

def phase2(g, name, st, o):
    NST, PRE, EVERY = o.get("NST", 3), o.get("PRE", 20), o.get("EVERY", 2)
    lf = o.get("lf", " sc1").replace(" none", "")
    SA, SWP, SX, SO, SDB = 12, 16, 20, 24, 28
    C4K, C8K, C2M, C2M4K = 33, 34, 42, 43
    sMT, sNT, sB, sT0, sT1, sR0, sBASE = 35, 36, 37, 38, 39, 97, 96
    vLane, vT, vW, vMR, vML, vO, vT2 = 1, 2, 3, 4, 5, 6, 7
    vH = [8+j for j in range(6)]
    vA, vA1 = 14, 15
    vXF = 16
    HB = 24
    HIB = HB + NST*24
    T0 = HIB + NST*16
    T2 = T0 + 24
    VEND = T2 + 24
    vF, vG, vPF = VEND, VEND+1, VEND+2
    assert VEND + 8 <= 250
    ACC, WB = 0, 64
    AEND = WB + NST*40
    g.vm = []; g.lg = []
    g.label(f"{name}_ph2")
    if st.on: st.n = 15
    st()
    g.e(f"s_and_b32 s{sT0}, s2, 7")
    g.e(f"s_lshr_b32 s{sT1}, s2, 3")
    g.e(f"s_and_b32 s{sB}, s{sT0}, 1")
    g.e(f"s_lshr_b32 s{sT0}, s{sT0}, 1")
    g.e(f"s_and_b32 s{sMT}, s{sT1}, 7")
    g.e(f"s_lshr_b32 s{sT1}, s{sT1}, 3")
    g.e(f"s_lshl_b32 s{sNT}, s{sT0}, 2")
    g.e(f"s_add_u32 s{sNT}, s{sNT}, s{sT1}")
    g.e(f"s_lshl_b32 s{sT0}, s{sB}, 5")
    g.e(f"s_lshl_b32 s{sT1}, s{sMT}, 2")
    g.e(f"s_add_u32 s{sR0}, s{sT0}, s{sT1}")
    srd(g, SDB, 50, 51, 16 << 20)
    NL = o.get("NL", 8); LG = NL.bit_length() - 1; MS = NL*128
    g.e(f"s_lshr_b32 s{sT0}, s{sR0}, 2")
    g.e(f"s_lshl_b32 s{sT0}, s{sT0}, 4")
    g.e(f"s_add_u32 s{sT0}, s{sT0}, s{sNT}")
    g.e(f"s_mul_i32 s{sT0}, s{sT0}, {MS}")
    g.e(f"s_add_u32 s{sT0}, s{sT0}, {WS_MB}")
    g.e(f"v_and_b32 v{vF}, {NL-1}, v{vLane}")
    g.e(f"v_lshlrev_b32 v{vF}, 7, v{vF}")
    g.e(f"v_lshrrev_b32 v{vG}, {LG}, v{vLane}")
    g.e(f"v_lshl_add_u32 v{vF}, v{vG}, 2, v{vF}")
    g.e(f"v_add_u32 v{vF}, s{sT0}, v{vF}")
    g.e(f"s_movk_i32 s{C4K}, 0x1000")
    g.e(f"s_movk_i32 s{C8K}, 0x2000")
    g.e(f"s_mov_b32 s{C2M}, 0x200000")
    g.e(f"s_mov_b32 s{C2M4K}, 0x201000")
    g.e(f"s_lshl_b32 s{sBASE}, s{sR0}, 15")
    g.e(f"s_lshl_b32 s{sT0}, s{sW}, 13")
    g.e(f"s_add_u32 s{sBASE}, s{sBASE}, s{sT0}")
    g.e(f"v_lshlrev_b32 v{vT}, 4, v{vLane}")
    for j in range(1, 5):
        g.e(f"s_add_u32 s{sT0}, s{sBASE}, {(j-1)*32768}")
        g.e(f"v_add_u32 v{vH[j]}, s{sT0}, v{vT}")
    g.e(f"s_sub_u32 s{sT0}, s{sBASE}, 32768")
    g.e(f"s_cmp_eq_u32 s{sMT}, 0")
    g.e(f"s_cselect_b32 s{sT0}, 0x40000000, s{sT0}")
    g.e(f"v_add_u32 v{vH[0]}, s{sT0}, v{vT}")
    g.e(f"s_add_u32 s{sT0}, s{sBASE}, {4*32768}")
    g.e(f"s_cmp_eq_u32 s{sMT}, 7")
    g.e(f"s_cselect_b32 s{sT0}, 0x40000000, s{sT0}")
    g.e(f"v_add_u32 v{vH[5]}, s{sT0}, v{vT}")
    g.e(f"s_lshl_b32 s{sT0}, s{sNT}, 5")
    g.e(f"s_lshl_b32 s{sT1}, s{sW}, 3")
    g.e(f"s_add_u32 s{sT0}, s{sT0}, s{sT1}")
    g.e(f"s_mul_i32 s92, s{sT0}, 10240")
    g.e(f"v_add_u32 v{vW}, s92, v{vT}")
    srd(g, SA, 50, 51, 4 << 20)
    srd(g, SWP, 50, 51, WP_BYTES, add=WS_WP)
    srd(g, SX, 40, 41, 2 << 20)
    srd(g, SO, 46, 47, 2 << 20)
    g.e(f"s_add_u32 s{sT0}, s{sR0}, s{sW}")
    g.e(f"s_lshl_b32 s{sT0}, s{sT0}, 15")
    g.e(f"s_lshl_b32 s{sT1}, s{sNT}, 6")
    g.e(f"s_add_u32 s{sT0}, s{sT0}, s{sT1}")
    g.e(f"v_lshrrev_b32 v{vO}, 2, v{vLane}")
    g.e(f"v_lshlrev_b32 v{vO}, 10, v{vO}")
    g.e(f"v_and_b32 v{vT2}, 3, v{vLane}")
    g.e(f"v_lshlrev_b32 v{vT2}, 4, v{vT2}")
    g.e(f"v_add3_u32 v{vO}, v{vO}, v{vT2}, s{sT0}")
    g.e(f"s_movk_i32 s{sT1}, 0x4000")
    xfl = " nt" if o.get("nt", 0) else ""
    g.e(f"buffer_load_dwordx4 {vr(vXF)}, v{vO}, {sr(SX)}, 0 offen{xfl}")
    g.e(f"buffer_load_dwordx4 {vr(vXF+4)}, v{vO}, {sr(SX)}, s{sT1} offen{xfl}")
    g.e(f"v_and_b32 v{vT}, 31, v{vLane}")
    g.e(f"v_cmp_ne_u32 vcc, 0, v{vT}")
    g.e("s_nop 1")
    g.e(f"v_cndmask_b32 v{vMR}, 0, -1, vcc")
    g.e(f"v_cmp_ne_u32 vcc, 31, v{vT}")
    g.e("s_nop 1")
    g.e(f"v_cndmask_b32 v{vML}, 0, -1, vcc")
    g.e(f"v_lshlrev_b32 v{vA}, 4, v{vLane}")
    g.e(f"s_mul_i32 s{sT0}, s{sW}, 4352")
    g.e(f"v_add_u32 v{vA}, s{sT0}, v{vA}")
    g.e(f"v_and_b32 v{vA1}, 3, v{vLane}")
    g.e(f"v_mul_u32_u24 v{vA1}, 1088, v{vA1}")
    g.e(f"v_lshrrev_b32 v{vT}, 2, v{vLane}")
    g.e(f"v_lshl_add_u32 v{vA1}, v{vT}, 4, v{vA1}")
    g.e(f"s_mul_i32 s{sT0}, s{sW}, 17408")
    g.e(f"v_add_u32 v{vA1}, s{sT0}, v{vA1}")
    g.e("s_mov_b32 s90, 0xffff0000")
    g.e("s_mov_b32 s91, 0xffff")
    g.e(f"s_movk_i32 s{sT0}, 0x1111")
    g.e(f"s_cmp_eq_u32 s{sMT}, 0")
    g.e(f"s_cselect_b32 s{sT0}, 0x1110, s{sT0}")
    g.e(f"s_cmp_eq_u32 s{sMT}, 7")
    g.e(f"s_cselect_b32 s{sT0}, 0x0111, s{sT0}")
    g.e(f"s_lshl_b32 s94, s{sT0}, s{sW}")
    g.e("s_mov_b32 s95, 0")
    def poll(tag, mask, first_issued):
        g.e(f"s_mov_b32 s{sT0}, 0")
        if first_issued: g.e(f"s_branch {name}_fchk{tag}")
        g.label(f"{name}_fpoll{tag}")
        if o.get("fs", 0): g.e(f"s_sleep {o['fs']}")
        g.e(f"buffer_load_dword v{vG}, v{vF}, {sr(SDB)}, 0 offen sc1")
        g.label(f"{name}_fchk{tag}")
        g.e(f"s_add_u32 s{sT0}, s{sT0}, 1")
        g.e(f"s_cmp_gt_u32 s{sT0}, 200000")
        g.e(f"s_cbranch_scc1 {name}_fw{tag}")
        g.e("s_waitcnt vmcnt(0)")
        g.e(f"v_cmp_ne_u32 vcc, s3, v{vG}")
        g.e("s_nop 4")
        g.e(f"s_and_b64 vcc, vcc, {mask}")
        g.e(f"s_cbranch_scc1 {name}_fpoll{tag}")
        g.label(f"{name}_fw{tag}")

    SPF = o.get("spf", 0)
    if SPF:
        g.e(f"s_mul_i32 s{sT0}, s{sMT}, 1280")
        g.e(f"s_add_u32 s{sT0}, s{sT0}, s92")
        g.e(f"s_add_u32 s{sT0}, s{sT0}, {WS_WP}")
        g.e(f"s_add_u32 s4, s50, s{sT0}")
        g.e(f"s_addc_u32 s5, s51, 0")
        g.e(f"s_and_b32 s{sT0}, s{sNT}, 3")
        g.e(f"s_lshl_b32 s{sT0}, s{sT0}, 8")
        g.e(f"s_add_u32 s{sT0}, s{sT0}, s{sBASE}")
        g.e(f"s_add_u32 s6, s50, s{sT0}")
        g.e(f"s_addc_u32 s7, s51, 0")
        g.e(f"s_add_u32 s8, s6, 0x200000")
        g.e(f"s_addc_u32 s9, s7, 0")
    def spf_list(k):
        if not SPF or k > 7: return []
        L = [f"s_load_dword s10, s[4:5], {k*10240 + i*128:#x}" for i in range(10)]
        if o.get("spfh", 1):
            for r in range(4):
                for i in range(2):
                    L.append(f"s_load_dword s10, s[6:7], {r*32768 + k*1024 + i*128:#x}")
                    L.append(f"s_load_dword s10, s[8:9], {r*32768 + k*1024 + i*128:#x}")
        return L
    def Hreg(s_, j): return HB + s_*24 + j*4
    def HIreg(s_, r): return HIB + s_*16 + r*4
    def Wreg(s_, t): return WB + s_*40 + t*4
    def ldW(k, t):
        s_ = k % NST
        off = (k*10 + t)*1024
        return ("W", k, t, s_, off)
    def emitW(k, t):
        s_ = k % NST
        off = (k*10 + t)*1024
        g.e(f"s_mov_b32 s{sT0}, {off & ~4095}")
        g.vmem(f"buffer_load_dwordx4 {ar(Wreg(s_,t))}, v{vW}, {sr(SWP)}, s{sT0} offen offset:{off & 4095}{lf}", ("W", k, t))
    def emitH(k, j):
        s_ = k % NST
        so_h = "0" if k < 4 else f"s{C4K}"
        g.vmem(f"buffer_load_dwordx4 {vr(Hreg(s_,j))}, v{vH[j]}, {sr(SA)}, {so_h} offen offset:{(k%4)*1024}{lf}", ("H", k, j))
    def emitHI(k, r):
        s_ = k % NST
        so = f"s{C2M}" if k < 4 else f"s{C2M4K}"
        g.vmem(f"buffer_load_dwordx4 {vr(HIreg(s_,r))}, v{vH[r+1]}, {sr(SA)}, {so} offen offset:{(k%4)*1024}{lf}", ("HI", k, r))
    def order(k):
        return [("W",1),("H",0),("H",1),("H",2),("H",3),("W",4),("H",4),("W",7),("H",5),("W",9),
                ("HI",0),("HI",1),("HI",2),("HI",3),("W",0),("W",3),("W",6),("W",2),("W",5),("W",8)]
    queue = [(k, t, i) for k in range(8) for (t, i) in order(k)]
    def emit_item(it):
        k, t, i = it
        {"W": emitW, "H": emitH, "HI": emitHI}[t](k, i)
    WPRE = o.get("WPRE", 2)
    split = 0
    if split:
        poll("P", "s[90:91]", False)
        st(); dt(g, 9)
        pre = [it for it in queue if it[1] == "W" and it[0] < WPRE]
        for it in pre:
            queue.remove(it); emit_item(it)
        if o.get("pfw", 0):
            g.e(f"s_mul_i32 s{sT0}, s{sMT}, 10240")
            g.e(f"s_add_u32 s{sT0}, s{sT0}, s92")
            g.e(f"v_lshlrev_b32 v{vPF}, 7, v{vLane}")
            g.e(f"buffer_load_dword v{vPF+1}, v{vPF}, {sr(SWP)}, s{sT0} offen{lf}")
            g.e(f"s_add_u32 s{sT0}, s{sT0}, 2048")
            g.e(f"buffer_load_dword v{vPF+2}, v{vPF}, {sr(SWP)}, s{sT0} offen{lf}")
        g.e(f"v_cmp_ne_u32 vcc, s3, v{vG}")
        g.e("s_nop 4")
        g.e("s_and_b64 vcc, vcc, s[94:95]")
        g.e(f"s_cbranch_scc0 {name}_fwG")
        poll("G", "s[94:95]", False)
    else:
        if o.get("w0", 1):
            g.e(f"s_mov_b32 s{sT0}, 0xffff")
            g.e(f"s_cmp_eq_u32 s{sMT}, 0")
            g.e(f"s_cselect_b32 s{sT0}, 0xfff0, s{sT0}")
            g.e(f"s_cmp_eq_u32 s{sMT}, 7")
            g.e(f"s_cselect_b32 s94, 0x0fff, s{sT0}")
            g.e("s_or_b64 s[90:91], s[90:91], s[94:95]")
            g.e(f"s_cmp_lg_u32 s{sW}, 0")
            g.e(f"s_cbranch_scc1 {name}_fwP")
            poll("P", "s[90:91]", False)
            g.e("s_waitcnt vmcnt(0)")
            g.e("s_barrier")
        else:
            g.e("s_or_b64 s[90:91], s[90:91], s[94:95]")
            poll("P", "s[90:91]", False)
        st(); dt(g, 9)
    if st.on:
        g.e(f"s_memrealtime s[{52+2*st.n}:{53+2*st.n}]"); st.n += 1
    def issue_next(cur_k):
        if not queue: return False
        it = queue[0]
        if it[0] - NST >= cur_k or len(g.vm) >= 60: return False
        queue.pop(0); emit_item(it); return True
    def need(tok, k):
        while any((it[1], it[0], it[2]) == tok for it in queue): assert issue_next(k)
    for _ in range(PRE): issue_next(0)
    if o.get("pfh", 0):
        g.e(f"s_and_b32 s{sT0}, s{sNT}, 3")
        g.e(f"s_lshl_b32 s{sT0}, s{sT0}, 11")
        g.e(f"s_add_u32 s{sT0}, s{sT0}, s{sBASE}")
        g.e(f"v_lshrrev_b32 v{vPF}, 4, v{vLane}")
        g.e(f"v_lshlrev_b32 v{vPF}, 15, v{vPF}")
        g.e(f"v_and_b32 v{vPF+1}, 15, v{vLane}")
        g.e(f"v_lshl_add_u32 v{vPF}, v{vPF+1}, 7, v{vPF}")
        g.vmem(f"buffer_load_dword v{vPF+1}, v{vPF}, {sr(SA)}, s{sT0} offen{lf}")
        g.e(f"s_add_u32 s{sT0}, s{sT0}, 0x200000")
        g.vmem(f"buffer_load_dword v{vPF+2}, v{vPF}, {sr(SA)}, s{sT0} offen{lf}")
    wr_pending = []
    for k in range(8):
        s_ = k % NST
        last = k == 7
        g.c(f"---- k-step {k}")
        if k == 1: st()
        if o.get("ste") and k >= 2: g.e(f"s_memtime s[{60+2*(k-2)}:{61+2*(k-2)}]")
        dpp = [(T0, vMR, "wave_shr:1", j, i) for j in range(6) for i in range(4)]
        dpp2 = [(T2, vML, "wave_shl:1", j, i) for j in range(6) for i in range(4)]
        mf = []
        for di in range(3):
            for r in range(4): mf.append((r, di*3+1, ("H", k, r+di), Hreg(s_, r+di), "A"))
        for r in range(4): mf.append((r, 9, ("HI", k, r), HIreg(s_, r), "B"))
        if not last:
            for di in range(3):
                for r in range(4): mf.append((r, di*3, None, T0 + (r+di)*4, "C"))
            for di in range(3):
                for r in range(4): mf.append((r, di*3+2, None, T2 + (r+di)*4, "D"))
        else:
            dpp = [x for pair in zip(dpp, dpp2) for x in pair]; dpp2 = []
            for r in range(4):
                for di in range(3): mf.append((r, di*3, None, T0 + (r+di)*4, "E"))
                for di in range(3): mf.append((r, di*3+2, None, T2 + (r+di)*4, "E" if di < 2 else "F"))
        since = 0
        spl = spf_list(k + SPF) if k > 0 else [x for kk in range(2, SPF+1) for x in spf_list(kk)]
        for n, (r, t, ht, hreg, grp) in enumerate(mf):
            toks = [("W", k, t)] + ([ht] if ht else [])
            for tok in toks: need(tok, k)
            g.wait_vm(toks)
            c = "0" if (k == 0 and n < 4) else ar(ACC+16*r, 16)
            if o.get("fake16"):
                for u_ in range(2):
                    q_ = ACC + 16*r + 4*((2*n + u_) % 4)
                    g.e(f"v_mfma_f32_16x16x32_bf16 {ar(q_)}, {ar(Wreg(s_,t))}, {vr(hreg)}, {'0' if k == 0 and n < 8 else ar(q_)}")
            else:
                g.e(f"v_mfma_f32_32x32x16_bf16 {ar(ACC+16*r,16)}, {ar(Wreg(s_,t))}, {vr(hreg)}, {c}")
            if grp in "AB" and n >= 2:
                for _ in range(4 if last else 2):
                    if dpp:
                        T, vm_, sh, j, i = dpp.pop(0)
                        need(("H", k, j), k); g.wait_vm([("H", k, j)])
                        g.e(f"v_and_b32_dpp v{T+j*4+i}, v{Hreg(s_,j)+i}, v{vm_} {sh} row_mask:0xf bank_mask:0xf bound_ctrl:0")
            if grp == "C":
                for _ in range(3):
                    if dpp2:
                        T, vm_, sh, j, i = dpp2.pop(0)
                        g.e(f"v_and_b32_dpp v{T+j*4+i}, v{Hreg(s_,j)+i}, v{vm_} {sh} row_mask:0xf bank_mask:0xf bound_ctrl:0")
            if o.get("RN"):
                if (n * o["RN"]) % o["RD"] < o["RN"]: issue_next(k)
            elif n % EVERY == EVERY - 1: issue_next(k)
            for _ in range(2 if k == 0 else 1):
                if spl: g.e(spl.pop(0))
            if wr_pending:
                since += 1
                if since == 2: g.e("s_nop 9")
                if since >= 2:
                    g.e(wr_pending.pop(0))
            if grp == "F":
                assert not wr_pending
                wr_pending = [f"ds_write_b128 v{vA}, {ar(ACC+16*r+4*q)} offset:{r*17408 + q*1088}" for q in range(4)]
                since = 0
        assert not dpp and not dpp2
    assert not queue
    g.c("---- epilogue")
    st(); dt(g, 11)
    g.e("s_nop 11")
    for w_ in wr_pending: g.e(w_)
    g.e("s_waitcnt lgkmcnt(0)")
    if o.get("ste"): g.e("s_memtime s[54:55]")
    g.e("s_barrier")
    if o.get("ste"): g.e("s_memtime s[56:57]")
    R = HB
    for i in range(2):
        for src in range(4):
            for hf in range(2):
                g.lds(f"ds_read_b128 {vr(R + ((i*4+src)*2+hf)*4)}, v{vA1} offset:{src*4352 + hf*512 + i*256}", ("R", i, src))
    XU = R + 64
    for i in range(2):
        for e_ in range(4):
            x = vXF + 4*i + e_
            g.e(f"v_lshlrev_b32 v{XU+8*i+2*e_}, 16, v{x}")
            g.e(f"v_and_b32 v{XU+8*i+2*e_+1}, 0xffff0000, v{x}")
    for i in range(2):
        base = R + i*32
        for src in range(4):
            g.wait_lg([("R", i, src)])
            for e_ in range(4):
                g.e(f"v_pk_add_f32 {vr(XU+8*i+2*e_,2)}, {vr(XU+8*i+2*e_,2)}, {vr(base+8*src+2*e_,2)}")
        for e_ in range(4): g.e(f"v_cvt_pk_bf16_f32 v{vXF+4*i+e_}, v{XU+8*i+2*e_}, v{XU+8*i+2*e_+1}")
        g.vmem(f"buffer_store_dwordx4 {vr(vXF+4*i)}, v{vO}, {sr(SO)}, {'0' if i==0 else 's%d'%sT1} offen{o.get('ostf',' sc1')}")
    if o.get("ste"): g.e("s_memtime s[58:59]")
    if o.get("enc"):
        i = o["enc"]
        g.e("s_waitcnt vmcnt(0)")
        g.e("s_memrealtime s[76:77]")
        g.e(f"s_cmp_lg_u32 s2, {o.get('encwg', 8)}")
        g.e("s_cbranch_scc1 enc_done")
        g.e(f"s_cmp_lg_u32 s{sW}, 0")
        g.e("s_cbranch_scc1 enc_done")
        g.e("s_waitcnt lgkmcnt(0)")
        g.e(f"s_sub_u32 s84, s{52+2*i}, s52")
        g.e("s_mul_i32 s84, s84, 20")
        g.label("enc_loop")
        g.e("s_memrealtime s[86:87]")
        g.e("s_waitcnt lgkmcnt(0)")
        g.e("s_sub_u32 s85, s86, s76")
        g.e("s_cmp_lt_u32 s85, s84")
        g.e("s_cbranch_scc1 enc_loop")
        g.label("enc_done")
    else:
        dt_finish(g)
    st.finish(st.n + 1)
    return AEND

def gen_all(out, o):
    DT[0] = bool(o.get("dt", 0)); CPF[0] = o.get("cpf", 2)
    name = "fused_kernel"
    g = Gen(); st = Stamper(g, o.get("st", 0))
    entry(g, name, st)
    phase1(g, name, st, o)
    aend = phase2(g, name, st, o)
    g.label(f"{name}_end"); g.e("s_endpgm")
    build([(name, g.text(), kd(name, 256 + max(aend, 128), 256, 100), 256, 256, 160*1024)], out)

if __name__ == "__main__":
    o = {}
    for a in sys.argv[2:]:
        k, v = a.split("=")
        o[k] = int(v) if v.lstrip("-").isdigit() else " " + v.replace("+", " ")
    gen_all(sys.argv[1], o)
```

```python
import sys, struct
from gen import Gen, vr, ar, sr, srd, kd, build, WS_H, WS_HI, WS_WP, WS_ST, WP_BYTES
import gen4
from gen4 import Stamper, f2u, LOG2E, sW, WS_MB, dt, dt_finish, DT, CPF, entry

def phase1(g, name, st, o):
    stf = o.get("stf", " sc1")
    ldf = " nt" if o.get("nt", 0) else ""
    ldw = " nt" if o.get("ntw", 0) else ""
    SX, SWT, SWS, SXI, SDB = 12, 16, 20, 24, 28
    sCT, sU, sT0, sT1, sT2, sXROW, sM0X = 33, 34, 35, 36, 37, 38, 39
    sSOX, sSOW, sNONCE = 42, 43, 3
    sODD, sKC = 94, 95
    vLane, vT, vT2, vXD, vWD, vWA, vPX, vHF, vL16 = 1, 2, 3, 4, 5, 6, 7, 8, 9
    vXA = [10, 11, 12, 13]; vXAs = [14, 15, 16, 17]
    vWAs, vST, vWR, vNC, vZ, vWAs2 = 18, 19, 20, 21, 22, 23
    XF, WF, ACC, TMP = 24, 64, 80, 160
    g.e(f"s_and_b32 s{sT0}, s2, 7")
    g.e(f"s_lshr_b32 s{sT1}, s2, 3")
    g.e(f"s_and_b32 s{sCT}, s{sT1}, 3")
    g.e(f"s_lshr_b32 s{sT1}, s{sT1}, 2")
    if o.get("mix", 1):
        g.e(f"s_lshl_b32 s{sU}, s{sT0}, 2")
        g.e(f"s_lshr_b32 s{sT2}, s{sT1}, 1")
        g.e(f"s_add_u32 s{sU}, s{sU}, s{sT2}")
        g.e(f"s_and_b32 s{sT0}, s{sT1}, 1")
        g.e(f"s_lshl_b32 s{sT0}, s{sT0}, 2")
    else:
        g.e(f"s_and_b32 s{sU}, s{sT0}, 3")
        g.e(f"s_lshl_b32 s{sU}, s{sU}, 3")
        g.e(f"s_add_u32 s{sU}, s{sU}, s{sT1}")
    g.e(f"v_lshrrev_b32 v{vT}, 3, v{vLane}")
    g.e(f"s_lshl_b32 s{sT2}, s{sW}, 3")
    g.e(f"v_add_u32 v{vXD}, s{sT2}, v{vT}")
    g.e(f"v_lshrrev_b32 v{vT}, 1, v{vXD}")
    g.e(f"v_and_b32 v{vT}, 7, v{vT}")
    g.e(f"v_and_b32 v{vT2}, 7, v{vLane}")
    g.e(f"v_xor_b32 v{vT}, v{vT}, v{vT2}")
    g.e(f"v_lshlrev_b32 v{vT}, 4, v{vT}")
    g.e(f"v_lshl_add_u32 v{vXD}, v{vXD}, 10, v{vT}")
    g.e(f"v_lshrrev_b32 v{vT}, 4, v{vLane}")
    g.e(f"v_lshlrev_b32 v{vT2}, 2, v{vT}")
    g.e(f"v_and_b32 v{vWD}, 15, v{vLane}")
    g.e(f"v_xor_b32 v{vWD}, v{vWD}, v{vT2}")
    g.e(f"v_lshlrev_b32 v{vWD}, 4, v{vWD}")
    g.e(f"s_lshl_b32 s{sT2}, s{sW}, 2")
    g.e(f"v_add_u32 v{vT}, s{sT2}, v{vT}")
    g.e(f"v_lshl_add_u32 v{vWD}, v{vT}, 10, v{vWD}")
    g.e(f"s_lshl_b32 s{sT2}, s{sCT}, 8")
    g.e(f"v_add_u32 v{vWD}, s{sT2}, v{vWD}")
    g.e(f"s_lshl_b32 s{sM0X}, s{sW}, 10")
    g.e(f"v_mov_b32 v{vZ}, 0")
    g.e(f"s_cmp_ge_u32 s{sT0}, 4")
    g.e(f"s_cbranch_scc1 {name}_P")
    st_n0 = st.n

    def nonce_wait(role):
        g.wait_vm([("NC",)])
        g.e(f"s_mov_b32 s{sT2}, 0")
        g.label(f"{name}_ncpoll{role}")
        g.e(f"v_readfirstlane_b32 s{sNONCE}, v{vNC}")
        g.e(f"s_add_u32 s{sT2}, s{sT2}, 1")
        g.e(f"s_cmp_gt_u32 s{sT2}, 100000")
        g.e(f"s_cbranch_scc1 {name}_ncok{role}")
        g.e(f"s_cmp_lg_u32 s{sNONCE}, 0")
        g.e(f"s_cbranch_scc1 {name}_ncok{role}")
        g.e(f"buffer_load_dword v{vNC}, v{vZ}, {sr(SDB)}, 0 offen sc1")
        g.e("s_waitcnt vmcnt(0)")
        g.e(f"s_branch {name}_ncpoll{role}")
        g.label(f"{name}_ncok{role}")

    def pretouch():
        if not o.get("tlb", 0): return
        lab = f"{name}_pt{len(g.lines)}"
        g.e(f"s_cmp_lg_u32 s{sW}, 3")
        g.e(f"s_cbranch_scc1 {lab}")
        srd(g, 84, 50, 51, 12 << 20)
        g.e(f"v_lshlrev_b32 v{vT}, 18, v{vLane}")
        g.e(f"buffer_load_dword v252, v{vT}, s[84:87], 0 offen")
        srd(g, 84, 46, 47, 2 << 20)
        g.e(f"v_lshlrev_b32 v{vT}, 16, v{vLane}")
        g.e(f"buffer_load_dword v253, v{vT}, s[84:87], 0 offen")
        srd(g, 84, 40, 41, 2 << 20)
        g.e(f"buffer_load_dword v254, v{vT}, s[84:87], 0 offen")
        g.e(f"buffer_load_dword v251, v{vZ}, {sr(SDB)}, 0 offen sc1")
        g.label(lab)

    def l2pf(G):
        pf = o.get("pf", 0)
        if not (pf & (1 if G else 2)): return
        if G:
            g.e(f"v_lshrrev_b32 v{vT}, 2, v{vLane}")
            g.e(f"v_and_b32 v{vT2}, 3, v{vLane}")
            g.e(f"v_lshlrev_b32 v{vT2}, 6, v{vT2}")
            g.e(f"v_lshl_add_u32 v{vT}, v{vT}, 10, v{vT2}")
            g.e(f"s_lshl_b32 s{sT2}, s{sW}, 14")
            g.e(f"s_add_u32 s{sT2}, s{sT2}, s{sXROW}")
        else:
            g.e(f"v_lshrrev_b32 v{vT}, 1, v{vLane}")
            g.e(f"v_and_b32 v{vT2}, 1, v{vLane}")
            g.e(f"v_lshlrev_b32 v{vT2}, 7, v{vT2}")
            g.e(f"v_lshl_add_u32 v{vT}, v{vT}, 10, v{vT2}")
            g.e(f"s_mul_i32 s{sT2}, s{sW}, {40*1024}")
            g.e(f"s_add_u32 s{sT2}, s{sT2}, s93")
        g.e(f"s_lshl_b32 s{sT0}, s{sCT}, 8")
        g.e(f"s_add_u32 s{sT2}, s{sT2}, s{sT0}")
        g.vmem(f"buffer_load_dword v250, v{vT}, {sr(SX)}, s{sT2} offen")
        if not G:
            g.e(f"s_add_u32 s{sT2}, s{sT2}, 0x8000")
            g.vmem(f"buffer_load_dword v251, v{vT}, {sr(SX)}, s{sT2} offen")
        if pf & 4:
            g.e(f"s_and_b32 s{sT0}, s{sU}, 3")
            g.e(f"s_lshl_b32 s{sT0}, s{sT0}, 2")
            g.e(f"s_add_u32 s{sT0}, s{sT0}, s{sCT}")
            g.e(f"s_lshl_b32 s{sT0}, s{sT0}, 2")
            g.e(f"s_add_u32 s{sT0}, s{sT0}, s{sW}")
            g.e(f"s_lshl_b32 s{sT0}, s{sT0}, 13")
            g.e(f"v_lshlrev_b32 v{vT}, 7, v{vLane}")
            g.vmem(f"buffer_load_dword v252, v{vT}, {sr(SWT)}, s{sT0} offen")

    def frag_consts(G):
        pretouch()
        l2pf(G)
        g.e(f"v_and_b32 v{vPX}, 31, v{vLane}")
        g.e(f"v_lshrrev_b32 v{vHF}, 5, v{vLane}")
        g.e(f"v_lshlrev_b32 v{vL16}, 4, v{vLane}")
        g.e(f"v_lshrrev_b32 v{vT}, 1, v{vPX}")
        g.e(f"v_and_b32 v{vT}, 7, v{vT}")
        g.e(f"v_xor_b32 v{vT}, v{vT}, v{vHF}")
        g.e(f"v_lshlrev_b32 v{vT}, 4, v{vT}")
        g.e(f"v_lshl_add_u32 v{vXA[0]}, v{vPX}, 7, v{vT}")
        if G:
            g.e(f"s_lshr_b32 s{sT2}, s{sW}, 1")
            g.e(f"s_lshl_b32 s{sT2}, s{sT2}, 12")
            g.e(f"v_add_u32 v{vXA[0]}, s{sT2}, v{vXA[0]}")
        for s in range(1, 4):
            g.e(f"v_xor_b32 v{vXA[s]}, {s*32}, v{vXA[0]}")
        g.e(f"v_bfe_u32 v{vT}, v{vLane}, 2, 2")
        g.e(f"v_lshl_add_u32 v{vT2}, v{vHF}, 3, v{vT}")
        g.e(f"v_lshlrev_b32 v{vWA}, 8, v{vT2}")
        if G:
            g.e(f"s_and_b32 s{sT2}, s{sW}, 1")
            g.e(f"s_lshl_b32 s{sT2}, s{sT2}, 1")
            g.e(f"v_xor_b32 v{vT}, s{sT2}, v{vT}")
        else:
            g.e(f"v_xor_b32 v{vT}, s{sW}, v{vT}")
        g.e(f"v_lshl_add_u32 v{vWA}, v{vT}, 6, v{vWA}")
        g.e(f"v_bfe_u32 v{vT}, v{vLane}, 4, 1")
        g.e(f"v_lshl_add_u32 v{vWA}, v{vT}, 5, v{vWA}")
        g.e(f"v_and_b32 v{vT}, 3, v{vLane}")
        g.e(f"v_lshl_add_u32 v{vWA}, v{vT}, 3, v{vWA}")

    def publish(G):
        while st.on and st.n < 13: st()
        NL = o.get("NL", 8); LG = NL.bit_length() - 1; MS = NL*128
        def slot_off(dst, src):
            g.e(f"s_and_b32 s92, s{src}, {NL-1}")
            g.e(f"s_lshl_b32 s92, s92, 7")
            g.e(f"s_lshr_b32 s{dst}, s{src}, {LG}")
            g.e(f"s_lshl_b32 s{dst}, s{dst}, 2")
            g.e(f"s_add_u32 s{dst}, s{dst}, s92")
        if G:
            g.e(f"s_lshr_b32 s{sT0}, s{sU}, 1")
            g.e(f"s_and_b32 s{sT1}, s{sU}, 1")
            g.e(f"s_lshl_b32 s{sT2}, s{sT1}, 1")
            g.e(f"s_add_u32 s{sT2}, s{sT2}, s{sT0}")
            g.e(f"s_sub_u32 s{sT2}, s{sT2}, 1")
            g.e(f"s_add_u32 s{sSOX}, s{sT1}, 1")
            g.e(f"s_lshl_b32 s{sSOX}, s{sSOX}, 2")
            g.e(f"s_add_u32 s{sSOX}, s{sSOX}, s{sCT}")
            slot_off(sSOX, sSOX)
            g.e(f"s_mul_i32 s93, s{sT0}, {16*MS}")
            g.e(f"s_add_u32 s{sSOX}, s{sSOX}, s93")
            g.e(f"s_cmp_eq_u32 s{sT1}, 0")
            g.e(f"s_cselect_b32 s{sSOW}, 12, 0")
            g.e(f"s_add_u32 s{sSOW}, s{sSOW}, s{sCT}")
            slot_off(sSOW, sSOW)
            g.e(f"s_mul_i32 s93, s{sT2}, {16*MS}")
            g.e(f"s_add_u32 s{sSOW}, s{sSOW}, s93")
            g.e(f"s_lshr_b32 s{sT2}, s{sT2}, 3")
            g.e(f"s_lshr_b32 s{sT0}, s{sT0}, 3")
            g.e(f"s_cmp_eq_u32 s{sT2}, s{sT0}")
            g.e(f"s_cselect_b32 s92, -1, 0xffff")
            g.e(f"s_mov_b32 s93, 0")
            g.e(f"v_and_b32 v{vT}, 15, v{vLane}")
            g.e(f"v_mul_u32_u24 v{vT}, {MS}, v{vT}")
            g.e(f"v_mov_b32 v{vT2}, s{sSOW}")
            g.e(f"v_mov_b32 v{vPX}, s{sSOX}")
            g.e(f"v_cmp_gt_u32 vcc, 16, v{vLane}")
            g.e("s_nop 1")
            g.e(f"v_cndmask_b32 v{vT2}, v{vT2}, v{vPX}, vcc")
            g.e(f"v_add_u32 v{vT}, v{vT}, v{vT2}")
            g.e(f"s_mov_b32 s{sT0}, {WS_MB}")
        else:
            g.e(f"v_lshrrev_b32 v{vT}, 2, v{vLane}")
            g.e(f"v_lshlrev_b32 v{vT}, 4, v{vT}")
            g.e(f"v_and_b32 v{vT2}, 3, v{vLane}")
            g.e(f"v_add_u32 v{vT}, v{vT}, v{vT2}")
            g.e(f"v_mul_u32_u24 v{vT}, {MS}, v{vT}")
            g.e(f"s_add_u32 s{sT1}, s{sU}, 16")
            slot_off(sT1, sT1)
            g.e(f"s_mul_i32 s{sT0}, s{sCT}, {4*MS}")
            g.e(f"s_add_u32 s{sT0}, s{sT0}, s{sT1}")
            g.e(f"s_add_u32 s{sT0}, s{sT0}, {WS_MB}")
            g.e(f"s_mov_b64 s[92:93], -1")
        dt(g, 5 if G else 6)
        if st.on: g.e("s_memrealtime s[78:79]")
        g.e("s_waitcnt vmcnt(0)")
        g.e("s_barrier")
        if st.on: g.e("s_memrealtime s[80:81]")
        dt(g, 7 if G else 8)
        g.e(f"s_cmp_lg_u32 s{sW}, 0")
        g.e(f"s_cbranch_scc1 {name}_ph2")
        g.e(f"s_mov_b64 exec, s[92:93]")
        g.e(f"buffer_store_dword v{vNC}, v{vT}, {sr(SWS)}, s{sT0} offen sc1")
        g.e("s_mov_b64 exec, -1")
        g.e(f"s_branch {name}_ph2")

    def bodyP():
        g.vm = []; g.lg = []
        st.n = st_n0
        g.label(f"{name}_P")
        NA = 3
        S = o.get("SP", 4)
        STG = 16384 + NA*4096
        XB3, XB4 = S*STG, (S*STG + 32768 if S == 3 else 0)
        PRE = o.get("PREP", 3)
        g.e(f"s_and_b32 s{sODD}, s{sU}, 1")
        g.e(f"s_lshr_b32 s{sT1}, s{sU}, 1")
        g.e(f"s_mul_i32 s{sXROW}, s{sT1}, 288")
        g.e(f"s_mul_i32 s{sT2}, s{sODD}, 160")
        g.e(f"s_add_u32 s{sXROW}, s{sXROW}, s{sT2}")
        g.e(f"s_lshr_b32 s{sKC}, s{sT1}, 1")
        g.e(f"s_lshl_b32 s{sKC}, s{sKC}, 16")
        g.e(f"s_lshl_b32 s93, s{sXROW}, 10")
        g.e(f"s_lshr_b32 s92, s{sKC}, 9")
        g.e("s_waitcnt lgkmcnt(0)")
        if o.get("wsoff", 0):
            g.e(f"s_add_u32 s50, s50, {o['wsoff'] << 20:#x}")
            g.e("s_addc_u32 s51, s51, 0")
        st(); dt(g, 2)
        srd(g, SX, 44, 45, 4608*1024); srd(g, SWT, 10, 11, 512 << 10)
        cur = [None]
        def kofs(kc):
            if cur[0] == kc: return
            cur[0] = kc
            g.e(f"s_add_u32 s{sT2}, s92, {kc*128}")
            g.e(f"s_and_b32 s{sT2}, s{sT2}, 0x3ff")
            g.e(f"s_add_u32 s91, s{sT2}, s93")
            g.e(f"s_lshl_b32 s90, s{sT2}, 9")
        def ldW(kc, m):
            kofs(kc)
            g.e(f"s_add_u32 m0, s{sM0X}, {(kc % S)*STG + m*4096}")
            g.e(f"s_add_u32 s{sSOW}, s90, {m*16384}")
            g.vmem(f"buffer_load_dwordx4 v{vWD}, {sr(SWT)}, s{sSOW} offen{ldw} lds", ("D", kc))
        def ldX(b, kc):
            kofs(kc)
            dst = (kc % S)*STG + 16384 + b*4096 if b < NA else [XB3, XB4][b-NA] + kc*4096
            g.e(f"s_add_u32 m0, s{sM0X}, {dst}")
            g.e(f"s_add_u32 s{sSOX}, s91, {b*32768}")
            g.vmem(f"buffer_load_dwordx4 v{vXD}, {sr(SX)}, s{sSOX} offen{ldf} lds", ("D", kc) if b < NA else ("XB", b))
        ldq = []
        for kc in range(8):
            for m in range(4): ldq.append(("W", kc, m, kc - S))
            for b in range(NA): ldq.append(("X", b, kc, kc - S))
            if not o.get("late", 1) and kc >= 2:
                for b in (3, 4): ldq.append(("X", b, kc - 2, -1))
        if o.get("late", 1):
            for b in (3, 4):
                for kc in range(8): ldq.append(("X", b, kc, 5 if (b == 4 and S == 4) else -1))
        else:
            for kc in (6, 7):
                for b in (3, 4): ldq.append(("X", b, kc, -1))
        freed = [-1]
        def ldnext():
            if not ldq or len(g.vm) >= 60: return False
            t, a, b_, need = ldq[0]
            if need > freed[0]: return False
            ldq.pop(0)
            if t == "W": ldW(a, b_)
            else: ldX(a, b_)
            return True
        for _ in range(7*PRE): ldnext()
        slotc = [0]
        srd(g, SDB, 48, 49, 256)
        frag_consts(False)
        srd(g, SWS, 50, 51, 16 << 20)
        g.e(f"s_lshl_b32 s{sT0}, s{sCT}, 2")
        g.e(f"s_add_u32 s{sT0}, s{sT0}, s{sW}")
        g.e(f"s_mul_i32 s{sT0}, s{sT0}, {32*10240}")
        g.e(f"s_add_u32 s{sT0}, s{sT0}, {WS_WP}")
        g.e(f"v_add_u32 v{vST}, s{sT0}, v{vL16}")
        XRB = TMP + 40
        def read_list(kc, s):
            p = (kc*4 + s) % 2
            ks = 4*kc + s
            L = []
            for h in range(2):
                L.append((f"ds_read_b64_tr_b16 {ar(4*ks+2*h,2)}, v{vWAs} offset:{s*4096+h*1024}", 0))
            for b in range(NA):
                L.append((f"ds_read_b128 {vr(XF+p*20+b*4)}, v{vXAs[s]} offset:{b*4096}", b))
            return [(r, ("R", kc, s, b)) for r, b in L]
        def stage_addr(kc):
            sb = (kc % S) * STG
            for s in range(4): g.e(f"v_add_u32 v{vXAs[s]}, {sb + 16384}, v{vXA[s]}")
            g.e(f"v_add_u32 v{vWAs}, {sb}, v{vWA}")
        stage_addr(0)
        st()
        g.wait_vm([("D", 0)])
        g.e("s_barrier")
        st()
        for r, t in read_list(0, 0): g.lds(r, t)
        LPA = o.get("LPA", 1)
        for kc in range(8):
            for s in range(4):
                if s < 3:
                    nxt = read_list(kc, s+1)
                else:
                    nxt = []
                    if kc < 7:
                        g.wait_lg([("R", kc, 3, b) for b in range(NA)])
                        while any(t[3] == kc+1-S and t[3] >= -10 and ((t[0] == "W" and t[1] == kc+1) or (t[0] == "X" and t[1] < NA and t[2] == kc+1)) for t in ldq): assert ldnext()
                        g.wait_vm([("D", kc+1)])
                        g.e("s_barrier")
                        if kc in (1, 3, 5): st()
                        freed[0] = kc
                        stage_addr(kc+1)
                        nxt = read_list(kc+1, 0)
                p = (kc*4 + s) % 2
                ks = 4*kc + s
                for b in range(NA):
                    g.wait_lg([("R", kc, s, bb) for bb in range(b+1)])
                    ac = vr(ACC+16*b, 16)
                    g.e(f"v_mfma_f32_32x32x16_bf16 {ac}, {vr(XF+p*20+b*4)}, {ar(4*ks)}, {'0' if ks == 0 else ac}")
                    for _ in range(2):
                        if nxt:
                            r, t = nxt.pop(0); g.lds(r, t)
                    slotc[0] += 1
                    if (slotc[0] * o.get("PN", 12)) % 12 < o.get("PN", 12): ldnext()
            if kc == 4:
                g.vmem(f"buffer_load_dword v{vNC}, v{vZ}, {sr(SDB)}, 0 offen sc1", ("NC",))
        while ldq: assert ldnext()
        st()
        def store_block(b):
            a = ACC + 16*b
            L = []
            L.append(f"s_add_u32 s{sT0}, s{sXROW}, {32*b}")
            L.append(f"s_lshr_b32 s{sT1}, s{sT0}, 9")
            L.append(f"s_and_b32 s{sT0}, s{sT0}, 511")
            L.append(f"s_lshr_b32 s{sT0}, s{sT0}, 4")
            L.append(f"s_mul_i32 s{sT0}, s{sT0}, 10")
            L.append(f"s_add_u32 s{sT0}, s{sT0}, s{sT1}")
            L.append(f"s_lshl_b32 s{sT0}, s{sT0}, 10")
            L.append(f"s_add_u32 s{sT1}, s{sT0}, 10240")
            for hh in range(2):
                d = TMP + b*8 + hh*4
                for i in range(4):
                    L.append(f"v_cvt_pk_bf16_f32 v{d+i}, v{a+8*hh+2*i}, v{a+8*hh+2*i+1}")
                L.append(("ST", f"buffer_store_dwordx4 {vr(d)}, v{vST}, {sr(SWS)}, s{sT0 if hh==0 else sT1} offen{stf}"))
            return L
        def emit(x):
            if isinstance(x, tuple): g.vmem(x[1])
            else: g.e(x)
        xr = [0]; xreg = {}
        def xread(b, ks):
            r = XRB + (xr[0] % 8)*4; xr[0] += 1
            g.lds(f"ds_read_b128 {vr(r)}, v{vXAs[ks%4]} offset:{(ks//4)*4096}", ("R2", b, ks))
            return r
        g.wait_vm([("XB", 3)] if o.get("late", 1) else [("XB", 3), ("XB", 4)])
        g.e("s_barrier")
        def blockB(b, pend):
            for s in range(4): g.e(f"v_add_u32 v{vXAs[s]}, {[XB3, XB4][b-3]}, v{vXA[s]}")
            AH = 6
            for ks in range(AH): xreg[(b, ks)] = xread(b, ks)
            for ks in range(32):
                g.wait_lg([("R2", b, ks)])
                ac = vr(ACC + 16*b, 16)
                g.e(f"v_mfma_f32_32x32x16_bf16 {ac}, {vr(xreg[(b,ks)])}, {ar(4*ks)}, {'0' if ks == 0 else ac}")
                if ks + AH < 32: xreg[(b, ks+AH)] = xread(b, ks+AH)
                if ks >= 1:
                    for _ in range(2):
                        if pend: emit(pend.pop(0))
            assert not pend
        blockB(3, store_block(0) + store_block(1) + store_block(2))
        st()
        g.e(f"s_cmp_lg_u32 s{sODD}, 0")
        g.e(f"s_cbranch_scc1 {name}_P4")
        saved = (list(g.vm), list(g.lg))
        if o.get("late", 1):
            g.wait_vm([("XB", 4)])
            g.e("s_barrier")
        blockB(4, store_block(3))
        st(); dt(g, 4)
        g.e("s_nop 3")
        for x in store_block(4): emit(x)
        g.e(f"s_branch {name}_Pdone")
        g.label(f"{name}_P4")
        g.vm, g.lg = saved
        g.e(f"s_lshr_b32 s{sT0}, s{sU}, 1")
        g.e(f"s_and_b32 s{sT2}, s{sT0}, 1")
        g.e(f"s_mul_i32 s{sT0}, s{sT0}, 20480")
        g.e(f"s_add_u32 s{sT0}, s{sT0}, 9216")
        g.e(f"s_add_u32 s{sT1}, s{sT0}, 10240")
        g.e(f"s_cmp_eq_u32 s{sT2}, 0")
        g.e(f"s_cbranch_scc0 {name}_rp1")
        g.e(f"buffer_store_dwordx4 {ar(0)}, v{vST}, {sr(SWS)}, s{sT0} offen{stf}")
        g.e(f"buffer_store_dwordx4 {ar(4)}, v{vST}, {sr(SWS)}, s{sT1} offen{stf}")
        g.e(f"s_branch {name}_rp2")
        g.label(f"{name}_rp1")
        g.e(f"buffer_store_dwordx4 {ar(8)}, v{vST}, {sr(SWS)}, s{sT0} offen{stf}")
        g.e(f"buffer_store_dwordx4 {ar(12)}, v{vST}, {sr(SWS)}, s{sT1} offen{stf}")
        g.label(f"{name}_rp2")
        g.e("s_nop 3")
        for x in store_block(3): emit(x)
        g.label(f"{name}_Pdone")
        g.vm = []
        nonce_wait("P")
        publish(False)

    def bodyG():
        NX, S = 2, 6
        XB = NX * 4096
        STG = XB + 16384
        NI = NX + 4
        PRE1 = o.get("PREG", 3)
        XT = 6*STG
        g.vm = []; g.lg = []
        st.n = st_n0
        g.e(f"s_lshl_b32 s{sXROW}, s{sU}, 16")
        g.e(f"v_lshrrev_b32 v{vT}, 4, v{vLane}")
        g.e(f"s_lshl_b32 s{sT2}, s{sW}, 2")
        g.e(f"v_add_u32 v{vT}, s{sT2}, v{vT}")
        g.e(f"v_and_b32 v{vT2}, 15, v{vLane}")
        g.e(f"v_xor_b32 v{vT2}, v{vT2}, v{vT}")
        g.e(f"v_lshlrev_b32 v{vT2}, 4, v{vT2}")
        g.e(f"v_lshl_add_u32 v{vT}, v{vT}, 10, v{vT2}")
        g.e(f"s_lshl_b32 s{sT2}, s{sCT}, 8")
        g.e(f"v_add_u32 v{vWR}, s{sT2}, v{vT}")
        g.e("s_waitcnt lgkmcnt(0)")
        if o.get("wsoff", 0):
            g.e(f"s_add_u32 s50, s50, {o['wsoff'] << 20:#x}")
            g.e("s_addc_u32 s51, s51, 0")
        st(); dt(g, 2)
        srd(g, SX, 6, 7, 2 << 20); srd(g, SWT, 8, 9, 512 << 10); srd(g, SXI, 4, 5, 2 << 20)
        def ld1(kc, m):
            sb = (kc % S) * STG
            isx = m < NX
            mm = m if isx else m - NX
            g.e(f"s_add_u32 m0, s{sM0X}, {sb + m*4096}")
            if isx: g.e(f"s_add_u32 s{sSOX}, s{sXROW}, {mm*32768 + kc*128}")
            else:   g.e(f"s_mov_b32 s{sSOW}, {(kc*64 + 16*mm)*1024}")
            va, sd, so = (vXD, SX, sSOX) if isx else (vWD, SWT, sSOW)
            g.vmem(f"buffer_load_dwordx4 v{va}, {sr(sd)}, s{so} offen{ldf if isx else ldw} lds", ("D", kc))
        for m in range(NI): ld1(0, m)
        srd(g, SDB, 48, 49, 256)
        g.e(f"s_or_b32 s{sT0}, s2, s{sW}")
        g.e(f"s_cmp_lg_u32 s{sT0}, 0")
        g.e(f"s_cbranch_scc1 {name}_nn")
        g.e("s_memrealtime s[96:97]")
        g.e("s_waitcnt lgkmcnt(0)")
        g.e(f"s_or_b32 s96, s96, 1")
        g.e(f"v_mov_b32 v{vT}, s96")
        g.e(f"buffer_store_dword v{vT}, v{vZ}, {sr(SDB)}, 0 offen sc1")
        g.label(f"{name}_nn")
        for kc in range(1, PRE1):
            for m in range(NI): ld1(kc, m)
        ldq = [(kc, m) for kc in range(PRE1, 8) for m in range(NI)]
        k6 = [i for i, (kc, m) in enumerate(ldq) if kc >= 5][0]
        ldq[k6:k6] = [("X", m) for m in range(4)]
        freed = [0]
        def ldnext():
            if not ldq: return False
            kc, m = ldq[0]
            if kc == "X":
                ldq.pop(0)
                g.e(f"s_add_u32 m0, s{sM0X}, {XT + m*4096}")
                g.e(f"s_add_u32 s{sSOX}, s{sXROW}, {m*16384}")
                g.vmem(f"buffer_load_dwordx4 v{vWR}, {sr(SXI)}, s{sSOX} offen{ldf} lds", ("D", 5))
                return True
            if kc - S >= freed[0]: return False
            ldq.pop(0); ld1(kc, m); return True
        frag_consts(True)
        srd(g, SWS, 50, 51, 16 << 20)
        mk = len(g.lines)
        vXR, vGA, vGO = TMP+60, TMP+61, TMP+62
        g.e(f"s_lshr_b32 s{sT0}, s{sW}, 1")
        g.e(f"s_and_b32 s{sT1}, s{sW}, 1")
        g.e(f"s_lshl_b32 s{sT2}, s{sT0}, 13")
        g.e(f"s_add_u32 s{sT2}, s{sT2}, {XT}")
        g.e(f"v_and_b32 v{vT}, 15, v{vPX}")
        g.e(f"s_lshl_b32 s{sSOX}, s{sT1}, 3")
        g.e(f"v_xor_b32 v{vT}, s{sSOX}, v{vT}")
        g.e(f"v_lshlrev_b32 v{vT}, 4, v{vT}")
        g.e(f"v_lshl_add_u32 v{vT}, v{vPX}, 8, v{vT}")
        g.e(f"v_lshl_add_u32 v{vT}, v{vHF}, 3, v{vT}")
        g.e(f"v_add_u32 v{vXR}, s{sT2}, v{vT}")
        g.e(f"s_lshl_b32 s{sT2}, s{sT0}, 15")
        g.e(f"s_add_u32 s{sT2}, s{sT2}, s{sXROW}")
        g.e(f"s_lshl_b32 s{sSOX}, s{sCT}, 13")
        g.e(f"s_add_u32 s{sT2}, s{sT2}, s{sSOX}")
        g.e(f"s_lshl_b32 s{sSOX}, s{sT1}, 12")
        g.e(f"s_add_u32 s{sT2}, s{sT2}, s{sSOX}")
        g.e(f"v_add_u32 v{vST}, s{sT2}, v{vL16}")
        g.e(f"s_lshl_b32 s{sSOX}, s{sU}, 1")
        g.e(f"s_add_u32 s{sSOX}, s{sSOX}, s{sT0}")
        g.e(f"s_lshl_b32 s{sSOX}, s{sSOX}, 12")
        g.e(f"s_add_u32 s{sSOX}, s{sSOX}, {WS_ST}")
        g.e(f"v_lshlrev_b32 v{vGO}, 4, v{vPX}")
        g.e(f"v_add_u32 v{vGO}, s{sSOX}, v{vGO}")
        g.e(f"v_lshl_add_u32 v{vGA}, v{vHF}, 11, v{vGO}")
        g.e(f"s_lshl_b32 s93, s{sCT}, 1")
        g.e(f"s_add_u32 s93, s93, s{sT1}")
        g.e(f"s_lshl_b32 s93, s93, 9")
        deferG = g.lines[mk:]; del g.lines[mk:]
        def stage_addr(kc):
            sb = (kc % S) * STG
            for s in range(4): g.e(f"v_add_u32 v{vXAs[s]}, {sb}, v{vXA[s]}")
            g.e(f"v_add_u32 v{vWAs}, {sb + XB}, v{vWA}")
            g.e(f"v_xor_b32 v{vWAs2}, 64, v{vWAs}")
        def read_list(kc, s):
            p = (kc*4 + s) % 2
            L = [(f"ds_read_b128 {vr(XF+p*20)}, v{vXAs[s]}", 0)]
            for cb in range(2):
                for h in range(2):
                    L.append((f"ds_read_b64_tr_b16 {vr(WF+p*8+cb*4+h*2,2)}, v{vWAs if cb==0 else vWAs2} offset:{s*4096+h*1024}", cb))
            return [(r, ("R", kc, s, b)) for r, b in L]
        stage_addr(0)
        st()
        g.wait_vm([("D", 0)])
        g.e("s_barrier")
        st()
        XR = TMP
        XU = ACC + 32
        for r, t in read_list(0, 0): g.lds(r, t)
        LPM = o.get("LPG", 1)
        for kc in range(8):
            for s in range(4):
                if s < 3:
                    nxt = read_list(kc, s+1)
                else:
                    nxt = []
                    if kc < 7:
                        g.wait_lg([("R", kc, 3, b) for b in range(2)])
                        while any(c_ == kc+1 for c_, _ in ldq): assert ldnext()
                        g.wait_vm([("D", kc+1)])
                        g.e("s_barrier")
                        if kc in (0, 2, 4, 6): st()
                        freed[0] = kc + 1
                        stage_addr(kc+1)
                        nxt = read_list(kc+1, 0)
                p = (kc*4 + s) % 2
                for b in range(2):
                    g.wait_lg([("R", kc, s, bb) for bb in range(b+1)])
                    ac = vr(ACC+16*b, 16)
                    g.e(f"v_mfma_f32_32x32x16_bf16 {ac}, {vr(WF+p*8+b*4)}, {vr(XF+p*20)}, {'0' if kc == 0 and s == 0 else ac}")
                    for _ in range(3):
                        if nxt:
                            r, t = nxt.pop(0); g.lds(r, t)
                    for _ in range(LPM): ldnext()
            if kc == 4:
                g.vmem(f"buffer_load_dword v{vNC}, v{vZ}, {sr(SDB)}, 0 offen sc1", ("NC",))
            if kc == 0: g.lines += deferG
            if kc == 5:
                for j in range(8):
                    g.e(f"v_xor_b32 v{vT2}, {j*16}, v{vXR}")
                    g.lds(f"ds_read_b64 {vr(XR+2*j,2)}, v{vT2}", ("XR", j))
            if kc == 6:
                g.wait_lg([("XR", 7)])
                for j in range(16):
                    g.e(f"v_lshlrev_b32 v{XU+2*j}, 16, v{XR+j}")
                    g.e(f"v_and_b32 v{XU+2*j+1}, 0xffff0000, v{XR+j}")
        assert not ldq
        st(); dt(g, 3)
        nonce_wait("G")
        g.e("s_nop 7")
        S1, S2 = TMP+16, TMP+18
        P1, P2 = TMP+20, TMP+22
        for i in range(16): g.e(f"v_pk_add_f32 {vr(ACC+2*i,2)}, {vr(ACC+2*i,2)}, {vr(XU+2*i,2)}")
        g.e(f"v_pk_add_f32 {vr(P1,2)}, {vr(ACC,2)}, {vr(ACC+2,2)}")
        g.e(f"v_pk_mul_f32 {vr(P2,2)}, {vr(ACC,2)}, {vr(ACC,2)}")
        g.e(f"v_pk_fma_f32 {vr(P2,2)}, {vr(ACC+2,2)}, {vr(ACC+2,2)}, {vr(P2,2)}")
        for i in range(2, 16):
            g.e(f"v_pk_add_f32 {vr(P1,2)}, {vr(P1,2)}, {vr(ACC+2*i,2)}")
            g.e(f"v_pk_fma_f32 {vr(P2,2)}, {vr(ACC+2*i,2)}, {vr(ACC+2*i,2)}, {vr(P2,2)}")
        g.e(f"v_add_f32 v{S1}, v{P1}, v{P1+1}")
        g.e(f"v_add_f32 v{S2}, v{P2}, v{P2+1}")
        g.e(f"v_mov_b32 v{vT}, v{S1}")
        g.e(f"v_mov_b32 v{vT2}, v{S2}")
        g.e(f"v_mov_b32 v{S1+1}, v{vNC}")
        g.e(f"v_mov_b32 v{S2+1}, v{vNC}")
        g.e(f"v_permlane32_swap_b32 v{S1}, v{vT}")
        g.e(f"v_permlane32_swap_b32 v{S2}, v{vT2}")
        g.e(f"v_add_f32 v{S1}, v{S1}, v{vT}")
        g.e(f"v_add_f32 v{S2}, v{S2}, v{vT2}")
        g.e("s_mov_b64 exec, 0xffffffff")
        g.e(f"buffer_store_dwordx4 {vr(S1)}, v{vGO}, {sr(SWS)}, s93 offen sc1")
        g.e("s_mov_b64 exec, -1")
        st()
        for j in range(16):
            g.e(f"v_cvt_pk_bf16_f32 v{XR+j}, v{ACC+2*j}, v{ACC+2*j+1}")
        g.e("s_nop 1")
        for hh in range(4):
            g.e(f"v_permlane32_swap_b32 v{XR+4*hh}, v{XR+4*hh+2}")
            g.e(f"v_permlane32_swap_b32 v{XR+4*hh+1}, v{XR+4*hh+3}")
        EA, EB = TMP + 24, TMP + 40
        def poll_issue(E):
            for e_ in range(4):
                g.e(f"buffer_load_dwordx4 {vr(E+4*e_)}, v{vGA}, {sr(SWS)}, 0 offen offset:{e_*512} sc1")
        def poll_check(E):
            g.e(f"v_xor_b32 v{vT}, v{E+1}, v{vNC}")
            for e_ in range(4):
                for o_ in (1, 3):
                    if e_ == 0 and o_ == 1: continue
                    g.e(f"v_xor_b32 v{vT2}, v{E+4*e_+o_}, v{vNC}")
                    g.e(f"v_or_b32 v{vT}, v{vT}, v{vT2}")
            g.e(f"v_cmp_ne_u32 vcc, 0, v{vT}")
            g.e("s_nop 4")
        g.e(f"s_mov_b32 s{sT2}, 0")
        poll_issue(EA)
        g.label(f"{name}_poll")
        g.e(f"s_add_u32 s{sT2}, s{sT2}, 1")
        g.e(f"s_cmp_gt_u32 s{sT2}, 100000")
        g.e(f"s_cbranch_scc1 {name}_pollx")
        if o.get("pp", 1):
            g.e("s_sleep 4")
            poll_issue(EB)
            g.e("s_waitcnt vmcnt(4)")
            poll_check(EA)
            g.e(f"s_cbranch_vccz {name}_pollx")
            poll_issue(EA)
            g.e("s_waitcnt vmcnt(4)")
            poll_check(EB)
            g.e(f"s_cbranch_vccnz {name}_poll")
            g.e("s_waitcnt vmcnt(0)")
        else:
            g.e("s_waitcnt vmcnt(0)")
            poll_check(EA)
            g.e(f"s_cbranch_vccz {name}_pollx")
            poll_issue(EA)
            g.e(f"s_branch {name}_poll")
        g.label(f"{name}_pollx")
        st()
        E = EA
        g.e(f"s_mov_b32 s{sT1}, {WS_HI}")
        for e_ in range(1, 4):
            g.e(f"v_add_f32 v{E}, v{E}, v{E+4*e_}")
            g.e(f"v_add_f32 v{E+2}, v{E+2}, v{E+4*e_+2}")
        g.e(f"v_mov_b32 v{vT}, v{E}")
        g.e(f"v_mov_b32 v{vT2}, v{E+2}")
        for hh in range(4):
            g.e(f"buffer_store_dwordx4 {vr(XR+4*hh)}, v{vST}, {sr(SWS)}, s{sT1} offen offset:{hh*1024}{stf}")
        g.e(f"v_permlane32_swap_b32 v{E}, v{vT}")
        g.e(f"v_permlane32_swap_b32 v{E+2}, v{vT2}")
        g.e(f"v_add_f32 v{E}, v{E}, v{vT}")
        g.e(f"v_add_f32 v{E+2}, v{E+2}, v{vT2}")
        g.e(f"v_mul_f32 v{E}, {f2u(1/512):#x}, v{E}")
        g.e(f"v_mul_f32 v{E+2}, {f2u(1/512):#x}, v{E+2}")
        g.e(f"v_fma_f32 v{E+2}, -v{E}, v{E}, v{E+2}")
        g.e(f"v_max_f32 v{E+2}, 0, v{E+2}")
        g.e(f"v_add_f32 v{E+2}, {f2u(1e-5):#x}, v{E+2}")
        A_, B_, A2, B2 = E+4, E+6, E+8, E+10
        g.e(f"v_rsq_f32 v{A_}, v{E+2}")
        g.e("s_nop 0")
        g.e(f"v_mul_f32 v{B_}, v{E}, v{A_}")
        g.e(f"v_sub_f32 v{B_}, 0, v{B_}")
        g.e(f"v_mul_f32 v{A2}, {f2u(-LOG2E):#x}, v{A_}")
        g.e(f"v_mul_f32 v{B2}, {f2u(-LOG2E):#x}, v{B_}")
        Y = XF
        D = WF
        for hh in range(4):
            a = ACC + 8*hh; y = Y + (hh % 2)*8
            for i in range(4): g.e(f"v_pk_fma_f32 {vr(y+2*i,2)}, {vr(a+2*i,2)}, {vr(A2,2)}, {vr(B2,2)} op_sel_hi:[1,0,0]")
            for i in range(8): g.e(f"v_exp_f32 v{y+i}, v{y+i}")
            for i in range(4): g.e(f"v_pk_fma_f32 {vr(a+2*i,2)}, {vr(a+2*i,2)}, {vr(A_,2)}, {vr(B_,2)} op_sel_hi:[1,0,0]")
            for i in range(4): g.e(f"v_pk_add_f32 {vr(y+2*i,2)}, {vr(y+2*i,2)}, 1.0 op_sel_hi:[1,0]")
            for i in range(8): g.e(f"v_rcp_f32 v{y+i}, v{y+i}")
            g.e("s_nop 0")
            for i in range(4): g.e(f"v_pk_mul_f32 {vr(a+2*i,2)}, {vr(a+2*i,2)}, {vr(y+2*i,2)}")
            d = D + hh*4
            for i in range(4): g.e(f"v_cvt_pk_bf16_f32 v{d+i}, v{a+2*i}, v{a+2*i+1}")
            g.e(f"buffer_store_dwordx4 {vr(d)}, v{vST}, {sr(SWS)}, 0 offen offset:{hh*1024}{stf}")
        publish(True)
    bodyG(); bodyP()

def phase2(g, name, st, o):
    NST, PRE, EVERY = o.get("NST", 3), o.get("PRE", 20), o.get("EVERY", 2)
    lf = o.get("lf", " sc1").replace(" none", "")
    SA, SWP, SX, SO, SDB = 12, 16, 20, 24, 28
    C4K, C8K, C2M, C2M4K = 33, 34, 42, 43
    sMT, sNT, sB, sT0, sT1, sR0, sBASE = 35, 36, 37, 38, 39, 97, 96
    vLane, vT, vW, vMR, vML, vO, vT2 = 1, 2, 3, 4, 5, 6, 7
    vH = [8+j for j in range(6)]
    vA, vA1 = 14, 15
    vXF = 16
    HB = 24
    HIB = HB + NST*24
    T0 = HIB + NST*16
    T2 = T0 + 24
    VEND = T2 + 24
    vF, vG, vPF = VEND, VEND+1, VEND+2
    assert VEND + 8 <= 250
    ACC, WB = 0, 64
    AEND = WB + NST*40
    g.vm = []; g.lg = []
    g.label(f"{name}_ph2")
    if st.on: st.n = 15
    st()
    g.e(f"s_and_b32 s{sT0}, s2, 7")
    g.e(f"s_lshr_b32 s{sT1}, s2, 3")
    g.e(f"s_and_b32 s{sB}, s{sT0}, 1")
    g.e(f"s_lshr_b32 s{sT0}, s{sT0}, 1")
    g.e(f"s_and_b32 s{sMT}, s{sT1}, 7")
    g.e(f"s_lshr_b32 s{sT1}, s{sT1}, 3")
    g.e(f"s_lshl_b32 s{sNT}, s{sT0}, 2")
    g.e(f"s_add_u32 s{sNT}, s{sNT}, s{sT1}")
    g.e(f"s_lshl_b32 s{sT0}, s{sB}, 5")
    g.e(f"s_lshl_b32 s{sT1}, s{sMT}, 2")
    g.e(f"s_add_u32 s{sR0}, s{sT0}, s{sT1}")
    srd(g, SDB, 50, 51, 16 << 20)
    NL = o.get("NL", 8); LG = NL.bit_length() - 1; MS = NL*128
    g.e(f"s_lshr_b32 s{sT0}, s{sR0}, 2")
    g.e(f"s_lshl_b32 s{sT0}, s{sT0}, 4")
    g.e(f"s_add_u32 s{sT0}, s{sT0}, s{sNT}")
    g.e(f"s_mul_i32 s{sT0}, s{sT0}, {MS}")
    g.e(f"s_add_u32 s{sT0}, s{sT0}, {WS_MB}")
    g.e(f"v_and_b32 v{vF}, {NL-1}, v{vLane}")
    g.e(f"v_lshlrev_b32 v{vF}, 7, v{vF}")
    g.e(f"v_lshrrev_b32 v{vG}, {LG}, v{vLane}")
    g.e(f"v_lshl_add_u32 v{vF}, v{vG}, 2, v{vF}")
    g.e(f"v_add_u32 v{vF}, s{sT0}, v{vF}")
    g.e(f"s_movk_i32 s{C4K}, 0x1000")
    g.e(f"s_movk_i32 s{C8K}, 0x2000")
    g.e(f"s_mov_b32 s{C2M}, 0x200000")
    g.e(f"s_mov_b32 s{C2M4K}, 0x201000")
    g.e(f"s_lshl_b32 s{sBASE}, s{sR0}, 15")
    g.e(f"s_lshl_b32 s{sT0}, s{sW}, 13")
    g.e(f"s_add_u32 s{sBASE}, s{sBASE}, s{sT0}")
    g.e(f"v_lshlrev_b32 v{vT}, 4, v{vLane}")
    for j in range(1, 5):
        g.e(f"s_add_u32 s{sT0}, s{sBASE}, {(j-1)*32768}")
        g.e(f"v_add_u32 v{vH[j]}, s{sT0}, v{vT}")
    g.e(f"s_sub_u32 s{sT0}, s{sBASE}, 32768")
    g.e(f"s_cmp_eq_u32 s{sMT}, 0")
    g.e(f"s_cselect_b32 s{sT0}, 0x40000000, s{sT0}")
    g.e(f"v_add_u32 v{vH[0]}, s{sT0}, v{vT}")
    g.e(f"s_add_u32 s{sT0}, s{sBASE}, {4*32768}")
    g.e(f"s_cmp_eq_u32 s{sMT}, 7")
    g.e(f"s_cselect_b32 s{sT0}, 0x40000000, s{sT0}")
    g.e(f"v_add_u32 v{vH[5]}, s{sT0}, v{vT}")
    g.e(f"s_lshl_b32 s{sT0}, s{sNT}, 5")
    g.e(f"s_lshl_b32 s{sT1}, s{sW}, 3")
    g.e(f"s_add_u32 s{sT0}, s{sT0}, s{sT1}")
    g.e(f"s_mul_i32 s92, s{sT0}, 10240")
    g.e(f"v_add_u32 v{vW}, s92, v{vT}")
    srd(g, SA, 50, 51, 4 << 20)
    srd(g, SWP, 50, 51, WP_BYTES, add=WS_WP)
    srd(g, SX, 40, 41, 2 << 20)
    srd(g, SO, 46, 47, 2 << 20)
    g.e(f"s_add_u32 s{sT0}, s{sR0}, s{sW}")
    g.e(f"s_lshl_b32 s{sT0}, s{sT0}, 15")
    g.e(f"s_lshl_b32 s{sT1}, s{sNT}, 6")
    g.e(f"s_add_u32 s{sT0}, s{sT0}, s{sT1}")
    g.e(f"v_lshrrev_b32 v{vO}, 2, v{vLane}")
    g.e(f"v_lshlrev_b32 v{vO}, 10, v{vO}")
    g.e(f"v_and_b32 v{vT2}, 3, v{vLane}")
    g.e(f"v_lshlrev_b32 v{vT2}, 4, v{vT2}")
    g.e(f"v_add3_u32 v{vO}, v{vO}, v{vT2}, s{sT0}")
    g.e(f"s_movk_i32 s{sT1}, 0x4000")
    xfl = " nt" if o.get("nt", 0) else ""
    g.e(f"buffer_load_dwordx4 {vr(vXF)}, v{vO}, {sr(SX)}, 0 offen{xfl}")
    g.e(f"buffer_load_dwordx4 {vr(vXF+4)}, v{vO}, {sr(SX)}, s{sT1} offen{xfl}")
    g.e(f"v_and_b32 v{vT}, 31, v{vLane}")
    g.e(f"v_cmp_ne_u32 vcc, 0, v{vT}")
    g.e("s_nop 1")
    g.e(f"v_cndmask_b32 v{vMR}, 0, -1, vcc")
    g.e(f"v_cmp_ne_u32 vcc, 31, v{vT}")
    g.e("s_nop 1")
    g.e(f"v_cndmask_b32 v{vML}, 0, -1, vcc")
    g.e(f"v_lshlrev_b32 v{vA}, 4, v{vLane}")
    g.e(f"s_mul_i32 s{sT0}, s{sW}, 4352")
    g.e(f"v_add_u32 v{vA}, s{sT0}, v{vA}")
    g.e(f"v_and_b32 v{vA1}, 3, v{vLane}")
    g.e(f"v_mul_u32_u24 v{vA1}, 1088, v{vA1}")
    g.e(f"v_lshrrev_b32 v{vT}, 2, v{vLane}")
    g.e(f"v_lshl_add_u32 v{vA1}, v{vT}, 4, v{vA1}")
    g.e(f"s_mul_i32 s{sT0}, s{sW}, 17408")
    g.e(f"v_add_u32 v{vA1}, s{sT0}, v{vA1}")
    g.e("s_mov_b32 s90, 0xffff0000")
    g.e("s_mov_b32 s91, 0xffff")
    g.e(f"s_movk_i32 s{sT0}, 0x1111")
    g.e(f"s_cmp_eq_u32 s{sMT}, 0")
    g.e(f"s_cselect_b32 s{sT0}, 0x1110, s{sT0}")
    g.e(f"s_cmp_eq_u32 s{sMT}, 7")
    g.e(f"s_cselect_b32 s{sT0}, 0x0111, s{sT0}")
    g.e(f"s_lshl_b32 s94, s{sT0}, s{sW}")
    g.e("s_mov_b32 s95, 0")
    def poll(tag, mask, first_issued):
        g.e(f"s_mov_b32 s{sT0}, 0")
        if first_issued: g.e(f"s_branch {name}_fchk{tag}")
        g.label(f"{name}_fpoll{tag}")
        if o.get("fs", 0): g.e(f"s_sleep {o['fs']}")
        g.e(f"buffer_load_dword v{vG}, v{vF}, {sr(SDB)}, 0 offen sc1")
        g.label(f"{name}_fchk{tag}")
        g.e(f"s_add_u32 s{sT0}, s{sT0}, 1")
        g.e(f"s_cmp_gt_u32 s{sT0}, 200000")
        g.e(f"s_cbranch_scc1 {name}_fw{tag}")
        g.e("s_waitcnt vmcnt(0)")
        g.e(f"v_cmp_ne_u32 vcc, s3, v{vG}")
        g.e("s_nop 4")
        g.e(f"s_and_b64 vcc, vcc, {mask}")
        g.e(f"s_cbranch_scc1 {name}_fpoll{tag}")
        g.label(f"{name}_fw{tag}")

    SPF = o.get("spf", 0)
    if SPF:
        g.e(f"s_mul_i32 s{sT0}, s{sMT}, 1280")
        g.e(f"s_add_u32 s{sT0}, s{sT0}, s92")
        g.e(f"s_add_u32 s{sT0}, s{sT0}, {WS_WP}")
        g.e(f"s_add_u32 s4, s50, s{sT0}")
        g.e(f"s_addc_u32 s5, s51, 0")
        g.e(f"s_and_b32 s{sT0}, s{sNT}, 3")
        g.e(f"s_lshl_b32 s{sT0}, s{sT0}, 8")
        g.e(f"s_add_u32 s{sT0}, s{sT0}, s{sBASE}")
        g.e(f"s_add_u32 s6, s50, s{sT0}")
        g.e(f"s_addc_u32 s7, s51, 0")
        g.e(f"s_add_u32 s8, s6, 0x200000")
        g.e(f"s_addc_u32 s9, s7, 0")
    def spf_list(k):
        if not SPF or k > 7: return []
        L = [f"s_load_dword s10, s[4:5], {k*10240 + i*128:#x}" for i in range(10)]
        if o.get("spfh", 1):
            for r in range(4):
                for i in range(2):
                    L.append(f"s_load_dword s10, s[6:7], {r*32768 + k*1024 + i*128:#x}")
                    L.append(f"s_load_dword s10, s[8:9], {r*32768 + k*1024 + i*128:#x}")
        return L
    def Hreg(s_, j): return HB + s_*24 + j*4
    def HIreg(s_, r): return HIB + s_*16 + r*4
    def Wreg(s_, t): return WB + s_*40 + t*4
    def ldW(k, t):
        s_ = k % NST
        off = (k*10 + t)*1024
        return ("W", k, t, s_, off)
    def emitW(k, t):
        s_ = k % NST
        off = (k*10 + t)*1024
        g.e(f"s_mov_b32 s{sT0}, {off & ~4095}")
        g.vmem(f"buffer_load_dwordx4 {ar(Wreg(s_,t))}, v{vW}, {sr(SWP)}, s{sT0} offen offset:{off & 4095}{lf}", ("W", k, t))
    def emitH(k, j):
        s_ = k % NST
        so_h = "0" if k < 4 else f"s{C4K}"
        g.vmem(f"buffer_load_dwordx4 {vr(Hreg(s_,j))}, v{vH[j]}, {sr(SA)}, {so_h} offen offset:{(k%4)*1024}{lf}", ("H", k, j))
    def emitHI(k, r):
        s_ = k % NST
        so = f"s{C2M}" if k < 4 else f"s{C2M4K}"
        g.vmem(f"buffer_load_dwordx4 {vr(HIreg(s_,r))}, v{vH[r+1]}, {sr(SA)}, {so} offen offset:{(k%4)*1024}{lf}", ("HI", k, r))
    def order(k):
        return [("W",1),("H",0),("H",1),("H",2),("H",3),("W",4),("H",4),("W",7),("H",5),("W",9),
                ("HI",0),("HI",1),("HI",2),("HI",3),("W",0),("W",3),("W",6),("W",2),("W",5),("W",8)]
    queue = [(k, t, i) for k in range(8) for (t, i) in order(k)]
    def emit_item(it):
        k, t, i = it
        {"W": emitW, "H": emitH, "HI": emitHI}[t](k, i)
    WPRE = o.get("WPRE", 2)
    split = 0
    if split:
        poll("P", "s[90:91]", False)
        st(); dt(g, 9)
        pre = [it for it in queue if it[1] == "W" and it[0] < WPRE]
        for it in pre:
            queue.remove(it); emit_item(it)
        if o.get("pfw", 0):
            g.e(f"s_mul_i32 s{sT0}, s{sMT}, 10240")
            g.e(f"s_add_u32 s{sT0}, s{sT0}, s92")
            g.e(f"v_lshlrev_b32 v{vPF}, 7, v{vLane}")
            g.e(f"buffer_load_dword v{vPF+1}, v{vPF}, {sr(SWP)}, s{sT0} offen{lf}")
            g.e(f"s_add_u32 s{sT0}, s{sT0}, 2048")
            g.e(f"buffer_load_dword v{vPF+2}, v{vPF}, {sr(SWP)}, s{sT0} offen{lf}")
        g.e(f"v_cmp_ne_u32 vcc, s3, v{vG}")
        g.e("s_nop 4")
        g.e("s_and_b64 vcc, vcc, s[94:95]")
        g.e(f"s_cbranch_scc0 {name}_fwG")
        poll("G", "s[94:95]", False)
    else:
        if o.get("w0", 1):
            g.e(f"s_mov_b32 s{sT0}, 0xffff")
            g.e(f"s_cmp_eq_u32 s{sMT}, 0")
            g.e(f"s_cselect_b32 s{sT0}, 0xfff0, s{sT0}")
            g.e(f"s_cmp_eq_u32 s{sMT}, 7")
            g.e(f"s_cselect_b32 s94, 0x0fff, s{sT0}")
            g.e("s_or_b64 s[90:91], s[90:91], s[94:95]")
            g.e(f"s_cmp_lg_u32 s{sW}, 0")
            g.e(f"s_cbranch_scc1 {name}_fwP")
            poll("P", "s[90:91]", False)
            g.e("s_waitcnt vmcnt(0)")
            g.e("s_barrier")
        else:
            g.e("s_or_b64 s[90:91], s[90:91], s[94:95]")
            poll("P", "s[90:91]", False)
        st(); dt(g, 9)
    if st.on:
        g.e(f"s_memrealtime s[{52+2*st.n}:{53+2*st.n}]"); st.n += 1
    def issue_next(cur_k):
        if not queue: return False
        it = queue[0]
        if it[0] - NST >= cur_k or len(g.vm) >= 60: return False
        queue.pop(0); emit_item(it); return True
    def need(tok, k):
        while any((it[1], it[0], it[2]) == tok for it in queue): assert issue_next(k)
    for _ in range(PRE): issue_next(0)
    if o.get("pfh", 0):
        g.e(f"s_and_b32 s{sT0}, s{sNT}, 3")
        g.e(f"s_lshl_b32 s{sT0}, s{sT0}, 11")
        g.e(f"s_add_u32 s{sT0}, s{sT0}, s{sBASE}")
        g.e(f"v_lshrrev_b32 v{vPF}, 4, v{vLane}")
        g.e(f"v_lshlrev_b32 v{vPF}, 15, v{vPF}")
        g.e(f"v_and_b32 v{vPF+1}, 15, v{vLane}")
        g.e(f"v_lshl_add_u32 v{vPF}, v{vPF+1}, 7, v{vPF}")
        g.vmem(f"buffer_load_dword v{vPF+1}, v{vPF}, {sr(SA)}, s{sT0} offen{lf}")
        g.e(f"s_add_u32 s{sT0}, s{sT0}, 0x200000")
        g.vmem(f"buffer_load_dword v{vPF+2}, v{vPF}, {sr(SA)}, s{sT0} offen{lf}")
    wr_pending = []
    for k in range(8):
        s_ = k % NST
        last = k == 7
        g.c(f"---- k-step {k}")
        if k == 1: st()
        if o.get("ste") and k >= 2: g.e(f"s_memtime s[{60+2*(k-2)}:{61+2*(k-2)}]")
        dpp = [(T0, vMR, "wave_shr:1", j, i) for j in range(6) for i in range(4)]
        dpp2 = [(T2, vML, "wave_shl:1", j, i) for j in range(6) for i in range(4)]
        mf = []
        for di in range(3):
            for r in range(4): mf.append((r, di*3+1, ("H", k, r+di), Hreg(s_, r+di), "A"))
        for r in range(4): mf.append((r, 9, ("HI", k, r), HIreg(s_, r), "B"))
        if not last:
            for di in range(3):
                for r in range(4): mf.append((r, di*3, None, T0 + (r+di)*4, "C"))
            for di in range(3):
                for r in range(4): mf.append((r, di*3+2, None, T2 + (r+di)*4, "D"))
        else:
            dpp = [x for pair in zip(dpp, dpp2) for x in pair]; dpp2 = []
            for r in range(4):
                for di in range(3): mf.append((r, di*3, None, T0 + (r+di)*4, "E"))
                for di in range(3): mf.append((r, di*3+2, None, T2 + (r+di)*4, "E" if di < 2 else "F"))
        since = 0
        spl = spf_list(k + SPF) if k > 0 else [x for kk in range(2, SPF+1) for x in spf_list(kk)]
        for n, (r, t, ht, hreg, grp) in enumerate(mf):
            toks = [("W", k, t)] + ([ht] if ht else [])
            for tok in toks: need(tok, k)
            g.wait_vm(toks)
            c = "0" if (k == 0 and n < 4) else ar(ACC+16*r, 16)
            if o.get("fake16"):
                for u_ in range(2):
                    q_ = ACC + 16*r + 4*((2*n + u_) % 4)
                    g.e(f"v_mfma_f32_16x16x32_bf16 {ar(q_)}, {ar(Wreg(s_,t))}, {vr(hreg)}, {'0' if k == 0 and n < 8 else ar(q_)}")
            else:
                g.e(f"v_mfma_f32_32x32x16_bf16 {ar(ACC+16*r,16)}, {ar(Wreg(s_,t))}, {vr(hreg)}, {c}")
            if grp in "AB" and n >= 2:
                for _ in range(4 if last else 2):
                    if dpp:
                        T, vm_, sh, j, i = dpp.pop(0)
                        need(("H", k, j), k); g.wait_vm([("H", k, j)])
                        g.e(f"v_and_b32_dpp v{T+j*4+i}, v{Hreg(s_,j)+i}, v{vm_} {sh} row_mask:0xf bank_mask:0xf bound_ctrl:0")
            if grp == "C":
                for _ in range(3):
                    if dpp2:
                        T, vm_, sh, j, i = dpp2.pop(0)
                        g.e(f"v_and_b32_dpp v{T+j*4+i}, v{Hreg(s_,j)+i}, v{vm_} {sh} row_mask:0xf bank_mask:0xf bound_ctrl:0")
            if o.get("RN"):
                if (n * o["RN"]) % o["RD"] < o["RN"]: issue_next(k)
            elif n % EVERY == EVERY - 1: issue_next(k)
            for _ in range(2 if k == 0 else 1):
                if spl: g.e(spl.pop(0))
            if wr_pending:
                since += 1
                if since == 2: g.e("s_nop 9")
                if since >= 2:
                    g.e(wr_pending.pop(0))
            if grp == "F":
                assert not wr_pending
                wr_pending = [f"ds_write_b128 v{vA}, {ar(ACC+16*r+4*q)} offset:{r*17408 + q*1088}" for q in range(4)]
                since = 0
        assert not dpp and not dpp2
    assert not queue
    g.c("---- epilogue")
    st(); dt(g, 11)
    g.e("s_nop 11")
    for w_ in wr_pending: g.e(w_)
    g.e("s_waitcnt lgkmcnt(0)")
    if o.get("ste"): g.e("s_memtime s[54:55]")
    g.e("s_barrier")
    if o.get("ste"): g.e("s_memtime s[56:57]")
    R = HB
    for i in range(2):
        for src in range(4):
            for hf in range(2):
                g.lds(f"ds_read_b128 {vr(R + ((i*4+src)*2+hf)*4)}, v{vA1} offset:{src*4352 + hf*512 + i*256}", ("R", i, src))
    XU = R + 64
    for i in range(2):
        for e_ in range(4):
            x = vXF + 4*i + e_
            g.e(f"v_lshlrev_b32 v{XU+8*i+2*e_}, 16, v{x}")
            g.e(f"v_and_b32 v{XU+8*i+2*e_+1}, 0xffff0000, v{x}")
    for i in range(2):
        base = R + i*32
        for src in range(4):
            g.wait_lg([("R", i, src)])
            for e_ in range(4):
                g.e(f"v_pk_add_f32 {vr(XU+8*i+2*e_,2)}, {vr(XU+8*i+2*e_,2)}, {vr(base+8*src+2*e_,2)}")
        for e_ in range(4): g.e(f"v_cvt_pk_bf16_f32 v{vXF+4*i+e_}, v{XU+8*i+2*e_}, v{XU+8*i+2*e_+1}")
        g.vmem(f"buffer_store_dwordx4 {vr(vXF+4*i)}, v{vO}, {sr(SO)}, {'0' if i==0 else 's%d'%sT1} offen{o.get('ostf',' sc1')}")
    if o.get("ste"): g.e("s_memtime s[58:59]")
    if o.get("enc"):
        i = o["enc"]
        g.e("s_waitcnt vmcnt(0)")
        g.e("s_memrealtime s[76:77]")
        g.e(f"s_cmp_lg_u32 s2, {o.get('encwg', 8)}")
        g.e("s_cbranch_scc1 enc_done")
        g.e(f"s_cmp_lg_u32 s{sW}, 0")
        g.e("s_cbranch_scc1 enc_done")
        g.e("s_waitcnt lgkmcnt(0)")
        g.e(f"s_sub_u32 s84, s{52+2*i}, s52")
        g.e("s_mul_i32 s84, s84, 20")
        g.label("enc_loop")
        g.e("s_memrealtime s[86:87]")
        g.e("s_waitcnt lgkmcnt(0)")
        g.e("s_sub_u32 s85, s86, s76")
        g.e("s_cmp_lt_u32 s85, s84")
        g.e("s_cbranch_scc1 enc_loop")
        g.label("enc_done")
    else:
        dt_finish(g)
    st.finish(st.n + 1)
    return AEND

def gen_all(out, o):
    DT[0] = bool(o.get("dt", 0)); CPF[0] = o.get("cpf", 2)
    name = "fused_kernel"
    g = Gen(); st = Stamper(g, o.get("st", 0))
    entry(g, name, st)
    phase1(g, name, st, o)
    aend = phase2(g, name, st, o)
    g.label(f"{name}_end"); g.e("s_endpgm")
    build([(name, g.text(), kd(name, 256 + max(aend, 128), 256, 100), 256, 256, 160*1024)], out)

if __name__ == "__main__":
    o = {}
    for a in sys.argv[2:]:
        k, v = a.split("=")
        o[k] = int(v) if v.lstrip("-").isdigit() else " " + v.replace("+", " ")
    gen_all(sys.argv[1], o)
```

```python
import sys, struct
from gen import Gen, vr, ar, sr, srd, kd, build, WS_H, WS_HI, WS_WP, WS_ST, WP_BYTES
import gen4
from gen4 import Stamper, f2u, LOG2E, sW, WS_MB, dt, dt_finish, DT, CPF, entry

def phase1(g, name, st, o):
    stf = o.get("stf", " sc1")
    ldf = " nt" if o.get("nt", 0) else ""
    ldw = " nt" if o.get("ntw", 0) else ""
    SX, SWT, SWS, SXI, SDB = 12, 16, 20, 24, 28
    sCT, sU, sT0, sT1, sT2, sXROW, sM0X = 33, 34, 35, 36, 37, 38, 39
    sSOX, sSOW, sNONCE = 42, 43, 3
    sODD, sKC = 94, 95
    vLane, vT, vT2, vXD, vWD, vWA, vPX, vHF, vL16 = 1, 2, 3, 4, 5, 6, 7, 8, 9
    vXA = [10, 11, 12, 13]; vXAs = [14, 15, 16, 17]
    vWAs, vST, vWR, vNC, vZ, vWAs2 = 18, 19, 20, 21, 22, 23
    XF, WF, ACC, TMP = 24, 64, 80, 160
    g.e(f"s_and_b32 s{sT0}, s2, 7")
    g.e(f"s_lshr_b32 s{sT1}, s2, 3")
    g.e(f"s_and_b32 s{sCT}, s{sT1}, 3")
    g.e(f"s_lshr_b32 s{sT1}, s{sT1}, 2")
    if o.get("mix", 1):
        g.e(f"s_lshl_b32 s{sU}, s{sT0}, 2")
        g.e(f"s_lshr_b32 s{sT2}, s{sT1}, 1")
        g.e(f"s_add_u32 s{sU}, s{sU}, s{sT2}")
        g.e(f"s_and_b32 s{sT0}, s{sT1}, 1")
        g.e(f"s_lshl_b32 s{sT0}, s{sT0}, 2")
    else:
        g.e(f"s_and_b32 s{sU}, s{sT0}, 3")
        g.e(f"s_lshl_b32 s{sU}, s{sU}, 3")
        g.e(f"s_add_u32 s{sU}, s{sU}, s{sT1}")
    g.e(f"v_lshrrev_b32 v{vT}, 3, v{vLane}")
    g.e(f"s_lshl_b32 s{sT2}, s{sW}, 3")
    g.e(f"v_add_u32 v{vXD}, s{sT2}, v{vT}")
    g.e(f"v_lshrrev_b32 v{vT}, 1, v{vXD}")
    g.e(f"v_and_b32 v{vT}, 7, v{vT}")
    g.e(f"v_and_b32 v{vT2}, 7, v{vLane}")
    g.e(f"v_xor_b32 v{vT}, v{vT}, v{vT2}")
    g.e(f"v_lshlrev_b32 v{vT}, 4, v{vT}")
    g.e(f"v_lshl_add_u32 v{vXD}, v{vXD}, 10, v{vT}")
    g.e(f"v_lshrrev_b32 v{vT}, 4, v{vLane}")
    g.e(f"v_lshlrev_b32 v{vT2}, 2, v{vT}")
    g.e(f"v_and_b32 v{vWD}, 15, v{vLane}")
    g.e(f"v_xor_b32 v{vWD}, v{vWD}, v{vT2}")
    g.e(f"v_lshlrev_b32 v{vWD}, 4, v{vWD}")
    g.e(f"s_lshl_b32 s{sT2}, s{sW}, 2")
    g.e(f"v_add_u32 v{vT}, s{sT2}, v{vT}")
    g.e(f"v_lshl_add_u32 v{vWD}, v{vT}, 10, v{vWD}")
    g.e(f"s_lshl_b32 s{sT2}, s{sCT}, 8")
    g.e(f"v_add_u32 v{vWD}, s{sT2}, v{vWD}")
    g.e(f"s_lshl_b32 s{sM0X}, s{sW}, 10")
    g.e(f"v_mov_b32 v{vZ}, 0")
    g.e(f"s_cmp_ge_u32 s{sT0}, 4")
    g.e(f"s_cbranch_scc1 {name}_P")
    st_n0 = st.n

    def nonce_wait(role):
        g.wait_vm([("NC",)])
        g.e(f"s_mov_b32 s{sT2}, 0")
        g.label(f"{name}_ncpoll{role}")
        g.e(f"v_readfirstlane_b32 s{sNONCE}, v{vNC}")
        g.e(f"s_add_u32 s{sT2}, s{sT2}, 1")
        g.e(f"s_cmp_gt_u32 s{sT2}, 100000")
        g.e(f"s_cbranch_scc1 {name}_ncok{role}")
        g.e(f"s_cmp_lg_u32 s{sNONCE}, 0")
        g.e(f"s_cbranch_scc1 {name}_ncok{role}")
        g.e(f"buffer_load_dword v{vNC}, v{vZ}, {sr(SDB)}, 0 offen sc1")
        g.e("s_waitcnt vmcnt(0)")
        g.e(f"s_branch {name}_ncpoll{role}")
        g.label(f"{name}_ncok{role}")

    def pretouch():
        if not o.get("tlb", 0): return
        lab = f"{name}_pt{len(g.lines)}"
        g.e(f"s_cmp_lg_u32 s{sW}, 3")
        g.e(f"s_cbranch_scc1 {lab}")
        srd(g, 84, 50, 51, 12 << 20)
        g.e(f"v_lshlrev_b32 v{vT}, 18, v{vLane}")
        g.e(f"buffer_load_dword v252, v{vT}, s[84:87], 0 offen")
        srd(g, 84, 46, 47, 2 << 20)
        g.e(f"v_lshlrev_b32 v{vT}, 16, v{vLane}")
        g.e(f"buffer_load_dword v253, v{vT}, s[84:87], 0 offen")
        srd(g, 84, 40, 41, 2 << 20)
        g.e(f"buffer_load_dword v254, v{vT}, s[84:87], 0 offen")
        g.e(f"buffer_load_dword v251, v{vZ}, {sr(SDB)}, 0 offen sc1")
        g.label(lab)

    def l2pf(G):
        pf = o.get("pf", 0)
        if not (pf & (1 if G else 2)): return
        if G:
            g.e(f"v_lshrrev_b32 v{vT}, 2, v{vLane}")
            g.e(f"v_and_b32 v{vT2}, 3, v{vLane}")
            g.e(f"v_lshlrev_b32 v{vT2}, 6, v{vT2}")
            g.e(f"v_lshl_add_u32 v{vT}, v{vT}, 10, v{vT2}")
            g.e(f"s_lshl_b32 s{sT2}, s{sW}, 14")
            g.e(f"s_add_u32 s{sT2}, s{sT2}, s{sXROW}")
        else:
            g.e(f"v_lshrrev_b32 v{vT}, 1, v{vLane}")
            g.e(f"v_and_b32 v{vT2}, 1, v{vLane}")
            g.e(f"v_lshlrev_b32 v{vT2}, 7, v{vT2}")
            g.e(f"v_lshl_add_u32 v{vT}, v{vT}, 10, v{vT2}")
            g.e(f"s_mul_i32 s{sT2}, s{sW}, {40*1024}")
            g.e(f"s_add_u32 s{sT2}, s{sT2}, s93")
        g.e(f"s_lshl_b32 s{sT0}, s{sCT}, 8")
        g.e(f"s_add_u32 s{sT2}, s{sT2}, s{sT0}")
        g.vmem(f"buffer_load_dword v250, v{vT}, {sr(SX)}, s{sT2} offen")
        if not G:
            g.e(f"s_add_u32 s{sT2}, s{sT2}, 0x8000")
            g.vmem(f"buffer_load_dword v251, v{vT}, {sr(SX)}, s{sT2} offen")
        if pf & 4:
            g.e(f"s_and_b32 s{sT0}, s{sU}, 3")
            g.e(f"s_lshl_b32 s{sT0}, s{sT0}, 2")
            g.e(f"s_add_u32 s{sT0}, s{sT0}, s{sCT}")
            g.e(f"s_lshl_b32 s{sT0}, s{sT0}, 2")
            g.e(f"s_add_u32 s{sT0}, s{sT0}, s{sW}")
            g.e(f"s_lshl_b32 s{sT0}, s{sT0}, 13")
            g.e(f"v_lshlrev_b32 v{vT}, 7, v{vLane}")
            g.vmem(f"buffer_load_dword v252, v{vT}, {sr(SWT)}, s{sT0} offen")

    def frag_consts(G):
        pretouch()
        l2pf(G)
        g.e(f"v_and_b32 v{vPX}, 31, v{vLane}")
        g.e(f"v_lshrrev_b32 v{vHF}, 5, v{vLane}")
        g.e(f"v_lshlrev_b32 v{vL16}, 4, v{vLane}")
        g.e(f"v_lshrrev_b32 v{vT}, 1, v{vPX}")
        g.e(f"v_and_b32 v{vT}, 7, v{vT}")
        g.e(f"v_xor_b32 v{vT}, v{vT}, v{vHF}")
        g.e(f"v_lshlrev_b32 v{vT}, 4, v{vT}")
        g.e(f"v_lshl_add_u32 v{vXA[0]}, v{vPX}, 7, v{vT}")
        if G:
            g.e(f"s_lshr_b32 s{sT2}, s{sW}, 1")
            g.e(f"s_lshl_b32 s{sT2}, s{sT2}, 12")
            g.e(f"v_add_u32 v{vXA[0]}, s{sT2}, v{vXA[0]}")
        for s in range(1, 4):
            g.e(f"v_xor_b32 v{vXA[s]}, {s*32}, v{vXA[0]}")
        g.e(f"v_bfe_u32 v{vT}, v{vLane}, 2, 2")
        g.e(f"v_lshl_add_u32 v{vT2}, v{vHF}, 3, v{vT}")
        g.e(f"v_lshlrev_b32 v{vWA}, 8, v{vT2}")
        if G:
            g.e(f"s_and_b32 s{sT2}, s{sW}, 1")
            g.e(f"s_lshl_b32 s{sT2}, s{sT2}, 1")
            g.e(f"v_xor_b32 v{vT}, s{sT2}, v{vT}")
        else:
            g.e(f"v_xor_b32 v{vT}, s{sW}, v{vT}")
        g.e(f"v_lshl_add_u32 v{vWA}, v{vT}, 6, v{vWA}")
        g.e(f"v_bfe_u32 v{vT}, v{vLane}, 4, 1")
        g.e(f"v_lshl_add_u32 v{vWA}, v{vT}, 5, v{vWA}")
        g.e(f"v_and_b32 v{vT}, 3, v{vLane}")
        g.e(f"v_lshl_add_u32 v{vWA}, v{vT}, 3, v{vWA}")

    def publish(G):
        while st.on and st.n < 13: st()
        NL = o.get("NL", 8); LG = NL.bit_length() - 1; MS = NL*128
        def slot_off(dst, src):
            g.e(f"s_and_b32 s92, s{src}, {NL-1}")
            g.e(f"s_lshl_b32 s92, s92, 7")
            g.e(f"s_lshr_b32 s{dst}, s{src}, {LG}")
            g.e(f"s_lshl_b32 s{dst}, s{dst}, 2")
            g.e(f"s_add_u32 s{dst}, s{dst}, s92")
        if G:
            g.e(f"s_lshr_b32 s{sT0}, s{sU}, 1")
            g.e(f"s_and_b32 s{sT1}, s{sU}, 1")
            g.e(f"s_lshl_b32 s{sT2}, s{sT1}, 1")
            g.e(f"s_add_u32 s{sT2}, s{sT2}, s{sT0}")
            g.e(f"s_sub_u32 s{sT2}, s{sT2}, 1")
            g.e(f"s_add_u32 s{sSOX}, s{sT1}, 1")
            g.e(f"s_lshl_b32 s{sSOX}, s{sSOX}, 2")
            g.e(f"s_add_u32 s{sSOX}, s{sSOX}, s{sCT}")
            slot_off(sSOX, sSOX)
            g.e(f"s_mul_i32 s93, s{sT0}, {16*MS}")
            g.e(f"s_add_u32 s{sSOX}, s{sSOX}, s93")
            g.e(f"s_cmp_eq_u32 s{sT1}, 0")
            g.e(f"s_cselect_b32 s{sSOW}, 12, 0")
            g.e(f"s_add_u32 s{sSOW}, s{sSOW}, s{sCT}")
            slot_off(sSOW, sSOW)
            g.e(f"s_mul_i32 s93, s{sT2}, {16*MS}")
            g.e(f"s_add_u32 s{sSOW}, s{sSOW}, s93")
            g.e(f"s_lshr_b32 s{sT2}, s{sT2}, 3")
            g.e(f"s_lshr_b32 s{sT0}, s{sT0}, 3")
            g.e(f"s_cmp_eq_u32 s{sT2}, s{sT0}")
            g.e(f"s_cselect_b32 s92, -1, 0xffff")
            g.e(f"s_mov_b32 s93, 0")
            g.e(f"v_and_b32 v{vT}, 15, v{vLane}")
            g.e(f"v_mul_u32_u24 v{vT}, {MS}, v{vT}")
            g.e(f"v_mov_b32 v{vT2}, s{sSOW}")
            g.e(f"v_mov_b32 v{vPX}, s{sSOX}")
            g.e(f"v_cmp_gt_u32 vcc, 16, v{vLane}")
            g.e("s_nop 1")
            g.e(f"v_cndmask_b32 v{vT2}, v{vT2}, v{vPX}, vcc")
            g.e(f"v_add_u32 v{vT}, v{vT}, v{vT2}")
            g.e(f"s_mov_b32 s{sT0}, {WS_MB}")
        else:
            g.e(f"v_lshrrev_b32 v{vT}, 2, v{vLane}")
            g.e(f"v_lshlrev_b32 v{vT}, 4, v{vT}")
            g.e(f"v_and_b32 v{vT2}, 3, v{vLane}")
            g.e(f"v_add_u32 v{vT}, v{vT}, v{vT2}")
            g.e(f"v_mul_u32_u24 v{vT}, {MS}, v{vT}")
            g.e(f"s_add_u32 s{sT1}, s{sU}, 16")
            slot_off(sT1, sT1)
            g.e(f"s_mul_i32 s{sT0}, s{sCT}, {4*MS}")
            g.e(f"s_add_u32 s{sT0}, s{sT0}, s{sT1}")
            g.e(f"s_add_u32 s{sT0}, s{sT0}, {WS_MB}")
            g.e(f"s_mov_b64 s[92:93], -1")
        dt(g, 5 if G else 6)
        if st.on: g.e("s_memrealtime s[78:79]")
        g.e("s_waitcnt vmcnt(0)")
        g.e("s_barrier")
        if st.on: g.e("s_memrealtime s[80:81]")
        dt(g, 7 if G else 8)
        g.e(f"s_cmp_lg_u32 s{sW}, 0")
        g.e(f"s_cbranch_scc1 {name}_ph2")
        g.e(f"s_mov_b64 exec, s[92:93]")
        g.e(f"buffer_store_dword v{vNC}, v{vT}, {sr(SWS)}, s{sT0} offen sc1")
        g.e("s_mov_b64 exec, -1")
        g.e(f"s_branch {name}_ph2")

    def bodyP():
        g.vm = []; g.lg = []
        st.n = st_n0
        g.label(f"{name}_P")
        NA = 3
        S = o.get("SP", 4)
        STG = 16384 + NA*4096
        XB3, XB4 = S*STG, (S*STG + 32768 if S == 3 else 0)
        PRE = o.get("PREP", 3)
        g.e(f"s_and_b32 s{sODD}, s{sU}, 1")
        g.e(f"s_lshr_b32 s{sT1}, s{sU}, 1")
        g.e(f"s_mul_i32 s{sXROW}, s{sT1}, 288")
        g.e(f"s_mul_i32 s{sT2}, s{sODD}, 160")
        g.e(f"s_add_u32 s{sXROW}, s{sXROW}, s{sT2}")
        g.e(f"s_lshr_b32 s{sKC}, s{sT1}, 1")
        g.e(f"s_lshl_b32 s{sKC}, s{sKC}, 16")
        g.e(f"s_lshl_b32 s93, s{sXROW}, 10")
        g.e(f"s_lshr_b32 s92, s{sKC}, 9")
        g.e("s_waitcnt lgkmcnt(0)")
        if o.get("wsoff", 0):
            g.e(f"s_add_u32 s50, s50, {o['wsoff'] << 20:#x}")
            g.e("s_addc_u32 s51, s51, 0")
        st(); dt(g, 2)
        srd(g, SX, 44, 45, 4608*1024); srd(g, SWT, 10, 11, 512 << 10)
        cur = [None]
        def kofs(kc):
            if cur[0] == kc: return
            cur[0] = kc
            g.e(f"s_add_u32 s{sT2}, s92, {kc*128}")
            g.e(f"s_and_b32 s{sT2}, s{sT2}, 0x3ff")
            g.e(f"s_add_u32 s91, s{sT2}, s93")
            g.e(f"s_lshl_b32 s90, s{sT2}, 9")
        def ldW(kc, m):
            kofs(kc)
            g.e(f"s_add_u32 m0, s{sM0X}, {(kc % S)*STG + m*4096}")
            g.e(f"s_add_u32 s{sSOW}, s90, {m*16384}")
            g.vmem(f"buffer_load_dwordx4 v{vWD}, {sr(SWT)}, s{sSOW} offen{ldw} lds", ("D", kc))
        def ldX(b, kc):
            kofs(kc)
            dst = (kc % S)*STG + 16384 + b*4096 if b < NA else [XB3, XB4][b-NA] + kc*4096
            g.e(f"s_add_u32 m0, s{sM0X}, {dst}")
            g.e(f"s_add_u32 s{sSOX}, s91, {b*32768}")
            g.vmem(f"buffer_load_dwordx4 v{vXD}, {sr(SX)}, s{sSOX} offen{ldf} lds", ("D", kc) if b < NA else ("XB", b))
        ldq = []
        for kc in range(8):
            for m in range(4): ldq.append(("W", kc, m, kc - S))
            for b in range(NA): ldq.append(("X", b, kc, kc - S))
            if not o.get("late", 1) and kc >= 2:
                for b in (3, 4): ldq.append(("X", b, kc - 2, -1))
        if o.get("late", 1):
            for b in (3, 4):
                for kc in range(8): ldq.append(("X", b, kc, 5 if (b == 4 and S == 4) else -1))
        else:
            for kc in (6, 7):
                for b in (3, 4): ldq.append(("X", b, kc, -1))
        freed = [-1]
        def ldnext():
            if not ldq or len(g.vm) >= 60: return False
            t, a, b_, need = ldq[0]
            if need > freed[0]: return False
            ldq.pop(0)
            if t == "W": ldW(a, b_)
            else: ldX(a, b_)
            return True
        for _ in range(7*PRE): ldnext()
        slotc = [0]
        srd(g, SDB, 48, 49, 256)
        frag_consts(False)
        srd(g, SWS, 50, 51, 16 << 20)
        g.e(f"s_lshl_b32 s{sT0}, s{sCT}, 2")
        g.e(f"s_add_u32 s{sT0}, s{sT0}, s{sW}")
        g.e(f"s_mul_i32 s{sT0}, s{sT0}, {32*10240}")
        g.e(f"s_add_u32 s{sT0}, s{sT0}, {WS_WP}")
        g.e(f"v_add_u32 v{vST}, s{sT0}, v{vL16}")
        XRB = TMP + 40
        def read_list(kc, s):
            p = (kc*4 + s) % 2
            ks = 4*kc + s
            L = []
            for h in range(2):
                L.append((f"ds_read_b64_tr_b16 {ar(4*ks+2*h,2)}, v{vWAs} offset:{s*4096+h*1024}", 0))
            for b in range(NA):
                L.append((f"ds_read_b128 {vr(XF+p*20+b*4)}, v{vXAs[s]} offset:{b*4096}", b))
            return [(r, ("R", kc, s, b)) for r, b in L]
        def stage_addr(kc):
            sb = (kc % S) * STG
            for s in range(4): g.e(f"v_add_u32 v{vXAs[s]}, {sb + 16384}, v{vXA[s]}")
            g.e(f"v_add_u32 v{vWAs}, {sb}, v{vWA}")
        stage_addr(0)
        st()
        g.wait_vm([("D", 0)])
        g.e("s_barrier")
        st()
        dt(g, 1)
        for r, t in read_list(0, 0): g.lds(r, t)
        LPA = o.get("LPA", 1)
        for kc in range(8):
            for s in range(4):
                if s < 3:
                    nxt = read_list(kc, s+1)
                else:
                    nxt = []
                    if kc < 7:
                        g.wait_lg([("R", kc, 3, b) for b in range(NA)])
                        while any(t[3] == kc+1-S and t[3] >= -10 and ((t[0] == "W" and t[1] == kc+1) or (t[0] == "X" and t[1] < NA and t[2] == kc+1)) for t in ldq): assert ldnext()
                        g.wait_vm([("D", kc+1)])
                        g.e("s_barrier")
                        if kc in (1, 3, 5): st()
                        freed[0] = kc
                        stage_addr(kc+1)
                        nxt = read_list(kc+1, 0)
                p = (kc*4 + s) % 2
                ks = 4*kc + s
                for b in range(NA):
                    g.wait_lg([("R", kc, s, bb) for bb in range(b+1)])
                    ac = vr(ACC+16*b, 16)
                    g.e(f"v_mfma_f32_32x32x16_bf16 {ac}, {vr(XF+p*20+b*4)}, {ar(4*ks)}, {'0' if ks == 0 else ac}")
                    for _ in range(2):
                        if nxt:
                            r, t = nxt.pop(0); g.lds(r, t)
                    slotc[0] += 1
                    if (slotc[0] * o.get("PN", 12)) % 12 < o.get("PN", 12): ldnext()
            if kc == 4:
                g.vmem(f"buffer_load_dword v{vNC}, v{vZ}, {sr(SDB)}, 0 offen sc1", ("NC",))
        while ldq: assert ldnext()
        st(); dt(g, 10)
        def store_block(b):
            a = ACC + 16*b
            L = []
            L.append(f"s_add_u32 s{sT0}, s{sXROW}, {32*b}")
            L.append(f"s_lshr_b32 s{sT1}, s{sT0}, 9")
            L.append(f"s_and_b32 s{sT0}, s{sT0}, 511")
            L.append(f"s_lshr_b32 s{sT0}, s{sT0}, 4")
            L.append(f"s_mul_i32 s{sT0}, s{sT0}, 10")
            L.append(f"s_add_u32 s{sT0}, s{sT0}, s{sT1}")
            L.append(f"s_lshl_b32 s{sT0}, s{sT0}, 10")
            L.append(f"s_add_u32 s{sT1}, s{sT0}, 10240")
            for hh in range(2):
                d = TMP + b*8 + hh*4
                for i in range(4):
                    L.append(f"v_cvt_pk_bf16_f32 v{d+i}, v{a+8*hh+2*i}, v{a+8*hh+2*i+1}")
                L.append(("ST", f"buffer_store_dwordx4 {vr(d)}, v{vST}, {sr(SWS)}, s{sT0 if hh==0 else sT1} offen{stf}"))
            return L
        def emit(x):
            if isinstance(x, tuple): g.vmem(x[1])
            else: g.e(x)
        xr = [0]; xreg = {}
        def xread(b, ks):
            r = XRB + (xr[0] % 8)*4; xr[0] += 1
            g.lds(f"ds_read_b128 {vr(r)}, v{vXAs[ks%4]} offset:{(ks//4)*4096}", ("R2", b, ks))
            return r
        g.wait_vm([("XB", 3)] if o.get("late", 1) else [("XB", 3), ("XB", 4)])
        g.e("s_barrier")
        def blockB(b, pend):
            for s in range(4): g.e(f"v_add_u32 v{vXAs[s]}, {[XB3, XB4][b-3]}, v{vXA[s]}")
            AH = 6
            for ks in range(AH): xreg[(b, ks)] = xread(b, ks)
            for ks in range(32):
                g.wait_lg([("R2", b, ks)])
                ac = vr(ACC + 16*b, 16)
                g.e(f"v_mfma_f32_32x32x16_bf16 {ac}, {vr(xreg[(b,ks)])}, {ar(4*ks)}, {'0' if ks == 0 else ac}")
                if ks + AH < 32: xreg[(b, ks+AH)] = xread(b, ks+AH)
                if ks >= 1:
                    for _ in range(2):
                        if pend: emit(pend.pop(0))
            assert not pend
        blockB(3, store_block(0) + store_block(1) + store_block(2))
        st()
        g.e(f"s_cmp_lg_u32 s{sODD}, 0")
        g.e(f"s_cbranch_scc1 {name}_P4")
        saved = (list(g.vm), list(g.lg))
        if o.get("late", 1):
            g.wait_vm([("XB", 4)])
            g.e("s_barrier")
        blockB(4, store_block(3))
        st(); dt(g, 4)
        g.e("s_nop 3")
        for x in store_block(4): emit(x)
        g.e(f"s_branch {name}_Pdone")
        g.label(f"{name}_P4")
        g.vm, g.lg = saved
        g.e(f"s_lshr_b32 s{sT0}, s{sU}, 1")
        g.e(f"s_and_b32 s{sT2}, s{sT0}, 1")
        g.e(f"s_mul_i32 s{sT0}, s{sT0}, 20480")
        g.e(f"s_add_u32 s{sT0}, s{sT0}, 9216")
        g.e(f"s_add_u32 s{sT1}, s{sT0}, 10240")
        g.e(f"s_cmp_eq_u32 s{sT2}, 0")
        g.e(f"s_cbranch_scc0 {name}_rp1")
        g.e(f"buffer_store_dwordx4 {ar(0)}, v{vST}, {sr(SWS)}, s{sT0} offen{stf}")
        g.e(f"buffer_store_dwordx4 {ar(4)}, v{vST}, {sr(SWS)}, s{sT1} offen{stf}")
        g.e(f"s_branch {name}_rp2")
        g.label(f"{name}_rp1")
        g.e(f"buffer_store_dwordx4 {ar(8)}, v{vST}, {sr(SWS)}, s{sT0} offen{stf}")
        g.e(f"buffer_store_dwordx4 {ar(12)}, v{vST}, {sr(SWS)}, s{sT1} offen{stf}")
        g.label(f"{name}_rp2")
        g.e("s_nop 3")
        for x in store_block(3): emit(x)
        g.label(f"{name}_Pdone")
        g.vm = []
        nonce_wait("P")
        publish(False)

    def bodyG():
        NX, S = 2, 6
        XB = NX * 4096
        STG = XB + 16384
        NI = NX + 4
        PRE1 = o.get("PREG", 3)
        XT = 6*STG
        g.vm = []; g.lg = []
        st.n = st_n0
        g.e(f"s_lshl_b32 s{sXROW}, s{sU}, 16")
        g.e(f"v_lshrrev_b32 v{vT}, 4, v{vLane}")
        g.e(f"s_lshl_b32 s{sT2}, s{sW}, 2")
        g.e(f"v_add_u32 v{vT}, s{sT2}, v{vT}")
        g.e(f"v_and_b32 v{vT2}, 15, v{vLane}")
        g.e(f"v_xor_b32 v{vT2}, v{vT2}, v{vT}")
        g.e(f"v_lshlrev_b32 v{vT2}, 4, v{vT2}")
        g.e(f"v_lshl_add_u32 v{vT}, v{vT}, 10, v{vT2}")
        g.e(f"s_lshl_b32 s{sT2}, s{sCT}, 8")
        g.e(f"v_add_u32 v{vWR}, s{sT2}, v{vT}")
        g.e("s_waitcnt lgkmcnt(0)")
        if o.get("wsoff", 0):
            g.e(f"s_add_u32 s50, s50, {o['wsoff'] << 20:#x}")
            g.e("s_addc_u32 s51, s51, 0")
        st(); dt(g, 2)
        srd(g, SX, 6, 7, 2 << 20); srd(g, SWT, 8, 9, 512 << 10); srd(g, SXI, 4, 5, 2 << 20)
        def ld1(kc, m):
            sb = (kc % S) * STG
            isx = m < NX
            mm = m if isx else m - NX
            g.e(f"s_add_u32 m0, s{sM0X}, {sb + m*4096}")
            if isx: g.e(f"s_add_u32 s{sSOX}, s{sXROW}, {mm*32768 + kc*128}")
            else:   g.e(f"s_mov_b32 s{sSOW}, {(kc*64 + 16*mm)*1024}")
            va, sd, so = (vXD, SX, sSOX) if isx else (vWD, SWT, sSOW)
            g.vmem(f"buffer_load_dwordx4 v{va}, {sr(sd)}, s{so} offen{ldf if isx else ldw} lds", ("D", kc))
        for m in range(NI): ld1(0, m)
        srd(g, SDB, 48, 49, 256)
        g.e(f"s_or_b32 s{sT0}, s2, s{sW}")
        g.e(f"s_cmp_lg_u32 s{sT0}, 0")
        g.e(f"s_cbranch_scc1 {name}_nn")
        g.e("s_memrealtime s[96:97]")
        g.e("s_waitcnt lgkmcnt(0)")
        g.e(f"s_or_b32 s96, s96, 1")
        g.e(f"v_mov_b32 v{vT}, s96")
        g.e(f"buffer_store_dword v{vT}, v{vZ}, {sr(SDB)}, 0 offen sc1")
        g.label(f"{name}_nn")
        for kc in range(1, PRE1):
            for m in range(NI): ld1(kc, m)
        ldq = [(kc, m) for kc in range(PRE1, 8) for m in range(NI)]
        k6 = [i for i, (kc, m) in enumerate(ldq) if kc >= 5][0]
        ldq[k6:k6] = [("X", m) for m in range(4)]
        freed = [0]
        def ldnext():
            if not ldq: return False
            kc, m = ldq[0]
            if kc == "X":
                ldq.pop(0)
                g.e(f"s_add_u32 m0, s{sM0X}, {XT + m*4096}")
                g.e(f"s_add_u32 s{sSOX}, s{sXROW}, {m*16384}")
                g.vmem(f"buffer_load_dwordx4 v{vWR}, {sr(SXI)}, s{sSOX} offen{ldf} lds", ("D", 5))
                return True
            if kc - S >= freed[0]: return False
            ldq.pop(0); ld1(kc, m); return True
        frag_consts(True)
        srd(g, SWS, 50, 51, 16 << 20)
        mk = len(g.lines)
        vXR, vGA, vGO = TMP+60, TMP+61, TMP+62
        g.e(f"s_lshr_b32 s{sT0}, s{sW}, 1")
        g.e(f"s_and_b32 s{sT1}, s{sW}, 1")
        g.e(f"s_lshl_b32 s{sT2}, s{sT0}, 13")
        g.e(f"s_add_u32 s{sT2}, s{sT2}, {XT}")
        g.e(f"v_and_b32 v{vT}, 15, v{vPX}")
        g.e(f"s_lshl_b32 s{sSOX}, s{sT1}, 3")
        g.e(f"v_xor_b32 v{vT}, s{sSOX}, v{vT}")
        g.e(f"v_lshlrev_b32 v{vT}, 4, v{vT}")
        g.e(f"v_lshl_add_u32 v{vT}, v{vPX}, 8, v{vT}")
        g.e(f"v_lshl_add_u32 v{vT}, v{vHF}, 3, v{vT}")
        g.e(f"v_add_u32 v{vXR}, s{sT2}, v{vT}")
        g.e(f"s_lshl_b32 s{sT2}, s{sT0}, 15")
        g.e(f"s_add_u32 s{sT2}, s{sT2}, s{sXROW}")
        g.e(f"s_lshl_b32 s{sSOX}, s{sCT}, 13")
        g.e(f"s_add_u32 s{sT2}, s{sT2}, s{sSOX}")
        g.e(f"s_lshl_b32 s{sSOX}, s{sT1}, 12")
        g.e(f"s_add_u32 s{sT2}, s{sT2}, s{sSOX}")
        g.e(f"v_add_u32 v{vST}, s{sT2}, v{vL16}")
        g.e(f"s_lshl_b32 s{sSOX}, s{sU}, 1")
        g.e(f"s_add_u32 s{sSOX}, s{sSOX}, s{sT0}")
        g.e(f"s_lshl_b32 s{sSOX}, s{sSOX}, 12")
        g.e(f"s_add_u32 s{sSOX}, s{sSOX}, {WS_ST}")
        g.e(f"v_lshlrev_b32 v{vGO}, 4, v{vPX}")
        g.e(f"v_add_u32 v{vGO}, s{sSOX}, v{vGO}")
        g.e(f"v_lshl_add_u32 v{vGA}, v{vHF}, 11, v{vGO}")
        g.e(f"s_lshl_b32 s93, s{sCT}, 1")
        g.e(f"s_add_u32 s93, s93, s{sT1}")
        g.e(f"s_lshl_b32 s93, s93, 9")
        deferG = g.lines[mk:]; del g.lines[mk:]
        def stage_addr(kc):
            sb = (kc % S) * STG
            for s in range(4): g.e(f"v_add_u32 v{vXAs[s]}, {sb}, v{vXA[s]}")
            g.e(f"v_add_u32 v{vWAs}, {sb + XB}, v{vWA}")
            g.e(f"v_xor_b32 v{vWAs2}, 64, v{vWAs}")
        def read_list(kc, s):
            p = (kc*4 + s) % 2
            L = [(f"ds_read_b128 {vr(XF+p*20)}, v{vXAs[s]}", 0)]
            for cb in range(2):
                for h in range(2):
                    L.append((f"ds_read_b64_tr_b16 {vr(WF+p*8+cb*4+h*2,2)}, v{vWAs if cb==0 else vWAs2} offset:{s*4096+h*1024}", cb))
            return [(r, ("R", kc, s, b)) for r, b in L]
        stage_addr(0)
        st()
        g.wait_vm([("D", 0)])
        g.e("s_barrier")
        st()
        dt(g, 1)
        XR = TMP
        XU = ACC + 32
        for r, t in read_list(0, 0): g.lds(r, t)
        LPM = o.get("LPG", 1)
        for kc in range(8):
            for s in range(4):
                if s < 3:
                    nxt = read_list(kc, s+1)
                else:
                    nxt = []
                    if kc < 7:
                        g.wait_lg([("R", kc, 3, b) for b in range(2)])
                        while any(c_ == kc+1 for c_, _ in ldq): assert ldnext()
                        g.wait_vm([("D", kc+1)])
                        g.e("s_barrier")
                        if kc in (0, 2, 4, 6): st()
                        if kc == o.get("dtk", 2): dt(g, 10)
                        freed[0] = kc + 1
                        stage_addr(kc+1)
                        nxt = read_list(kc+1, 0)
                p = (kc*4 + s) % 2
                for b in range(2):
                    g.wait_lg([("R", kc, s, bb) for bb in range(b+1)])
                    ac = vr(ACC+16*b, 16)
                    g.e(f"v_mfma_f32_32x32x16_bf16 {ac}, {vr(WF+p*8+b*4)}, {vr(XF+p*20)}, {'0' if kc == 0 and s == 0 else ac}")
                    for _ in range(3):
                        if nxt:
                            r, t = nxt.pop(0); g.lds(r, t)
                    for _ in range(LPM): ldnext()
            if kc == 4:
                g.vmem(f"buffer_load_dword v{vNC}, v{vZ}, {sr(SDB)}, 0 offen sc1", ("NC",))
            if kc == 0: g.lines += deferG
            if kc == 5:
                for j in range(8):
                    g.e(f"v_xor_b32 v{vT2}, {j*16}, v{vXR}")
                    g.lds(f"ds_read_b64 {vr(XR+2*j,2)}, v{vT2}", ("XR", j))
            if kc == 6:
                g.wait_lg([("XR", 7)])
                for j in range(16):
                    g.e(f"v_lshlrev_b32 v{XU+2*j}, 16, v{XR+j}")
                    g.e(f"v_and_b32 v{XU+2*j+1}, 0xffff0000, v{XR+j}")
        assert not ldq
        st(); dt(g, 3)
        nonce_wait("G")
        g.e("s_nop 7")
        S1, S2 = TMP+16, TMP+18
        P1, P2 = TMP+20, TMP+22
        for i in range(16): g.e(f"v_pk_add_f32 {vr(ACC+2*i,2)}, {vr(ACC+2*i,2)}, {vr(XU+2*i,2)}")
        g.e(f"v_pk_add_f32 {vr(P1,2)}, {vr(ACC,2)}, {vr(ACC+2,2)}")
        g.e(f"v_pk_mul_f32 {vr(P2,2)}, {vr(ACC,2)}, {vr(ACC,2)}")
        g.e(f"v_pk_fma_f32 {vr(P2,2)}, {vr(ACC+2,2)}, {vr(ACC+2,2)}, {vr(P2,2)}")
        for i in range(2, 16):
            g.e(f"v_pk_add_f32 {vr(P1,2)}, {vr(P1,2)}, {vr(ACC+2*i,2)}")
            g.e(f"v_pk_fma_f32 {vr(P2,2)}, {vr(ACC+2*i,2)}, {vr(ACC+2*i,2)}, {vr(P2,2)}")
        g.e(f"v_add_f32 v{S1}, v{P1}, v{P1+1}")
        g.e(f"v_add_f32 v{S2}, v{P2}, v{P2+1}")
        g.e(f"v_mov_b32 v{vT}, v{S1}")
        g.e(f"v_mov_b32 v{vT2}, v{S2}")
        g.e(f"v_mov_b32 v{S1+1}, v{vNC}")
        g.e(f"v_mov_b32 v{S2+1}, v{vNC}")
        g.e(f"v_permlane32_swap_b32 v{S1}, v{vT}")
        g.e(f"v_permlane32_swap_b32 v{S2}, v{vT2}")
        g.e(f"v_add_f32 v{S1}, v{S1}, v{vT}")
        g.e(f"v_add_f32 v{S2}, v{S2}, v{vT2}")
        g.e("s_mov_b64 exec, 0xffffffff")
        g.e(f"buffer_store_dwordx4 {vr(S1)}, v{vGO}, {sr(SWS)}, s93 offen sc1")
        g.e("s_mov_b64 exec, -1")
        st()
        for j in range(16):
            g.e(f"v_cvt_pk_bf16_f32 v{XR+j}, v{ACC+2*j}, v{ACC+2*j+1}")
        g.e("s_nop 1")
        for hh in range(4):
            g.e(f"v_permlane32_swap_b32 v{XR+4*hh}, v{XR+4*hh+2}")
            g.e(f"v_permlane32_swap_b32 v{XR+4*hh+1}, v{XR+4*hh+3}")
        EA, EB = TMP + 24, TMP + 40
        def poll_issue(E):
            for e_ in range(4):
                g.e(f"buffer_load_dwordx4 {vr(E+4*e_)}, v{vGA}, {sr(SWS)}, 0 offen offset:{e_*512} sc1")
        def poll_check(E):
            g.e(f"v_xor_b32 v{vT}, v{E+1}, v{vNC}")
            for e_ in range(4):
                for o_ in (1, 3):
                    if e_ == 0 and o_ == 1: continue
                    g.e(f"v_xor_b32 v{vT2}, v{E+4*e_+o_}, v{vNC}")
                    g.e(f"v_or_b32 v{vT}, v{vT}, v{vT2}")
            g.e(f"v_cmp_ne_u32 vcc, 0, v{vT}")
            g.e("s_nop 4")
        g.e(f"s_mov_b32 s{sT2}, 0")
        poll_issue(EA)
        g.label(f"{name}_poll")
        g.e(f"s_add_u32 s{sT2}, s{sT2}, 1")
        g.e(f"s_cmp_gt_u32 s{sT2}, 100000")
        g.e(f"s_cbranch_scc1 {name}_pollx")
        if o.get("pp", 1):
            g.e("s_sleep 4")
            poll_issue(EB)
            g.e("s_waitcnt vmcnt(4)")
            poll_check(EA)
            g.e(f"s_cbranch_vccz {name}_pollx")
            poll_issue(EA)
            g.e("s_waitcnt vmcnt(4)")
            poll_check(EB)
            g.e(f"s_cbranch_vccnz {name}_poll")
            g.e("s_waitcnt vmcnt(0)")
        else:
            g.e("s_waitcnt vmcnt(0)")
            poll_check(EA)
            g.e(f"s_cbranch_vccz {name}_pollx")
            poll_issue(EA)
            g.e(f"s_branch {name}_poll")
        g.label(f"{name}_pollx")
        st()
        E = EA
        g.e(f"s_mov_b32 s{sT1}, {WS_HI}")
        for e_ in range(1, 4):
            g.e(f"v_add_f32 v{E}, v{E}, v{E+4*e_}")
            g.e(f"v_add_f32 v{E+2}, v{E+2}, v{E+4*e_+2}")
        g.e(f"v_mov_b32 v{vT}, v{E}")
        g.e(f"v_mov_b32 v{vT2}, v{E+2}")
        for hh in range(4):
            g.e(f"buffer_store_dwordx4 {vr(XR+4*hh)}, v{vST}, {sr(SWS)}, s{sT1} offen offset:{hh*1024}{stf}")
        g.e(f"v_permlane32_swap_b32 v{E}, v{vT}")
        g.e(f"v_permlane32_swap_b32 v{E+2}, v{vT2}")
        g.e(f"v_add_f32 v{E}, v{E}, v{vT}")
        g.e(f"v_add_f32 v{E+2}, v{E+2}, v{vT2}")
        g.e(f"v_mul_f32 v{E}, {f2u(1/512):#x}, v{E}")
        g.e(f"v_mul_f32 v{E+2}, {f2u(1/512):#x}, v{E+2}")
        g.e(f"v_fma_f32 v{E+2}, -v{E}, v{E}, v{E+2}")
        g.e(f"v_max_f32 v{E+2}, 0, v{E+2}")
        g.e(f"v_add_f32 v{E+2}, {f2u(1e-5):#x}, v{E+2}")
        A_, B_, A2, B2 = E+4, E+6, E+8, E+10
        g.e(f"v_rsq_f32 v{A_}, v{E+2}")
        g.e("s_nop 0")
        g.e(f"v_mul_f32 v{B_}, v{E}, v{A_}")
        g.e(f"v_sub_f32 v{B_}, 0, v{B_}")
        g.e(f"v_mul_f32 v{A2}, {f2u(-LOG2E):#x}, v{A_}")
        g.e(f"v_mul_f32 v{B2}, {f2u(-LOG2E):#x}, v{B_}")
        Y = XF
        D = WF
        for hh in range(4):
            a = ACC + 8*hh; y = Y + (hh % 2)*8
            for i in range(4): g.e(f"v_pk_fma_f32 {vr(y+2*i,2)}, {vr(a+2*i,2)}, {vr(A2,2)}, {vr(B2,2)} op_sel_hi:[1,0,0]")
            for i in range(8): g.e(f"v_exp_f32 v{y+i}, v{y+i}")
            for i in range(4): g.e(f"v_pk_fma_f32 {vr(a+2*i,2)}, {vr(a+2*i,2)}, {vr(A_,2)}, {vr(B_,2)} op_sel_hi:[1,0,0]")
            for i in range(4): g.e(f"v_pk_add_f32 {vr(y+2*i,2)}, {vr(y+2*i,2)}, 1.0 op_sel_hi:[1,0]")
            for i in range(8): g.e(f"v_rcp_f32 v{y+i}, v{y+i}")
            g.e("s_nop 0")
            for i in range(4): g.e(f"v_pk_mul_f32 {vr(a+2*i,2)}, {vr(a+2*i,2)}, {vr(y+2*i,2)}")
            d = D + hh*4
            for i in range(4): g.e(f"v_cvt_pk_bf16_f32 v{d+i}, v{a+2*i}, v{a+2*i+1}")
            g.e(f"buffer_store_dwordx4 {vr(d)}, v{vST}, {sr(SWS)}, 0 offen offset:{hh*1024}{stf}")
        publish(True)
    bodyG(); bodyP()

def phase2(g, name, st, o):
    NST, PRE, EVERY = o.get("NST", 3), o.get("PRE", 20), o.get("EVERY", 2)
    lf = o.get("lf", " sc1").replace(" none", "")
    SA, SWP, SX, SO, SDB = 12, 16, 20, 24, 28
    C4K, C8K, C2M, C2M4K = 33, 34, 42, 43
    sMT, sNT, sB, sT0, sT1, sR0, sBASE = 35, 36, 37, 38, 39, 97, 96
    vLane, vT, vW, vMR, vML, vO, vT2 = 1, 2, 3, 4, 5, 6, 7
    vH = [8+j for j in range(6)]
    vA, vA1 = 14, 15
    vXF = 16
    HB = 24
    HIB = HB + NST*24
    T0 = HIB + NST*16
    T2 = T0 + 24
    VEND = T2 + 24
    vF, vG, vPF = VEND, VEND+1, VEND+2
    assert VEND + 8 <= 250
    ACC, WB = 0, 64
    AEND = WB + NST*40
    g.vm = []; g.lg = []
    g.label(f"{name}_ph2")
    if st.on: st.n = 15
    st()
    g.e(f"s_and_b32 s{sT0}, s2, 7")
    g.e(f"s_lshr_b32 s{sT1}, s2, 3")
    g.e(f"s_and_b32 s{sB}, s{sT0}, 1")
    g.e(f"s_lshr_b32 s{sT0}, s{sT0}, 1")
    g.e(f"s_and_b32 s{sMT}, s{sT1}, 7")
    g.e(f"s_lshr_b32 s{sT1}, s{sT1}, 3")
    g.e(f"s_lshl_b32 s{sNT}, s{sT0}, 2")
    g.e(f"s_add_u32 s{sNT}, s{sNT}, s{sT1}")
    g.e(f"s_lshl_b32 s{sT0}, s{sB}, 5")
    g.e(f"s_lshl_b32 s{sT1}, s{sMT}, 2")
    g.e(f"s_add_u32 s{sR0}, s{sT0}, s{sT1}")
    srd(g, SDB, 50, 51, 16 << 20)
    NL = o.get("NL", 8); LG = NL.bit_length() - 1; MS = NL*128
    g.e(f"s_lshr_b32 s{sT0}, s{sR0}, 2")
    g.e(f"s_lshl_b32 s{sT0}, s{sT0}, 4")
    g.e(f"s_add_u32 s{sT0}, s{sT0}, s{sNT}")
    g.e(f"s_mul_i32 s{sT0}, s{sT0}, {MS}")
    g.e(f"s_add_u32 s{sT0}, s{sT0}, {WS_MB}")
    g.e(f"v_and_b32 v{vF}, {NL-1}, v{vLane}")
    g.e(f"v_lshlrev_b32 v{vF}, 7, v{vF}")
    g.e(f"v_lshrrev_b32 v{vG}, {LG}, v{vLane}")
    g.e(f"v_lshl_add_u32 v{vF}, v{vG}, 2, v{vF}")
    g.e(f"v_add_u32 v{vF}, s{sT0}, v{vF}")
    g.e(f"s_movk_i32 s{C4K}, 0x1000")
    g.e(f"s_movk_i32 s{C8K}, 0x2000")
    g.e(f"s_mov_b32 s{C2M}, 0x200000")
    g.e(f"s_mov_b32 s{C2M4K}, 0x201000")
    g.e(f"s_lshl_b32 s{sBASE}, s{sR0}, 15")
    g.e(f"s_lshl_b32 s{sT0}, s{sW}, 13")
    g.e(f"s_add_u32 s{sBASE}, s{sBASE}, s{sT0}")
    g.e(f"v_lshlrev_b32 v{vT}, 4, v{vLane}")
    for j in range(1, 5):
        g.e(f"s_add_u32 s{sT0}, s{sBASE}, {(j-1)*32768}")
        g.e(f"v_add_u32 v{vH[j]}, s{sT0}, v{vT}")
    g.e(f"s_sub_u32 s{sT0}, s{sBASE}, 32768")
    g.e(f"s_cmp_eq_u32 s{sMT}, 0")
    g.e(f"s_cselect_b32 s{sT0}, 0x40000000, s{sT0}")
    g.e(f"v_add_u32 v{vH[0]}, s{sT0}, v{vT}")
    g.e(f"s_add_u32 s{sT0}, s{sBASE}, {4*32768}")
    g.e(f"s_cmp_eq_u32 s{sMT}, 7")
    g.e(f"s_cselect_b32 s{sT0}, 0x40000000, s{sT0}")
    g.e(f"v_add_u32 v{vH[5]}, s{sT0}, v{vT}")
    g.e(f"s_lshl_b32 s{sT0}, s{sNT}, 5")
    g.e(f"s_lshl_b32 s{sT1}, s{sW}, 3")
    g.e(f"s_add_u32 s{sT0}, s{sT0}, s{sT1}")
    g.e(f"s_mul_i32 s92, s{sT0}, 10240")
    g.e(f"v_add_u32 v{vW}, s92, v{vT}")
    srd(g, SA, 50, 51, 4 << 20)
    srd(g, SWP, 50, 51, WP_BYTES, add=WS_WP)
    srd(g, SX, 40, 41, 2 << 20)
    srd(g, SO, 46, 47, 2 << 20)
    g.e(f"s_add_u32 s{sT0}, s{sR0}, s{sW}")
    g.e(f"s_lshl_b32 s{sT0}, s{sT0}, 15")
    g.e(f"s_lshl_b32 s{sT1}, s{sNT}, 6")
    g.e(f"s_add_u32 s{sT0}, s{sT0}, s{sT1}")
    g.e(f"v_lshrrev_b32 v{vO}, 2, v{vLane}")
    g.e(f"v_lshlrev_b32 v{vO}, 10, v{vO}")
    g.e(f"v_and_b32 v{vT2}, 3, v{vLane}")
    g.e(f"v_lshlrev_b32 v{vT2}, 4, v{vT2}")
    g.e(f"v_add3_u32 v{vO}, v{vO}, v{vT2}, s{sT0}")
    g.e(f"s_movk_i32 s{sT1}, 0x4000")
    xfl = " nt" if o.get("nt", 0) else ""
    g.e(f"buffer_load_dwordx4 {vr(vXF)}, v{vO}, {sr(SX)}, 0 offen{xfl}")
    g.e(f"buffer_load_dwordx4 {vr(vXF+4)}, v{vO}, {sr(SX)}, s{sT1} offen{xfl}")
    g.e(f"v_and_b32 v{vT}, 31, v{vLane}")
    g.e(f"v_cmp_ne_u32 vcc, 0, v{vT}")
    g.e("s_nop 1")
    g.e(f"v_cndmask_b32 v{vMR}, 0, -1, vcc")
    g.e(f"v_cmp_ne_u32 vcc, 31, v{vT}")
    g.e("s_nop 1")
    g.e(f"v_cndmask_b32 v{vML}, 0, -1, vcc")
    g.e(f"v_lshlrev_b32 v{vA}, 4, v{vLane}")
    g.e(f"s_mul_i32 s{sT0}, s{sW}, 4352")
    g.e(f"v_add_u32 v{vA}, s{sT0}, v{vA}")
    g.e(f"v_and_b32 v{vA1}, 3, v{vLane}")
    g.e(f"v_mul_u32_u24 v{vA1}, 1088, v{vA1}")
    g.e(f"v_lshrrev_b32 v{vT}, 2, v{vLane}")
    g.e(f"v_lshl_add_u32 v{vA1}, v{vT}, 4, v{vA1}")
    g.e(f"s_mul_i32 s{sT0}, s{sW}, 17408")
    g.e(f"v_add_u32 v{vA1}, s{sT0}, v{vA1}")
    g.e("s_mov_b32 s90, 0xffff0000")
    g.e("s_mov_b32 s91, 0xffff")
    g.e(f"s_movk_i32 s{sT0}, 0x1111")
    g.e(f"s_cmp_eq_u32 s{sMT}, 0")
    g.e(f"s_cselect_b32 s{sT0}, 0x1110, s{sT0}")
    g.e(f"s_cmp_eq_u32 s{sMT}, 7")
    g.e(f"s_cselect_b32 s{sT0}, 0x0111, s{sT0}")
    g.e(f"s_lshl_b32 s94, s{sT0}, s{sW}")
    g.e("s_mov_b32 s95, 0")
    def poll(tag, mask, first_issued):
        g.e(f"s_mov_b32 s{sT0}, 0")
        if first_issued: g.e(f"s_branch {name}_fchk{tag}")
        g.label(f"{name}_fpoll{tag}")
        if o.get("fs", 0): g.e(f"s_sleep {o['fs']}")
        g.e(f"buffer_load_dword v{vG}, v{vF}, {sr(SDB)}, 0 offen sc1")
        g.label(f"{name}_fchk{tag}")
        g.e(f"s_add_u32 s{sT0}, s{sT0}, 1")
        g.e(f"s_cmp_gt_u32 s{sT0}, 200000")
        g.e(f"s_cbranch_scc1 {name}_fw{tag}")
        g.e("s_waitcnt vmcnt(0)")
        g.e(f"v_cmp_ne_u32 vcc, s3, v{vG}")
        g.e("s_nop 4")
        g.e(f"s_and_b64 vcc, vcc, {mask}")
        g.e(f"s_cbranch_scc1 {name}_fpoll{tag}")
        g.label(f"{name}_fw{tag}")

    SPF = o.get("spf", 0)
    if SPF:
        g.e(f"s_mul_i32 s{sT0}, s{sMT}, 1280")
        g.e(f"s_add_u32 s{sT0}, s{sT0}, s92")
        g.e(f"s_add_u32 s{sT0}, s{sT0}, {WS_WP}")
        g.e(f"s_add_u32 s4, s50, s{sT0}")
        g.e(f"s_addc_u32 s5, s51, 0")
        g.e(f"s_and_b32 s{sT0}, s{sNT}, 3")
        g.e(f"s_lshl_b32 s{sT0}, s{sT0}, 8")
        g.e(f"s_add_u32 s{sT0}, s{sT0}, s{sBASE}")
        g.e(f"s_add_u32 s6, s50, s{sT0}")
        g.e(f"s_addc_u32 s7, s51, 0")
        g.e(f"s_add_u32 s8, s6, 0x200000")
        g.e(f"s_addc_u32 s9, s7, 0")
    def spf_list(k):
        if not SPF or k > 7: return []
        L = [f"s_load_dword s10, s[4:5], {k*10240 + i*128:#x}" for i in range(10)]
        if o.get("spfh", 1):
            for r in range(4):
                for i in range(2):
                    L.append(f"s_load_dword s10, s[6:7], {r*32768 + k*1024 + i*128:#x}")
                    L.append(f"s_load_dword s10, s[8:9], {r*32768 + k*1024 + i*128:#x}")
        return L
    def Hreg(s_, j): return HB + s_*24 + j*4
    def HIreg(s_, r): return HIB + s_*16 + r*4
    def Wreg(s_, t): return WB + s_*40 + t*4
    def ldW(k, t):
        s_ = k % NST
        off = (k*10 + t)*1024
        return ("W", k, t, s_, off)
    def emitW(k, t):
        s_ = k % NST
        off = (k*10 + t)*1024
        g.e(f"s_mov_b32 s{sT0}, {off & ~4095}")
        g.vmem(f"buffer_load_dwordx4 {ar(Wreg(s_,t))}, v{vW}, {sr(SWP)}, s{sT0} offen offset:{off & 4095}{lf}", ("W", k, t))
    def emitH(k, j):
        s_ = k % NST
        so_h = "0" if k < 4 else f"s{C4K}"
        g.vmem(f"buffer_load_dwordx4 {vr(Hreg(s_,j))}, v{vH[j]}, {sr(SA)}, {so_h} offen offset:{(k%4)*1024}{lf}", ("H", k, j))
    def emitHI(k, r):
        s_ = k % NST
        so = f"s{C2M}" if k < 4 else f"s{C2M4K}"
        g.vmem(f"buffer_load_dwordx4 {vr(HIreg(s_,r))}, v{vH[r+1]}, {sr(SA)}, {so} offen offset:{(k%4)*1024}{lf}", ("HI", k, r))
    def order(k):
        return [("W",1),("H",0),("H",1),("H",2),("H",3),("W",4),("H",4),("W",7),("H",5),("W",9),
                ("HI",0),("HI",1),("HI",2),("HI",3),("W",0),("W",3),("W",6),("W",2),("W",5),("W",8)]
    queue = [(k, t, i) for k in range(8) for (t, i) in order(k)]
    def emit_item(it):
        k, t, i = it
        {"W": emitW, "H": emitH, "HI": emitHI}[t](k, i)
    WPRE = o.get("WPRE", 2)
    split = 0
    if split:
        poll("P", "s[90:91]", False)
        st(); dt(g, 9)
        pre = [it for it in queue if it[1] == "W" and it[0] < WPRE]
        for it in pre:
            queue.remove(it); emit_item(it)
        if o.get("pfw", 0):
            g.e(f"s_mul_i32 s{sT0}, s{sMT}, 10240")
            g.e(f"s_add_u32 s{sT0}, s{sT0}, s92")
            g.e(f"v_lshlrev_b32 v{vPF}, 7, v{vLane}")
            g.e(f"buffer_load_dword v{vPF+1}, v{vPF}, {sr(SWP)}, s{sT0} offen{lf}")
            g.e(f"s_add_u32 s{sT0}, s{sT0}, 2048")
            g.e(f"buffer_load_dword v{vPF+2}, v{vPF}, {sr(SWP)}, s{sT0} offen{lf}")
        g.e(f"v_cmp_ne_u32 vcc, s3, v{vG}")
        g.e("s_nop 4")
        g.e("s_and_b64 vcc, vcc, s[94:95]")
        g.e(f"s_cbranch_scc0 {name}_fwG")
        poll("G", "s[94:95]", False)
    else:
        if o.get("w0", 1):
            g.e(f"s_mov_b32 s{sT0}, 0xffff")
            g.e(f"s_cmp_eq_u32 s{sMT}, 0")
            g.e(f"s_cselect_b32 s{sT0}, 0xfff0, s{sT0}")
            g.e(f"s_cmp_eq_u32 s{sMT}, 7")
            g.e(f"s_cselect_b32 s94, 0x0fff, s{sT0}")
            g.e("s_or_b64 s[90:91], s[90:91], s[94:95]")
            g.e(f"s_cmp_lg_u32 s{sW}, 0")
            g.e(f"s_cbranch_scc1 {name}_fwP")
            poll("P", "s[90:91]", False)
            g.e("s_waitcnt vmcnt(0)")
            g.e("s_barrier")
        else:
            g.e("s_or_b64 s[90:91], s[90:91], s[94:95]")
            poll("P", "s[90:91]", False)
        st(); dt(g, 9)
    if st.on:
        g.e(f"s_memrealtime s[{52+2*st.n}:{53+2*st.n}]"); st.n += 1
    def issue_next(cur_k):
        if not queue: return False
        it = queue[0]
        if it[0] - NST >= cur_k or len(g.vm) >= 60: return False
        queue.pop(0); emit_item(it); return True
    def need(tok, k):
        while any((it[1], it[0], it[2]) == tok for it in queue): assert issue_next(k)
    for _ in range(PRE): issue_next(0)
    if o.get("pfh", 0):
        g.e(f"s_and_b32 s{sT0}, s{sNT}, 3")
        g.e(f"s_lshl_b32 s{sT0}, s{sT0}, 11")
        g.e(f"s_add_u32 s{sT0}, s{sT0}, s{sBASE}")
        g.e(f"v_lshrrev_b32 v{vPF}, 4, v{vLane}")
        g.e(f"v_lshlrev_b32 v{vPF}, 15, v{vPF}")
        g.e(f"v_and_b32 v{vPF+1}, 15, v{vLane}")
        g.e(f"v_lshl_add_u32 v{vPF}, v{vPF+1}, 7, v{vPF}")
        g.vmem(f"buffer_load_dword v{vPF+1}, v{vPF}, {sr(SA)}, s{sT0} offen{lf}")
        g.e(f"s_add_u32 s{sT0}, s{sT0}, 0x200000")
        g.vmem(f"buffer_load_dword v{vPF+2}, v{vPF}, {sr(SA)}, s{sT0} offen{lf}")
    wr_pending = []
    for k in range(8):
        s_ = k % NST
        last = k == 7
        g.c(f"---- k-step {k}")
        if k == 1: st()
        if o.get("ste") and k >= 2: g.e(f"s_memtime s[{60+2*(k-2)}:{61+2*(k-2)}]")
        dpp = [(T0, vMR, "wave_shr:1", j, i) for j in range(6) for i in range(4)]
        dpp2 = [(T2, vML, "wave_shl:1", j, i) for j in range(6) for i in range(4)]
        mf = []
        for di in range(3):
            for r in range(4): mf.append((r, di*3+1, ("H", k, r+di), Hreg(s_, r+di), "A"))
        for r in range(4): mf.append((r, 9, ("HI", k, r), HIreg(s_, r), "B"))
        if not last:
            for di in range(3):
                for r in range(4): mf.append((r, di*3, None, T0 + (r+di)*4, "C"))
            for di in range(3):
                for r in range(4): mf.append((r, di*3+2, None, T2 + (r+di)*4, "D"))
        else:
            dpp = [x for pair in zip(dpp, dpp2) for x in pair]; dpp2 = []
            for r in range(4):
                for di in range(3): mf.append((r, di*3, None, T0 + (r+di)*4, "E"))
                for di in range(3): mf.append((r, di*3+2, None, T2 + (r+di)*4, "E" if di < 2 else "F"))
        since = 0
        spl = spf_list(k + SPF) if k > 0 else [x for kk in range(2, SPF+1) for x in spf_list(kk)]
        for n, (r, t, ht, hreg, grp) in enumerate(mf):
            toks = [("W", k, t)] + ([ht] if ht else [])
            for tok in toks: need(tok, k)
            g.wait_vm(toks)
            c = "0" if (k == 0 and n < 4) else ar(ACC+16*r, 16)
            if o.get("fake16"):
                for u_ in range(2):
                    q_ = ACC + 16*r + 4*((2*n + u_) % 4)
                    g.e(f"v_mfma_f32_16x16x32_bf16 {ar(q_)}, {ar(Wreg(s_,t))}, {vr(hreg)}, {'0' if k == 0 and n < 8 else ar(q_)}")
            else:
                g.e(f"v_mfma_f32_32x32x16_bf16 {ar(ACC+16*r,16)}, {ar(Wreg(s_,t))}, {vr(hreg)}, {c}")
            if grp in "AB" and n >= 2:
                for _ in range(4 if last else 2):
                    if dpp:
                        T, vm_, sh, j, i = dpp.pop(0)
                        need(("H", k, j), k); g.wait_vm([("H", k, j)])
                        g.e(f"v_and_b32_dpp v{T+j*4+i}, v{Hreg(s_,j)+i}, v{vm_} {sh} row_mask:0xf bank_mask:0xf bound_ctrl:0")
            if grp == "C":
                for _ in range(3):
                    if dpp2:
                        T, vm_, sh, j, i = dpp2.pop(0)
                        g.e(f"v_and_b32_dpp v{T+j*4+i}, v{Hreg(s_,j)+i}, v{vm_} {sh} row_mask:0xf bank_mask:0xf bound_ctrl:0")
            if o.get("RN"):
                if (n * o["RN"]) % o["RD"] < o["RN"]: issue_next(k)
            elif n % EVERY == EVERY - 1: issue_next(k)
            for _ in range(2 if k == 0 else 1):
                if spl: g.e(spl.pop(0))
            if wr_pending:
                since += 1
                if since == 2: g.e("s_nop 9")
                if since >= 2:
                    g.e(wr_pending.pop(0))
            if grp == "F":
                assert not wr_pending
                wr_pending = [f"ds_write_b128 v{vA}, {ar(ACC+16*r+4*q)} offset:{r*17408 + q*1088}" for q in range(4)]
                since = 0
        assert not dpp and not dpp2
    assert not queue
    g.c("---- epilogue")
    st(); dt(g, 11)
    g.e("s_nop 11")
    for w_ in wr_pending: g.e(w_)
    g.e("s_waitcnt lgkmcnt(0)")
    if o.get("ste"): g.e("s_memtime s[54:55]")
    g.e("s_barrier")
    if o.get("ste"): g.e("s_memtime s[56:57]")
    R = HB
    for i in range(2):
        for src in range(4):
            for hf in range(2):
                g.lds(f"ds_read_b128 {vr(R + ((i*4+src)*2+hf)*4)}, v{vA1} offset:{src*4352 + hf*512 + i*256}", ("R", i, src))
    XU = R + 64
    for i in range(2):
        for e_ in range(4):
            x = vXF + 4*i + e_
            g.e(f"v_lshlrev_b32 v{XU+8*i+2*e_}, 16, v{x}")
            g.e(f"v_and_b32 v{XU+8*i+2*e_+1}, 0xffff0000, v{x}")
    for i in range(2):
        base = R + i*32
        for src in range(4):
            g.wait_lg([("R", i, src)])
            for e_ in range(4):
                g.e(f"v_pk_add_f32 {vr(XU+8*i+2*e_,2)}, {vr(XU+8*i+2*e_,2)}, {vr(base+8*src+2*e_,2)}")
        for e_ in range(4): g.e(f"v_cvt_pk_bf16_f32 v{vXF+4*i+e_}, v{XU+8*i+2*e_}, v{XU+8*i+2*e_+1}")
        g.vmem(f"buffer_store_dwordx4 {vr(vXF+4*i)}, v{vO}, {sr(SO)}, {'0' if i==0 else 's%d'%sT1} offen{o.get('ostf',' sc1')}")
    if o.get("ste"): g.e("s_memtime s[58:59]")
    if o.get("enc"):
        i = o["enc"]
        g.e("s_waitcnt vmcnt(0)")
        g.e("s_memrealtime s[76:77]")
        g.e(f"s_cmp_lg_u32 s2, {o.get('encwg', 8)}")
        g.e("s_cbranch_scc1 enc_done")
        g.e(f"s_cmp_lg_u32 s{sW}, 0")
        g.e("s_cbranch_scc1 enc_done")
        g.e("s_waitcnt lgkmcnt(0)")
        g.e(f"s_sub_u32 s84, s{52+2*i}, s52")
        g.e("s_mul_i32 s84, s84, 20")
        g.label("enc_loop")
        g.e("s_memrealtime s[86:87]")
        g.e("s_waitcnt lgkmcnt(0)")
        g.e("s_sub_u32 s85, s86, s76")
        g.e("s_cmp_lt_u32 s85, s84")
        g.e("s_cbranch_scc1 enc_loop")
        g.label("enc_done")
    else:
        dt_finish(g)
    st.finish(st.n + 1)
    return AEND

def gen_all(out, o):
    DT[0] = bool(o.get("dt", 0)); CPF[0] = o.get("cpf", 2); CPF[1] = o.get("cpfo", 0)
    name = "fused_kernel"
    g = Gen(); st = Stamper(g, o.get("st", 0))
    entry(g, name, st)
    phase1(g, name, st, o)
    aend = phase2(g, name, st, o)
    g.label(f"{name}_end"); g.e("s_endpgm")
    build([(name, g.text(), kd(name, 256 + max(aend, 128), 256, 100), 256, 256, 160*1024)], out)

if __name__ == "__main__":
    o = {}
    for a in sys.argv[2:]:
        k, v = a.split("=")
        o[k] = int(v) if v.lstrip("-").isdigit() else " " + v.replace("+", " ")
    gen_all(sys.argv[1], o)
```

```python
import sys, struct
from gen import Gen, vr, ar, sr, srd, kd, build, WS_H, WS_HI, WS_WP, WS_ST, WP_BYTES
import gen4
from gen4 import Stamper, f2u, LOG2E, sW, WS_MB, dt, dt_finish, DT, CPF, entry

def phase1(g, name, st, o):
    stf = o.get("stf", " sc1")
    ldf = " nt" if o.get("nt", 0) else ""
    ldw = " nt" if o.get("ntw", 0) else ""
    SX, SWT, SWS, SXI, SDB = 12, 16, 20, 24, 28
    sCT, sU, sT0, sT1, sT2, sXROW, sM0X = 33, 34, 35, 36, 37, 38, 39
    sSOX, sSOW, sNONCE = 42, 43, 3
    sODD, sKC = 94, 95
    vLane, vT, vT2, vXD, vWD, vWA, vPX, vHF, vL16 = 1, 2, 3, 4, 5, 6, 7, 8, 9
    vXA = [10, 11, 12, 13]; vXAs = [14, 15, 16, 17]
    vWAs, vST, vWR, vNC, vZ, vWAs2 = 18, 19, 20, 21, 22, 23
    XF, WF, ACC, TMP = 24, 64, 80, 160
    g.e(f"s_and_b32 s{sT0}, s2, 7")
    g.e(f"s_lshr_b32 s{sT1}, s2, 3")
    g.e(f"s_and_b32 s{sCT}, s{sT1}, 3")
    g.e(f"s_lshr_b32 s{sT1}, s{sT1}, 2")
    if o.get("mix", 1):
        g.e(f"s_lshl_b32 s{sU}, s{sT0}, 2")
        g.e(f"s_lshr_b32 s{sT2}, s{sT1}, 1")
        g.e(f"s_add_u32 s{sU}, s{sU}, s{sT2}")
        g.e(f"s_and_b32 s{sT0}, s{sT1}, 1")
        g.e(f"s_lshl_b32 s{sT0}, s{sT0}, 2")
    else:
        g.e(f"s_and_b32 s{sU}, s{sT0}, 3")
        g.e(f"s_lshl_b32 s{sU}, s{sU}, 3")
        g.e(f"s_add_u32 s{sU}, s{sU}, s{sT1}")
    g.e(f"v_lshrrev_b32 v{vT}, 3, v{vLane}")
    g.e(f"s_lshl_b32 s{sT2}, s{sW}, 3")
    g.e(f"v_add_u32 v{vXD}, s{sT2}, v{vT}")
    g.e(f"v_lshrrev_b32 v{vT}, 1, v{vXD}")
    g.e(f"v_and_b32 v{vT}, 7, v{vT}")
    g.e(f"v_and_b32 v{vT2}, 7, v{vLane}")
    g.e(f"v_xor_b32 v{vT}, v{vT}, v{vT2}")
    g.e(f"v_lshlrev_b32 v{vT}, 4, v{vT}")
    g.e(f"v_lshl_add_u32 v{vXD}, v{vXD}, 10, v{vT}")
    g.e(f"v_lshrrev_b32 v{vT}, 4, v{vLane}")
    g.e(f"v_lshlrev_b32 v{vT2}, 2, v{vT}")
    g.e(f"v_and_b32 v{vWD}, 15, v{vLane}")
    g.e(f"v_xor_b32 v{vWD}, v{vWD}, v{vT2}")
    g.e(f"v_lshlrev_b32 v{vWD}, 4, v{vWD}")
    g.e(f"s_lshl_b32 s{sT2}, s{sW}, 2")
    g.e(f"v_add_u32 v{vT}, s{sT2}, v{vT}")
    g.e(f"v_lshl_add_u32 v{vWD}, v{vT}, 10, v{vWD}")
    g.e(f"s_lshl_b32 s{sT2}, s{sCT}, 8")
    g.e(f"v_add_u32 v{vWD}, s{sT2}, v{vWD}")
    g.e(f"s_lshl_b32 s{sM0X}, s{sW}, 10")
    g.e(f"v_mov_b32 v{vZ}, 0")
    g.e(f"s_cmp_ge_u32 s{sT0}, 4")
    g.e(f"s_cbranch_scc1 {name}_P")
    st_n0 = st.n

    def nonce_wait(role):
        g.wait_vm([("NC",)])
        g.e(f"s_mov_b32 s{sT2}, 0")
        g.label(f"{name}_ncpoll{role}")
        g.e(f"v_readfirstlane_b32 s{sNONCE}, v{vNC}")
        g.e(f"s_add_u32 s{sT2}, s{sT2}, 1")
        g.e(f"s_cmp_gt_u32 s{sT2}, 100000")
        g.e(f"s_cbranch_scc1 {name}_ncok{role}")
        g.e(f"s_cmp_lg_u32 s{sNONCE}, 0")
        g.e(f"s_cbranch_scc1 {name}_ncok{role}")
        g.e(f"buffer_load_dword v{vNC}, v{vZ}, {sr(SDB)}, 0 offen sc1")
        g.e("s_waitcnt vmcnt(0)")
        g.e(f"s_branch {name}_ncpoll{role}")
        g.label(f"{name}_ncok{role}")

    def pretouch():
        if not o.get("tlb", 0): return
        lab = f"{name}_pt{len(g.lines)}"
        g.e(f"s_cmp_lg_u32 s{sW}, 3")
        g.e(f"s_cbranch_scc1 {lab}")
        srd(g, 84, 50, 51, 12 << 20)
        g.e(f"v_lshlrev_b32 v{vT}, 18, v{vLane}")
        g.e(f"buffer_load_dword v252, v{vT}, s[84:87], 0 offen")
        srd(g, 84, 46, 47, 2 << 20)
        g.e(f"v_lshlrev_b32 v{vT}, 16, v{vLane}")
        g.e(f"buffer_load_dword v253, v{vT}, s[84:87], 0 offen")
        srd(g, 84, 40, 41, 2 << 20)
        g.e(f"buffer_load_dword v254, v{vT}, s[84:87], 0 offen")
        g.e(f"buffer_load_dword v251, v{vZ}, {sr(SDB)}, 0 offen sc1")
        g.label(lab)

    def l2pf(G):
        pf = o.get("pf", 0)
        if not (pf & (1 if G else 2)): return
        if G:
            g.e(f"v_lshrrev_b32 v{vT}, 2, v{vLane}")
            g.e(f"v_and_b32 v{vT2}, 3, v{vLane}")
            g.e(f"v_lshlrev_b32 v{vT2}, 6, v{vT2}")
            g.e(f"v_lshl_add_u32 v{vT}, v{vT}, 10, v{vT2}")
            g.e(f"s_lshl_b32 s{sT2}, s{sW}, 14")
            g.e(f"s_add_u32 s{sT2}, s{sT2}, s{sXROW}")
        else:
            g.e(f"v_lshrrev_b32 v{vT}, 1, v{vLane}")
            g.e(f"v_and_b32 v{vT2}, 1, v{vLane}")
            g.e(f"v_lshlrev_b32 v{vT2}, 7, v{vT2}")
            g.e(f"v_lshl_add_u32 v{vT}, v{vT}, 10, v{vT2}")
            g.e(f"s_mul_i32 s{sT2}, s{sW}, {40*1024}")
            g.e(f"s_add_u32 s{sT2}, s{sT2}, s93")
        g.e(f"s_lshl_b32 s{sT0}, s{sCT}, 8")
        g.e(f"s_add_u32 s{sT2}, s{sT2}, s{sT0}")
        g.vmem(f"buffer_load_dword v250, v{vT}, {sr(SX)}, s{sT2} offen")
        if not G:
            g.e(f"s_add_u32 s{sT2}, s{sT2}, 0x8000")
            g.vmem(f"buffer_load_dword v251, v{vT}, {sr(SX)}, s{sT2} offen")
        if pf & 4:
            g.e(f"s_and_b32 s{sT0}, s{sU}, 3")
            g.e(f"s_lshl_b32 s{sT0}, s{sT0}, 2")
            g.e(f"s_add_u32 s{sT0}, s{sT0}, s{sCT}")
            g.e(f"s_lshl_b32 s{sT0}, s{sT0}, 2")
            g.e(f"s_add_u32 s{sT0}, s{sT0}, s{sW}")
            g.e(f"s_lshl_b32 s{sT0}, s{sT0}, 13")
            g.e(f"v_lshlrev_b32 v{vT}, 7, v{vLane}")
            g.vmem(f"buffer_load_dword v252, v{vT}, {sr(SWT)}, s{sT0} offen")

    def frag_consts(G):
        pretouch()
        l2pf(G)
        g.e(f"v_and_b32 v{vPX}, 31, v{vLane}")
        g.e(f"v_lshrrev_b32 v{vHF}, 5, v{vLane}")
        g.e(f"v_lshlrev_b32 v{vL16}, 4, v{vLane}")
        g.e(f"v_lshrrev_b32 v{vT}, 1, v{vPX}")
        g.e(f"v_and_b32 v{vT}, 7, v{vT}")
        g.e(f"v_xor_b32 v{vT}, v{vT}, v{vHF}")
        g.e(f"v_lshlrev_b32 v{vT}, 4, v{vT}")
        g.e(f"v_lshl_add_u32 v{vXA[0]}, v{vPX}, 7, v{vT}")
        if G:
            g.e(f"s_lshr_b32 s{sT2}, s{sW}, 1")
            g.e(f"s_lshl_b32 s{sT2}, s{sT2}, 12")
            g.e(f"v_add_u32 v{vXA[0]}, s{sT2}, v{vXA[0]}")
        for s in range(1, 4):
            g.e(f"v_xor_b32 v{vXA[s]}, {s*32}, v{vXA[0]}")
        g.e(f"v_bfe_u32 v{vT}, v{vLane}, 2, 2")
        g.e(f"v_lshl_add_u32 v{vT2}, v{vHF}, 3, v{vT}")
        g.e(f"v_lshlrev_b32 v{vWA}, 8, v{vT2}")
        if G:
            g.e(f"s_and_b32 s{sT2}, s{sW}, 1")
            g.e(f"s_lshl_b32 s{sT2}, s{sT2}, 1")
            g.e(f"v_xor_b32 v{vT}, s{sT2}, v{vT}")
        else:
            g.e(f"v_xor_b32 v{vT}, s{sW}, v{vT}")
        g.e(f"v_lshl_add_u32 v{vWA}, v{vT}, 6, v{vWA}")
        g.e(f"v_bfe_u32 v{vT}, v{vLane}, 4, 1")
        g.e(f"v_lshl_add_u32 v{vWA}, v{vT}, 5, v{vWA}")
        g.e(f"v_and_b32 v{vT}, 3, v{vLane}")
        g.e(f"v_lshl_add_u32 v{vWA}, v{vT}, 3, v{vWA}")

    def publish(G):
        while st.on and st.n < 13: st()
        NL = o.get("NL", 8); LG = NL.bit_length() - 1; MS = NL*128
        def slot_off(dst, src):
            g.e(f"s_and_b32 s92, s{src}, {NL-1}")
            g.e(f"s_lshl_b32 s92, s92, 7")
            g.e(f"s_lshr_b32 s{dst}, s{src}, {LG}")
            g.e(f"s_lshl_b32 s{dst}, s{dst}, 2")
            g.e(f"s_add_u32 s{dst}, s{dst}, s92")
        if G:
            g.e(f"s_lshr_b32 s{sT0}, s{sU}, 1")
            g.e(f"s_and_b32 s{sT1}, s{sU}, 1")
            g.e(f"s_lshl_b32 s{sT2}, s{sT1}, 1")
            g.e(f"s_add_u32 s{sT2}, s{sT2}, s{sT0}")
            g.e(f"s_sub_u32 s{sT2}, s{sT2}, 1")
            g.e(f"s_add_u32 s{sSOX}, s{sT1}, 1")
            g.e(f"s_lshl_b32 s{sSOX}, s{sSOX}, 2")
            g.e(f"s_add_u32 s{sSOX}, s{sSOX}, s{sCT}")
            slot_off(sSOX, sSOX)
            g.e(f"s_mul_i32 s93, s{sT0}, {16*MS}")
            g.e(f"s_add_u32 s{sSOX}, s{sSOX}, s93")
            g.e(f"s_cmp_eq_u32 s{sT1}, 0")
            g.e(f"s_cselect_b32 s{sSOW}, 12, 0")
            g.e(f"s_add_u32 s{sSOW}, s{sSOW}, s{sCT}")
            slot_off(sSOW, sSOW)
            g.e(f"s_mul_i32 s93, s{sT2}, {16*MS}")
            g.e(f"s_add_u32 s{sSOW}, s{sSOW}, s93")
            g.e(f"s_lshr_b32 s{sT2}, s{sT2}, 3")
            g.e(f"s_lshr_b32 s{sT0}, s{sT0}, 3")
            g.e(f"s_cmp_eq_u32 s{sT2}, s{sT0}")
            g.e(f"s_cselect_b32 s92, -1, 0xffff")
            g.e(f"s_mov_b32 s93, 0")
            g.e(f"v_and_b32 v{vT}, 15, v{vLane}")
            g.e(f"v_mul_u32_u24 v{vT}, {MS}, v{vT}")
            g.e(f"v_mov_b32 v{vT2}, s{sSOW}")
            g.e(f"v_mov_b32 v{vPX}, s{sSOX}")
            g.e(f"v_cmp_gt_u32 vcc, 16, v{vLane}")
            g.e("s_nop 1")
            g.e(f"v_cndmask_b32 v{vT2}, v{vT2}, v{vPX}, vcc")
            g.e(f"v_add_u32 v{vT}, v{vT}, v{vT2}")
            g.e(f"s_mov_b32 s{sT0}, {WS_MB}")
        else:
            g.e(f"v_lshrrev_b32 v{vT}, 2, v{vLane}")
            g.e(f"v_lshlrev_b32 v{vT}, 4, v{vT}")
            g.e(f"v_and_b32 v{vT2}, 3, v{vLane}")
            g.e(f"v_add_u32 v{vT}, v{vT}, v{vT2}")
            g.e(f"v_mul_u32_u24 v{vT}, {MS}, v{vT}")
            g.e(f"s_add_u32 s{sT1}, s{sU}, 16")
            slot_off(sT1, sT1)
            g.e(f"s_mul_i32 s{sT0}, s{sCT}, {4*MS}")
            g.e(f"s_add_u32 s{sT0}, s{sT0}, s{sT1}")
            g.e(f"s_add_u32 s{sT0}, s{sT0}, {WS_MB}")
            g.e(f"s_mov_b64 s[92:93], -1")
        dt(g, 5 if G else 6)
        if st.on: g.e("s_memrealtime s[78:79]")
        g.e("s_waitcnt vmcnt(0)")
        g.e("s_barrier")
        if st.on: g.e("s_memrealtime s[80:81]")
        dt(g, 7 if G else 8)
        g.e(f"s_cmp_lg_u32 s{sW}, 0")
        g.e(f"s_cbranch_scc1 {name}_ph2")
        g.e(f"s_mov_b64 exec, s[92:93]")
        g.e(f"buffer_store_dword v{vNC}, v{vT}, {sr(SWS)}, s{sT0} offen sc1")
        g.e("s_mov_b64 exec, -1")
        g.e(f"s_branch {name}_ph2")

    def bodyP():
        g.vm = []; g.lg = []
        st.n = st_n0
        g.label(f"{name}_P")
        NA = 3
        S = o.get("SP", 4)
        STG = 16384 + NA*4096
        XB3, XB4 = S*STG, (S*STG + 32768 if S == 3 else 0)
        PRE = o.get("PREP", 3)
        g.e(f"s_and_b32 s{sODD}, s{sU}, 1")
        g.e(f"s_lshr_b32 s{sT1}, s{sU}, 1")
        g.e(f"s_mul_i32 s{sXROW}, s{sT1}, 288")
        g.e(f"s_mul_i32 s{sT2}, s{sODD}, 160")
        g.e(f"s_add_u32 s{sXROW}, s{sXROW}, s{sT2}")
        g.e(f"s_lshr_b32 s{sKC}, s{sT1}, 1")
        g.e(f"s_lshl_b32 s{sKC}, s{sKC}, 16")
        g.e(f"s_lshl_b32 s93, s{sXROW}, 10")
        g.e(f"s_lshr_b32 s92, s{sKC}, 9")
        g.e("s_waitcnt lgkmcnt(0)")
        if o.get("wsoff", 0):
            g.e(f"s_add_u32 s50, s50, {o['wsoff'] << 20:#x}")
            g.e("s_addc_u32 s51, s51, 0")
        st(); dt(g, 2)
        srd(g, SX, 44, 45, 4608*1024); srd(g, SWT, 10, 11, 512 << 10)
        cur = [None]
        def kofs(kc):
            if cur[0] == kc: return
            cur[0] = kc
            g.e(f"s_add_u32 s{sT2}, s92, {kc*128}")
            g.e(f"s_and_b32 s{sT2}, s{sT2}, 0x3ff")
            g.e(f"s_add_u32 s91, s{sT2}, s93")
            g.e(f"s_lshl_b32 s90, s{sT2}, 9")
        def ldW(kc, m):
            kofs(kc)
            g.e(f"s_add_u32 m0, s{sM0X}, {(kc % S)*STG + m*4096}")
            g.e(f"s_add_u32 s{sSOW}, s90, {m*16384}")
            g.vmem(f"buffer_load_dwordx4 v{vWD}, {sr(SWT)}, s{sSOW} offen{ldw} lds", ("D", kc))
        def ldX(b, kc):
            kofs(kc)
            dst = (kc % S)*STG + 16384 + b*4096 if b < NA else [XB3, XB4][b-NA] + kc*4096
            g.e(f"s_add_u32 m0, s{sM0X}, {dst}")
            g.e(f"s_add_u32 s{sSOX}, s91, {b*32768}")
            g.vmem(f"buffer_load_dwordx4 v{vXD}, {sr(SX)}, s{sSOX} offen{ldf} lds", ("D", kc) if b < NA else ("XB", b))
        ldq = []
        for kc in range(8):
            for m in range(4): ldq.append(("W", kc, m, kc - S))
            for b in range(NA): ldq.append(("X", b, kc, kc - S))
            if not o.get("late", 1) and kc >= 2:
                for b in (3, 4): ldq.append(("X", b, kc - 2, -1))
        if o.get("late", 1):
            for b in (3, 4):
                for kc in range(8): ldq.append(("X", b, kc, 5 if (b == 4 and S == 4) else -1))
        else:
            for kc in (6, 7):
                for b in (3, 4): ldq.append(("X", b, kc, -1))
        freed = [-1]
        def ldnext():
            if not ldq or len(g.vm) >= 60: return False
            idx = 0
            if ldq[0][3] > freed[0]:
                if not o.get("ooo", 0): return False
                cand = [i for i, t in enumerate(ldq) if t[0] == "X" and t[1] >= NA and t[3] <= freed[0]]
                if not cand or fill[0] >= o["ooo"]: return False
                idx = cand[0]; fill[0] += 1
            t, a, b_, need = ldq.pop(idx)
            if t == "W": ldW(a, b_)
            else: ldX(a, b_)
            return True
        fill = [0]
        for _ in range(7*PRE): ldnext()
        slotc = [0]
        srd(g, SDB, 48, 49, 256)
        frag_consts(False)
        srd(g, SWS, 50, 51, 16 << 20)
        g.e(f"s_lshl_b32 s{sT0}, s{sCT}, 2")
        g.e(f"s_add_u32 s{sT0}, s{sT0}, s{sW}")
        g.e(f"s_mul_i32 s{sT0}, s{sT0}, {32*10240}")
        g.e(f"s_add_u32 s{sT0}, s{sT0}, {WS_WP}")
        g.e(f"v_add_u32 v{vST}, s{sT0}, v{vL16}")
        XRB = TMP + 40
        def read_list(kc, s):
            p = (kc*4 + s) % 2
            ks = 4*kc + s
            L = []
            for h in range(2):
                L.append((f"ds_read_b64_tr_b16 {ar(4*ks+2*h,2)}, v{vWAs} offset:{s*4096+h*1024}", 0))
            for b in range(NA):
                L.append((f"ds_read_b128 {vr(XF+p*20+b*4)}, v{vXAs[s]} offset:{b*4096}", b))
            return [(r, ("R", kc, s, b)) for r, b in L]
        def stage_addr(kc):
            sb = (kc % S) * STG
            for s in range(4): g.e(f"v_add_u32 v{vXAs[s]}, {sb + 16384}, v{vXA[s]}")
            g.e(f"v_add_u32 v{vWAs}, {sb}, v{vWA}")
        stage_addr(0)
        st()
        g.wait_vm([("D", 0)])
        g.e("s_barrier")
        st()
        dt(g, 1)
        for r, t in read_list(0, 0): g.lds(r, t)
        LPA = o.get("LPA", 1)
        for kc in range(8):
            for s in range(4):
                if s < 3:
                    nxt = read_list(kc, s+1)
                else:
                    nxt = []
                    if kc < 7:
                        g.wait_lg([("R", kc, 3, b) for b in range(NA)])
                        while any(t[3] == kc+1-S and t[3] >= -10 and ((t[0] == "W" and t[1] == kc+1) or (t[0] == "X" and t[1] < NA and t[2] == kc+1)) for t in ldq): assert ldnext()
                        g.wait_vm([("D", kc+1)])
                        g.e("s_barrier")
                        if kc in (1, 3, 5): st()
                        freed[0] = kc
                        fill[0] = 0
                        stage_addr(kc+1)
                        nxt = read_list(kc+1, 0)
                p = (kc*4 + s) % 2
                ks = 4*kc + s
                for b in range(NA):
                    g.wait_lg([("R", kc, s, bb) for bb in range(b+1)])
                    ac = vr(ACC+16*b, 16)
                    g.e(f"v_mfma_f32_32x32x16_bf16 {ac}, {vr(XF+p*20+b*4)}, {ar(4*ks)}, {'0' if ks == 0 else ac}")
                    for _ in range(2):
                        if nxt:
                            r, t = nxt.pop(0); g.lds(r, t)
                    slotc[0] += 1
                    if (slotc[0] * o.get("PN", 12)) % 12 < o.get("PN", 12): ldnext()
            if kc == 4:
                g.vmem(f"buffer_load_dword v{vNC}, v{vZ}, {sr(SDB)}, 0 offen sc1", ("NC",))
        while ldq: assert ldnext()
        st(); dt(g, 10)
        def store_block(b):
            a = ACC + 16*b
            L = []
            L.append(f"s_add_u32 s{sT0}, s{sXROW}, {32*b}")
            L.append(f"s_lshr_b32 s{sT1}, s{sT0}, 9")
            L.append(f"s_and_b32 s{sT0}, s{sT0}, 511")
            L.append(f"s_lshr_b32 s{sT0}, s{sT0}, 4")
            L.append(f"s_mul_i32 s{sT0}, s{sT0}, 10")
            L.append(f"s_add_u32 s{sT0}, s{sT0}, s{sT1}")
            L.append(f"s_lshl_b32 s{sT0}, s{sT0}, 10")
            L.append(f"s_add_u32 s{sT1}, s{sT0}, 10240")
            for hh in range(2):
                d = TMP + b*8 + hh*4
                for i in range(4):
                    L.append(f"v_cvt_pk_bf16_f32 v{d+i}, v{a+8*hh+2*i}, v{a+8*hh+2*i+1}")
                L.append(("ST", f"buffer_store_dwordx4 {vr(d)}, v{vST}, {sr(SWS)}, s{sT0 if hh==0 else sT1} offen{stf}"))
            return L
        def emit(x):
            if isinstance(x, tuple): g.vmem(x[1])
            else: g.e(x)
        xr = [0]; xreg = {}
        def xread(b, ks):
            r = XRB + (xr[0] % 8)*4; xr[0] += 1
            g.lds(f"ds_read_b128 {vr(r)}, v{vXAs[ks%4]} offset:{(ks//4)*4096}", ("R2", b, ks))
            return r
        g.wait_vm([("XB", 3)] if o.get("late", 1) else [("XB", 3), ("XB", 4)])
        g.e("s_barrier")
        def blockB(b, pend):
            for s in range(4): g.e(f"v_add_u32 v{vXAs[s]}, {[XB3, XB4][b-3]}, v{vXA[s]}")
            AH = 6
            for ks in range(AH): xreg[(b, ks)] = xread(b, ks)
            for ks in range(32):
                g.wait_lg([("R2", b, ks)])
                ac = vr(ACC + 16*b, 16)
                g.e(f"v_mfma_f32_32x32x16_bf16 {ac}, {vr(xreg[(b,ks)])}, {ar(4*ks)}, {'0' if ks == 0 else ac}")
                if ks + AH < 32: xreg[(b, ks+AH)] = xread(b, ks+AH)
                if ks >= 1:
                    for _ in range(2):
                        if pend: emit(pend.pop(0))
            assert not pend
        blockB(3, store_block(0) + store_block(1) + store_block(2))
        st()
        g.e(f"s_cmp_lg_u32 s{sODD}, 0")
        g.e(f"s_cbranch_scc1 {name}_P4")
        saved = (list(g.vm), list(g.lg))
        if o.get("late", 1):
            g.wait_vm([("XB", 4)])
            g.e("s_barrier")
        blockB(4, store_block(3))
        st(); dt(g, 4)
        g.e("s_nop 3")
        for x in store_block(4): emit(x)
        g.e(f"s_branch {name}_Pdone")
        g.label(f"{name}_P4")
        g.vm, g.lg = saved
        g.e(f"s_lshr_b32 s{sT0}, s{sU}, 1")
        g.e(f"s_and_b32 s{sT2}, s{sT0}, 1")
        g.e(f"s_mul_i32 s{sT0}, s{sT0}, 20480")
        g.e(f"s_add_u32 s{sT0}, s{sT0}, 9216")
        g.e(f"s_add_u32 s{sT1}, s{sT0}, 10240")
        g.e(f"s_cmp_eq_u32 s{sT2}, 0")
        g.e(f"s_cbranch_scc0 {name}_rp1")
        g.e(f"buffer_store_dwordx4 {ar(0)}, v{vST}, {sr(SWS)}, s{sT0} offen{stf}")
        g.e(f"buffer_store_dwordx4 {ar(4)}, v{vST}, {sr(SWS)}, s{sT1} offen{stf}")
        g.e(f"s_branch {name}_rp2")
        g.label(f"{name}_rp1")
        g.e(f"buffer_store_dwordx4 {ar(8)}, v{vST}, {sr(SWS)}, s{sT0} offen{stf}")
        g.e(f"buffer_store_dwordx4 {ar(12)}, v{vST}, {sr(SWS)}, s{sT1} offen{stf}")
        g.label(f"{name}_rp2")
        g.e("s_nop 3")
        for x in store_block(3): emit(x)
        g.label(f"{name}_Pdone")
        g.vm = []
        nonce_wait("P")
        publish(False)

    def bodyG():
        NX, S = 2, 6
        XB = NX * 4096
        STG = XB + 16384
        NI = NX + 4
        PRE1 = o.get("PREG", 3)
        XT = 6*STG
        g.vm = []; g.lg = []
        st.n = st_n0
        g.e(f"s_lshl_b32 s{sXROW}, s{sU}, 16")
        g.e(f"v_lshrrev_b32 v{vT}, 4, v{vLane}")
        g.e(f"s_lshl_b32 s{sT2}, s{sW}, 2")
        g.e(f"v_add_u32 v{vT}, s{sT2}, v{vT}")
        g.e(f"v_and_b32 v{vT2}, 15, v{vLane}")
        g.e(f"v_xor_b32 v{vT2}, v{vT2}, v{vT}")
        g.e(f"v_lshlrev_b32 v{vT2}, 4, v{vT2}")
        g.e(f"v_lshl_add_u32 v{vT}, v{vT}, 10, v{vT2}")
        g.e(f"s_lshl_b32 s{sT2}, s{sCT}, 8")
        g.e(f"v_add_u32 v{vWR}, s{sT2}, v{vT}")
        g.e("s_waitcnt lgkmcnt(0)")
        if o.get("wsoff", 0):
            g.e(f"s_add_u32 s50, s50, {o['wsoff'] << 20:#x}")
            g.e("s_addc_u32 s51, s51, 0")
        st(); dt(g, 2)
        srd(g, SX, 6, 7, 2 << 20); srd(g, SWT, 8, 9, 512 << 10); srd(g, SXI, 4, 5, 2 << 20)
        def ld1(kc, m):
            sb = (kc % S) * STG
            isx = m < NX
            mm = m if isx else m - NX
            g.e(f"s_add_u32 m0, s{sM0X}, {sb + m*4096}")
            if isx: g.e(f"s_add_u32 s{sSOX}, s{sXROW}, {mm*32768 + kc*128}")
            else:   g.e(f"s_mov_b32 s{sSOW}, {(kc*64 + 16*mm)*1024}")
            va, sd, so = (vXD, SX, sSOX) if isx else (vWD, SWT, sSOW)
            g.vmem(f"buffer_load_dwordx4 v{va}, {sr(sd)}, s{so} offen{ldf if isx else ldw} lds", ("D", kc))
        for m in range(NI): ld1(0, m)
        srd(g, SDB, 48, 49, 256)
        g.e(f"s_or_b32 s{sT0}, s2, s{sW}")
        g.e(f"s_cmp_lg_u32 s{sT0}, 0")
        g.e(f"s_cbranch_scc1 {name}_nn")
        g.e("s_memrealtime s[96:97]")
        g.e("s_waitcnt lgkmcnt(0)")
        g.e(f"s_or_b32 s96, s96, 1")
        g.e(f"v_mov_b32 v{vT}, s96")
        g.e(f"buffer_store_dword v{vT}, v{vZ}, {sr(SDB)}, 0 offen sc1")
        g.label(f"{name}_nn")
        for kc in range(1, PRE1):
            for m in range(NI): ld1(kc, m)
        ldq = [(kc, m) for kc in range(PRE1, 8) for m in range(NI)]
        k6 = [i for i, (kc, m) in enumerate(ldq) if kc >= 5][0]
        ldq[k6:k6] = [("X", m) for m in range(4)]
        freed = [0]
        def ldnext():
            if not ldq: return False
            kc, m = ldq[0]
            if kc == "X":
                ldq.pop(0)
                g.e(f"s_add_u32 m0, s{sM0X}, {XT + m*4096}")
                g.e(f"s_add_u32 s{sSOX}, s{sXROW}, {m*16384}")
                g.vmem(f"buffer_load_dwordx4 v{vWR}, {sr(SXI)}, s{sSOX} offen{ldf} lds", ("D", 5))
                return True
            if kc - S >= freed[0]: return False
            ldq.pop(0); ld1(kc, m); return True
        frag_consts(True)
        srd(g, SWS, 50, 51, 16 << 20)
        mk = len(g.lines)
        vXR, vGA, vGO = TMP+60, TMP+61, TMP+62
        g.e(f"s_lshr_b32 s{sT0}, s{sW}, 1")
        g.e(f"s_and_b32 s{sT1}, s{sW}, 1")
        g.e(f"s_lshl_b32 s{sT2}, s{sT0}, 13")
        g.e(f"s_add_u32 s{sT2}, s{sT2}, {XT}")
        g.e(f"v_and_b32 v{vT}, 15, v{vPX}")
        g.e(f"s_lshl_b32 s{sSOX}, s{sT1}, 3")
        g.e(f"v_xor_b32 v{vT}, s{sSOX}, v{vT}")
        g.e(f"v_lshlrev_b32 v{vT}, 4, v{vT}")
        g.e(f"v_lshl_add_u32 v{vT}, v{vPX}, 8, v{vT}")
        g.e(f"v_lshl_add_u32 v{vT}, v{vHF}, 3, v{vT}")
        g.e(f"v_add_u32 v{vXR}, s{sT2}, v{vT}")
        g.e(f"s_lshl_b32 s{sT2}, s{sT0}, 15")
        g.e(f"s_add_u32 s{sT2}, s{sT2}, s{sXROW}")
        g.e(f"s_lshl_b32 s{sSOX}, s{sCT}, 13")
        g.e(f"s_add_u32 s{sT2}, s{sT2}, s{sSOX}")
        g.e(f"s_lshl_b32 s{sSOX}, s{sT1}, 12")
        g.e(f"s_add_u32 s{sT2}, s{sT2}, s{sSOX}")
        g.e(f"v_add_u32 v{vST}, s{sT2}, v{vL16}")
        g.e(f"s_lshl_b32 s{sSOX}, s{sU}, 1")
        g.e(f"s_add_u32 s{sSOX}, s{sSOX}, s{sT0}")
        g.e(f"s_lshl_b32 s{sSOX}, s{sSOX}, 12")
        g.e(f"s_add_u32 s{sSOX}, s{sSOX}, {WS_ST}")
        g.e(f"v_lshlrev_b32 v{vGO}, 4, v{vPX}")
        g.e(f"v_add_u32 v{vGO}, s{sSOX}, v{vGO}")
        g.e(f"v_lshl_add_u32 v{vGA}, v{vHF}, 11, v{vGO}")
        g.e(f"s_lshl_b32 s93, s{sCT}, 1")
        g.e(f"s_add_u32 s93, s93, s{sT1}")
        g.e(f"s_lshl_b32 s93, s93, 9")
        deferG = g.lines[mk:]; del g.lines[mk:]
        def stage_addr(kc):
            sb = (kc % S) * STG
            for s in range(4): g.e(f"v_add_u32 v{vXAs[s]}, {sb}, v{vXA[s]}")
            g.e(f"v_add_u32 v{vWAs}, {sb + XB}, v{vWA}")
            g.e(f"v_xor_b32 v{vWAs2}, 64, v{vWAs}")
        def read_list(kc, s):
            p = (kc*4 + s) % 2
            L = [(f"ds_read_b128 {vr(XF+p*20)}, v{vXAs[s]}", 0)]
            for cb in range(2):
                for h in range(2):
                    L.append((f"ds_read_b64_tr_b16 {vr(WF+p*8+cb*4+h*2,2)}, v{vWAs if cb==0 else vWAs2} offset:{s*4096+h*1024}", cb))
            return [(r, ("R", kc, s, b)) for r, b in L]
        stage_addr(0)
        st()
        g.wait_vm([("D", 0)])
        g.e("s_barrier")
        st()
        dt(g, 1)
        XR = TMP
        XU = ACC + 32
        for r, t in read_list(0, 0): g.lds(r, t)
        LPM = o.get("LPG", 1)
        for kc in range(8):
            for s in range(4):
                if s < 3:
                    nxt = read_list(kc, s+1)
                else:
                    nxt = []
                    if kc < 7:
                        g.wait_lg([("R", kc, 3, b) for b in range(2)])
                        while any(c_ == kc+1 for c_, _ in ldq): assert ldnext()
                        g.wait_vm([("D", kc+1)])
                        g.e("s_barrier")
                        if kc in (0, 2, 4, 6): st()
                        if kc == o.get("dtk", 2): dt(g, 10)
                        freed[0] = kc + 1
                        stage_addr(kc+1)
                        nxt = read_list(kc+1, 0)
                p = (kc*4 + s) % 2
                for b in range(2):
                    g.wait_lg([("R", kc, s, bb) for bb in range(b+1)])
                    ac = vr(ACC+16*b, 16)
                    g.e(f"v_mfma_f32_32x32x16_bf16 {ac}, {vr(WF+p*8+b*4)}, {vr(XF+p*20)}, {'0' if kc == 0 and s == 0 else ac}")
                    for _ in range(3):
                        if nxt:
                            r, t = nxt.pop(0); g.lds(r, t)
                    for _ in range(LPM): ldnext()
            if kc == 4:
                g.vmem(f"buffer_load_dword v{vNC}, v{vZ}, {sr(SDB)}, 0 offen sc1", ("NC",))
            if kc == 0: g.lines += deferG
            if kc == 5:
                for j in range(8):
                    g.e(f"v_xor_b32 v{vT2}, {j*16}, v{vXR}")
                    g.lds(f"ds_read_b64 {vr(XR+2*j,2)}, v{vT2}", ("XR", j))
            if kc == 6:
                g.wait_lg([("XR", 7)])
                for j in range(16):
                    g.e(f"v_lshlrev_b32 v{XU+2*j}, 16, v{XR+j}")
                    g.e(f"v_and_b32 v{XU+2*j+1}, 0xffff0000, v{XR+j}")
        assert not ldq
        st(); dt(g, 3)
        nonce_wait("G")
        g.e("s_nop 7")
        S1, S2 = TMP+16, TMP+18
        P1, P2 = TMP+20, TMP+22
        for i in range(16): g.e(f"v_pk_add_f32 {vr(ACC+2*i,2)}, {vr(ACC+2*i,2)}, {vr(XU+2*i,2)}")
        g.e(f"v_pk_add_f32 {vr(P1,2)}, {vr(ACC,2)}, {vr(ACC+2,2)}")
        g.e(f"v_pk_mul_f32 {vr(P2,2)}, {vr(ACC,2)}, {vr(ACC,2)}")
        g.e(f"v_pk_fma_f32 {vr(P2,2)}, {vr(ACC+2,2)}, {vr(ACC+2,2)}, {vr(P2,2)}")
        for i in range(2, 16):
            g.e(f"v_pk_add_f32 {vr(P1,2)}, {vr(P1,2)}, {vr(ACC+2*i,2)}")
            g.e(f"v_pk_fma_f32 {vr(P2,2)}, {vr(ACC+2*i,2)}, {vr(ACC+2*i,2)}, {vr(P2,2)}")
        g.e(f"v_add_f32 v{S1}, v{P1}, v{P1+1}")
        g.e(f"v_add_f32 v{S2}, v{P2}, v{P2+1}")
        g.e(f"v_mov_b32 v{vT}, v{S1}")
        g.e(f"v_mov_b32 v{vT2}, v{S2}")
        g.e(f"v_mov_b32 v{S1+1}, v{vNC}")
        g.e(f"v_mov_b32 v{S2+1}, v{vNC}")
        g.e(f"v_permlane32_swap_b32 v{S1}, v{vT}")
        g.e(f"v_permlane32_swap_b32 v{S2}, v{vT2}")
        g.e(f"v_add_f32 v{S1}, v{S1}, v{vT}")
        g.e(f"v_add_f32 v{S2}, v{S2}, v{vT2}")
        g.e("s_mov_b64 exec, 0xffffffff")
        g.e(f"buffer_store_dwordx4 {vr(S1)}, v{vGO}, {sr(SWS)}, s93 offen sc1")
        g.e("s_mov_b64 exec, -1")
        st()
        for j in range(16):
            g.e(f"v_cvt_pk_bf16_f32 v{XR+j}, v{ACC+2*j}, v{ACC+2*j+1}")
        g.e("s_nop 1")
        for hh in range(4):
            g.e(f"v_permlane32_swap_b32 v{XR+4*hh}, v{XR+4*hh+2}")
            g.e(f"v_permlane32_swap_b32 v{XR+4*hh+1}, v{XR+4*hh+3}")
        EA, EB = TMP + 24, TMP + 40
        def poll_issue(E):
            for e_ in range(4):
                g.e(f"buffer_load_dwordx4 {vr(E+4*e_)}, v{vGA}, {sr(SWS)}, 0 offen offset:{e_*512} sc1")
        def poll_check(E):
            g.e(f"v_xor_b32 v{vT}, v{E+1}, v{vNC}")
            for e_ in range(4):
                for o_ in (1, 3):
                    if e_ == 0 and o_ == 1: continue
                    g.e(f"v_xor_b32 v{vT2}, v{E+4*e_+o_}, v{vNC}")
                    g.e(f"v_or_b32 v{vT}, v{vT}, v{vT2}")
            g.e(f"v_cmp_ne_u32 vcc, 0, v{vT}")
            g.e("s_nop 4")
        g.e(f"s_mov_b32 s{sT2}, 0")
        poll_issue(EA)
        g.label(f"{name}_poll")
        g.e(f"s_add_u32 s{sT2}, s{sT2}, 1")
        g.e(f"s_cmp_gt_u32 s{sT2}, 100000")
        g.e(f"s_cbranch_scc1 {name}_pollx")
        if o.get("pp", 1):
            g.e("s_sleep 4")
            poll_issue(EB)
            g.e("s_waitcnt vmcnt(4)")
            poll_check(EA)
            g.e(f"s_cbranch_vccz {name}_pollx")
            poll_issue(EA)
            g.e("s_waitcnt vmcnt(4)")
            poll_check(EB)
            g.e(f"s_cbranch_vccnz {name}_poll")
            g.e("s_waitcnt vmcnt(0)")
        else:
            g.e("s_waitcnt vmcnt(0)")
            poll_check(EA)
            g.e(f"s_cbranch_vccz {name}_pollx")
            poll_issue(EA)
            g.e(f"s_branch {name}_poll")
        g.label(f"{name}_pollx")
        st()
        E = EA
        g.e(f"s_mov_b32 s{sT1}, {WS_HI}")
        for e_ in range(1, 4):
            g.e(f"v_add_f32 v{E}, v{E}, v{E+4*e_}")
            g.e(f"v_add_f32 v{E+2}, v{E+2}, v{E+4*e_+2}")
        g.e(f"v_mov_b32 v{vT}, v{E}")
        g.e(f"v_mov_b32 v{vT2}, v{E+2}")
        for hh in range(4):
            g.e(f"buffer_store_dwordx4 {vr(XR+4*hh)}, v{vST}, {sr(SWS)}, s{sT1} offen offset:{hh*1024}{stf}")
        g.e(f"v_permlane32_swap_b32 v{E}, v{vT}")
        g.e(f"v_permlane32_swap_b32 v{E+2}, v{vT2}")
        g.e(f"v_add_f32 v{E}, v{E}, v{vT}")
        g.e(f"v_add_f32 v{E+2}, v{E+2}, v{vT2}")
        g.e(f"v_mul_f32 v{E}, {f2u(1/512):#x}, v{E}")
        g.e(f"v_mul_f32 v{E+2}, {f2u(1/512):#x}, v{E+2}")
        g.e(f"v_fma_f32 v{E+2}, -v{E}, v{E}, v{E+2}")
        g.e(f"v_max_f32 v{E+2}, 0, v{E+2}")
        g.e(f"v_add_f32 v{E+2}, {f2u(1e-5):#x}, v{E+2}")
        A_, B_, A2, B2 = E+4, E+6, E+8, E+10
        g.e(f"v_rsq_f32 v{A_}, v{E+2}")
        g.e("s_nop 0")
        g.e(f"v_mul_f32 v{B_}, v{E}, v{A_}")
        g.e(f"v_sub_f32 v{B_}, 0, v{B_}")
        g.e(f"v_mul_f32 v{A2}, {f2u(-LOG2E):#x}, v{A_}")
        g.e(f"v_mul_f32 v{B2}, {f2u(-LOG2E):#x}, v{B_}")
        Y = XF
        D = WF
        for hh in range(4):
            a = ACC + 8*hh; y = Y + (hh % 2)*8
            for i in range(4): g.e(f"v_pk_fma_f32 {vr(y+2*i,2)}, {vr(a+2*i,2)}, {vr(A2,2)}, {vr(B2,2)} op_sel_hi:[1,0,0]")
            for i in range(8): g.e(f"v_exp_f32 v{y+i}, v{y+i}")
            for i in range(4): g.e(f"v_pk_fma_f32 {vr(a+2*i,2)}, {vr(a+2*i,2)}, {vr(A_,2)}, {vr(B_,2)} op_sel_hi:[1,0,0]")
            for i in range(4): g.e(f"v_pk_add_f32 {vr(y+2*i,2)}, {vr(y+2*i,2)}, 1.0 op_sel_hi:[1,0]")
            for i in range(8): g.e(f"v_rcp_f32 v{y+i}, v{y+i}")
            g.e("s_nop 0")
            for i in range(4): g.e(f"v_pk_mul_f32 {vr(a+2*i,2)}, {vr(a+2*i,2)}, {vr(y+2*i,2)}")
            d = D + hh*4
            for i in range(4): g.e(f"v_cvt_pk_bf16_f32 v{d+i}, v{a+2*i}, v{a+2*i+1}")
            g.e(f"buffer_store_dwordx4 {vr(d)}, v{vST}, {sr(SWS)}, 0 offen offset:{hh*1024}{stf}")
        publish(True)
    bodyG(); bodyP()

def phase2(g, name, st, o):
    NST, PRE, EVERY = o.get("NST", 3), o.get("PRE", 20), o.get("EVERY", 2)
    lf = o.get("lf", " sc1").replace(" none", "")
    SA, SWP, SX, SO, SDB = 12, 16, 20, 24, 28
    C4K, C8K, C2M, C2M4K = 33, 34, 42, 43
    sMT, sNT, sB, sT0, sT1, sR0, sBASE = 35, 36, 37, 38, 39, 97, 96
    vLane, vT, vW, vMR, vML, vO, vT2 = 1, 2, 3, 4, 5, 6, 7
    vH = [8+j for j in range(6)]
    vA, vA1 = 14, 15
    vXF = 16
    HB = 24
    HIB = HB + NST*24
    T0 = HIB + NST*16
    T2 = T0 + 24
    VEND = T2 + 24
    vF, vG, vPF = VEND, VEND+1, VEND+2
    assert VEND + 8 <= 250
    ACC, WB = 0, 64
    AEND = WB + NST*40
    g.vm = []; g.lg = []
    g.label(f"{name}_ph2")
    if st.on: st.n = 15
    st()
    g.e(f"s_and_b32 s{sT0}, s2, 7")
    g.e(f"s_lshr_b32 s{sT1}, s2, 3")
    g.e(f"s_and_b32 s{sB}, s{sT0}, 1")
    g.e(f"s_lshr_b32 s{sT0}, s{sT0}, 1")
    g.e(f"s_and_b32 s{sMT}, s{sT1}, 7")
    g.e(f"s_lshr_b32 s{sT1}, s{sT1}, 3")
    g.e(f"s_lshl_b32 s{sNT}, s{sT0}, 2")
    g.e(f"s_add_u32 s{sNT}, s{sNT}, s{sT1}")
    g.e(f"s_lshl_b32 s{sT0}, s{sB}, 5")
    g.e(f"s_lshl_b32 s{sT1}, s{sMT}, 2")
    g.e(f"s_add_u32 s{sR0}, s{sT0}, s{sT1}")
    srd(g, SDB, 50, 51, 16 << 20)
    NL = o.get("NL", 8); LG = NL.bit_length() - 1; MS = NL*128
    g.e(f"s_lshr_b32 s{sT0}, s{sR0}, 2")
    g.e(f"s_lshl_b32 s{sT0}, s{sT0}, 4")
    g.e(f"s_add_u32 s{sT0}, s{sT0}, s{sNT}")
    g.e(f"s_mul_i32 s{sT0}, s{sT0}, {MS}")
    g.e(f"s_add_u32 s{sT0}, s{sT0}, {WS_MB}")
    g.e(f"v_and_b32 v{vF}, {NL-1}, v{vLane}")
    g.e(f"v_lshlrev_b32 v{vF}, 7, v{vF}")
    g.e(f"v_lshrrev_b32 v{vG}, {LG}, v{vLane}")
    g.e(f"v_lshl_add_u32 v{vF}, v{vG}, 2, v{vF}")
    g.e(f"v_add_u32 v{vF}, s{sT0}, v{vF}")
    g.e(f"s_movk_i32 s{C4K}, 0x1000")
    g.e(f"s_movk_i32 s{C8K}, 0x2000")
    g.e(f"s_mov_b32 s{C2M}, 0x200000")
    g.e(f"s_mov_b32 s{C2M4K}, 0x201000")
    g.e(f"s_lshl_b32 s{sBASE}, s{sR0}, 15")
    g.e(f"s_lshl_b32 s{sT0}, s{sW}, 13")
    g.e(f"s_add_u32 s{sBASE}, s{sBASE}, s{sT0}")
    g.e(f"v_lshlrev_b32 v{vT}, 4, v{vLane}")
    for j in range(1, 5):
        g.e(f"s_add_u32 s{sT0}, s{sBASE}, {(j-1)*32768}")
        g.e(f"v_add_u32 v{vH[j]}, s{sT0}, v{vT}")
    g.e(f"s_sub_u32 s{sT0}, s{sBASE}, 32768")
    g.e(f"s_cmp_eq_u32 s{sMT}, 0")
    g.e(f"s_cselect_b32 s{sT0}, 0x40000000, s{sT0}")
    g.e(f"v_add_u32 v{vH[0]}, s{sT0}, v{vT}")
    g.e(f"s_add_u32 s{sT0}, s{sBASE}, {4*32768}")
    g.e(f"s_cmp_eq_u32 s{sMT}, 7")
    g.e(f"s_cselect_b32 s{sT0}, 0x40000000, s{sT0}")
    g.e(f"v_add_u32 v{vH[5]}, s{sT0}, v{vT}")
    g.e(f"s_lshl_b32 s{sT0}, s{sNT}, 5")
    g.e(f"s_lshl_b32 s{sT1}, s{sW}, 3")
    g.e(f"s_add_u32 s{sT0}, s{sT0}, s{sT1}")
    g.e(f"s_mul_i32 s92, s{sT0}, 10240")
    g.e(f"v_add_u32 v{vW}, s92, v{vT}")
    srd(g, SA, 50, 51, 4 << 20)
    srd(g, SWP, 50, 51, WP_BYTES, add=WS_WP)
    srd(g, SX, 40, 41, 2 << 20)
    srd(g, SO, 46, 47, 2 << 20)
    g.e(f"s_add_u32 s{sT0}, s{sR0}, s{sW}")
    g.e(f"s_lshl_b32 s{sT0}, s{sT0}, 15")
    g.e(f"s_lshl_b32 s{sT1}, s{sNT}, 6")
    g.e(f"s_add_u32 s{sT0}, s{sT0}, s{sT1}")
    g.e(f"v_lshrrev_b32 v{vO}, 2, v{vLane}")
    g.e(f"v_lshlrev_b32 v{vO}, 10, v{vO}")
    g.e(f"v_and_b32 v{vT2}, 3, v{vLane}")
    g.e(f"v_lshlrev_b32 v{vT2}, 4, v{vT2}")
    g.e(f"v_add3_u32 v{vO}, v{vO}, v{vT2}, s{sT0}")
    g.e(f"s_movk_i32 s{sT1}, 0x4000")
    xfl = " nt" if o.get("nt", 0) else ""
    g.e(f"buffer_load_dwordx4 {vr(vXF)}, v{vO}, {sr(SX)}, 0 offen{xfl}")
    g.e(f"buffer_load_dwordx4 {vr(vXF+4)}, v{vO}, {sr(SX)}, s{sT1} offen{xfl}")
    g.e(f"v_and_b32 v{vT}, 31, v{vLane}")
    g.e(f"v_cmp_ne_u32 vcc, 0, v{vT}")
    g.e("s_nop 1")
    g.e(f"v_cndmask_b32 v{vMR}, 0, -1, vcc")
    g.e(f"v_cmp_ne_u32 vcc, 31, v{vT}")
    g.e("s_nop 1")
    g.e(f"v_cndmask_b32 v{vML}, 0, -1, vcc")
    g.e(f"v_lshlrev_b32 v{vA}, 4, v{vLane}")
    g.e(f"s_mul_i32 s{sT0}, s{sW}, 4352")
    g.e(f"v_add_u32 v{vA}, s{sT0}, v{vA}")
    g.e(f"v_and_b32 v{vA1}, 3, v{vLane}")
    g.e(f"v_mul_u32_u24 v{vA1}, 1088, v{vA1}")
    g.e(f"v_lshrrev_b32 v{vT}, 2, v{vLane}")
    g.e(f"v_lshl_add_u32 v{vA1}, v{vT}, 4, v{vA1}")
    g.e(f"s_mul_i32 s{sT0}, s{sW}, 17408")
    g.e(f"v_add_u32 v{vA1}, s{sT0}, v{vA1}")
    g.e("s_mov_b32 s90, 0xffff0000")
    g.e("s_mov_b32 s91, 0xffff")
    g.e(f"s_movk_i32 s{sT0}, 0x1111")
    g.e(f"s_cmp_eq_u32 s{sMT}, 0")
    g.e(f"s_cselect_b32 s{sT0}, 0x1110, s{sT0}")
    g.e(f"s_cmp_eq_u32 s{sMT}, 7")
    g.e(f"s_cselect_b32 s{sT0}, 0x0111, s{sT0}")
    g.e(f"s_lshl_b32 s94, s{sT0}, s{sW}")
    g.e("s_mov_b32 s95, 0")
    def poll(tag, mask, first_issued):
        g.e(f"s_mov_b32 s{sT0}, 0")
        if first_issued: g.e(f"s_branch {name}_fchk{tag}")
        g.label(f"{name}_fpoll{tag}")
        if o.get("fs", 0): g.e(f"s_sleep {o['fs']}")
        g.e(f"buffer_load_dword v{vG}, v{vF}, {sr(SDB)}, 0 offen sc1")
        g.label(f"{name}_fchk{tag}")
        g.e(f"s_add_u32 s{sT0}, s{sT0}, 1")
        g.e(f"s_cmp_gt_u32 s{sT0}, 200000")
        g.e(f"s_cbranch_scc1 {name}_fw{tag}")
        g.e("s_waitcnt vmcnt(0)")
        g.e(f"v_cmp_ne_u32 vcc, s3, v{vG}")
        g.e("s_nop 4")
        g.e(f"s_and_b64 vcc, vcc, {mask}")
        g.e(f"s_cbranch_scc1 {name}_fpoll{tag}")
        g.label(f"{name}_fw{tag}")

    SPF = o.get("spf", 0)
    if SPF:
        g.e(f"s_mul_i32 s{sT0}, s{sMT}, 1280")
        g.e(f"s_add_u32 s{sT0}, s{sT0}, s92")
        g.e(f"s_add_u32 s{sT0}, s{sT0}, {WS_WP}")
        g.e(f"s_add_u32 s4, s50, s{sT0}")
        g.e(f"s_addc_u32 s5, s51, 0")
        g.e(f"s_and_b32 s{sT0}, s{sNT}, 3")
        g.e(f"s_lshl_b32 s{sT0}, s{sT0}, 8")
        g.e(f"s_add_u32 s{sT0}, s{sT0}, s{sBASE}")
        g.e(f"s_add_u32 s6, s50, s{sT0}")
        g.e(f"s_addc_u32 s7, s51, 0")
        g.e(f"s_add_u32 s8, s6, 0x200000")
        g.e(f"s_addc_u32 s9, s7, 0")
    def spf_list(k):
        if not SPF or k > 7: return []
        L = [f"s_load_dword s10, s[4:5], {k*10240 + i*128:#x}" for i in range(10)]
        if o.get("spfh", 1):
            for r in range(4):
                for i in range(2):
                    L.append(f"s_load_dword s10, s[6:7], {r*32768 + k*1024 + i*128:#x}")
                    L.append(f"s_load_dword s10, s[8:9], {r*32768 + k*1024 + i*128:#x}")
        return L
    def Hreg(s_, j): return HB + s_*24 + j*4
    def HIreg(s_, r): return HIB + s_*16 + r*4
    def Wreg(s_, t): return WB + s_*40 + t*4
    def ldW(k, t):
        s_ = k % NST
        off = (k*10 + t)*1024
        return ("W", k, t, s_, off)
    def emitW(k, t):
        s_ = k % NST
        off = (k*10 + t)*1024
        g.e(f"s_mov_b32 s{sT0}, {off & ~4095}")
        g.vmem(f"buffer_load_dwordx4 {ar(Wreg(s_,t))}, v{vW}, {sr(SWP)}, s{sT0} offen offset:{off & 4095}{lf}", ("W", k, t))
    def emitH(k, j):
        s_ = k % NST
        so_h = "0" if k < 4 else f"s{C4K}"
        g.vmem(f"buffer_load_dwordx4 {vr(Hreg(s_,j))}, v{vH[j]}, {sr(SA)}, {so_h} offen offset:{(k%4)*1024}{lf}", ("H", k, j))
    def emitHI(k, r):
        s_ = k % NST
        so = f"s{C2M}" if k < 4 else f"s{C2M4K}"
        g.vmem(f"buffer_load_dwordx4 {vr(HIreg(s_,r))}, v{vH[r+1]}, {sr(SA)}, {so} offen offset:{(k%4)*1024}{lf}", ("HI", k, r))
    def order(k):
        return [("W",1),("H",0),("H",1),("H",2),("H",3),("W",4),("H",4),("W",7),("H",5),("W",9),
                ("HI",0),("HI",1),("HI",2),("HI",3),("W",0),("W",3),("W",6),("W",2),("W",5),("W",8)]
    queue = [(k, t, i) for k in range(8) for (t, i) in order(k)]
    def emit_item(it):
        k, t, i = it
        {"W": emitW, "H": emitH, "HI": emitHI}[t](k, i)
    WPRE = o.get("WPRE", 2)
    split = 0
    if split:
        poll("P", "s[90:91]", False)
        st(); dt(g, 9)
        pre = [it for it in queue if it[1] == "W" and it[0] < WPRE]
        for it in pre:
            queue.remove(it); emit_item(it)
        if o.get("pfw", 0):
            g.e(f"s_mul_i32 s{sT0}, s{sMT}, 10240")
            g.e(f"s_add_u32 s{sT0}, s{sT0}, s92")
            g.e(f"v_lshlrev_b32 v{vPF}, 7, v{vLane}")
            g.e(f"buffer_load_dword v{vPF+1}, v{vPF}, {sr(SWP)}, s{sT0} offen{lf}")
            g.e(f"s_add_u32 s{sT0}, s{sT0}, 2048")
            g.e(f"buffer_load_dword v{vPF+2}, v{vPF}, {sr(SWP)}, s{sT0} offen{lf}")
        g.e(f"v_cmp_ne_u32 vcc, s3, v{vG}")
        g.e("s_nop 4")
        g.e("s_and_b64 vcc, vcc, s[94:95]")
        g.e(f"s_cbranch_scc0 {name}_fwG")
        poll("G", "s[94:95]", False)
    else:
        if o.get("w0", 1):
            g.e(f"s_mov_b32 s{sT0}, 0xffff")
            g.e(f"s_cmp_eq_u32 s{sMT}, 0")
            g.e(f"s_cselect_b32 s{sT0}, 0xfff0, s{sT0}")
            g.e(f"s_cmp_eq_u32 s{sMT}, 7")
            g.e(f"s_cselect_b32 s94, 0x0fff, s{sT0}")
            g.e("s_or_b64 s[90:91], s[90:91], s[94:95]")
            g.e(f"s_cmp_lg_u32 s{sW}, 0")
            g.e(f"s_cbranch_scc1 {name}_fwP")
            poll("P", "s[90:91]", False)
            g.e("s_waitcnt vmcnt(0)")
            g.e("s_barrier")
        else:
            g.e("s_or_b64 s[90:91], s[90:91], s[94:95]")
            poll("P", "s[90:91]", False)
        st(); dt(g, 9)
    if st.on:
        g.e(f"s_memrealtime s[{52+2*st.n}:{53+2*st.n}]"); st.n += 1
    def issue_next(cur_k):
        if not queue: return False
        it = queue[0]
        if it[0] - NST >= cur_k or len(g.vm) >= 60: return False
        queue.pop(0); emit_item(it); return True
    def need(tok, k):
        while any((it[1], it[0], it[2]) == tok for it in queue): assert issue_next(k)
    for _ in range(PRE): issue_next(0)
    if o.get("pfh", 0):
        g.e(f"s_and_b32 s{sT0}, s{sNT}, 3")
        g.e(f"s_lshl_b32 s{sT0}, s{sT0}, 11")
        g.e(f"s_add_u32 s{sT0}, s{sT0}, s{sBASE}")
        g.e(f"v_lshrrev_b32 v{vPF}, 4, v{vLane}")
        g.e(f"v_lshlrev_b32 v{vPF}, 15, v{vPF}")
        g.e(f"v_and_b32 v{vPF+1}, 15, v{vLane}")
        g.e(f"v_lshl_add_u32 v{vPF}, v{vPF+1}, 7, v{vPF}")
        g.vmem(f"buffer_load_dword v{vPF+1}, v{vPF}, {sr(SA)}, s{sT0} offen{lf}")
        g.e(f"s_add_u32 s{sT0}, s{sT0}, 0x200000")
        g.vmem(f"buffer_load_dword v{vPF+2}, v{vPF}, {sr(SA)}, s{sT0} offen{lf}")
    wr_pending = []
    for k in range(8):
        s_ = k % NST
        last = k == 7
        g.c(f"---- k-step {k}")
        if k == 1: st()
        if o.get("ste") and k >= 2: g.e(f"s_memtime s[{60+2*(k-2)}:{61+2*(k-2)}]")
        dpp = [(T0, vMR, "wave_shr:1", j, i) for j in range(6) for i in range(4)]
        dpp2 = [(T2, vML, "wave_shl:1", j, i) for j in range(6) for i in range(4)]
        mf = []
        for di in range(3):
            for r in range(4): mf.append((r, di*3+1, ("H", k, r+di), Hreg(s_, r+di), "A"))
        for r in range(4): mf.append((r, 9, ("HI", k, r), HIreg(s_, r), "B"))
        if not last:
            for di in range(3):
                for r in range(4): mf.append((r, di*3, None, T0 + (r+di)*4, "C"))
            for di in range(3):
                for r in range(4): mf.append((r, di*3+2, None, T2 + (r+di)*4, "D"))
        else:
            dpp = [x for pair in zip(dpp, dpp2) for x in pair]; dpp2 = []
            for r in range(4):
                for di in range(3): mf.append((r, di*3, None, T0 + (r+di)*4, "E"))
                for di in range(3): mf.append((r, di*3+2, None, T2 + (r+di)*4, "E" if di < 2 else "F"))
        since = 0
        spl = spf_list(k + SPF) if k > 0 else [x for kk in range(2, SPF+1) for x in spf_list(kk)]
        for n, (r, t, ht, hreg, grp) in enumerate(mf):
            toks = [("W", k, t)] + ([ht] if ht else [])
            for tok in toks: need(tok, k)
            g.wait_vm(toks)
            c = "0" if (k == 0 and n < 4) else ar(ACC+16*r, 16)
            if o.get("fake16"):
                for u_ in range(2):
                    q_ = ACC + 16*r + 4*((2*n + u_) % 4)
                    g.e(f"v_mfma_f32_16x16x32_bf16 {ar(q_)}, {ar(Wreg(s_,t))}, {vr(hreg)}, {'0' if k == 0 and n < 8 else ar(q_)}")
            else:
                g.e(f"v_mfma_f32_32x32x16_bf16 {ar(ACC+16*r,16)}, {ar(Wreg(s_,t))}, {vr(hreg)}, {c}")
            if grp in "AB" and n >= 2:
                for _ in range(4 if last else 2):
                    if dpp:
                        T, vm_, sh, j, i = dpp.pop(0)
                        need(("H", k, j), k); g.wait_vm([("H", k, j)])
                        g.e(f"v_and_b32_dpp v{T+j*4+i}, v{Hreg(s_,j)+i}, v{vm_} {sh} row_mask:0xf bank_mask:0xf bound_ctrl:0")
            if grp == "C":
                for _ in range(3):
                    if dpp2:
                        T, vm_, sh, j, i = dpp2.pop(0)
                        g.e(f"v_and_b32_dpp v{T+j*4+i}, v{Hreg(s_,j)+i}, v{vm_} {sh} row_mask:0xf bank_mask:0xf bound_ctrl:0")
            if o.get("RN"):
                if (n * o["RN"]) % o["RD"] < o["RN"]: issue_next(k)
            elif n % EVERY == EVERY - 1: issue_next(k)
            for _ in range(2 if k == 0 else 1):
                if spl: g.e(spl.pop(0))
            if wr_pending:
                since += 1
                if since == 2: g.e("s_nop 9")
                if since >= 2:
                    g.e(wr_pending.pop(0))
            if grp == "F":
                assert not wr_pending
                wr_pending = [f"ds_write_b128 v{vA}, {ar(ACC+16*r+4*q)} offset:{r*17408 + q*1088}" for q in range(4)]
                since = 0
        assert not dpp and not dpp2
    assert not queue
    g.c("---- epilogue")
    st(); dt(g, 11)
    g.e("s_nop 11")
    for w_ in wr_pending: g.e(w_)
    g.e("s_waitcnt lgkmcnt(0)")
    if o.get("ste"): g.e("s_memtime s[54:55]")
    g.e("s_barrier")
    if o.get("ste"): g.e("s_memtime s[56:57]")
    R = HB
    for i in range(2):
        for src in range(4):
            for hf in range(2):
                g.lds(f"ds_read_b128 {vr(R + ((i*4+src)*2+hf)*4)}, v{vA1} offset:{src*4352 + hf*512 + i*256}", ("R", i, src))
    XU = R + 64
    for i in range(2):
        for e_ in range(4):
            x = vXF + 4*i + e_
            g.e(f"v_lshlrev_b32 v{XU+8*i+2*e_}, 16, v{x}")
            g.e(f"v_and_b32 v{XU+8*i+2*e_+1}, 0xffff0000, v{x}")
    for i in range(2):
        base = R + i*32
        for src in range(4):
            g.wait_lg([("R", i, src)])
            for e_ in range(4):
                g.e(f"v_pk_add_f32 {vr(XU+8*i+2*e_,2)}, {vr(XU+8*i+2*e_,2)}, {vr(base+8*src+2*e_,2)}")
        for e_ in range(4): g.e(f"v_cvt_pk_bf16_f32 v{vXF+4*i+e_}, v{XU+8*i+2*e_}, v{XU+8*i+2*e_+1}")
        g.vmem(f"buffer_store_dwordx4 {vr(vXF+4*i)}, v{vO}, {sr(SO)}, {'0' if i==0 else 's%d'%sT1} offen{o.get('ostf',' sc1')}")
    if o.get("ste"): g.e("s_memtime s[58:59]")
    if o.get("enc"):
        i = o["enc"]
        g.e("s_waitcnt vmcnt(0)")
        g.e("s_memrealtime s[76:77]")
        g.e(f"s_cmp_lg_u32 s2, {o.get('encwg', 8)}")
        g.e("s_cbranch_scc1 enc_done")
        g.e(f"s_cmp_lg_u32 s{sW}, 0")
        g.e("s_cbranch_scc1 enc_done")
        g.e("s_waitcnt lgkmcnt(0)")
        g.e(f"s_sub_u32 s84, s{52+2*i}, s52")
        g.e("s_mul_i32 s84, s84, 20")
        g.label("enc_loop")
        g.e("s_memrealtime s[86:87]")
        g.e("s_waitcnt lgkmcnt(0)")
        g.e("s_sub_u32 s85, s86, s76")
        g.e("s_cmp_lt_u32 s85, s84")
        g.e("s_cbranch_scc1 enc_loop")
        g.label("enc_done")
    else:
        dt_finish(g)
    st.finish(st.n + 1)
    return AEND

def gen_all(out, o):
    DT[0] = bool(o.get("dt", 0)); CPF[0] = o.get("cpf", 2); CPF[1] = o.get("cpfo", 0)
    name = "fused_kernel"
    g = Gen(); st = Stamper(g, o.get("st", 0))
    entry(g, name, st)
    phase1(g, name, st, o)
    aend = phase2(g, name, st, o)
    g.label(f"{name}_end"); g.e("s_endpgm")
    build([(name, g.text(), kd(name, 256 + max(aend, 128), 256, 100), 256, 256, 160*1024)], out)

if __name__ == "__main__":
    o = {}
    for a in sys.argv[2:]:
        k, v = a.split("=")
        o[k] = int(v) if v.lstrip("-").isdigit() else " " + v.replace("+", " ")
    gen_all(sys.argv[1], o)
```

```python
import sys, struct
from gen import Gen, vr, ar, sr, srd, kd, build, WS_H, WS_HI, WS_WP, WS_ST, WP_BYTES
import gen4
from gen4 import Stamper, f2u, LOG2E, sW, WS_MB, dt, dt_finish, DT, CPF, entry

def phase1(g, name, st, o):
    stf = o.get("stf", " sc1")
    ldf = " nt" if o.get("nt", 0) else ""
    ldw = " nt" if o.get("ntw", 0) else ""
    ldp = " nt" if (o.get("ntp") or o.get("nt")) else ""
    SX, SWT, SWS, SXI, SDB = 12, 16, 20, 24, 28
    sCT, sU, sT0, sT1, sT2, sXROW, sM0X = 33, 34, 35, 36, 37, 38, 39
    sSOX, sSOW, sNONCE = 42, 43, 3
    sODD, sKC = 94, 95
    vLane, vT, vT2, vXD, vWD, vWA, vPX, vHF, vL16 = 1, 2, 3, 4, 5, 6, 7, 8, 9
    vXA = [10, 11, 12, 13]; vXAs = [14, 15, 16, 17]
    vWAs, vST, vWR, vNC, vZ, vWAs2 = 18, 19, 20, 21, 22, 23
    XF, WF, ACC, TMP = 24, 64, 80, 160
    g.e(f"s_and_b32 s{sT0}, s2, 7")
    g.e(f"s_lshr_b32 s{sT1}, s2, 3")
    g.e(f"s_and_b32 s{sCT}, s{sT1}, 3")
    g.e(f"s_lshr_b32 s{sT1}, s{sT1}, 2")
    if o.get("mix", 1):
        g.e(f"s_lshl_b32 s{sU}, s{sT0}, 2")
        g.e(f"s_lshr_b32 s{sT2}, s{sT1}, 1")
        g.e(f"s_add_u32 s{sU}, s{sU}, s{sT2}")
        g.e(f"s_and_b32 s{sT0}, s{sT1}, 1")
        g.e(f"s_lshl_b32 s{sT0}, s{sT0}, 2")
    else:
        g.e(f"s_and_b32 s{sU}, s{sT0}, 3")
        g.e(f"s_lshl_b32 s{sU}, s{sU}, 3")
        g.e(f"s_add_u32 s{sU}, s{sU}, s{sT1}")
    g.e(f"v_lshrrev_b32 v{vT}, 3, v{vLane}")
    g.e(f"s_lshl_b32 s{sT2}, s{sW}, 3")
    g.e(f"v_add_u32 v{vXD}, s{sT2}, v{vT}")
    g.e(f"v_lshrrev_b32 v{vT}, 1, v{vXD}")
    g.e(f"v_and_b32 v{vT}, 7, v{vT}")
    g.e(f"v_and_b32 v{vT2}, 7, v{vLane}")
    g.e(f"v_xor_b32 v{vT}, v{vT}, v{vT2}")
    g.e(f"v_lshlrev_b32 v{vT}, 4, v{vT}")
    g.e(f"v_lshl_add_u32 v{vXD}, v{vXD}, 10, v{vT}")
    g.e(f"v_lshrrev_b32 v{vT}, 4, v{vLane}")
    g.e(f"v_lshlrev_b32 v{vT2}, 2, v{vT}")
    g.e(f"v_and_b32 v{vWD}, 15, v{vLane}")
    g.e(f"v_xor_b32 v{vWD}, v{vWD}, v{vT2}")
    g.e(f"v_lshlrev_b32 v{vWD}, 4, v{vWD}")
    g.e(f"s_lshl_b32 s{sT2}, s{sW}, 2")
    g.e(f"v_add_u32 v{vT}, s{sT2}, v{vT}")
    g.e(f"v_lshl_add_u32 v{vWD}, v{vT}, 10, v{vWD}")
    g.e(f"s_lshl_b32 s{sT2}, s{sCT}, 8")
    g.e(f"v_add_u32 v{vWD}, s{sT2}, v{vWD}")
    g.e(f"s_lshl_b32 s{sM0X}, s{sW}, 10")
    g.e(f"v_mov_b32 v{vZ}, 0")
    g.e(f"s_cmp_ge_u32 s{sT0}, 4")
    g.e(f"s_cbranch_scc1 {name}_P")
    st_n0 = st.n

    def nonce_wait(role):
        g.wait_vm([("NC",)])
        g.e(f"s_mov_b32 s{sT2}, 0")
        g.label(f"{name}_ncpoll{role}")
        g.e(f"v_readfirstlane_b32 s{sNONCE}, v{vNC}")
        g.e(f"s_add_u32 s{sT2}, s{sT2}, 1")
        g.e(f"s_cmp_gt_u32 s{sT2}, 100000")
        g.e(f"s_cbranch_scc1 {name}_ncok{role}")
        g.e(f"s_cmp_lg_u32 s{sNONCE}, 0")
        g.e(f"s_cbranch_scc1 {name}_ncok{role}")
        g.e(f"buffer_load_dword v{vNC}, v{vZ}, {sr(SDB)}, 0 offen sc1")
        g.e("s_waitcnt vmcnt(0)")
        g.e(f"s_branch {name}_ncpoll{role}")
        g.label(f"{name}_ncok{role}")

    def pretouch():
        if not o.get("tlb", 0): return
        lab = f"{name}_pt{len(g.lines)}"
        g.e(f"s_cmp_lg_u32 s{sW}, 3")
        g.e(f"s_cbranch_scc1 {lab}")
        srd(g, 84, 50, 51, 12 << 20)
        g.e(f"v_lshlrev_b32 v{vT}, 18, v{vLane}")
        g.e(f"buffer_load_dword v252, v{vT}, s[84:87], 0 offen")
        srd(g, 84, 46, 47, 2 << 20)
        g.e(f"v_lshlrev_b32 v{vT}, 16, v{vLane}")
        g.e(f"buffer_load_dword v253, v{vT}, s[84:87], 0 offen")
        srd(g, 84, 40, 41, 2 << 20)
        g.e(f"buffer_load_dword v254, v{vT}, s[84:87], 0 offen")
        g.e(f"buffer_load_dword v251, v{vZ}, {sr(SDB)}, 0 offen sc1")
        g.label(lab)

    def l2pf(G):
        pf = o.get("pf", 0)
        if not (pf & (1 if G else 2)): return
        if G:
            g.e(f"v_lshrrev_b32 v{vT}, 2, v{vLane}")
            g.e(f"v_and_b32 v{vT2}, 3, v{vLane}")
            g.e(f"v_lshlrev_b32 v{vT2}, 6, v{vT2}")
            g.e(f"v_lshl_add_u32 v{vT}, v{vT}, 10, v{vT2}")
            g.e(f"s_lshl_b32 s{sT2}, s{sW}, 14")
            g.e(f"s_add_u32 s{sT2}, s{sT2}, s{sXROW}")
        else:
            g.e(f"v_lshrrev_b32 v{vT}, 1, v{vLane}")
            g.e(f"v_and_b32 v{vT2}, 1, v{vLane}")
            g.e(f"v_lshlrev_b32 v{vT2}, 7, v{vT2}")
            g.e(f"v_lshl_add_u32 v{vT}, v{vT}, 10, v{vT2}")
            g.e(f"s_mul_i32 s{sT2}, s{sW}, {40*1024}")
            g.e(f"s_add_u32 s{sT2}, s{sT2}, s93")
        g.e(f"s_lshl_b32 s{sT0}, s{sCT}, 8")
        g.e(f"s_add_u32 s{sT2}, s{sT2}, s{sT0}")
        g.vmem(f"buffer_load_dword v250, v{vT}, {sr(SX)}, s{sT2} offen")
        if not G:
            g.e(f"s_add_u32 s{sT2}, s{sT2}, 0x8000")
            g.vmem(f"buffer_load_dword v251, v{vT}, {sr(SX)}, s{sT2} offen")
        if pf & 4:
            g.e(f"s_and_b32 s{sT0}, s{sU}, 3")
            g.e(f"s_lshl_b32 s{sT0}, s{sT0}, 2")
            g.e(f"s_add_u32 s{sT0}, s{sT0}, s{sCT}")
            g.e(f"s_lshl_b32 s{sT0}, s{sT0}, 2")
            g.e(f"s_add_u32 s{sT0}, s{sT0}, s{sW}")
            g.e(f"s_lshl_b32 s{sT0}, s{sT0}, 13")
            g.e(f"v_lshlrev_b32 v{vT}, 7, v{vLane}")
            g.vmem(f"buffer_load_dword v252, v{vT}, {sr(SWT)}, s{sT0} offen")

    def frag_consts(G):
        pretouch()
        l2pf(G)
        g.e(f"v_and_b32 v{vPX}, 31, v{vLane}")
        g.e(f"v_lshrrev_b32 v{vHF}, 5, v{vLane}")
        g.e(f"v_lshlrev_b32 v{vL16}, 4, v{vLane}")
        g.e(f"v_lshrrev_b32 v{vT}, 1, v{vPX}")
        g.e(f"v_and_b32 v{vT}, 7, v{vT}")
        g.e(f"v_xor_b32 v{vT}, v{vT}, v{vHF}")
        g.e(f"v_lshlrev_b32 v{vT}, 4, v{vT}")
        g.e(f"v_lshl_add_u32 v{vXA[0]}, v{vPX}, 7, v{vT}")
        if G:
            g.e(f"s_lshr_b32 s{sT2}, s{sW}, 1")
            g.e(f"s_lshl_b32 s{sT2}, s{sT2}, 12")
            g.e(f"v_add_u32 v{vXA[0]}, s{sT2}, v{vXA[0]}")
        for s in range(1, 4):
            g.e(f"v_xor_b32 v{vXA[s]}, {s*32}, v{vXA[0]}")
        g.e(f"v_bfe_u32 v{vT}, v{vLane}, 2, 2")
        g.e(f"v_lshl_add_u32 v{vT2}, v{vHF}, 3, v{vT}")
        g.e(f"v_lshlrev_b32 v{vWA}, 8, v{vT2}")
        if G:
            g.e(f"s_and_b32 s{sT2}, s{sW}, 1")
            g.e(f"s_lshl_b32 s{sT2}, s{sT2}, 1")
            g.e(f"v_xor_b32 v{vT}, s{sT2}, v{vT}")
        else:
            g.e(f"v_xor_b32 v{vT}, s{sW}, v{vT}")
        g.e(f"v_lshl_add_u32 v{vWA}, v{vT}, 6, v{vWA}")
        g.e(f"v_bfe_u32 v{vT}, v{vLane}, 4, 1")
        g.e(f"v_lshl_add_u32 v{vWA}, v{vT}, 5, v{vWA}")
        g.e(f"v_and_b32 v{vT}, 3, v{vLane}")
        g.e(f"v_lshl_add_u32 v{vWA}, v{vT}, 3, v{vWA}")

    def publish(G):
        while st.on and st.n < 13: st()
        NL = o.get("NL", 8); LG = NL.bit_length() - 1; MS = NL*128
        def slot_off(dst, src):
            g.e(f"s_and_b32 s92, s{src}, {NL-1}")
            g.e(f"s_lshl_b32 s92, s92, 7")
            g.e(f"s_lshr_b32 s{dst}, s{src}, {LG}")
            g.e(f"s_lshl_b32 s{dst}, s{dst}, 2")
            g.e(f"s_add_u32 s{dst}, s{dst}, s92")
        if G:
            g.e(f"s_lshr_b32 s{sT0}, s{sU}, 1")
            g.e(f"s_and_b32 s{sT1}, s{sU}, 1")
            g.e(f"s_lshl_b32 s{sT2}, s{sT1}, 1")
            g.e(f"s_add_u32 s{sT2}, s{sT2}, s{sT0}")
            g.e(f"s_sub_u32 s{sT2}, s{sT2}, 1")
            g.e(f"s_add_u32 s{sSOX}, s{sT1}, 1")
            g.e(f"s_lshl_b32 s{sSOX}, s{sSOX}, 2")
            g.e(f"s_add_u32 s{sSOX}, s{sSOX}, s{sCT}")
            slot_off(sSOX, sSOX)
            g.e(f"s_mul_i32 s93, s{sT0}, {16*MS}")
            g.e(f"s_add_u32 s{sSOX}, s{sSOX}, s93")
            g.e(f"s_cmp_eq_u32 s{sT1}, 0")
            g.e(f"s_cselect_b32 s{sSOW}, 12, 0")
            g.e(f"s_add_u32 s{sSOW}, s{sSOW}, s{sCT}")
            slot_off(sSOW, sSOW)
            g.e(f"s_mul_i32 s93, s{sT2}, {16*MS}")
            g.e(f"s_add_u32 s{sSOW}, s{sSOW}, s93")
            g.e(f"s_lshr_b32 s{sT2}, s{sT2}, 3")
            g.e(f"s_lshr_b32 s{sT0}, s{sT0}, 3")
            g.e(f"s_cmp_eq_u32 s{sT2}, s{sT0}")
            g.e(f"s_cselect_b32 s92, -1, 0xffff")
            g.e(f"s_mov_b32 s93, 0")
            g.e(f"v_and_b32 v{vT}, 15, v{vLane}")
            g.e(f"v_mul_u32_u24 v{vT}, {MS}, v{vT}")
            g.e(f"v_mov_b32 v{vT2}, s{sSOW}")
            g.e(f"v_mov_b32 v{vPX}, s{sSOX}")
            g.e(f"v_cmp_gt_u32 vcc, 16, v{vLane}")
            g.e("s_nop 1")
            g.e(f"v_cndmask_b32 v{vT2}, v{vT2}, v{vPX}, vcc")
            g.e(f"v_add_u32 v{vT}, v{vT}, v{vT2}")
            g.e(f"s_mov_b32 s{sT0}, {WS_MB}")
        else:
            g.e(f"v_lshrrev_b32 v{vT}, 2, v{vLane}")
            g.e(f"v_lshlrev_b32 v{vT}, 4, v{vT}")
            g.e(f"v_and_b32 v{vT2}, 3, v{vLane}")
            g.e(f"v_add_u32 v{vT}, v{vT}, v{vT2}")
            g.e(f"v_mul_u32_u24 v{vT}, {MS}, v{vT}")
            g.e(f"s_add_u32 s{sT1}, s{sU}, 16")
            slot_off(sT1, sT1)
            g.e(f"s_mul_i32 s{sT0}, s{sCT}, {4*MS}")
            g.e(f"s_add_u32 s{sT0}, s{sT0}, s{sT1}")
            g.e(f"s_add_u32 s{sT0}, s{sT0}, {WS_MB}")
            g.e(f"s_mov_b64 s[92:93], -1")
        dt(g, 5 if G else 6)
        if st.on: g.e("s_memrealtime s[78:79]")
        g.e("s_waitcnt vmcnt(0)")
        g.e("s_barrier")
        if st.on: g.e("s_memrealtime s[80:81]")
        dt(g, 7 if G else 8)
        g.e(f"s_cmp_lg_u32 s{sW}, 0")
        g.e(f"s_cbranch_scc1 {name}_ph2")
        g.e(f"s_mov_b64 exec, s[92:93]")
        g.e(f"buffer_store_dword v{vNC}, v{vT}, {sr(SWS)}, s{sT0} offen sc1")
        g.e("s_mov_b64 exec, -1")
        g.e(f"s_branch {name}_ph2")

    def bodyP():
        g.vm = []; g.lg = []
        st.n = st_n0
        g.label(f"{name}_P")
        NA = 3
        S = o.get("SP", 4)
        STG = 16384 + NA*4096
        XB3, XB4 = S*STG, (S*STG + 32768 if S == 3 else 0)
        PRE = o.get("PREP", 3)
        g.e(f"s_and_b32 s{sODD}, s{sU}, 1")
        g.e(f"s_lshr_b32 s{sT1}, s{sU}, 1")
        g.e(f"s_mul_i32 s{sXROW}, s{sT1}, 288")
        g.e(f"s_mul_i32 s{sT2}, s{sODD}, 160")
        g.e(f"s_add_u32 s{sXROW}, s{sXROW}, s{sT2}")
        g.e(f"s_lshr_b32 s{sKC}, s{sT1}, 1")
        g.e(f"s_lshl_b32 s{sKC}, s{sKC}, 16")
        g.e(f"s_lshl_b32 s93, s{sXROW}, 10")
        g.e(f"s_lshr_b32 s92, s{sKC}, 9")
        g.e("s_waitcnt lgkmcnt(0)")
        if o.get("wsoff", 0):
            g.e(f"s_add_u32 s50, s50, {o['wsoff'] << 20:#x}")
            g.e("s_addc_u32 s51, s51, 0")
        st(); dt(g, 2)
        srd(g, SX, 44, 45, 4608*1024); srd(g, SWT, 10, 11, 512 << 10)
        cur = [None]
        def kofs(kc):
            if cur[0] == kc: return
            cur[0] = kc
            g.e(f"s_add_u32 s{sT2}, s92, {kc*128}")
            g.e(f"s_and_b32 s{sT2}, s{sT2}, 0x3ff")
            g.e(f"s_add_u32 s91, s{sT2}, s93")
            g.e(f"s_lshl_b32 s90, s{sT2}, 9")
        def ldW(kc, m):
            kofs(kc)
            g.e(f"s_add_u32 m0, s{sM0X}, {(kc % S)*STG + m*4096}")
            g.e(f"s_add_u32 s{sSOW}, s90, {m*16384}")
            g.vmem(f"buffer_load_dwordx4 v{vWD}, {sr(SWT)}, s{sSOW} offen{ldw} lds", ("D", kc))
        def ldX(b, kc):
            kofs(kc)
            dst = (kc % S)*STG + 16384 + b*4096 if b < NA else [XB3, XB4][b-NA] + kc*4096
            g.e(f"s_add_u32 m0, s{sM0X}, {dst}")
            g.e(f"s_add_u32 s{sSOX}, s91, {b*32768}")
            g.vmem(f"buffer_load_dwordx4 v{vXD}, {sr(SX)}, s{sSOX} offen{ldp} lds", ("D", kc) if b < NA else ("XB", b))
        ldq = []
        for kc in range(8):
            for m in range(4): ldq.append(("W", kc, m, kc - S))
            for b in range(NA): ldq.append(("X", b, kc, kc - S))
            if not o.get("late", 1) and kc >= 2:
                for b in (3, 4): ldq.append(("X", b, kc - 2, -1))
        if o.get("late", 1):
            for b in (3, 4):
                for kc in range(8): ldq.append(("X", b, kc, 5 if (b == 4 and S == 4) else -1))
        else:
            for kc in (6, 7):
                for b in (3, 4): ldq.append(("X", b, kc, -1))
        freed = [-1]
        def ldnext():
            if not ldq or len(g.vm) >= 60: return False
            idx = 0
            if ldq[0][3] > freed[0]:
                if not o.get("ooo", 0): return False
                cand = [i for i, t in enumerate(ldq) if t[0] == "X" and t[1] >= NA and t[3] <= freed[0]]
                if not cand or fill[0] >= o["ooo"]: return False
                idx = cand[0]; fill[0] += 1
            t, a, b_, need = ldq.pop(idx)
            if t == "W": ldW(a, b_)
            else: ldX(a, b_)
            return True
        fill = [0]
        for _ in range(7*PRE): ldnext()
        slotc = [0]
        srd(g, SDB, 48, 49, 256)
        frag_consts(False)
        srd(g, SWS, 50, 51, 16 << 20)
        g.e(f"s_lshl_b32 s{sT0}, s{sCT}, 2")
        g.e(f"s_add_u32 s{sT0}, s{sT0}, s{sW}")
        g.e(f"s_mul_i32 s{sT0}, s{sT0}, {32*10240}")
        g.e(f"s_add_u32 s{sT0}, s{sT0}, {WS_WP}")
        g.e(f"v_add_u32 v{vST}, s{sT0}, v{vL16}")
        XRB = TMP + 40
        def read_list(kc, s):
            p = (kc*4 + s) % 2
            ks = 4*kc + s
            L = []
            for h in range(2):
                L.append((f"ds_read_b64_tr_b16 {ar(4*ks+2*h,2)}, v{vWAs} offset:{s*4096+h*1024}", 0))
            for b in range(NA):
                L.append((f"ds_read_b128 {vr(XF+p*20+b*4)}, v{vXAs[s]} offset:{b*4096}", b))
            return [(r, ("R", kc, s, b)) for r, b in L]
        def stage_addr(kc):
            sb = (kc % S) * STG
            for s in range(4): g.e(f"v_add_u32 v{vXAs[s]}, {sb + 16384}, v{vXA[s]}")
            g.e(f"v_add_u32 v{vWAs}, {sb}, v{vWA}")
        stage_addr(0)
        st()
        g.wait_vm([("D", 0)])
        g.e("s_barrier")
        st()
        dt(g, 1)
        for r, t in read_list(0, 0): g.lds(r, t)
        LPA = o.get("LPA", 1)
        for kc in range(8):
            for s in range(4):
                if s < 3:
                    nxt = read_list(kc, s+1)
                else:
                    nxt = []
                    if kc < 7:
                        g.wait_lg([("R", kc, 3, b) for b in range(NA)])
                        while any(t[3] == kc+1-S and t[3] >= -10 and ((t[0] == "W" and t[1] == kc+1) or (t[0] == "X" and t[1] < NA and t[2] == kc+1)) for t in ldq): assert ldnext()
                        g.wait_vm([("D", kc+1)])
                        g.e("s_barrier")
                        if kc in (1, 3, 5): st()
                        freed[0] = kc
                        fill[0] = 0
                        stage_addr(kc+1)
                        nxt = read_list(kc+1, 0)
                p = (kc*4 + s) % 2
                ks = 4*kc + s
                for b in range(NA):
                    g.wait_lg([("R", kc, s, bb) for bb in range(b+1)])
                    ac = vr(ACC+16*b, 16)
                    g.e(f"v_mfma_f32_32x32x16_bf16 {ac}, {vr(XF+p*20+b*4)}, {ar(4*ks)}, {'0' if ks == 0 else ac}")
                    for _ in range(2):
                        if nxt:
                            r, t = nxt.pop(0); g.lds(r, t)
                    slotc[0] += 1
                    if (slotc[0] * o.get("PN", 12)) % 12 < o.get("PN", 12): ldnext()
            if kc == 4:
                g.vmem(f"buffer_load_dword v{vNC}, v{vZ}, {sr(SDB)}, 0 offen sc1", ("NC",))
        while ldq: assert ldnext()
        st(); dt(g, 10)
        def store_block(b):
            a = ACC + 16*b
            L = []
            L.append(f"s_add_u32 s{sT0}, s{sXROW}, {32*b}")
            L.append(f"s_lshr_b32 s{sT1}, s{sT0}, 9")
            L.append(f"s_and_b32 s{sT0}, s{sT0}, 511")
            L.append(f"s_lshr_b32 s{sT0}, s{sT0}, 4")
            L.append(f"s_mul_i32 s{sT0}, s{sT0}, 10")
            L.append(f"s_add_u32 s{sT0}, s{sT0}, s{sT1}")
            L.append(f"s_lshl_b32 s{sT0}, s{sT0}, 10")
            L.append(f"s_add_u32 s{sT1}, s{sT0}, 10240")
            for hh in range(2):
                d = TMP + b*8 + hh*4
                for i in range(4):
                    L.append(f"v_cvt_pk_bf16_f32 v{d+i}, v{a+8*hh+2*i}, v{a+8*hh+2*i+1}")
                L.append(("ST", f"buffer_store_dwordx4 {vr(d)}, v{vST}, {sr(SWS)}, s{sT0 if hh==0 else sT1} offen{stf}"))
            return L
        def emit(x):
            if isinstance(x, tuple): g.vmem(x[1])
            else: g.e(x)
        xr = [0]; xreg = {}
        def xread(b, ks):
            r = XRB + (xr[0] % 8)*4; xr[0] += 1
            g.lds(f"ds_read_b128 {vr(r)}, v{vXAs[ks%4]} offset:{(ks//4)*4096}", ("R2", b, ks))
            return r
        g.wait_vm([("XB", 3)] if o.get("late", 1) else [("XB", 3), ("XB", 4)])
        g.e("s_barrier")
        def blockB(b, pend):
            for s in range(4): g.e(f"v_add_u32 v{vXAs[s]}, {[XB3, XB4][b-3]}, v{vXA[s]}")
            AH = 6
            for ks in range(AH): xreg[(b, ks)] = xread(b, ks)
            for ks in range(32):
                g.wait_lg([("R2", b, ks)])
                ac = vr(ACC + 16*b, 16)
                g.e(f"v_mfma_f32_32x32x16_bf16 {ac}, {vr(xreg[(b,ks)])}, {ar(4*ks)}, {'0' if ks == 0 else ac}")
                if ks + AH < 32: xreg[(b, ks+AH)] = xread(b, ks+AH)
                if ks >= 1:
                    for _ in range(2):
                        if pend: emit(pend.pop(0))
            assert not pend
        blockB(3, store_block(0) + store_block(1) + store_block(2))
        st()
        g.e(f"s_cmp_lg_u32 s{sODD}, 0")
        g.e(f"s_cbranch_scc1 {name}_P4")
        saved = (list(g.vm), list(g.lg))
        if o.get("late", 1):
            g.wait_vm([("XB", 4)])
            g.e("s_barrier")
        blockB(4, store_block(3))
        st(); dt(g, 4)
        g.e("s_nop 3")
        for x in store_block(4): emit(x)
        g.e(f"s_branch {name}_Pdone")
        g.label(f"{name}_P4")
        g.vm, g.lg = saved
        g.e(f"s_lshr_b32 s{sT0}, s{sU}, 1")
        g.e(f"s_and_b32 s{sT2}, s{sT0}, 1")
        g.e(f"s_mul_i32 s{sT0}, s{sT0}, 20480")
        g.e(f"s_add_u32 s{sT0}, s{sT0}, 9216")
        g.e(f"s_add_u32 s{sT1}, s{sT0}, 10240")
        g.e(f"s_cmp_eq_u32 s{sT2}, 0")
        g.e(f"s_cbranch_scc0 {name}_rp1")
        g.e(f"buffer_store_dwordx4 {ar(0)}, v{vST}, {sr(SWS)}, s{sT0} offen{stf}")
        g.e(f"buffer_store_dwordx4 {ar(4)}, v{vST}, {sr(SWS)}, s{sT1} offen{stf}")
        g.e(f"s_branch {name}_rp2")
        g.label(f"{name}_rp1")
        g.e(f"buffer_store_dwordx4 {ar(8)}, v{vST}, {sr(SWS)}, s{sT0} offen{stf}")
        g.e(f"buffer_store_dwordx4 {ar(12)}, v{vST}, {sr(SWS)}, s{sT1} offen{stf}")
        g.label(f"{name}_rp2")
        g.e("s_nop 3")
        for x in store_block(3): emit(x)
        g.label(f"{name}_Pdone")
        g.vm = []
        nonce_wait("P")
        publish(False)

    def bodyG():
        ldf = " nt" if (o.get("ntg") or o.get("nt")) else ""
        NX, S = 2, 6
        XB = NX * 4096
        STG = XB + 16384
        NI = NX + 4
        PRE1 = o.get("PREG", 3)
        XT = 6*STG
        g.vm = []; g.lg = []
        st.n = st_n0
        g.e(f"s_lshl_b32 s{sXROW}, s{sU}, 16")
        g.e(f"v_lshrrev_b32 v{vT}, 4, v{vLane}")
        g.e(f"s_lshl_b32 s{sT2}, s{sW}, 2")
        g.e(f"v_add_u32 v{vT}, s{sT2}, v{vT}")
        g.e(f"v_and_b32 v{vT2}, 15, v{vLane}")
        g.e(f"v_xor_b32 v{vT2}, v{vT2}, v{vT}")
        g.e(f"v_lshlrev_b32 v{vT2}, 4, v{vT2}")
        g.e(f"v_lshl_add_u32 v{vT}, v{vT}, 10, v{vT2}")
        g.e(f"s_lshl_b32 s{sT2}, s{sCT}, 8")
        g.e(f"v_add_u32 v{vWR}, s{sT2}, v{vT}")
        g.e("s_waitcnt lgkmcnt(0)")
        if o.get("wsoff", 0):
            g.e(f"s_add_u32 s50, s50, {o['wsoff'] << 20:#x}")
            g.e("s_addc_u32 s51, s51, 0")
        st(); dt(g, 2)
        srd(g, SX, 6, 7, 2 << 20); srd(g, SWT, 8, 9, 512 << 10); srd(g, SXI, 4, 5, 2 << 20)
        def ld1(kc, m):
            sb = (kc % S) * STG
            isx = m < NX
            mm = m if isx else m - NX
            g.e(f"s_add_u32 m0, s{sM0X}, {sb + m*4096}")
            if isx: g.e(f"s_add_u32 s{sSOX}, s{sXROW}, {mm*32768 + kc*128}")
            else:   g.e(f"s_mov_b32 s{sSOW}, {(kc*64 + 16*mm)*1024}")
            va, sd, so = (vXD, SX, sSOX) if isx else (vWD, SWT, sSOW)
            g.vmem(f"buffer_load_dwordx4 v{va}, {sr(sd)}, s{so} offen{ldf if isx else ldw} lds", ("D", kc))
        for m in range(NI): ld1(0, m)
        srd(g, SDB, 48, 49, 256)
        g.e(f"s_or_b32 s{sT0}, s2, s{sW}")
        g.e(f"s_cmp_lg_u32 s{sT0}, 0")
        g.e(f"s_cbranch_scc1 {name}_nn")
        g.e("s_memrealtime s[96:97]")
        g.e("s_waitcnt lgkmcnt(0)")
        g.e(f"s_or_b32 s96, s96, 1")
        g.e(f"v_mov_b32 v{vT}, s96")
        g.e(f"buffer_store_dword v{vT}, v{vZ}, {sr(SDB)}, 0 offen sc1")
        g.label(f"{name}_nn")
        for kc in range(1, PRE1):
            for m in range(NI): ld1(kc, m)
        ldq = [(kc, m) for kc in range(PRE1, 8) for m in range(NI)]
        k6 = [i for i, (kc, m) in enumerate(ldq) if kc >= 5][0]
        ldq[k6:k6] = [("X", m) for m in range(4)]
        freed = [0]
        def ldnext():
            if not ldq: return False
            kc, m = ldq[0]
            if kc == "X":
                ldq.pop(0)
                g.e(f"s_add_u32 m0, s{sM0X}, {XT + m*4096}")
                g.e(f"s_add_u32 s{sSOX}, s{sXROW}, {m*16384}")
                g.vmem(f"buffer_load_dwordx4 v{vWR}, {sr(SXI)}, s{sSOX} offen{ldf} lds", ("D", 5))
                return True
            if kc - S >= freed[0]: return False
            ldq.pop(0); ld1(kc, m); return True
        frag_consts(True)
        srd(g, SWS, 50, 51, 16 << 20)
        mk = len(g.lines)
        vXR, vGA, vGO = TMP+60, TMP+61, TMP+62
        g.e(f"s_lshr_b32 s{sT0}, s{sW}, 1")
        g.e(f"s_and_b32 s{sT1}, s{sW}, 1")
        g.e(f"s_lshl_b32 s{sT2}, s{sT0}, 13")
        g.e(f"s_add_u32 s{sT2}, s{sT2}, {XT}")
        g.e(f"v_and_b32 v{vT}, 15, v{vPX}")
        g.e(f"s_lshl_b32 s{sSOX}, s{sT1}, 3")
        g.e(f"v_xor_b32 v{vT}, s{sSOX}, v{vT}")
        g.e(f"v_lshlrev_b32 v{vT}, 4, v{vT}")
        g.e(f"v_lshl_add_u32 v{vT}, v{vPX}, 8, v{vT}")
        g.e(f"v_lshl_add_u32 v{vT}, v{vHF}, 3, v{vT}")
        g.e(f"v_add_u32 v{vXR}, s{sT2}, v{vT}")
        g.e(f"s_lshl_b32 s{sT2}, s{sT0}, 15")
        g.e(f"s_add_u32 s{sT2}, s{sT2}, s{sXROW}")
        g.e(f"s_lshl_b32 s{sSOX}, s{sCT}, 13")
        g.e(f"s_add_u32 s{sT2}, s{sT2}, s{sSOX}")
        g.e(f"s_lshl_b32 s{sSOX}, s{sT1}, 12")
        g.e(f"s_add_u32 s{sT2}, s{sT2}, s{sSOX}")
        g.e(f"v_add_u32 v{vST}, s{sT2}, v{vL16}")
        g.e(f"s_lshl_b32 s{sSOX}, s{sU}, 1")
        g.e(f"s_add_u32 s{sSOX}, s{sSOX}, s{sT0}")
        g.e(f"s_lshl_b32 s{sSOX}, s{sSOX}, 12")
        g.e(f"s_add_u32 s{sSOX}, s{sSOX}, {WS_ST}")
        g.e(f"v_lshlrev_b32 v{vGO}, 4, v{vPX}")
        g.e(f"v_add_u32 v{vGO}, s{sSOX}, v{vGO}")
        g.e(f"v_lshl_add_u32 v{vGA}, v{vHF}, 11, v{vGO}")
        g.e(f"s_lshl_b32 s93, s{sCT}, 1")
        g.e(f"s_add_u32 s93, s93, s{sT1}")
        g.e(f"s_lshl_b32 s93, s93, 9")
        deferG = g.lines[mk:]; del g.lines[mk:]
        def stage_addr(kc):
            sb = (kc % S) * STG
            for s in range(4): g.e(f"v_add_u32 v{vXAs[s]}, {sb}, v{vXA[s]}")
            g.e(f"v_add_u32 v{vWAs}, {sb + XB}, v{vWA}")
            g.e(f"v_xor_b32 v{vWAs2}, 64, v{vWAs}")
        def read_list(kc, s):
            p = (kc*4 + s) % 2
            L = [(f"ds_read_b128 {vr(XF+p*20)}, v{vXAs[s]}", 0)]
            for cb in range(2):
                for h in range(2):
                    L.append((f"ds_read_b64_tr_b16 {vr(WF+p*8+cb*4+h*2,2)}, v{vWAs if cb==0 else vWAs2} offset:{s*4096+h*1024}", cb))
            return [(r, ("R", kc, s, b)) for r, b in L]
        stage_addr(0)
        st()
        g.wait_vm([("D", 0)])
        g.e("s_barrier")
        st()
        dt(g, 1)
        XR = TMP
        XU = ACC + 32
        for r, t in read_list(0, 0): g.lds(r, t)
        LPM = o.get("LPG", 1)
        for kc in range(8):
            for s in range(4):
                if s < 3:
                    nxt = read_list(kc, s+1)
                else:
                    nxt = []
                    if kc < 7:
                        g.wait_lg([("R", kc, 3, b) for b in range(2)])
                        while any(c_ == kc+1 for c_, _ in ldq): assert ldnext()
                        g.wait_vm([("D", kc+1)])
                        g.e("s_barrier")
                        if kc in (0, 2, 4, 6): st()
                        if kc == o.get("dtk", 2): dt(g, 10)
                        freed[0] = kc + 1
                        stage_addr(kc+1)
                        nxt = read_list(kc+1, 0)
                p = (kc*4 + s) % 2
                for b in range(2):
                    g.wait_lg([("R", kc, s, bb) for bb in range(b+1)])
                    ac = vr(ACC+16*b, 16)
                    g.e(f"v_mfma_f32_32x32x16_bf16 {ac}, {vr(WF+p*8+b*4)}, {vr(XF+p*20)}, {'0' if kc == 0 and s == 0 else ac}")
                    for _ in range(3):
                        if nxt:
                            r, t = nxt.pop(0); g.lds(r, t)
                    for _ in range(LPM): ldnext()
            if kc == 4:
                g.vmem(f"buffer_load_dword v{vNC}, v{vZ}, {sr(SDB)}, 0 offen sc1", ("NC",))
            if kc == 0: g.lines += deferG
            if kc == 5:
                for j in range(8):
                    g.e(f"v_xor_b32 v{vT2}, {j*16}, v{vXR}")
                    g.lds(f"ds_read_b64 {vr(XR+2*j,2)}, v{vT2}", ("XR", j))
            if kc == 6:
                g.wait_lg([("XR", 7)])
                for j in range(16):
                    g.e(f"v_lshlrev_b32 v{XU+2*j}, 16, v{XR+j}")
                    g.e(f"v_and_b32 v{XU+2*j+1}, 0xffff0000, v{XR+j}")
        assert not ldq
        st(); dt(g, 3)
        nonce_wait("G")
        g.e("s_nop 7")
        S1, S2 = TMP+16, TMP+18
        P1, P2 = TMP+20, TMP+22
        for i in range(16): g.e(f"v_pk_add_f32 {vr(ACC+2*i,2)}, {vr(ACC+2*i,2)}, {vr(XU+2*i,2)}")
        g.e(f"v_pk_add_f32 {vr(P1,2)}, {vr(ACC,2)}, {vr(ACC+2,2)}")
        g.e(f"v_pk_mul_f32 {vr(P2,2)}, {vr(ACC,2)}, {vr(ACC,2)}")
        g.e(f"v_pk_fma_f32 {vr(P2,2)}, {vr(ACC+2,2)}, {vr(ACC+2,2)}, {vr(P2,2)}")
        for i in range(2, 16):
            g.e(f"v_pk_add_f32 {vr(P1,2)}, {vr(P1,2)}, {vr(ACC+2*i,2)}")
            g.e(f"v_pk_fma_f32 {vr(P2,2)}, {vr(ACC+2*i,2)}, {vr(ACC+2*i,2)}, {vr(P2,2)}")
        g.e(f"v_add_f32 v{S1}, v{P1}, v{P1+1}")
        g.e(f"v_add_f32 v{S2}, v{P2}, v{P2+1}")
        g.e(f"v_mov_b32 v{vT}, v{S1}")
        g.e(f"v_mov_b32 v{vT2}, v{S2}")
        g.e(f"v_mov_b32 v{S1+1}, v{vNC}")
        g.e(f"v_mov_b32 v{S2+1}, v{vNC}")
        g.e(f"v_permlane32_swap_b32 v{S1}, v{vT}")
        g.e(f"v_permlane32_swap_b32 v{S2}, v{vT2}")
        g.e(f"v_add_f32 v{S1}, v{S1}, v{vT}")
        g.e(f"v_add_f32 v{S2}, v{S2}, v{vT2}")
        g.e("s_mov_b64 exec, 0xffffffff")
        g.e(f"buffer_store_dwordx4 {vr(S1)}, v{vGO}, {sr(SWS)}, s93 offen sc1")
        g.e("s_mov_b64 exec, -1")
        st()
        for j in range(16):
            g.e(f"v_cvt_pk_bf16_f32 v{XR+j}, v{ACC+2*j}, v{ACC+2*j+1}")
        g.e("s_nop 1")
        for hh in range(4):
            g.e(f"v_permlane32_swap_b32 v{XR+4*hh}, v{XR+4*hh+2}")
            g.e(f"v_permlane32_swap_b32 v{XR+4*hh+1}, v{XR+4*hh+3}")
        EA, EB = TMP + 24, TMP + 40
        def poll_issue(E):
            for e_ in range(4):
                g.e(f"buffer_load_dwordx4 {vr(E+4*e_)}, v{vGA}, {sr(SWS)}, 0 offen offset:{e_*512} sc1")
        def poll_check(E):
            g.e(f"v_xor_b32 v{vT}, v{E+1}, v{vNC}")
            for e_ in range(4):
                for o_ in (1, 3):
                    if e_ == 0 and o_ == 1: continue
                    g.e(f"v_xor_b32 v{vT2}, v{E+4*e_+o_}, v{vNC}")
                    g.e(f"v_or_b32 v{vT}, v{vT}, v{vT2}")
            g.e(f"v_cmp_ne_u32 vcc, 0, v{vT}")
            g.e("s_nop 4")
        g.e(f"s_mov_b32 s{sT2}, 0")
        poll_issue(EA)
        g.label(f"{name}_poll")
        g.e(f"s_add_u32 s{sT2}, s{sT2}, 1")
        g.e(f"s_cmp_gt_u32 s{sT2}, 100000")
        g.e(f"s_cbranch_scc1 {name}_pollx")
        if o.get("pp", 1):
            g.e("s_sleep 4")
            poll_issue(EB)
            g.e("s_waitcnt vmcnt(4)")
            poll_check(EA)
            g.e(f"s_cbranch_vccz {name}_pollx")
            poll_issue(EA)
            g.e("s_waitcnt vmcnt(4)")
            poll_check(EB)
            g.e(f"s_cbranch_vccnz {name}_poll")
            g.e("s_waitcnt vmcnt(0)")
        else:
            g.e("s_waitcnt vmcnt(0)")
            poll_check(EA)
            g.e(f"s_cbranch_vccz {name}_pollx")
            poll_issue(EA)
            g.e(f"s_branch {name}_poll")
        g.label(f"{name}_pollx")
        st()
        E = EA
        g.e(f"s_mov_b32 s{sT1}, {WS_HI}")
        for e_ in range(1, 4):
            g.e(f"v_add_f32 v{E}, v{E}, v{E+4*e_}")
            g.e(f"v_add_f32 v{E+2}, v{E+2}, v{E+4*e_+2}")
        g.e(f"v_mov_b32 v{vT}, v{E}")
        g.e(f"v_mov_b32 v{vT2}, v{E+2}")
        for hh in range(4):
            g.e(f"buffer_store_dwordx4 {vr(XR+4*hh)}, v{vST}, {sr(SWS)}, s{sT1} offen offset:{hh*1024}{stf}")
        g.e(f"v_permlane32_swap_b32 v{E}, v{vT}")
        g.e(f"v_permlane32_swap_b32 v{E+2}, v{vT2}")
        g.e(f"v_add_f32 v{E}, v{E}, v{vT}")
        g.e(f"v_add_f32 v{E+2}, v{E+2}, v{vT2}")
        g.e(f"v_mul_f32 v{E}, {f2u(1/512):#x}, v{E}")
        g.e(f"v_mul_f32 v{E+2}, {f2u(1/512):#x}, v{E+2}")
        g.e(f"v_fma_f32 v{E+2}, -v{E}, v{E}, v{E+2}")
        g.e(f"v_max_f32 v{E+2}, 0, v{E+2}")
        g.e(f"v_add_f32 v{E+2}, {f2u(1e-5):#x}, v{E+2}")
        A_, B_, A2, B2 = E+4, E+6, E+8, E+10
        g.e(f"v_rsq_f32 v{A_}, v{E+2}")
        g.e("s_nop 0")
        g.e(f"v_mul_f32 v{B_}, v{E}, v{A_}")
        g.e(f"v_sub_f32 v{B_}, 0, v{B_}")
        g.e(f"v_mul_f32 v{A2}, {f2u(-LOG2E):#x}, v{A_}")
        g.e(f"v_mul_f32 v{B2}, {f2u(-LOG2E):#x}, v{B_}")
        Y = XF
        D = WF
        for hh in range(4):
            a = ACC + 8*hh; y = Y + (hh % 2)*8
            for i in range(4): g.e(f"v_pk_fma_f32 {vr(y+2*i,2)}, {vr(a+2*i,2)}, {vr(A2,2)}, {vr(B2,2)} op_sel_hi:[1,0,0]")
            for i in range(8): g.e(f"v_exp_f32 v{y+i}, v{y+i}")
            for i in range(4): g.e(f"v_pk_fma_f32 {vr(a+2*i,2)}, {vr(a+2*i,2)}, {vr(A_,2)}, {vr(B_,2)} op_sel_hi:[1,0,0]")
            for i in range(4): g.e(f"v_pk_add_f32 {vr(y+2*i,2)}, {vr(y+2*i,2)}, 1.0 op_sel_hi:[1,0]")
            for i in range(8): g.e(f"v_rcp_f32 v{y+i}, v{y+i}")
            g.e("s_nop 0")
            for i in range(4): g.e(f"v_pk_mul_f32 {vr(a+2*i,2)}, {vr(a+2*i,2)}, {vr(y+2*i,2)}")
            d = D + hh*4
            for i in range(4): g.e(f"v_cvt_pk_bf16_f32 v{d+i}, v{a+2*i}, v{a+2*i+1}")
            g.e(f"buffer_store_dwordx4 {vr(d)}, v{vST}, {sr(SWS)}, 0 offen offset:{hh*1024}{stf}")
        publish(True)
    bodyG(); bodyP()

def phase2(g, name, st, o):
    NST, PRE, EVERY = o.get("NST", 3), o.get("PRE", 20), o.get("EVERY", 2)
    lf = o.get("lf", " sc1").replace(" none", "")
    SA, SWP, SX, SO, SDB = 12, 16, 20, 24, 28
    C4K, C8K, C2M, C2M4K = 33, 34, 42, 43
    sMT, sNT, sB, sT0, sT1, sR0, sBASE = 35, 36, 37, 38, 39, 97, 96
    vLane, vT, vW, vMR, vML, vO, vT2 = 1, 2, 3, 4, 5, 6, 7
    vH = [8+j for j in range(6)]
    vA, vA1 = 14, 15
    vXF = 16
    HB = 24
    HIB = HB + NST*24
    T0 = HIB + NST*16
    T2 = T0 + 24
    VEND = T2 + 24
    vF, vG, vPF = VEND, VEND+1, VEND+2
    assert VEND + 8 <= 250
    ACC, WB = 0, 64
    AEND = WB + NST*40
    g.vm = []; g.lg = []
    g.label(f"{name}_ph2")
    if st.on: st.n = 15
    st()
    g.e(f"s_and_b32 s{sT0}, s2, 7")
    g.e(f"s_lshr_b32 s{sT1}, s2, 3")
    g.e(f"s_and_b32 s{sB}, s{sT0}, 1")
    g.e(f"s_lshr_b32 s{sT0}, s{sT0}, 1")
    g.e(f"s_and_b32 s{sMT}, s{sT1}, 7")
    g.e(f"s_lshr_b32 s{sT1}, s{sT1}, 3")
    g.e(f"s_lshl_b32 s{sNT}, s{sT0}, 2")
    g.e(f"s_add_u32 s{sNT}, s{sNT}, s{sT1}")
    g.e(f"s_lshl_b32 s{sT0}, s{sB}, 5")
    g.e(f"s_lshl_b32 s{sT1}, s{sMT}, 2")
    g.e(f"s_add_u32 s{sR0}, s{sT0}, s{sT1}")
    srd(g, SDB, 50, 51, 16 << 20)
    NL = o.get("NL", 8); LG = NL.bit_length() - 1; MS = NL*128
    g.e(f"s_lshr_b32 s{sT0}, s{sR0}, 2")
    g.e(f"s_lshl_b32 s{sT0}, s{sT0}, 4")
    g.e(f"s_add_u32 s{sT0}, s{sT0}, s{sNT}")
    g.e(f"s_mul_i32 s{sT0}, s{sT0}, {MS}")
    g.e(f"s_add_u32 s{sT0}, s{sT0}, {WS_MB}")
    g.e(f"v_and_b32 v{vF}, {NL-1}, v{vLane}")
    g.e(f"v_lshlrev_b32 v{vF}, 7, v{vF}")
    g.e(f"v_lshrrev_b32 v{vG}, {LG}, v{vLane}")
    g.e(f"v_lshl_add_u32 v{vF}, v{vG}, 2, v{vF}")
    g.e(f"v_add_u32 v{vF}, s{sT0}, v{vF}")
    g.e(f"s_movk_i32 s{C4K}, 0x1000")
    g.e(f"s_movk_i32 s{C8K}, 0x2000")
    g.e(f"s_mov_b32 s{C2M}, 0x200000")
    g.e(f"s_mov_b32 s{C2M4K}, 0x201000")
    g.e(f"s_lshl_b32 s{sBASE}, s{sR0}, 15")
    g.e(f"s_lshl_b32 s{sT0}, s{sW}, 13")
    g.e(f"s_add_u32 s{sBASE}, s{sBASE}, s{sT0}")
    g.e(f"v_lshlrev_b32 v{vT}, 4, v{vLane}")
    for j in range(1, 5):
        g.e(f"s_add_u32 s{sT0}, s{sBASE}, {(j-1)*32768}")
        g.e(f"v_add_u32 v{vH[j]}, s{sT0}, v{vT}")
    g.e(f"s_sub_u32 s{sT0}, s{sBASE}, 32768")
    g.e(f"s_cmp_eq_u32 s{sMT}, 0")
    g.e(f"s_cselect_b32 s{sT0}, 0x40000000, s{sT0}")
    g.e(f"v_add_u32 v{vH[0]}, s{sT0}, v{vT}")
    g.e(f"s_add_u32 s{sT0}, s{sBASE}, {4*32768}")
    g.e(f"s_cmp_eq_u32 s{sMT}, 7")
    g.e(f"s_cselect_b32 s{sT0}, 0x40000000, s{sT0}")
    g.e(f"v_add_u32 v{vH[5]}, s{sT0}, v{vT}")
    g.e(f"s_lshl_b32 s{sT0}, s{sNT}, 5")
    g.e(f"s_lshl_b32 s{sT1}, s{sW}, 3")
    g.e(f"s_add_u32 s{sT0}, s{sT0}, s{sT1}")
    g.e(f"s_mul_i32 s92, s{sT0}, 10240")
    g.e(f"v_add_u32 v{vW}, s92, v{vT}")
    srd(g, SA, 50, 51, 4 << 20)
    srd(g, SWP, 50, 51, WP_BYTES, add=WS_WP)
    srd(g, SX, 40, 41, 2 << 20)
    srd(g, SO, 46, 47, 2 << 20)
    g.e(f"s_add_u32 s{sT0}, s{sR0}, s{sW}")
    g.e(f"s_lshl_b32 s{sT0}, s{sT0}, 15")
    g.e(f"s_lshl_b32 s{sT1}, s{sNT}, 6")
    g.e(f"s_add_u32 s{sT0}, s{sT0}, s{sT1}")
    g.e(f"v_lshrrev_b32 v{vO}, 2, v{vLane}")
    g.e(f"v_lshlrev_b32 v{vO}, 10, v{vO}")
    g.e(f"v_and_b32 v{vT2}, 3, v{vLane}")
    g.e(f"v_lshlrev_b32 v{vT2}, 4, v{vT2}")
    g.e(f"v_add3_u32 v{vO}, v{vO}, v{vT2}, s{sT0}")
    g.e(f"s_movk_i32 s{sT1}, 0x4000")
    xfl = " nt" if (o.get("nt", 0) or o.get("ntf")) else ""
    g.e(f"buffer_load_dwordx4 {vr(vXF)}, v{vO}, {sr(SX)}, 0 offen{xfl}")
    g.e(f"buffer_load_dwordx4 {vr(vXF+4)}, v{vO}, {sr(SX)}, s{sT1} offen{xfl}")
    g.e(f"v_and_b32 v{vT}, 31, v{vLane}")
    g.e(f"v_cmp_ne_u32 vcc, 0, v{vT}")
    g.e("s_nop 1")
    g.e(f"v_cndmask_b32 v{vMR}, 0, -1, vcc")
    g.e(f"v_cmp_ne_u32 vcc, 31, v{vT}")
    g.e("s_nop 1")
    g.e(f"v_cndmask_b32 v{vML}, 0, -1, vcc")
    g.e(f"v_lshlrev_b32 v{vA}, 4, v{vLane}")
    g.e(f"s_mul_i32 s{sT0}, s{sW}, 4352")
    g.e(f"v_add_u32 v{vA}, s{sT0}, v{vA}")
    g.e(f"v_and_b32 v{vA1}, 3, v{vLane}")
    g.e(f"v_mul_u32_u24 v{vA1}, 1088, v{vA1}")
    g.e(f"v_lshrrev_b32 v{vT}, 2, v{vLane}")
    g.e(f"v_lshl_add_u32 v{vA1}, v{vT}, 4, v{vA1}")
    g.e(f"s_mul_i32 s{sT0}, s{sW}, 17408")
    g.e(f"v_add_u32 v{vA1}, s{sT0}, v{vA1}")
    g.e("s_mov_b32 s90, 0xffff0000")
    g.e("s_mov_b32 s91, 0xffff")
    g.e(f"s_movk_i32 s{sT0}, 0x1111")
    g.e(f"s_cmp_eq_u32 s{sMT}, 0")
    g.e(f"s_cselect_b32 s{sT0}, 0x1110, s{sT0}")
    g.e(f"s_cmp_eq_u32 s{sMT}, 7")
    g.e(f"s_cselect_b32 s{sT0}, 0x0111, s{sT0}")
    g.e(f"s_lshl_b32 s94, s{sT0}, s{sW}")
    g.e("s_mov_b32 s95, 0")
    def poll(tag, mask, first_issued):
        g.e(f"s_mov_b32 s{sT0}, 0")
        if first_issued: g.e(f"s_branch {name}_fchk{tag}")
        g.label(f"{name}_fpoll{tag}")
        if o.get("fs", 0): g.e(f"s_sleep {o['fs']}")
        g.e(f"buffer_load_dword v{vG}, v{vF}, {sr(SDB)}, 0 offen sc1")
        g.label(f"{name}_fchk{tag}")
        g.e(f"s_add_u32 s{sT0}, s{sT0}, 1")
        g.e(f"s_cmp_gt_u32 s{sT0}, 200000")
        g.e(f"s_cbranch_scc1 {name}_fw{tag}")
        g.e("s_waitcnt vmcnt(0)")
        g.e(f"v_cmp_ne_u32 vcc, s3, v{vG}")
        g.e("s_nop 4")
        g.e(f"s_and_b64 vcc, vcc, {mask}")
        g.e(f"s_cbranch_scc1 {name}_fpoll{tag}")
        g.label(f"{name}_fw{tag}")

    SPF = o.get("spf", 0)
    if SPF:
        g.e(f"s_mul_i32 s{sT0}, s{sMT}, 1280")
        g.e(f"s_add_u32 s{sT0}, s{sT0}, s92")
        g.e(f"s_add_u32 s{sT0}, s{sT0}, {WS_WP}")
        g.e(f"s_add_u32 s4, s50, s{sT0}")
        g.e(f"s_addc_u32 s5, s51, 0")
        g.e(f"s_and_b32 s{sT0}, s{sNT}, 3")
        g.e(f"s_lshl_b32 s{sT0}, s{sT0}, 8")
        g.e(f"s_add_u32 s{sT0}, s{sT0}, s{sBASE}")
        g.e(f"s_add_u32 s6, s50, s{sT0}")
        g.e(f"s_addc_u32 s7, s51, 0")
        g.e(f"s_add_u32 s8, s6, 0x200000")
        g.e(f"s_addc_u32 s9, s7, 0")
    def spf_list(k):
        if not SPF or k > 7: return []
        L = [f"s_load_dword s10, s[4:5], {k*10240 + i*128:#x}" for i in range(10)]
        if o.get("spfh", 1):
            for r in range(4):
                for i in range(2):
                    L.append(f"s_load_dword s10, s[6:7], {r*32768 + k*1024 + i*128:#x}")
                    L.append(f"s_load_dword s10, s[8:9], {r*32768 + k*1024 + i*128:#x}")
        return L
    def Hreg(s_, j): return HB + s_*24 + j*4
    def HIreg(s_, r): return HIB + s_*16 + r*4
    def Wreg(s_, t): return WB + s_*40 + t*4
    def ldW(k, t):
        s_ = k % NST
        off = (k*10 + t)*1024
        return ("W", k, t, s_, off)
    def emitW(k, t):
        s_ = k % NST
        off = (k*10 + t)*1024
        g.e(f"s_mov_b32 s{sT0}, {off & ~4095}")
        g.vmem(f"buffer_load_dwordx4 {ar(Wreg(s_,t))}, v{vW}, {sr(SWP)}, s{sT0} offen offset:{off & 4095}{lf}", ("W", k, t))
    def emitH(k, j):
        s_ = k % NST
        so_h = "0" if k < 4 else f"s{C4K}"
        g.vmem(f"buffer_load_dwordx4 {vr(Hreg(s_,j))}, v{vH[j]}, {sr(SA)}, {so_h} offen offset:{(k%4)*1024}{lf}", ("H", k, j))
    def emitHI(k, r):
        s_ = k % NST
        so = f"s{C2M}" if k < 4 else f"s{C2M4K}"
        g.vmem(f"buffer_load_dwordx4 {vr(HIreg(s_,r))}, v{vH[r+1]}, {sr(SA)}, {so} offen offset:{(k%4)*1024}{lf}", ("HI", k, r))
    def order(k):
        return [("W",1),("H",0),("H",1),("H",2),("H",3),("W",4),("H",4),("W",7),("H",5),("W",9),
                ("HI",0),("HI",1),("HI",2),("HI",3),("W",0),("W",3),("W",6),("W",2),("W",5),("W",8)]
    queue = [(k, t, i) for k in range(8) for (t, i) in order(k)]
    def emit_item(it):
        k, t, i = it
        {"W": emitW, "H": emitH, "HI": emitHI}[t](k, i)
    WPRE = o.get("WPRE", 2)
    split = 0
    if split:
        poll("P", "s[90:91]", False)
        st(); dt(g, 9)
        pre = [it for it in queue if it[1] == "W" and it[0] < WPRE]
        for it in pre:
            queue.remove(it); emit_item(it)
        if o.get("pfw", 0):
            g.e(f"s_mul_i32 s{sT0}, s{sMT}, 10240")
            g.e(f"s_add_u32 s{sT0}, s{sT0}, s92")
            g.e(f"v_lshlrev_b32 v{vPF}, 7, v{vLane}")
            g.e(f"buffer_load_dword v{vPF+1}, v{vPF}, {sr(SWP)}, s{sT0} offen{lf}")
            g.e(f"s_add_u32 s{sT0}, s{sT0}, 2048")
            g.e(f"buffer_load_dword v{vPF+2}, v{vPF}, {sr(SWP)}, s{sT0} offen{lf}")
        g.e(f"v_cmp_ne_u32 vcc, s3, v{vG}")
        g.e("s_nop 4")
        g.e("s_and_b64 vcc, vcc, s[94:95]")
        g.e(f"s_cbranch_scc0 {name}_fwG")
        poll("G", "s[94:95]", False)
    else:
        if o.get("w0", 1):
            g.e(f"s_mov_b32 s{sT0}, 0xffff")
            g.e(f"s_cmp_eq_u32 s{sMT}, 0")
            g.e(f"s_cselect_b32 s{sT0}, 0xfff0, s{sT0}")
            g.e(f"s_cmp_eq_u32 s{sMT}, 7")
            g.e(f"s_cselect_b32 s94, 0x0fff, s{sT0}")
            g.e("s_or_b64 s[90:91], s[90:91], s[94:95]")
            g.e(f"s_cmp_lg_u32 s{sW}, 0")
            g.e(f"s_cbranch_scc1 {name}_fwP")
            poll("P", "s[90:91]", False)
            g.e("s_waitcnt vmcnt(0)")
            g.e("s_barrier")
        else:
            g.e("s_or_b64 s[90:91], s[90:91], s[94:95]")
            poll("P", "s[90:91]", False)
        st(); dt(g, 9)
    if st.on:
        g.e(f"s_memrealtime s[{52+2*st.n}:{53+2*st.n}]"); st.n += 1
    def issue_next(cur_k):
        if not queue: return False
        it = queue[0]
        if it[0] - NST >= cur_k or len(g.vm) >= 60: return False
        queue.pop(0); emit_item(it); return True
    def need(tok, k):
        while any((it[1], it[0], it[2]) == tok for it in queue): assert issue_next(k)
    for _ in range(PRE): issue_next(0)
    if o.get("pfh", 0):
        g.e(f"s_and_b32 s{sT0}, s{sNT}, 3")
        g.e(f"s_lshl_b32 s{sT0}, s{sT0}, 11")
        g.e(f"s_add_u32 s{sT0}, s{sT0}, s{sBASE}")
        g.e(f"v_lshrrev_b32 v{vPF}, 4, v{vLane}")
        g.e(f"v_lshlrev_b32 v{vPF}, 15, v{vPF}")
        g.e(f"v_and_b32 v{vPF+1}, 15, v{vLane}")
        g.e(f"v_lshl_add_u32 v{vPF}, v{vPF+1}, 7, v{vPF}")
        g.vmem(f"buffer_load_dword v{vPF+1}, v{vPF}, {sr(SA)}, s{sT0} offen{lf}")
        g.e(f"s_add_u32 s{sT0}, s{sT0}, 0x200000")
        g.vmem(f"buffer_load_dword v{vPF+2}, v{vPF}, {sr(SA)}, s{sT0} offen{lf}")
    wr_pending = []
    for k in range(8):
        s_ = k % NST
        last = k == 7
        g.c(f"---- k-step {k}")
        if k == 1: st()
        if o.get("ste") and k >= 2: g.e(f"s_memtime s[{60+2*(k-2)}:{61+2*(k-2)}]")
        dpp = [(T0, vMR, "wave_shr:1", j, i) for j in range(6) for i in range(4)]
        dpp2 = [(T2, vML, "wave_shl:1", j, i) for j in range(6) for i in range(4)]
        mf = []
        for di in range(3):
            for r in range(4): mf.append((r, di*3+1, ("H", k, r+di), Hreg(s_, r+di), "A"))
        for r in range(4): mf.append((r, 9, ("HI", k, r), HIreg(s_, r), "B"))
        if not last:
            for di in range(3):
                for r in range(4): mf.append((r, di*3, None, T0 + (r+di)*4, "C"))
            for di in range(3):
                for r in range(4): mf.append((r, di*3+2, None, T2 + (r+di)*4, "D"))
        else:
            dpp = [x for pair in zip(dpp, dpp2) for x in pair]; dpp2 = []
            for r in range(4):
                for di in range(3): mf.append((r, di*3, None, T0 + (r+di)*4, "E"))
                for di in range(3): mf.append((r, di*3+2, None, T2 + (r+di)*4, "E" if di < 2 else "F"))
        since = 0
        spl = spf_list(k + SPF) if k > 0 else [x for kk in range(2, SPF+1) for x in spf_list(kk)]
        for n, (r, t, ht, hreg, grp) in enumerate(mf):
            toks = [("W", k, t)] + ([ht] if ht else [])
            for tok in toks: need(tok, k)
            g.wait_vm(toks)
            c = "0" if (k == 0 and n < 4) else ar(ACC+16*r, 16)
            if o.get("fake16"):
                for u_ in range(2):
                    q_ = ACC + 16*r + 4*((2*n + u_) % 4)
                    g.e(f"v_mfma_f32_16x16x32_bf16 {ar(q_)}, {ar(Wreg(s_,t))}, {vr(hreg)}, {'0' if k == 0 and n < 8 else ar(q_)}")
            else:
                g.e(f"v_mfma_f32_32x32x16_bf16 {ar(ACC+16*r,16)}, {ar(Wreg(s_,t))}, {vr(hreg)}, {c}")
            if grp in "AB" and n >= 2:
                for _ in range(4 if last else 2):
                    if dpp:
                        T, vm_, sh, j, i = dpp.pop(0)
                        need(("H", k, j), k); g.wait_vm([("H", k, j)])
                        g.e(f"v_and_b32_dpp v{T+j*4+i}, v{Hreg(s_,j)+i}, v{vm_} {sh} row_mask:0xf bank_mask:0xf bound_ctrl:0")
            if grp == "C":
                for _ in range(3):
                    if dpp2:
                        T, vm_, sh, j, i = dpp2.pop(0)
                        g.e(f"v_and_b32_dpp v{T+j*4+i}, v{Hreg(s_,j)+i}, v{vm_} {sh} row_mask:0xf bank_mask:0xf bound_ctrl:0")
            if o.get("RN"):
                if (n * o["RN"]) % o["RD"] < o["RN"]: issue_next(k)
            elif n % EVERY == EVERY - 1: issue_next(k)
            for _ in range(2 if k == 0 else 1):
                if spl: g.e(spl.pop(0))
            if wr_pending:
                since += 1
                if since == 2: g.e("s_nop 9")
                if since >= 2:
                    g.e(wr_pending.pop(0))
            if grp == "F":
                assert not wr_pending
                wr_pending = [f"ds_write_b128 v{vA}, {ar(ACC+16*r+4*q)} offset:{r*17408 + q*1088}" for q in range(4)]
                since = 0
        assert not dpp and not dpp2
    assert not queue
    g.c("---- epilogue")
    st(); dt(g, 11)
    g.e("s_nop 11")
    for w_ in wr_pending: g.e(w_)
    g.e("s_waitcnt lgkmcnt(0)")
    if o.get("ste"): g.e("s_memtime s[54:55]")
    g.e("s_barrier")
    if o.get("ste"): g.e("s_memtime s[56:57]")
    R = HB
    for i in range(2):
        for src in range(4):
            for hf in range(2):
                g.lds(f"ds_read_b128 {vr(R + ((i*4+src)*2+hf)*4)}, v{vA1} offset:{src*4352 + hf*512 + i*256}", ("R", i, src))
    XU = R + 64
    for i in range(2):
        for e_ in range(4):
            x = vXF + 4*i + e_
            g.e(f"v_lshlrev_b32 v{XU+8*i+2*e_}, 16, v{x}")
            g.e(f"v_and_b32 v{XU+8*i+2*e_+1}, 0xffff0000, v{x}")
    for i in range(2):
        base = R + i*32
        for src in range(4):
            g.wait_lg([("R", i, src)])
            for e_ in range(4):
                g.e(f"v_pk_add_f32 {vr(XU+8*i+2*e_,2)}, {vr(XU+8*i+2*e_,2)}, {vr(base+8*src+2*e_,2)}")
        for e_ in range(4): g.e(f"v_cvt_pk_bf16_f32 v{vXF+4*i+e_}, v{XU+8*i+2*e_}, v{XU+8*i+2*e_+1}")
        g.vmem(f"buffer_store_dwordx4 {vr(vXF+4*i)}, v{vO}, {sr(SO)}, {'0' if i==0 else 's%d'%sT1} offen{o.get('ostf',' sc1')}")
    if o.get("ste"): g.e("s_memtime s[58:59]")
    if o.get("enc"):
        i = o["enc"]
        g.e("s_waitcnt vmcnt(0)")
        g.e("s_memrealtime s[76:77]")
        g.e(f"s_cmp_lg_u32 s2, {o.get('encwg', 8)}")
        g.e("s_cbranch_scc1 enc_done")
        g.e(f"s_cmp_lg_u32 s{sW}, 0")
        g.e("s_cbranch_scc1 enc_done")
        g.e("s_waitcnt lgkmcnt(0)")
        g.e(f"s_sub_u32 s84, s{52+2*i}, s52")
        g.e("s_mul_i32 s84, s84, 20")
        g.label("enc_loop")
        g.e("s_memrealtime s[86:87]")
        g.e("s_waitcnt lgkmcnt(0)")
        g.e("s_sub_u32 s85, s86, s76")
        g.e("s_cmp_lt_u32 s85, s84")
        g.e("s_cbranch_scc1 enc_loop")
        g.label("enc_done")
    else:
        dt_finish(g)
    st.finish(st.n + 1)
    return AEND

def gen_all(out, o):
    DT[0] = bool(o.get("dt", 0)); CPF[0] = o.get("cpf", 2); CPF[1] = o.get("cpfo", 0)
    name = "fused_kernel"
    g = Gen(); st = Stamper(g, o.get("st", 0))
    entry(g, name, st)
    phase1(g, name, st, o)
    aend = phase2(g, name, st, o)
    g.label(f"{name}_end"); g.e("s_endpgm")
    build([(name, g.text(), kd(name, 256 + max(aend, 128), 256, 100), 256, 256, 160*1024)], out)

if __name__ == "__main__":
    o = {}
    for a in sys.argv[2:]:
        k, v = a.split("=")
        o[k] = int(v) if v.lstrip("-").isdigit() else " " + v.replace("+", " ")
    gen_all(sys.argv[1], o)
```

```python
import sys, struct
from gen import Gen, vr, ar, sr, srd, kd, build, WS_H, WS_HI, WS_WP, WS_ST, WP_BYTES
import gen4
from gen4 import Stamper, f2u, LOG2E, sW, WS_MB, dt, dt_finish, DT, CPF, entry

def phase1(g, name, st, o):
    stf = o.get("stf", " sc1")
    ldf = " nt" if o.get("nt", 0) else ""
    ldw = " nt" if o.get("ntw", 0) else ""
    ldp = " nt" if (o.get("ntp") or o.get("nt")) else ""
    SX, SWT, SWS, SXI, SDB = 12, 16, 20, 24, 28
    sCT, sU, sT0, sT1, sT2, sXROW, sM0X = 33, 34, 35, 36, 37, 38, 39
    sSOX, sSOW, sNONCE = 42, 43, 3
    sODD, sKC = 94, 95
    vLane, vT, vT2, vXD, vWD, vWA, vPX, vHF, vL16 = 1, 2, 3, 4, 5, 6, 7, 8, 9
    vXA = [10, 11, 12, 13]; vXAs = [14, 15, 16, 17]
    vWAs, vST, vWR, vNC, vZ, vWAs2 = 18, 19, 20, 21, 22, 23
    XF, WF, ACC, TMP = 24, 64, 80, 160
    g.e(f"s_and_b32 s{sT0}, s2, 7")
    g.e(f"s_lshr_b32 s{sT1}, s2, 3")
    g.e(f"s_and_b32 s{sCT}, s{sT1}, 3")
    g.e(f"s_lshr_b32 s{sT1}, s{sT1}, 2")
    if o.get("mix", 1):
        g.e(f"s_lshl_b32 s{sU}, s{sT0}, 2")
        g.e(f"s_lshr_b32 s{sT2}, s{sT1}, 1")
        g.e(f"s_add_u32 s{sU}, s{sU}, s{sT2}")
        g.e(f"s_and_b32 s{sT0}, s{sT1}, 1")
        g.e(f"s_lshl_b32 s{sT0}, s{sT0}, 2")
    else:
        g.e(f"s_and_b32 s{sU}, s{sT0}, 3")
        g.e(f"s_lshl_b32 s{sU}, s{sU}, 3")
        g.e(f"s_add_u32 s{sU}, s{sU}, s{sT1}")
    g.e(f"v_lshrrev_b32 v{vT}, 3, v{vLane}")
    g.e(f"s_lshl_b32 s{sT2}, s{sW}, 3")
    g.e(f"v_add_u32 v{vXD}, s{sT2}, v{vT}")
    g.e(f"v_lshrrev_b32 v{vT}, 1, v{vXD}")
    g.e(f"v_and_b32 v{vT}, 7, v{vT}")
    g.e(f"v_and_b32 v{vT2}, 7, v{vLane}")
    g.e(f"v_xor_b32 v{vT}, v{vT}, v{vT2}")
    g.e(f"v_lshlrev_b32 v{vT}, 4, v{vT}")
    g.e(f"v_lshl_add_u32 v{vXD}, v{vXD}, 10, v{vT}")
    g.e(f"v_lshrrev_b32 v{vT}, 4, v{vLane}")
    g.e(f"v_lshlrev_b32 v{vT2}, 2, v{vT}")
    g.e(f"v_and_b32 v{vWD}, 15, v{vLane}")
    g.e(f"v_xor_b32 v{vWD}, v{vWD}, v{vT2}")
    g.e(f"v_lshlrev_b32 v{vWD}, 4, v{vWD}")
    g.e(f"s_lshl_b32 s{sT2}, s{sW}, 2")
    g.e(f"v_add_u32 v{vT}, s{sT2}, v{vT}")
    g.e(f"v_lshl_add_u32 v{vWD}, v{vT}, 10, v{vWD}")
    g.e(f"s_lshl_b32 s{sT2}, s{sCT}, 8")
    g.e(f"v_add_u32 v{vWD}, s{sT2}, v{vWD}")
    g.e(f"s_lshl_b32 s{sM0X}, s{sW}, 10")
    g.e(f"v_mov_b32 v{vZ}, 0")
    g.e(f"s_cmp_ge_u32 s{sT0}, 4")
    g.e(f"s_cbranch_scc1 {name}_P")
    st_n0 = st.n

    def nonce_wait(role):
        g.wait_vm([("NC",)])
        g.e(f"s_mov_b32 s{sT2}, 0")
        g.label(f"{name}_ncpoll{role}")
        g.e(f"v_readfirstlane_b32 s{sNONCE}, v{vNC}")
        g.e(f"s_add_u32 s{sT2}, s{sT2}, 1")
        g.e(f"s_cmp_gt_u32 s{sT2}, 100000")
        g.e(f"s_cbranch_scc1 {name}_ncok{role}")
        g.e(f"s_cmp_lg_u32 s{sNONCE}, 0")
        g.e(f"s_cbranch_scc1 {name}_ncok{role}")
        g.e(f"buffer_load_dword v{vNC}, v{vZ}, {sr(SDB)}, 0 offen sc1")
        g.e("s_waitcnt vmcnt(0)")
        g.e(f"s_branch {name}_ncpoll{role}")
        g.label(f"{name}_ncok{role}")

    def pretouch():
        if not o.get("tlb", 0): return
        lab = f"{name}_pt{len(g.lines)}"
        g.e(f"s_cmp_lg_u32 s{sW}, 3")
        g.e(f"s_cbranch_scc1 {lab}")
        srd(g, 84, 50, 51, 12 << 20)
        g.e(f"v_lshlrev_b32 v{vT}, 18, v{vLane}")
        g.e(f"buffer_load_dword v252, v{vT}, s[84:87], 0 offen")
        srd(g, 84, 46, 47, 2 << 20)
        g.e(f"v_lshlrev_b32 v{vT}, 16, v{vLane}")
        g.e(f"buffer_load_dword v253, v{vT}, s[84:87], 0 offen")
        srd(g, 84, 40, 41, 2 << 20)
        g.e(f"buffer_load_dword v254, v{vT}, s[84:87], 0 offen")
        g.e(f"buffer_load_dword v251, v{vZ}, {sr(SDB)}, 0 offen sc1")
        g.label(lab)

    def l2pf(G):
        pf = o.get("pf", 0)
        if not (pf & (1 if G else 2)): return
        if G:
            g.e(f"v_lshrrev_b32 v{vT}, 2, v{vLane}")
            g.e(f"v_and_b32 v{vT2}, 3, v{vLane}")
            g.e(f"v_lshlrev_b32 v{vT2}, 6, v{vT2}")
            g.e(f"v_lshl_add_u32 v{vT}, v{vT}, 10, v{vT2}")
            g.e(f"s_lshl_b32 s{sT2}, s{sW}, 14")
            g.e(f"s_add_u32 s{sT2}, s{sT2}, s{sXROW}")
        else:
            g.e(f"v_lshrrev_b32 v{vT}, 1, v{vLane}")
            g.e(f"v_and_b32 v{vT2}, 1, v{vLane}")
            g.e(f"v_lshlrev_b32 v{vT2}, 7, v{vT2}")
            g.e(f"v_lshl_add_u32 v{vT}, v{vT}, 10, v{vT2}")
            g.e(f"s_mul_i32 s{sT2}, s{sW}, {40*1024}")
            g.e(f"s_add_u32 s{sT2}, s{sT2}, s93")
        g.e(f"s_lshl_b32 s{sT0}, s{sCT}, 8")
        g.e(f"s_add_u32 s{sT2}, s{sT2}, s{sT0}")
        g.vmem(f"buffer_load_dword v250, v{vT}, {sr(SX)}, s{sT2} offen")
        if not G:
            g.e(f"s_add_u32 s{sT2}, s{sT2}, 0x8000")
            g.vmem(f"buffer_load_dword v251, v{vT}, {sr(SX)}, s{sT2} offen")
        if pf & 4:
            g.e(f"s_and_b32 s{sT0}, s{sU}, 3")
            g.e(f"s_lshl_b32 s{sT0}, s{sT0}, 2")
            g.e(f"s_add_u32 s{sT0}, s{sT0}, s{sCT}")
            g.e(f"s_lshl_b32 s{sT0}, s{sT0}, 2")
            g.e(f"s_add_u32 s{sT0}, s{sT0}, s{sW}")
            g.e(f"s_lshl_b32 s{sT0}, s{sT0}, 13")
            g.e(f"v_lshlrev_b32 v{vT}, 7, v{vLane}")
            g.vmem(f"buffer_load_dword v252, v{vT}, {sr(SWT)}, s{sT0} offen")

    def frag_consts(G):
        pretouch()
        l2pf(G)
        g.e(f"v_and_b32 v{vPX}, 31, v{vLane}")
        g.e(f"v_lshrrev_b32 v{vHF}, 5, v{vLane}")
        g.e(f"v_lshlrev_b32 v{vL16}, 4, v{vLane}")
        g.e(f"v_lshrrev_b32 v{vT}, 1, v{vPX}")
        g.e(f"v_and_b32 v{vT}, 7, v{vT}")
        g.e(f"v_xor_b32 v{vT}, v{vT}, v{vHF}")
        g.e(f"v_lshlrev_b32 v{vT}, 4, v{vT}")
        g.e(f"v_lshl_add_u32 v{vXA[0]}, v{vPX}, 7, v{vT}")
        if G:
            g.e(f"s_lshr_b32 s{sT2}, s{sW}, 1")
            g.e(f"s_lshl_b32 s{sT2}, s{sT2}, 12")
            g.e(f"v_add_u32 v{vXA[0]}, s{sT2}, v{vXA[0]}")
        for s in range(1, 4):
            g.e(f"v_xor_b32 v{vXA[s]}, {s*32}, v{vXA[0]}")
        g.e(f"v_bfe_u32 v{vT}, v{vLane}, 2, 2")
        g.e(f"v_lshl_add_u32 v{vT2}, v{vHF}, 3, v{vT}")
        g.e(f"v_lshlrev_b32 v{vWA}, 8, v{vT2}")
        if G:
            g.e(f"s_and_b32 s{sT2}, s{sW}, 1")
            g.e(f"s_lshl_b32 s{sT2}, s{sT2}, 1")
            g.e(f"v_xor_b32 v{vT}, s{sT2}, v{vT}")
        else:
            g.e(f"v_xor_b32 v{vT}, s{sW}, v{vT}")
        g.e(f"v_lshl_add_u32 v{vWA}, v{vT}, 6, v{vWA}")
        g.e(f"v_bfe_u32 v{vT}, v{vLane}, 4, 1")
        g.e(f"v_lshl_add_u32 v{vWA}, v{vT}, 5, v{vWA}")
        g.e(f"v_and_b32 v{vT}, 3, v{vLane}")
        g.e(f"v_lshl_add_u32 v{vWA}, v{vT}, 3, v{vWA}")

    def publish(G):
        while st.on and st.n < 13: st()
        NL = o.get("NL", 8); LG = NL.bit_length() - 1; MS = NL*128
        def slot_off(dst, src):
            g.e(f"s_and_b32 s92, s{src}, {NL-1}")
            g.e(f"s_lshl_b32 s92, s92, 7")
            g.e(f"s_lshr_b32 s{dst}, s{src}, {LG}")
            g.e(f"s_lshl_b32 s{dst}, s{dst}, 2")
            g.e(f"s_add_u32 s{dst}, s{dst}, s92")
        if G:
            g.e(f"s_lshr_b32 s{sT0}, s{sU}, 1")
            g.e(f"s_and_b32 s{sT1}, s{sU}, 1")
            g.e(f"s_lshl_b32 s{sT2}, s{sT1}, 1")
            g.e(f"s_add_u32 s{sT2}, s{sT2}, s{sT0}")
            g.e(f"s_sub_u32 s{sT2}, s{sT2}, 1")
            g.e(f"s_add_u32 s{sSOX}, s{sT1}, 1")
            g.e(f"s_lshl_b32 s{sSOX}, s{sSOX}, 2")
            g.e(f"s_add_u32 s{sSOX}, s{sSOX}, s{sCT}")
            slot_off(sSOX, sSOX)
            g.e(f"s_mul_i32 s93, s{sT0}, {16*MS}")
            g.e(f"s_add_u32 s{sSOX}, s{sSOX}, s93")
            g.e(f"s_cmp_eq_u32 s{sT1}, 0")
            g.e(f"s_cselect_b32 s{sSOW}, 12, 0")
            g.e(f"s_add_u32 s{sSOW}, s{sSOW}, s{sCT}")
            slot_off(sSOW, sSOW)
            g.e(f"s_mul_i32 s93, s{sT2}, {16*MS}")
            g.e(f"s_add_u32 s{sSOW}, s{sSOW}, s93")
            g.e(f"s_lshr_b32 s{sT2}, s{sT2}, 3")
            g.e(f"s_lshr_b32 s{sT0}, s{sT0}, 3")
            g.e(f"s_cmp_eq_u32 s{sT2}, s{sT0}")
            g.e(f"s_cselect_b32 s92, -1, 0xffff")
            g.e(f"s_mov_b32 s93, 0")
            g.e(f"v_and_b32 v{vT}, 15, v{vLane}")
            g.e(f"v_mul_u32_u24 v{vT}, {MS}, v{vT}")
            g.e(f"v_mov_b32 v{vT2}, s{sSOW}")
            g.e(f"v_mov_b32 v{vPX}, s{sSOX}")
            g.e(f"v_cmp_gt_u32 vcc, 16, v{vLane}")
            g.e("s_nop 1")
            g.e(f"v_cndmask_b32 v{vT2}, v{vT2}, v{vPX}, vcc")
            g.e(f"v_add_u32 v{vT}, v{vT}, v{vT2}")
            g.e(f"s_mov_b32 s{sT0}, {WS_MB}")
        else:
            g.e(f"v_lshrrev_b32 v{vT}, 2, v{vLane}")
            g.e(f"v_lshlrev_b32 v{vT}, 4, v{vT}")
            g.e(f"v_and_b32 v{vT2}, 3, v{vLane}")
            g.e(f"v_add_u32 v{vT}, v{vT}, v{vT2}")
            g.e(f"v_mul_u32_u24 v{vT}, {MS}, v{vT}")
            g.e(f"s_add_u32 s{sT1}, s{sU}, 16")
            slot_off(sT1, sT1)
            g.e(f"s_mul_i32 s{sT0}, s{sCT}, {4*MS}")
            g.e(f"s_add_u32 s{sT0}, s{sT0}, s{sT1}")
            g.e(f"s_add_u32 s{sT0}, s{sT0}, {WS_MB}")
            g.e(f"s_mov_b64 s[92:93], -1")
        dt(g, 5 if G else 6)
        if st.on: g.e("s_memrealtime s[78:79]")
        g.e("s_waitcnt vmcnt(0)")
        g.e("s_barrier")
        if st.on: g.e("s_memrealtime s[80:81]")
        dt(g, 7 if G else 8)
        g.e(f"s_cmp_lg_u32 s{sW}, 0")
        g.e(f"s_cbranch_scc1 {name}_ph2")
        g.e(f"s_mov_b64 exec, s[92:93]")
        g.e(f"buffer_store_dword v{vNC}, v{vT}, {sr(SWS)}, s{sT0} offen sc1")
        g.e("s_mov_b64 exec, -1")
        g.e(f"s_branch {name}_ph2")

    def bodyP():
        g.vm = []; g.lg = []
        st.n = st_n0
        g.label(f"{name}_P")
        NA = 3
        S = o.get("SP", 4)
        STG = 16384 + NA*4096
        XB3, XB4 = S*STG, (S*STG + 32768 if S == 3 else 0)
        PRE = o.get("PREP", 3)
        g.e(f"s_and_b32 s{sODD}, s{sU}, 1")
        g.e(f"s_lshr_b32 s{sT1}, s{sU}, 1")
        g.e(f"s_mul_i32 s{sXROW}, s{sT1}, 288")
        g.e(f"s_mul_i32 s{sT2}, s{sODD}, 160")
        g.e(f"s_add_u32 s{sXROW}, s{sXROW}, s{sT2}")
        g.e(f"s_lshr_b32 s{sKC}, s{sT1}, 1")
        g.e(f"s_lshl_b32 s{sKC}, s{sKC}, 16")
        g.e(f"s_lshl_b32 s93, s{sXROW}, 10")
        g.e(f"s_lshr_b32 s92, s{sKC}, 9")
        g.e("s_waitcnt lgkmcnt(0)")
        if o.get("wsoff", 0):
            g.e(f"s_add_u32 s50, s50, {o['wsoff'] << 20:#x}")
            g.e("s_addc_u32 s51, s51, 0")
        st(); dt(g, 2)
        srd(g, SX, 44, 45, 4608*1024); srd(g, SWT, 10, 11, 512 << 10)
        cur = [None]
        def kofs(kc):
            if cur[0] == kc: return
            cur[0] = kc
            g.e(f"s_add_u32 s{sT2}, s92, {kc*128}")
            g.e(f"s_and_b32 s{sT2}, s{sT2}, 0x3ff")
            g.e(f"s_add_u32 s91, s{sT2}, s93")
            g.e(f"s_lshl_b32 s90, s{sT2}, 9")
        def ldW(kc, m):
            kofs(kc)
            g.e(f"s_add_u32 m0, s{sM0X}, {(kc % S)*STG + m*4096}")
            g.e(f"s_add_u32 s{sSOW}, s90, {m*16384}")
            g.vmem(f"buffer_load_dwordx4 v{vWD}, {sr(SWT)}, s{sSOW} offen{ldw} lds", ("D", kc))
        def ldX(b, kc):
            kofs(kc)
            dst = (kc % S)*STG + 16384 + b*4096 if b < NA else [XB3, XB4][b-NA] + kc*4096
            g.e(f"s_add_u32 m0, s{sM0X}, {dst}")
            g.e(f"s_add_u32 s{sSOX}, s91, {b*32768}")
            g.vmem(f"buffer_load_dwordx4 v{vXD}, {sr(SX)}, s{sSOX} offen{ldp} lds", ("D", kc) if b < NA else ("XB", b))
        ldq = []
        for kc in range(8):
            for m in range(4): ldq.append(("W", kc, m, kc - S))
            for b in range(NA): ldq.append(("X", b, kc, kc - S))
            if not o.get("late", 1) and kc >= 2:
                for b in (3, 4): ldq.append(("X", b, kc - 2, -1))
        if o.get("late", 1):
            for b in (3, 4):
                for kc in range(8): ldq.append(("X", b, kc, 5 if (b == 4 and S == 4) else -1))
        else:
            for kc in (6, 7):
                for b in (3, 4): ldq.append(("X", b, kc, -1))
        freed = [-1]
        def ldnext():
            if not ldq or len(g.vm) >= 60: return False
            idx = 0
            if ldq[0][3] > freed[0]:
                if not o.get("ooo", 0): return False
                cand = [i for i, t in enumerate(ldq) if t[0] == "X" and t[1] >= NA and t[3] <= freed[0]]
                if not cand or fill[0] >= o["ooo"]: return False
                idx = cand[0]; fill[0] += 1
            t, a, b_, need = ldq.pop(idx)
            if t == "W": ldW(a, b_)
            else: ldX(a, b_)
            return True
        fill = [0]
        for _ in range(7*PRE): ldnext()
        slotc = [0]
        srd(g, SDB, 48, 49, 256)
        frag_consts(False)
        srd(g, SWS, 50, 51, 16 << 20)
        g.e(f"s_lshl_b32 s{sT0}, s{sCT}, 2")
        g.e(f"s_add_u32 s{sT0}, s{sT0}, s{sW}")
        g.e(f"s_mul_i32 s{sT0}, s{sT0}, {32*10240}")
        g.e(f"s_add_u32 s{sT0}, s{sT0}, {WS_WP}")
        g.e(f"v_add_u32 v{vST}, s{sT0}, v{vL16}")
        XRB = TMP + 40
        def read_list(kc, s):
            p = (kc*4 + s) % 2
            ks = 4*kc + s
            L = []
            for h in range(2):
                L.append((f"ds_read_b64_tr_b16 {ar(4*ks+2*h,2)}, v{vWAs} offset:{s*4096+h*1024}", 0))
            for b in range(NA):
                L.append((f"ds_read_b128 {vr(XF+p*20+b*4)}, v{vXAs[s]} offset:{b*4096}", b))
            return [(r, ("R", kc, s, b)) for r, b in L]
        def stage_addr(kc):
            sb = (kc % S) * STG
            for s in range(4): g.e(f"v_add_u32 v{vXAs[s]}, {sb + 16384}, v{vXA[s]}")
            g.e(f"v_add_u32 v{vWAs}, {sb}, v{vWA}")
        stage_addr(0)
        st()
        g.wait_vm([("D", 0)])
        g.e("s_barrier")
        st()
        dt(g, 1)
        for r, t in read_list(0, 0): g.lds(r, t)
        LPA = o.get("LPA", 1)
        for kc in range(8):
            for s in range(4):
                if s < 3:
                    nxt = read_list(kc, s+1)
                else:
                    nxt = []
                    if kc < 7:
                        g.wait_lg([("R", kc, 3, b) for b in range(NA)])
                        while any(t[3] == kc+1-S and t[3] >= -10 and ((t[0] == "W" and t[1] == kc+1) or (t[0] == "X" and t[1] < NA and t[2] == kc+1)) for t in ldq): assert ldnext()
                        g.wait_vm([("D", kc+1)])
                        g.e("s_barrier")
                        if kc in (1, 3, 5): st()
                        freed[0] = kc
                        fill[0] = 0
                        stage_addr(kc+1)
                        nxt = read_list(kc+1, 0)
                p = (kc*4 + s) % 2
                ks = 4*kc + s
                for b in range(NA):
                    g.wait_lg([("R", kc, s, bb) for bb in range(b+1)])
                    ac = vr(ACC+16*b, 16)
                    g.e(f"v_mfma_f32_32x32x16_bf16 {ac}, {vr(XF+p*20+b*4)}, {ar(4*ks)}, {'0' if ks == 0 else ac}")
                    for _ in range(2):
                        if nxt:
                            r, t = nxt.pop(0); g.lds(r, t)
                    slotc[0] += 1
                    if (slotc[0] * o.get("PN", 12)) % 12 < o.get("PN", 12): ldnext()
            if kc == 4:
                g.vmem(f"buffer_load_dword v{vNC}, v{vZ}, {sr(SDB)}, 0 offen sc1", ("NC",))
        while ldq: assert ldnext()
        st(); dt(g, 10)
        def store_block(b):
            a = ACC + 16*b
            L = []
            L.append(f"s_add_u32 s{sT0}, s{sXROW}, {32*b}")
            L.append(f"s_lshr_b32 s{sT1}, s{sT0}, 9")
            L.append(f"s_and_b32 s{sT0}, s{sT0}, 511")
            L.append(f"s_lshr_b32 s{sT0}, s{sT0}, 4")
            L.append(f"s_mul_i32 s{sT0}, s{sT0}, 10")
            L.append(f"s_add_u32 s{sT0}, s{sT0}, s{sT1}")
            L.append(f"s_lshl_b32 s{sT0}, s{sT0}, 10")
            L.append(f"s_add_u32 s{sT1}, s{sT0}, 10240")
            for hh in range(2):
                d = TMP + b*8 + hh*4
                for i in range(4):
                    L.append(f"v_cvt_pk_bf16_f32 v{d+i}, v{a+8*hh+2*i}, v{a+8*hh+2*i+1}")
                L.append(("ST", f"buffer_store_dwordx4 {vr(d)}, v{vST}, {sr(SWS)}, s{sT0 if hh==0 else sT1} offen{stf}"))
            return L
        def emit(x):
            if isinstance(x, tuple): g.vmem(x[1])
            else: g.e(x)
        xr = [0]; xreg = {}
        def xread(b, ks):
            r = XRB + (xr[0] % 8)*4; xr[0] += 1
            g.lds(f"ds_read_b128 {vr(r)}, v{vXAs[ks%4]} offset:{(ks//4)*4096}", ("R2", b, ks))
            return r
        g.wait_vm([("XB", 3)] if o.get("late", 1) else [("XB", 3), ("XB", 4)])
        g.e("s_barrier")
        def blockB(b, pend):
            for s in range(4): g.e(f"v_add_u32 v{vXAs[s]}, {[XB3, XB4][b-3]}, v{vXA[s]}")
            AH = 6
            for ks in range(AH): xreg[(b, ks)] = xread(b, ks)
            for ks in range(32):
                g.wait_lg([("R2", b, ks)])
                ac = vr(ACC + 16*b, 16)
                g.e(f"v_mfma_f32_32x32x16_bf16 {ac}, {vr(xreg[(b,ks)])}, {ar(4*ks)}, {'0' if ks == 0 else ac}")
                if ks + AH < 32: xreg[(b, ks+AH)] = xread(b, ks+AH)
                if ks >= 1:
                    for _ in range(2):
                        if pend: emit(pend.pop(0))
            assert not pend
        blockB(3, store_block(0) + store_block(1) + store_block(2))
        st()
        g.e(f"s_cmp_lg_u32 s{sODD}, 0")
        g.e(f"s_cbranch_scc1 {name}_P4")
        saved = (list(g.vm), list(g.lg))
        if o.get("late", 1):
            g.wait_vm([("XB", 4)])
            g.e("s_barrier")
        blockB(4, store_block(3))
        st(); dt(g, 4)
        g.e("s_nop 3")
        for x in store_block(4): emit(x)
        g.e(f"s_branch {name}_Pdone")
        g.label(f"{name}_P4")
        g.vm, g.lg = saved
        g.e(f"s_lshr_b32 s{sT0}, s{sU}, 1")
        g.e(f"s_and_b32 s{sT2}, s{sT0}, 1")
        g.e(f"s_mul_i32 s{sT0}, s{sT0}, 20480")
        g.e(f"s_add_u32 s{sT0}, s{sT0}, 9216")
        g.e(f"s_add_u32 s{sT1}, s{sT0}, 10240")
        g.e(f"s_cmp_eq_u32 s{sT2}, 0")
        g.e(f"s_cbranch_scc0 {name}_rp1")
        g.e(f"buffer_store_dwordx4 {ar(0)}, v{vST}, {sr(SWS)}, s{sT0} offen{stf}")
        g.e(f"buffer_store_dwordx4 {ar(4)}, v{vST}, {sr(SWS)}, s{sT1} offen{stf}")
        g.e(f"s_branch {name}_rp2")
        g.label(f"{name}_rp1")
        g.e(f"buffer_store_dwordx4 {ar(8)}, v{vST}, {sr(SWS)}, s{sT0} offen{stf}")
        g.e(f"buffer_store_dwordx4 {ar(12)}, v{vST}, {sr(SWS)}, s{sT1} offen{stf}")
        g.label(f"{name}_rp2")
        g.e("s_nop 3")
        for x in store_block(3): emit(x)
        g.label(f"{name}_Pdone")
        g.vm = []
        nonce_wait("P")
        publish(False)

    def bodyG():
        ldf = " nt" if (o.get("ntg") or o.get("nt")) else ""
        NX, S = 2, 6
        XB = NX * 4096
        STG = XB + 16384
        NI = NX + 4
        PRE1 = o.get("PREG", 3)
        XT = 6*STG
        g.vm = []; g.lg = []
        st.n = st_n0
        g.e(f"s_lshl_b32 s{sXROW}, s{sU}, 16")
        g.e(f"v_lshrrev_b32 v{vT}, 4, v{vLane}")
        g.e(f"s_lshl_b32 s{sT2}, s{sW}, 2")
        g.e(f"v_add_u32 v{vT}, s{sT2}, v{vT}")
        g.e(f"v_and_b32 v{vT2}, 15, v{vLane}")
        g.e(f"v_xor_b32 v{vT2}, v{vT2}, v{vT}")
        g.e(f"v_lshlrev_b32 v{vT2}, 4, v{vT2}")
        g.e(f"v_lshl_add_u32 v{vT}, v{vT}, 10, v{vT2}")
        g.e(f"s_lshl_b32 s{sT2}, s{sCT}, 8")
        g.e(f"v_add_u32 v{vWR}, s{sT2}, v{vT}")
        g.e("s_waitcnt lgkmcnt(0)")
        if o.get("wsoff", 0):
            g.e(f"s_add_u32 s50, s50, {o['wsoff'] << 20:#x}")
            g.e("s_addc_u32 s51, s51, 0")
        st(); dt(g, 2)
        srd(g, SX, 6, 7, 2 << 20); srd(g, SWT, 8, 9, 512 << 10); srd(g, SXI, 4, 5, 2 << 20)
        def ld1(kc, m):
            sb = (kc % S) * STG
            isx = m < NX
            mm = m if isx else m - NX
            g.e(f"s_add_u32 m0, s{sM0X}, {sb + m*4096}")
            if isx: g.e(f"s_add_u32 s{sSOX}, s{sXROW}, {mm*32768 + kc*128}")
            else:   g.e(f"s_mov_b32 s{sSOW}, {(kc*64 + 16*mm)*1024}")
            va, sd, so = (vXD, SX, sSOX) if isx else (vWD, SWT, sSOW)
            g.vmem(f"buffer_load_dwordx4 v{va}, {sr(sd)}, s{so} offen{ldf if isx else ldw} lds", ("D", kc))
        for m in range(NI): ld1(0, m)
        srd(g, SDB, 48, 49, 256)
        g.e(f"s_or_b32 s{sT0}, s2, s{sW}")
        g.e(f"s_cmp_lg_u32 s{sT0}, 0")
        g.e(f"s_cbranch_scc1 {name}_nn")
        g.e("s_memrealtime s[96:97]")
        g.e("s_waitcnt lgkmcnt(0)")
        g.e(f"s_or_b32 s96, s96, 1")
        g.e(f"v_mov_b32 v{vT}, s96")
        g.e(f"buffer_store_dword v{vT}, v{vZ}, {sr(SDB)}, 0 offen sc1")
        g.label(f"{name}_nn")
        for kc in range(1, PRE1):
            for m in range(NI): ld1(kc, m)
        ldq = [(kc, m) for kc in range(PRE1, 8) for m in range(NI)]
        k6 = [i for i, (kc, m) in enumerate(ldq) if kc >= 5][0]
        ldq[k6:k6] = [("X", m) for m in range(4)]
        freed = [0]
        def ldnext():
            if not ldq: return False
            kc, m = ldq[0]
            if kc == "X":
                ldq.pop(0)
                g.e(f"s_add_u32 m0, s{sM0X}, {XT + m*4096}")
                g.e(f"s_add_u32 s{sSOX}, s{sXROW}, {m*16384}")
                g.vmem(f"buffer_load_dwordx4 v{vWR}, {sr(SXI)}, s{sSOX} offen{ldf} lds", ("D", 5))
                return True
            if kc - S >= freed[0]: return False
            ldq.pop(0); ld1(kc, m); return True
        frag_consts(True)
        srd(g, SWS, 50, 51, 16 << 20)
        mk = len(g.lines)
        vXR, vGA, vGO = TMP+60, TMP+61, TMP+62
        g.e(f"s_lshr_b32 s{sT0}, s{sW}, 1")
        g.e(f"s_and_b32 s{sT1}, s{sW}, 1")
        g.e(f"s_lshl_b32 s{sT2}, s{sT0}, 13")
        g.e(f"s_add_u32 s{sT2}, s{sT2}, {XT}")
        g.e(f"v_and_b32 v{vT}, 15, v{vPX}")
        g.e(f"s_lshl_b32 s{sSOX}, s{sT1}, 3")
        g.e(f"v_xor_b32 v{vT}, s{sSOX}, v{vT}")
        g.e(f"v_lshlrev_b32 v{vT}, 4, v{vT}")
        g.e(f"v_lshl_add_u32 v{vT}, v{vPX}, 8, v{vT}")
        g.e(f"v_lshl_add_u32 v{vT}, v{vHF}, 3, v{vT}")
        g.e(f"v_add_u32 v{vXR}, s{sT2}, v{vT}")
        g.e(f"s_lshl_b32 s{sT2}, s{sT0}, 15")
        g.e(f"s_add_u32 s{sT2}, s{sT2}, s{sXROW}")
        g.e(f"s_lshl_b32 s{sSOX}, s{sCT}, 13")
        g.e(f"s_add_u32 s{sT2}, s{sT2}, s{sSOX}")
        g.e(f"s_lshl_b32 s{sSOX}, s{sT1}, 12")
        g.e(f"s_add_u32 s{sT2}, s{sT2}, s{sSOX}")
        g.e(f"v_add_u32 v{vST}, s{sT2}, v{vL16}")
        g.e(f"s_lshl_b32 s{sSOX}, s{sU}, 1")
        g.e(f"s_add_u32 s{sSOX}, s{sSOX}, s{sT0}")
        g.e(f"s_lshl_b32 s{sSOX}, s{sSOX}, 12")
        g.e(f"s_add_u32 s{sSOX}, s{sSOX}, {WS_ST}")
        g.e(f"v_lshlrev_b32 v{vGO}, 4, v{vPX}")
        g.e(f"v_add_u32 v{vGO}, s{sSOX}, v{vGO}")
        g.e(f"v_lshl_add_u32 v{vGA}, v{vHF}, 11, v{vGO}")
        g.e(f"s_lshl_b32 s93, s{sCT}, 1")
        g.e(f"s_add_u32 s93, s93, s{sT1}")
        g.e(f"s_lshl_b32 s93, s93, 9")
        deferG = g.lines[mk:]; del g.lines[mk:]
        def stage_addr(kc):
            sb = (kc % S) * STG
            for s in range(4): g.e(f"v_add_u32 v{vXAs[s]}, {sb}, v{vXA[s]}")
            g.e(f"v_add_u32 v{vWAs}, {sb + XB}, v{vWA}")
            g.e(f"v_xor_b32 v{vWAs2}, 64, v{vWAs}")
        def read_list(kc, s):
            p = (kc*4 + s) % 2
            L = [(f"ds_read_b128 {vr(XF+p*20)}, v{vXAs[s]}", 0)]
            for cb in range(2):
                for h in range(2):
                    L.append((f"ds_read_b64_tr_b16 {vr(WF+p*8+cb*4+h*2,2)}, v{vWAs if cb==0 else vWAs2} offset:{s*4096+h*1024}", cb))
            return [(r, ("R", kc, s, b)) for r, b in L]
        stage_addr(0)
        st()
        g.wait_vm([("D", 0)])
        g.e("s_barrier")
        st()
        dt(g, 1)
        XR = TMP
        XU = ACC + 32
        for r, t in read_list(0, 0): g.lds(r, t)
        LPM = o.get("LPG", 1)
        for kc in range(8):
            for s in range(4):
                if s < 3:
                    nxt = read_list(kc, s+1)
                else:
                    nxt = []
                    if kc < 7:
                        g.wait_lg([("R", kc, 3, b) for b in range(2)])
                        while any(c_ == kc+1 for c_, _ in ldq): assert ldnext()
                        g.wait_vm([("D", kc+1)])
                        g.e("s_barrier")
                        if kc in (0, 2, 4, 6): st()
                        if kc == o.get("dtk", 2): dt(g, 10)
                        freed[0] = kc + 1
                        stage_addr(kc+1)
                        nxt = read_list(kc+1, 0)
                p = (kc*4 + s) % 2
                for b in range(2):
                    g.wait_lg([("R", kc, s, bb) for bb in range(b+1)])
                    ac = vr(ACC+16*b, 16)
                    g.e(f"v_mfma_f32_32x32x16_bf16 {ac}, {vr(WF+p*8+b*4)}, {vr(XF+p*20)}, {'0' if kc == 0 and s == 0 else ac}")
                    for _ in range(3):
                        if nxt:
                            r, t = nxt.pop(0); g.lds(r, t)
                    for _ in range(LPM): ldnext()
            if kc == 4:
                g.vmem(f"buffer_load_dword v{vNC}, v{vZ}, {sr(SDB)}, 0 offen sc1", ("NC",))
            if kc == 0: g.lines += deferG
            if kc == 5:
                for j in range(8):
                    g.e(f"v_xor_b32 v{vT2}, {j*16}, v{vXR}")
                    g.lds(f"ds_read_b64 {vr(XR+2*j,2)}, v{vT2}", ("XR", j))
            if kc == 6:
                g.wait_lg([("XR", 7)])
                for j in range(16):
                    g.e(f"v_lshlrev_b32 v{XU+2*j}, 16, v{XR+j}")
                    g.e(f"v_and_b32 v{XU+2*j+1}, 0xffff0000, v{XR+j}")
        assert not ldq
        st(); dt(g, 3)
        nonce_wait("G")
        g.e("s_nop 7")
        S1, S2 = TMP+16, TMP+18
        P1, P2 = TMP+20, TMP+22
        for i in range(16): g.e(f"v_pk_add_f32 {vr(ACC+2*i,2)}, {vr(ACC+2*i,2)}, {vr(XU+2*i,2)}")
        g.e(f"v_pk_add_f32 {vr(P1,2)}, {vr(ACC,2)}, {vr(ACC+2,2)}")
        g.e(f"v_pk_mul_f32 {vr(P2,2)}, {vr(ACC,2)}, {vr(ACC,2)}")
        g.e(f"v_pk_fma_f32 {vr(P2,2)}, {vr(ACC+2,2)}, {vr(ACC+2,2)}, {vr(P2,2)}")
        for i in range(2, 16):
            g.e(f"v_pk_add_f32 {vr(P1,2)}, {vr(P1,2)}, {vr(ACC+2*i,2)}")
            g.e(f"v_pk_fma_f32 {vr(P2,2)}, {vr(ACC+2*i,2)}, {vr(ACC+2*i,2)}, {vr(P2,2)}")
        g.e(f"v_add_f32 v{S1}, v{P1}, v{P1+1}")
        g.e(f"v_add_f32 v{S2}, v{P2}, v{P2+1}")
        g.e(f"v_mov_b32 v{vT}, v{S1}")
        g.e(f"v_mov_b32 v{vT2}, v{S2}")
        g.e(f"v_mov_b32 v{S1+1}, v{vNC}")
        g.e(f"v_mov_b32 v{S2+1}, v{vNC}")
        g.e(f"v_permlane32_swap_b32 v{S1}, v{vT}")
        g.e(f"v_permlane32_swap_b32 v{S2}, v{vT2}")
        g.e(f"v_add_f32 v{S1}, v{S1}, v{vT}")
        g.e(f"v_add_f32 v{S2}, v{S2}, v{vT2}")
        g.e("s_mov_b64 exec, 0xffffffff")
        g.e(f"buffer_store_dwordx4 {vr(S1)}, v{vGO}, {sr(SWS)}, s93 offen sc1")
        g.e("s_mov_b64 exec, -1")
        st()
        for j in range(16):
            g.e(f"v_cvt_pk_bf16_f32 v{XR+j}, v{ACC+2*j}, v{ACC+2*j+1}")
        g.e("s_nop 1")
        for hh in range(4):
            g.e(f"v_permlane32_swap_b32 v{XR+4*hh}, v{XR+4*hh+2}")
            g.e(f"v_permlane32_swap_b32 v{XR+4*hh+1}, v{XR+4*hh+3}")
        EA, EB = TMP + 24, TMP + 40
        def poll_issue(E):
            for e_ in range(4):
                g.e(f"buffer_load_dwordx4 {vr(E+4*e_)}, v{vGA}, {sr(SWS)}, 0 offen offset:{e_*512} sc1")
        def poll_check(E):
            g.e(f"v_xor_b32 v{vT}, v{E+1}, v{vNC}")
            for e_ in range(4):
                for o_ in (1, 3):
                    if e_ == 0 and o_ == 1: continue
                    g.e(f"v_xor_b32 v{vT2}, v{E+4*e_+o_}, v{vNC}")
                    g.e(f"v_or_b32 v{vT}, v{vT}, v{vT2}")
            g.e(f"v_cmp_ne_u32 vcc, 0, v{vT}")
            g.e("s_nop 4")
        g.e(f"s_mov_b32 s{sT2}, 0")
        poll_issue(EA)
        g.label(f"{name}_poll")
        g.e(f"s_add_u32 s{sT2}, s{sT2}, 1")
        g.e(f"s_cmp_gt_u32 s{sT2}, 100000")
        g.e(f"s_cbranch_scc1 {name}_pollx")
        if o.get("pp", 1):
            g.e("s_sleep 4")
            poll_issue(EB)
            g.e("s_waitcnt vmcnt(4)")
            poll_check(EA)
            g.e(f"s_cbranch_vccz {name}_pollx")
            poll_issue(EA)
            g.e("s_waitcnt vmcnt(4)")
            poll_check(EB)
            g.e(f"s_cbranch_vccnz {name}_poll")
            g.e("s_waitcnt vmcnt(0)")
        else:
            g.e("s_waitcnt vmcnt(0)")
            poll_check(EA)
            g.e(f"s_cbranch_vccz {name}_pollx")
            poll_issue(EA)
            g.e(f"s_branch {name}_poll")
        g.label(f"{name}_pollx")
        st()
        E = EA
        g.e(f"s_mov_b32 s{sT1}, {WS_HI}")
        for e_ in range(1, 4):
            g.e(f"v_add_f32 v{E}, v{E}, v{E+4*e_}")
            g.e(f"v_add_f32 v{E+2}, v{E+2}, v{E+4*e_+2}")
        g.e(f"v_mov_b32 v{vT}, v{E}")
        g.e(f"v_mov_b32 v{vT2}, v{E+2}")
        for hh in range(4):
            g.e(f"buffer_store_dwordx4 {vr(XR+4*hh)}, v{vST}, {sr(SWS)}, s{sT1} offen offset:{hh*1024}{stf}")
        g.e(f"v_permlane32_swap_b32 v{E}, v{vT}")
        g.e(f"v_permlane32_swap_b32 v{E+2}, v{vT2}")
        g.e(f"v_add_f32 v{E}, v{E}, v{vT}")
        g.e(f"v_add_f32 v{E+2}, v{E+2}, v{vT2}")
        g.e(f"v_mul_f32 v{E}, {f2u(1/512):#x}, v{E}")
        g.e(f"v_mul_f32 v{E+2}, {f2u(1/512):#x}, v{E+2}")
        g.e(f"v_fma_f32 v{E+2}, -v{E}, v{E}, v{E+2}")
        g.e(f"v_max_f32 v{E+2}, 0, v{E+2}")
        g.e(f"v_add_f32 v{E+2}, {f2u(1e-5):#x}, v{E+2}")
        A_, B_, A2, B2 = E+4, E+6, E+8, E+10
        g.e(f"v_rsq_f32 v{A_}, v{E+2}")
        g.e("s_nop 0")
        g.e(f"v_mul_f32 v{B_}, v{E}, v{A_}")
        g.e(f"v_sub_f32 v{B_}, 0, v{B_}")
        g.e(f"v_mul_f32 v{A2}, {f2u(-LOG2E):#x}, v{A_}")
        g.e(f"v_mul_f32 v{B2}, {f2u(-LOG2E):#x}, v{B_}")
        Y = XF
        D = WF
        for hh in range(4):
            a = ACC + 8*hh; y = Y + (hh % 2)*8
            for i in range(4): g.e(f"v_pk_fma_f32 {vr(y+2*i,2)}, {vr(a+2*i,2)}, {vr(A2,2)}, {vr(B2,2)} op_sel_hi:[1,0,0]")
            for i in range(8): g.e(f"v_exp_f32 v{y+i}, v{y+i}")
            for i in range(4): g.e(f"v_pk_fma_f32 {vr(a+2*i,2)}, {vr(a+2*i,2)}, {vr(A_,2)}, {vr(B_,2)} op_sel_hi:[1,0,0]")
            for i in range(4): g.e(f"v_pk_add_f32 {vr(y+2*i,2)}, {vr(y+2*i,2)}, 1.0 op_sel_hi:[1,0]")
            for i in range(8): g.e(f"v_rcp_f32 v{y+i}, v{y+i}")
            g.e("s_nop 0")
            for i in range(4): g.e(f"v_pk_mul_f32 {vr(a+2*i,2)}, {vr(a+2*i,2)}, {vr(y+2*i,2)}")
            d = D + hh*4
            for i in range(4): g.e(f"v_cvt_pk_bf16_f32 v{d+i}, v{a+2*i}, v{a+2*i+1}")
            g.e(f"buffer_store_dwordx4 {vr(d)}, v{vST}, {sr(SWS)}, 0 offen offset:{hh*1024}{stf}")
        publish(True)
    bodyG(); bodyP()

def phase2(g, name, st, o):
    NST, PRE, EVERY = o.get("NST", 3), o.get("PRE", 20), o.get("EVERY", 2)
    lf = o.get("lf", " sc1").replace(" none", "")
    SA, SWP, SX, SO, SDB = 12, 16, 20, 24, 28
    C4K, C8K, C2M, C2M4K = 33, 34, 42, 43
    sMT, sNT, sB, sT0, sT1, sR0, sBASE = 35, 36, 37, 38, 39, 97, 96
    vLane, vT, vW, vMR, vML, vO, vT2 = 1, 2, 3, 4, 5, 6, 7
    vH = [8+j for j in range(6)]
    vA, vA1 = 14, 15
    vXF = 16
    HB = 24
    HIB = HB + NST*24
    T0 = HIB + NST*16
    T2 = T0 + 24
    VEND = T2 + 24
    vF, vG, vPF = VEND, VEND+1, VEND+2
    assert VEND + 8 <= 250
    ACC, WB = 0, 64
    AEND = WB + NST*40
    g.vm = []; g.lg = []
    g.label(f"{name}_ph2")
    if st.on: st.n = 15
    st()
    g.e(f"s_and_b32 s{sT0}, s2, 7")
    g.e(f"s_lshr_b32 s{sT1}, s2, 3")
    g.e(f"s_and_b32 s{sB}, s{sT0}, 1")
    g.e(f"s_lshr_b32 s{sT0}, s{sT0}, 1")
    g.e(f"s_and_b32 s{sMT}, s{sT1}, 7")
    g.e(f"s_lshr_b32 s{sT1}, s{sT1}, 3")
    g.e(f"s_lshl_b32 s{sNT}, s{sT0}, 2")
    g.e(f"s_add_u32 s{sNT}, s{sNT}, s{sT1}")
    g.e(f"s_lshl_b32 s{sT0}, s{sB}, 5")
    g.e(f"s_lshl_b32 s{sT1}, s{sMT}, 2")
    g.e(f"s_add_u32 s{sR0}, s{sT0}, s{sT1}")
    srd(g, SDB, 50, 51, 16 << 20)
    NL = o.get("NL", 8); LG = NL.bit_length() - 1; MS = NL*128
    g.e(f"s_lshr_b32 s{sT0}, s{sR0}, 2")
    g.e(f"s_lshl_b32 s{sT0}, s{sT0}, 4")
    g.e(f"s_add_u32 s{sT0}, s{sT0}, s{sNT}")
    g.e(f"s_mul_i32 s{sT0}, s{sT0}, {MS}")
    g.e(f"s_add_u32 s{sT0}, s{sT0}, {WS_MB}")
    g.e(f"v_and_b32 v{vF}, {NL-1}, v{vLane}")
    g.e(f"v_lshlrev_b32 v{vF}, 7, v{vF}")
    g.e(f"v_lshrrev_b32 v{vG}, {LG}, v{vLane}")
    g.e(f"v_lshl_add_u32 v{vF}, v{vG}, 2, v{vF}")
    g.e(f"v_add_u32 v{vF}, s{sT0}, v{vF}")
    g.e(f"s_movk_i32 s{C4K}, 0x1000")
    g.e(f"s_movk_i32 s{C8K}, 0x2000")
    g.e(f"s_mov_b32 s{C2M}, 0x200000")
    g.e(f"s_mov_b32 s{C2M4K}, 0x201000")
    g.e(f"s_lshl_b32 s{sBASE}, s{sR0}, 15")
    g.e(f"s_lshl_b32 s{sT0}, s{sW}, 13")
    g.e(f"s_add_u32 s{sBASE}, s{sBASE}, s{sT0}")
    g.e(f"v_lshlrev_b32 v{vT}, 4, v{vLane}")
    for j in range(1, 5):
        g.e(f"s_add_u32 s{sT0}, s{sBASE}, {(j-1)*32768}")
        g.e(f"v_add_u32 v{vH[j]}, s{sT0}, v{vT}")
    g.e(f"s_sub_u32 s{sT0}, s{sBASE}, 32768")
    g.e(f"s_cmp_eq_u32 s{sMT}, 0")
    g.e(f"s_cselect_b32 s{sT0}, 0x40000000, s{sT0}")
    g.e(f"v_add_u32 v{vH[0]}, s{sT0}, v{vT}")
    g.e(f"s_add_u32 s{sT0}, s{sBASE}, {4*32768}")
    g.e(f"s_cmp_eq_u32 s{sMT}, 7")
    g.e(f"s_cselect_b32 s{sT0}, 0x40000000, s{sT0}")
    g.e(f"v_add_u32 v{vH[5]}, s{sT0}, v{vT}")
    g.e(f"s_lshl_b32 s{sT0}, s{sNT}, 5")
    g.e(f"s_lshl_b32 s{sT1}, s{sW}, 3")
    g.e(f"s_add_u32 s{sT0}, s{sT0}, s{sT1}")
    g.e(f"s_mul_i32 s92, s{sT0}, 10240")
    g.e(f"v_add_u32 v{vW}, s92, v{vT}")
    srd(g, SA, 50, 51, 4 << 20)
    srd(g, SWP, 50, 51, WP_BYTES, add=WS_WP)
    srd(g, SX, 40, 41, 2 << 20)
    srd(g, SO, 46, 47, 2 << 20)
    g.e(f"s_add_u32 s{sT0}, s{sR0}, s{sW}")
    g.e(f"s_lshl_b32 s{sT0}, s{sT0}, 15")
    g.e(f"s_lshl_b32 s{sT1}, s{sNT}, 6")
    g.e(f"s_add_u32 s{sT0}, s{sT0}, s{sT1}")
    g.e(f"v_lshrrev_b32 v{vO}, 2, v{vLane}")
    g.e(f"v_lshlrev_b32 v{vO}, 10, v{vO}")
    g.e(f"v_and_b32 v{vT2}, 3, v{vLane}")
    g.e(f"v_lshlrev_b32 v{vT2}, 4, v{vT2}")
    g.e(f"v_add3_u32 v{vO}, v{vO}, v{vT2}, s{sT0}")
    g.e(f"s_movk_i32 s{sT1}, 0x4000")
    xfl = " nt" if (o.get("nt", 0) or o.get("ntf")) else ""
    XFK = o.get("xfk", -1)
    if XFK == -1:
        g.e(f"buffer_load_dwordx4 {vr(vXF)}, v{vO}, {sr(SX)}, 0 offen{xfl}")
        g.e(f"buffer_load_dwordx4 {vr(vXF+4)}, v{vO}, {sr(SX)}, s{sT1} offen{xfl}")
    elif XFK == -2:
        g.e(f"s_cmp_eq_u32 s{sW}, 0")
        g.e(f"s_cbranch_scc1 {name}_xf0")
        g.e(f"buffer_load_dwordx4 {vr(vXF)}, v{vO}, {sr(SX)}, 0 offen{xfl}")
        g.e(f"buffer_load_dwordx4 {vr(vXF+4)}, v{vO}, {sr(SX)}, s{sT1} offen{xfl}")
        g.label(f"{name}_xf0")
    g.e(f"v_and_b32 v{vT}, 31, v{vLane}")
    g.e(f"v_cmp_ne_u32 vcc, 0, v{vT}")
    g.e("s_nop 1")
    g.e(f"v_cndmask_b32 v{vMR}, 0, -1, vcc")
    g.e(f"v_cmp_ne_u32 vcc, 31, v{vT}")
    g.e("s_nop 1")
    g.e(f"v_cndmask_b32 v{vML}, 0, -1, vcc")
    g.e(f"v_lshlrev_b32 v{vA}, 4, v{vLane}")
    g.e(f"s_mul_i32 s{sT0}, s{sW}, 4352")
    g.e(f"v_add_u32 v{vA}, s{sT0}, v{vA}")
    g.e(f"v_and_b32 v{vA1}, 3, v{vLane}")
    g.e(f"v_mul_u32_u24 v{vA1}, 1088, v{vA1}")
    g.e(f"v_lshrrev_b32 v{vT}, 2, v{vLane}")
    g.e(f"v_lshl_add_u32 v{vA1}, v{vT}, 4, v{vA1}")
    g.e(f"s_mul_i32 s{sT0}, s{sW}, 17408")
    g.e(f"v_add_u32 v{vA1}, s{sT0}, v{vA1}")
    g.e("s_mov_b32 s90, 0xffff0000")
    g.e("s_mov_b32 s91, 0xffff")
    g.e(f"s_movk_i32 s{sT0}, 0x1111")
    g.e(f"s_cmp_eq_u32 s{sMT}, 0")
    g.e(f"s_cselect_b32 s{sT0}, 0x1110, s{sT0}")
    g.e(f"s_cmp_eq_u32 s{sMT}, 7")
    g.e(f"s_cselect_b32 s{sT0}, 0x0111, s{sT0}")
    g.e(f"s_lshl_b32 s94, s{sT0}, s{sW}")
    g.e("s_mov_b32 s95, 0")
    def poll(tag, mask, first_issued):
        g.e(f"s_mov_b32 s{sT0}, 0")
        if first_issued: g.e(f"s_branch {name}_fchk{tag}")
        g.label(f"{name}_fpoll{tag}")
        if o.get("fs", 0): g.e(f"s_sleep {o['fs']}")
        g.e(f"buffer_load_dword v{vG}, v{vF}, {sr(SDB)}, 0 offen sc1")
        g.label(f"{name}_fchk{tag}")
        g.e(f"s_add_u32 s{sT0}, s{sT0}, 1")
        g.e(f"s_cmp_gt_u32 s{sT0}, 200000")
        g.e(f"s_cbranch_scc1 {name}_fw{tag}")
        g.e("s_waitcnt vmcnt(0)")
        g.e(f"v_cmp_ne_u32 vcc, s3, v{vG}")
        g.e("s_nop 4")
        g.e(f"s_and_b64 vcc, vcc, {mask}")
        g.e(f"s_cbranch_scc1 {name}_fpoll{tag}")
        g.label(f"{name}_fw{tag}")

    SPF = o.get("spf", 0)
    if SPF:
        g.e(f"s_mul_i32 s{sT0}, s{sMT}, 1280")
        g.e(f"s_add_u32 s{sT0}, s{sT0}, s92")
        g.e(f"s_add_u32 s{sT0}, s{sT0}, {WS_WP}")
        g.e(f"s_add_u32 s4, s50, s{sT0}")
        g.e(f"s_addc_u32 s5, s51, 0")
        g.e(f"s_and_b32 s{sT0}, s{sNT}, 3")
        g.e(f"s_lshl_b32 s{sT0}, s{sT0}, 8")
        g.e(f"s_add_u32 s{sT0}, s{sT0}, s{sBASE}")
        g.e(f"s_add_u32 s6, s50, s{sT0}")
        g.e(f"s_addc_u32 s7, s51, 0")
        g.e(f"s_add_u32 s8, s6, 0x200000")
        g.e(f"s_addc_u32 s9, s7, 0")
    def spf_list(k):
        if not SPF or k > 7: return []
        L = [f"s_load_dword s10, s[4:5], {k*10240 + i*128:#x}" for i in range(10)]
        if o.get("spfh", 1):
            for r in range(4):
                for i in range(2):
                    L.append(f"s_load_dword s10, s[6:7], {r*32768 + k*1024 + i*128:#x}")
                    L.append(f"s_load_dword s10, s[8:9], {r*32768 + k*1024 + i*128:#x}")
        return L
    def Hreg(s_, j): return HB + s_*24 + j*4
    def HIreg(s_, r): return HIB + s_*16 + r*4
    def Wreg(s_, t): return WB + s_*40 + t*4
    def ldW(k, t):
        s_ = k % NST
        off = (k*10 + t)*1024
        return ("W", k, t, s_, off)
    def emitW(k, t):
        s_ = k % NST
        off = (k*10 + t)*1024
        g.e(f"s_mov_b32 s{sT0}, {off & ~4095}")
        g.vmem(f"buffer_load_dwordx4 {ar(Wreg(s_,t))}, v{vW}, {sr(SWP)}, s{sT0} offen offset:{off & 4095}{lf}", ("W", k, t))
    def emitH(k, j):
        s_ = k % NST
        so_h = "0" if k < 4 else f"s{C4K}"
        g.vmem(f"buffer_load_dwordx4 {vr(Hreg(s_,j))}, v{vH[j]}, {sr(SA)}, {so_h} offen offset:{(k%4)*1024}{lf}", ("H", k, j))
    def emitHI(k, r):
        s_ = k % NST
        so = f"s{C2M}" if k < 4 else f"s{C2M4K}"
        g.vmem(f"buffer_load_dwordx4 {vr(HIreg(s_,r))}, v{vH[r+1]}, {sr(SA)}, {so} offen offset:{(k%4)*1024}{lf}", ("HI", k, r))
    def order(k):
        return [("W",1),("H",0),("H",1),("H",2),("H",3),("W",4),("H",4),("W",7),("H",5),("W",9),
                ("HI",0),("HI",1),("HI",2),("HI",3),("W",0),("W",3),("W",6),("W",2),("W",5),("W",8)]
    queue = [(k, t, i) for k in range(8) for (t, i) in order(k)]
    def emit_item(it):
        k, t, i = it
        {"W": emitW, "H": emitH, "HI": emitHI}[t](k, i)
    WPRE = o.get("WPRE", 2)
    split = 0
    if split:
        poll("P", "s[90:91]", False)
        st(); dt(g, 9)
        pre = [it for it in queue if it[1] == "W" and it[0] < WPRE]
        for it in pre:
            queue.remove(it); emit_item(it)
        if o.get("pfw", 0):
            g.e(f"s_mul_i32 s{sT0}, s{sMT}, 10240")
            g.e(f"s_add_u32 s{sT0}, s{sT0}, s92")
            g.e(f"v_lshlrev_b32 v{vPF}, 7, v{vLane}")
            g.e(f"buffer_load_dword v{vPF+1}, v{vPF}, {sr(SWP)}, s{sT0} offen{lf}")
            g.e(f"s_add_u32 s{sT0}, s{sT0}, 2048")
            g.e(f"buffer_load_dword v{vPF+2}, v{vPF}, {sr(SWP)}, s{sT0} offen{lf}")
        g.e(f"v_cmp_ne_u32 vcc, s3, v{vG}")
        g.e("s_nop 4")
        g.e("s_and_b64 vcc, vcc, s[94:95]")
        g.e(f"s_cbranch_scc0 {name}_fwG")
        poll("G", "s[94:95]", False)
    else:
        if o.get("w0", 1):
            g.e(f"s_mov_b32 s{sT0}, 0xffff")
            g.e(f"s_cmp_eq_u32 s{sMT}, 0")
            g.e(f"s_cselect_b32 s{sT0}, 0xfff0, s{sT0}")
            g.e(f"s_cmp_eq_u32 s{sMT}, 7")
            g.e(f"s_cselect_b32 s94, 0x0fff, s{sT0}")
            g.e("s_or_b64 s[90:91], s[90:91], s[94:95]")
            g.e(f"s_cmp_lg_u32 s{sW}, 0")
            g.e(f"s_cbranch_scc1 {name}_fwP")
            poll("P", "s[90:91]", False)
            g.e("s_waitcnt vmcnt(0)")
            g.e("s_barrier")
        else:
            g.e("s_or_b64 s[90:91], s[90:91], s[94:95]")
            poll("P", "s[90:91]", False)
        st(); dt(g, 9)
    if st.on:
        g.e(f"s_memrealtime s[{52+2*st.n}:{53+2*st.n}]"); st.n += 1
    def issue_next(cur_k):
        if not queue: return False
        it = queue[0]
        if it[0] - NST >= cur_k or len(g.vm) >= 60: return False
        queue.pop(0); emit_item(it); return True
    def need(tok, k):
        while any((it[1], it[0], it[2]) == tok for it in queue): assert issue_next(k)
    for _ in range(PRE): issue_next(0)
    if o.get("pfh", 0):
        g.e(f"s_and_b32 s{sT0}, s{sNT}, 3")
        g.e(f"s_lshl_b32 s{sT0}, s{sT0}, 11")
        g.e(f"s_add_u32 s{sT0}, s{sT0}, s{sBASE}")
        g.e(f"v_lshrrev_b32 v{vPF}, 4, v{vLane}")
        g.e(f"v_lshlrev_b32 v{vPF}, 15, v{vPF}")
        g.e(f"v_and_b32 v{vPF+1}, 15, v{vLane}")
        g.e(f"v_lshl_add_u32 v{vPF}, v{vPF+1}, 7, v{vPF}")
        g.vmem(f"buffer_load_dword v{vPF+1}, v{vPF}, {sr(SA)}, s{sT0} offen{lf}")
        g.e(f"s_add_u32 s{sT0}, s{sT0}, 0x200000")
        g.vmem(f"buffer_load_dword v{vPF+2}, v{vPF}, {sr(SA)}, s{sT0} offen{lf}")
    wr_pending = []
    for k in range(8):
        s_ = k % NST
        last = k == 7
        g.c(f"---- k-step {k}")
        if k == 1: st()
        if k == XFK:
            g.vmem(f"buffer_load_dwordx4 {vr(vXF)}, v{vO}, {sr(SX)}, 0 offen{xfl}", ("XF",))
            g.vmem(f"buffer_load_dwordx4 {vr(vXF+4)}, v{vO}, {sr(SX)}, s{sT1} offen{xfl}", ("XF",))
        if XFK == -2 and k == 5:
            g.e(f"s_cmp_lg_u32 s{sW}, 0")
            g.e(f"s_cbranch_scc1 {name}_xf1")
            g.e(f"buffer_load_dwordx4 {vr(vXF)}, v{vO}, {sr(SX)}, 0 offen{xfl}")
            g.e(f"buffer_load_dwordx4 {vr(vXF+4)}, v{vO}, {sr(SX)}, s{sT1} offen{xfl}")
            g.label(f"{name}_xf1")
        if o.get("ste") and k >= 2: g.e(f"s_memtime s[{60+2*(k-2)}:{61+2*(k-2)}]")
        dpp = [(T0, vMR, "wave_shr:1", j, i) for j in range(6) for i in range(4)]
        dpp2 = [(T2, vML, "wave_shl:1", j, i) for j in range(6) for i in range(4)]
        mf = []
        for di in range(3):
            for r in range(4): mf.append((r, di*3+1, ("H", k, r+di), Hreg(s_, r+di), "A"))
        for r in range(4): mf.append((r, 9, ("HI", k, r), HIreg(s_, r), "B"))
        if not last:
            for di in range(3):
                for r in range(4): mf.append((r, di*3, None, T0 + (r+di)*4, "C"))
            for di in range(3):
                for r in range(4): mf.append((r, di*3+2, None, T2 + (r+di)*4, "D"))
        else:
            dpp = [x for pair in zip(dpp, dpp2) for x in pair]; dpp2 = []
            for r in range(4):
                for di in range(3): mf.append((r, di*3, None, T0 + (r+di)*4, "E"))
                for di in range(3): mf.append((r, di*3+2, None, T2 + (r+di)*4, "E" if di < 2 else "F"))
        since = 0
        spl = spf_list(k + SPF) if k > 0 else [x for kk in range(2, SPF+1) for x in spf_list(kk)]
        for n, (r, t, ht, hreg, grp) in enumerate(mf):
            toks = [("W", k, t)] + ([ht] if ht else [])
            for tok in toks: need(tok, k)
            g.wait_vm(toks)
            c = "0" if (k == 0 and n < 4) else ar(ACC+16*r, 16)
            if o.get("fake16"):
                for u_ in range(2):
                    q_ = ACC + 16*r + 4*((2*n + u_) % 4)
                    g.e(f"v_mfma_f32_16x16x32_bf16 {ar(q_)}, {ar(Wreg(s_,t))}, {vr(hreg)}, {'0' if k == 0 and n < 8 else ar(q_)}")
            else:
                g.e(f"v_mfma_f32_32x32x16_bf16 {ar(ACC+16*r,16)}, {ar(Wreg(s_,t))}, {vr(hreg)}, {c}")
            if grp in "AB" and n >= 2:
                for _ in range(4 if last else 2):
                    if dpp:
                        T, vm_, sh, j, i = dpp.pop(0)
                        need(("H", k, j), k); g.wait_vm([("H", k, j)])
                        g.e(f"v_and_b32_dpp v{T+j*4+i}, v{Hreg(s_,j)+i}, v{vm_} {sh} row_mask:0xf bank_mask:0xf bound_ctrl:0")
            if grp == "C":
                for _ in range(3):
                    if dpp2:
                        T, vm_, sh, j, i = dpp2.pop(0)
                        g.e(f"v_and_b32_dpp v{T+j*4+i}, v{Hreg(s_,j)+i}, v{vm_} {sh} row_mask:0xf bank_mask:0xf bound_ctrl:0")
            if o.get("RN"):
                if (n * o["RN"]) % o["RD"] < o["RN"]: issue_next(k)
            elif n % EVERY == EVERY - 1: issue_next(k)
            for _ in range(2 if k == 0 else 1):
                if spl: g.e(spl.pop(0))
            if wr_pending:
                since += 1
                if since == 2: g.e("s_nop 9")
                if since >= 2:
                    g.e(wr_pending.pop(0))
            if grp == "F":
                assert not wr_pending
                wr_pending = [f"ds_write_b128 v{vA}, {ar(ACC+16*r+4*q)} offset:{r*17408 + q*1088}" for q in range(4)]
                since = 0
        assert not dpp and not dpp2
    assert not queue
    g.c("---- epilogue")
    st(); dt(g, 11)
    g.e("s_nop 11")
    for w_ in wr_pending: g.e(w_)
    g.e("s_waitcnt lgkmcnt(0)")
    if o.get("ste"): g.e("s_memtime s[54:55]")
    g.e("s_barrier")
    if o.get("ste"): g.e("s_memtime s[56:57]")
    R = HB
    for i in range(2):
        for src in range(4):
            for hf in range(2):
                g.lds(f"ds_read_b128 {vr(R + ((i*4+src)*2+hf)*4)}, v{vA1} offset:{src*4352 + hf*512 + i*256}", ("R", i, src))
    XU = R + 64
    g.e("s_waitcnt vmcnt(0)"); g.vm = []
    for i in range(2):
        for e_ in range(4):
            x = vXF + 4*i + e_
            g.e(f"v_lshlrev_b32 v{XU+8*i+2*e_}, 16, v{x}")
            g.e(f"v_and_b32 v{XU+8*i+2*e_+1}, 0xffff0000, v{x}")
    for i in range(2):
        base = R + i*32
        for src in range(4):
            g.wait_lg([("R", i, src)])
            for e_ in range(4):
                g.e(f"v_pk_add_f32 {vr(XU+8*i+2*e_,2)}, {vr(XU+8*i+2*e_,2)}, {vr(base+8*src+2*e_,2)}")
        for e_ in range(4): g.e(f"v_cvt_pk_bf16_f32 v{vXF+4*i+e_}, v{XU+8*i+2*e_}, v{XU+8*i+2*e_+1}")
        g.vmem(f"buffer_store_dwordx4 {vr(vXF+4*i)}, v{vO}, {sr(SO)}, {'0' if i==0 else 's%d'%sT1} offen{o.get('ostf',' sc1')}")
    if o.get("ste"): g.e("s_memtime s[58:59]")
    if o.get("enc"):
        i = o["enc"]
        g.e("s_waitcnt vmcnt(0)")
        g.e("s_memrealtime s[76:77]")
        g.e(f"s_cmp_lg_u32 s2, {o.get('encwg', 8)}")
        g.e("s_cbranch_scc1 enc_done")
        g.e(f"s_cmp_lg_u32 s{sW}, 0")
        g.e("s_cbranch_scc1 enc_done")
        g.e("s_waitcnt lgkmcnt(0)")
        g.e(f"s_sub_u32 s84, s{52+2*i}, s52")
        g.e("s_mul_i32 s84, s84, 20")
        g.label("enc_loop")
        g.e("s_memrealtime s[86:87]")
        g.e("s_waitcnt lgkmcnt(0)")
        g.e("s_sub_u32 s85, s86, s76")
        g.e("s_cmp_lt_u32 s85, s84")
        g.e("s_cbranch_scc1 enc_loop")
        g.label("enc_done")
    else:
        dt_finish(g)
    st.finish(st.n + 1)
    return AEND

def gen_all(out, o):
    DT[0] = bool(o.get("dt", 0)); CPF[0] = o.get("cpf", 2); CPF[1] = o.get("cpfo", 0)
    name = "fused_kernel"
    g = Gen(); st = Stamper(g, o.get("st", 0))
    entry(g, name, st)
    phase1(g, name, st, o)
    aend = phase2(g, name, st, o)
    g.label(f"{name}_end"); g.e("s_endpgm")
    build([(name, g.text(), kd(name, 256 + max(aend, 128), 256, 100), 256, 256, 160*1024)], out)

if __name__ == "__main__":
    o = {}
    for a in sys.argv[2:]:
        k, v = a.split("=")
        o[k] = int(v) if v.lstrip("-").isdigit() else " " + v.replace("+", " ")
    gen_all(sys.argv[1], o)
```

```python
import sys, struct
from gen import Gen, vr, ar, sr, srd, kd, build, WS_H, WS_HI, WS_WP, WS_ST, WP_BYTES
import gen4
from gen4 import Stamper, f2u, LOG2E, sW, WS_MB, dt, dt_finish, DT, CPF, entry

def phase1(g, name, st, o):
    stf = o.get("stf", " sc1")
    ldf = " nt" if o.get("nt", 0) else ""
    ldw = " nt" if o.get("ntw", 0) else ""
    ldp = " nt" if (o.get("ntp") or o.get("nt")) else ""
    SX, SWT, SWS, SXI, SDB = 12, 16, 20, 24, 28
    sCT, sU, sT0, sT1, sT2, sXROW, sM0X = 33, 34, 35, 36, 37, 38, 39
    sSOX, sSOW, sNONCE = 42, 43, 3
    sODD, sKC = 94, 95
    vLane, vT, vT2, vXD, vWD, vWA, vPX, vHF, vL16 = 1, 2, 3, 4, 5, 6, 7, 8, 9
    vXA = [10, 11, 12, 13]; vXAs = [14, 15, 16, 17]
    vWAs, vST, vWR, vNC, vZ, vWAs2 = 18, 19, 20, 21, 22, 23
    XF, WF, ACC, TMP = 24, 64, 80, 160
    g.e(f"s_and_b32 s{sT0}, s2, 7")
    g.e(f"s_lshr_b32 s{sT1}, s2, 3")
    g.e(f"s_and_b32 s{sCT}, s{sT1}, 3")
    g.e(f"s_lshr_b32 s{sT1}, s{sT1}, 2")
    if o.get("mix", 1):
        g.e(f"s_lshl_b32 s{sU}, s{sT0}, 2")
        g.e(f"s_lshr_b32 s{sT2}, s{sT1}, 1")
        g.e(f"s_add_u32 s{sU}, s{sU}, s{sT2}")
        g.e(f"s_and_b32 s{sT0}, s{sT1}, 1")
        g.e(f"s_lshl_b32 s{sT0}, s{sT0}, 2")
    else:
        g.e(f"s_and_b32 s{sU}, s{sT0}, 3")
        g.e(f"s_lshl_b32 s{sU}, s{sU}, 3")
        g.e(f"s_add_u32 s{sU}, s{sU}, s{sT1}")
    g.e(f"v_lshrrev_b32 v{vT}, 3, v{vLane}")
    g.e(f"s_lshl_b32 s{sT2}, s{sW}, 3")
    g.e(f"v_add_u32 v{vXD}, s{sT2}, v{vT}")
    g.e(f"v_lshrrev_b32 v{vT}, 1, v{vXD}")
    g.e(f"v_and_b32 v{vT}, 7, v{vT}")
    g.e(f"v_and_b32 v{vT2}, 7, v{vLane}")
    g.e(f"v_xor_b32 v{vT}, v{vT}, v{vT2}")
    g.e(f"v_lshlrev_b32 v{vT}, 4, v{vT}")
    g.e(f"v_lshl_add_u32 v{vXD}, v{vXD}, 10, v{vT}")
    g.e(f"v_lshrrev_b32 v{vT}, 4, v{vLane}")
    g.e(f"v_lshlrev_b32 v{vT2}, 2, v{vT}")
    g.e(f"v_and_b32 v{vWD}, 15, v{vLane}")
    g.e(f"v_xor_b32 v{vWD}, v{vWD}, v{vT2}")
    g.e(f"v_lshlrev_b32 v{vWD}, 4, v{vWD}")
    g.e(f"s_lshl_b32 s{sT2}, s{sW}, 2")
    g.e(f"v_add_u32 v{vT}, s{sT2}, v{vT}")
    g.e(f"v_lshl_add_u32 v{vWD}, v{vT}, 10, v{vWD}")
    g.e(f"s_lshl_b32 s{sT2}, s{sCT}, 8")
    g.e(f"v_add_u32 v{vWD}, s{sT2}, v{vWD}")
    g.e(f"s_lshl_b32 s{sM0X}, s{sW}, 10")
    g.e(f"v_mov_b32 v{vZ}, 0")
    g.e(f"s_cmp_ge_u32 s{sT0}, 4")
    g.e(f"s_cbranch_scc1 {name}_P")
    st_n0 = st.n

    def nonce_wait(role):
        g.wait_vm([("NC",)])
        g.e(f"s_mov_b32 s{sT2}, 0")
        g.label(f"{name}_ncpoll{role}")
        g.e(f"v_readfirstlane_b32 s{sNONCE}, v{vNC}")
        g.e(f"s_add_u32 s{sT2}, s{sT2}, 1")
        g.e(f"s_cmp_gt_u32 s{sT2}, 100000")
        g.e(f"s_cbranch_scc1 {name}_ncok{role}")
        g.e(f"s_cmp_lg_u32 s{sNONCE}, 0")
        g.e(f"s_cbranch_scc1 {name}_ncok{role}")
        g.e(f"buffer_load_dword v{vNC}, v{vZ}, {sr(SDB)}, 0 offen sc1")
        g.e("s_waitcnt vmcnt(0)")
        g.e(f"s_branch {name}_ncpoll{role}")
        g.label(f"{name}_ncok{role}")

    def pretouch():
        if not o.get("tlb", 0): return
        lab = f"{name}_pt{len(g.lines)}"
        g.e(f"s_cmp_lg_u32 s{sW}, 3")
        g.e(f"s_cbranch_scc1 {lab}")
        srd(g, 84, 50, 51, 12 << 20)
        g.e(f"v_lshlrev_b32 v{vT}, 18, v{vLane}")
        g.e(f"buffer_load_dword v252, v{vT}, s[84:87], 0 offen")
        srd(g, 84, 46, 47, 2 << 20)
        g.e(f"v_lshlrev_b32 v{vT}, 16, v{vLane}")
        g.e(f"buffer_load_dword v253, v{vT}, s[84:87], 0 offen")
        srd(g, 84, 40, 41, 2 << 20)
        g.e(f"buffer_load_dword v254, v{vT}, s[84:87], 0 offen")
        g.e(f"buffer_load_dword v251, v{vZ}, {sr(SDB)}, 0 offen sc1")
        g.label(lab)

    def l2pf(G):
        pf = o.get("pf", 0)
        if not (pf & (1 if G else 2)): return
        if G:
            g.e(f"v_lshrrev_b32 v{vT}, 2, v{vLane}")
            g.e(f"v_and_b32 v{vT2}, 3, v{vLane}")
            g.e(f"v_lshlrev_b32 v{vT2}, 6, v{vT2}")
            g.e(f"v_lshl_add_u32 v{vT}, v{vT}, 10, v{vT2}")
            g.e(f"s_lshl_b32 s{sT2}, s{sW}, 14")
            g.e(f"s_add_u32 s{sT2}, s{sT2}, s{sXROW}")
        else:
            g.e(f"v_lshrrev_b32 v{vT}, 1, v{vLane}")
            g.e(f"v_and_b32 v{vT2}, 1, v{vLane}")
            g.e(f"v_lshlrev_b32 v{vT2}, 7, v{vT2}")
            g.e(f"v_lshl_add_u32 v{vT}, v{vT}, 10, v{vT2}")
            g.e(f"s_mul_i32 s{sT2}, s{sW}, {40*1024}")
            g.e(f"s_add_u32 s{sT2}, s{sT2}, s93")
        g.e(f"s_lshl_b32 s{sT0}, s{sCT}, 8")
        g.e(f"s_add_u32 s{sT2}, s{sT2}, s{sT0}")
        g.vmem(f"buffer_load_dword v250, v{vT}, {sr(SX)}, s{sT2} offen")
        if not G:
            g.e(f"s_add_u32 s{sT2}, s{sT2}, 0x8000")
            g.vmem(f"buffer_load_dword v251, v{vT}, {sr(SX)}, s{sT2} offen")
        if pf & 4:
            g.e(f"s_and_b32 s{sT0}, s{sU}, 3")
            g.e(f"s_lshl_b32 s{sT0}, s{sT0}, 2")
            g.e(f"s_add_u32 s{sT0}, s{sT0}, s{sCT}")
            g.e(f"s_lshl_b32 s{sT0}, s{sT0}, 2")
            g.e(f"s_add_u32 s{sT0}, s{sT0}, s{sW}")
            g.e(f"s_lshl_b32 s{sT0}, s{sT0}, 13")
            g.e(f"v_lshlrev_b32 v{vT}, 7, v{vLane}")
            g.vmem(f"buffer_load_dword v252, v{vT}, {sr(SWT)}, s{sT0} offen")

    def frag_consts(G):
        pretouch()
        l2pf(G)
        g.e(f"v_and_b32 v{vPX}, 31, v{vLane}")
        g.e(f"v_lshrrev_b32 v{vHF}, 5, v{vLane}")
        g.e(f"v_lshlrev_b32 v{vL16}, 4, v{vLane}")
        g.e(f"v_lshrrev_b32 v{vT}, 1, v{vPX}")
        g.e(f"v_and_b32 v{vT}, 7, v{vT}")
        g.e(f"v_xor_b32 v{vT}, v{vT}, v{vHF}")
        g.e(f"v_lshlrev_b32 v{vT}, 4, v{vT}")
        g.e(f"v_lshl_add_u32 v{vXA[0]}, v{vPX}, 7, v{vT}")
        if G:
            g.e(f"s_lshr_b32 s{sT2}, s{sW}, 1")
            g.e(f"s_lshl_b32 s{sT2}, s{sT2}, 12")
            g.e(f"v_add_u32 v{vXA[0]}, s{sT2}, v{vXA[0]}")
        for s in range(1, 4):
            g.e(f"v_xor_b32 v{vXA[s]}, {s*32}, v{vXA[0]}")
        g.e(f"v_bfe_u32 v{vT}, v{vLane}, 2, 2")
        g.e(f"v_lshl_add_u32 v{vT2}, v{vHF}, 3, v{vT}")
        g.e(f"v_lshlrev_b32 v{vWA}, 8, v{vT2}")
        if G:
            g.e(f"s_and_b32 s{sT2}, s{sW}, 1")
            g.e(f"s_lshl_b32 s{sT2}, s{sT2}, 1")
            g.e(f"v_xor_b32 v{vT}, s{sT2}, v{vT}")
        else:
            g.e(f"v_xor_b32 v{vT}, s{sW}, v{vT}")
        g.e(f"v_lshl_add_u32 v{vWA}, v{vT}, 6, v{vWA}")
        g.e(f"v_bfe_u32 v{vT}, v{vLane}, 4, 1")
        g.e(f"v_lshl_add_u32 v{vWA}, v{vT}, 5, v{vWA}")
        g.e(f"v_and_b32 v{vT}, 3, v{vLane}")
        g.e(f"v_lshl_add_u32 v{vWA}, v{vT}, 3, v{vWA}")

    def publish(G):
        while st.on and st.n < 13: st()
        NL = o.get("NL", 8); LG = NL.bit_length() - 1; MS = NL*128
        def slot_off(dst, src):
            g.e(f"s_and_b32 s92, s{src}, {NL-1}")
            g.e(f"s_lshl_b32 s92, s92, 7")
            g.e(f"s_lshr_b32 s{dst}, s{src}, {LG}")
            g.e(f"s_lshl_b32 s{dst}, s{dst}, 2")
            g.e(f"s_add_u32 s{dst}, s{dst}, s92")
        if G:
            g.e(f"s_lshr_b32 s{sT0}, s{sU}, 1")
            g.e(f"s_and_b32 s{sT1}, s{sU}, 1")
            g.e(f"s_lshl_b32 s{sT2}, s{sT1}, 1")
            g.e(f"s_add_u32 s{sT2}, s{sT2}, s{sT0}")
            g.e(f"s_sub_u32 s{sT2}, s{sT2}, 1")
            g.e(f"s_add_u32 s{sSOX}, s{sT1}, 1")
            g.e(f"s_lshl_b32 s{sSOX}, s{sSOX}, 2")
            g.e(f"s_add_u32 s{sSOX}, s{sSOX}, s{sCT}")
            slot_off(sSOX, sSOX)
            g.e(f"s_mul_i32 s93, s{sT0}, {16*MS}")
            g.e(f"s_add_u32 s{sSOX}, s{sSOX}, s93")
            g.e(f"s_cmp_eq_u32 s{sT1}, 0")
            g.e(f"s_cselect_b32 s{sSOW}, 12, 0")
            g.e(f"s_add_u32 s{sSOW}, s{sSOW}, s{sCT}")
            slot_off(sSOW, sSOW)
            g.e(f"s_mul_i32 s93, s{sT2}, {16*MS}")
            g.e(f"s_add_u32 s{sSOW}, s{sSOW}, s93")
            g.e(f"s_lshr_b32 s{sT2}, s{sT2}, 3")
            g.e(f"s_lshr_b32 s{sT0}, s{sT0}, 3")
            g.e(f"s_cmp_eq_u32 s{sT2}, s{sT0}")
            g.e(f"s_cselect_b32 s92, -1, 0xffff")
            g.e(f"s_mov_b32 s93, 0")
            g.e(f"v_and_b32 v{vT}, 15, v{vLane}")
            g.e(f"v_mul_u32_u24 v{vT}, {MS}, v{vT}")
            g.e(f"v_mov_b32 v{vT2}, s{sSOW}")
            g.e(f"v_mov_b32 v{vPX}, s{sSOX}")
            g.e(f"v_cmp_gt_u32 vcc, 16, v{vLane}")
            g.e("s_nop 1")
            g.e(f"v_cndmask_b32 v{vT2}, v{vT2}, v{vPX}, vcc")
            g.e(f"v_add_u32 v{vT}, v{vT}, v{vT2}")
            g.e(f"s_mov_b32 s{sT0}, {WS_MB}")
        else:
            g.e(f"v_lshrrev_b32 v{vT}, 2, v{vLane}")
            g.e(f"v_lshlrev_b32 v{vT}, 4, v{vT}")
            g.e(f"v_and_b32 v{vT2}, 3, v{vLane}")
            g.e(f"v_add_u32 v{vT}, v{vT}, v{vT2}")
            g.e(f"v_mul_u32_u24 v{vT}, {MS}, v{vT}")
            g.e(f"s_add_u32 s{sT1}, s{sU}, 16")
            slot_off(sT1, sT1)
            g.e(f"s_mul_i32 s{sT0}, s{sCT}, {4*MS}")
            g.e(f"s_add_u32 s{sT0}, s{sT0}, s{sT1}")
            g.e(f"s_add_u32 s{sT0}, s{sT0}, {WS_MB}")
            g.e(f"s_mov_b64 s[92:93], -1")
        dt(g, 5 if G else 6)
        if st.on: g.e("s_memrealtime s[78:79]")
        g.e("s_waitcnt vmcnt(0)")
        g.e("s_barrier")
        if st.on: g.e("s_memrealtime s[80:81]")
        dt(g, 7 if G else 8)
        g.e(f"s_cmp_lg_u32 s{sW}, 0")
        g.e(f"s_cbranch_scc1 {name}_ph2")
        g.e(f"s_mov_b64 exec, s[92:93]")
        g.e(f"buffer_store_dword v{vNC}, v{vT}, {sr(SWS)}, s{sT0} offen sc1")
        g.e("s_mov_b64 exec, -1")
        g.e(f"s_branch {name}_ph2")

    def bodyP():
        g.vm = []; g.lg = []
        st.n = st_n0
        g.label(f"{name}_P")
        NA = o.get("NA", 3)
        S = o.get("SP", 4)
        STG = 16384 + NA*4096
        XB3, XB4 = S*STG, (S*STG + 32768 if S == 3 else 0)
        if NA == 4: XB3, XB4 = None, S*STG
        PRE = o.get("PREP", 3)
        g.e(f"s_and_b32 s{sODD}, s{sU}, 1")
        g.e(f"s_lshr_b32 s{sT1}, s{sU}, 1")
        g.e(f"s_mul_i32 s{sXROW}, s{sT1}, 288")
        g.e(f"s_mul_i32 s{sT2}, s{sODD}, 160")
        g.e(f"s_add_u32 s{sXROW}, s{sXROW}, s{sT2}")
        g.e(f"s_lshr_b32 s{sKC}, s{sT1}, 1")
        g.e(f"s_lshl_b32 s{sKC}, s{sKC}, 16")
        g.e(f"s_lshl_b32 s93, s{sXROW}, 10")
        g.e(f"s_lshr_b32 s92, s{sKC}, 9")
        g.e("s_waitcnt lgkmcnt(0)")
        if o.get("wsoff", 0):
            g.e(f"s_add_u32 s50, s50, {o['wsoff'] << 20:#x}")
            g.e("s_addc_u32 s51, s51, 0")
        st(); dt(g, 2)
        srd(g, SX, 44, 45, 4608*1024); srd(g, SWT, 10, 11, 512 << 10)
        cur = [None]
        def kofs(kc):
            if cur[0] == kc: return
            cur[0] = kc
            g.e(f"s_add_u32 s{sT2}, s92, {kc*128}")
            g.e(f"s_and_b32 s{sT2}, s{sT2}, 0x3ff")
            g.e(f"s_add_u32 s91, s{sT2}, s93")
            g.e(f"s_lshl_b32 s90, s{sT2}, 9")
        def ldW(kc, m):
            kofs(kc)
            g.e(f"s_add_u32 m0, s{sM0X}, {(kc % S)*STG + m*4096}")
            g.e(f"s_add_u32 s{sSOW}, s90, {m*16384}")
            g.vmem(f"buffer_load_dwordx4 v{vWD}, {sr(SWT)}, s{sSOW} offen{ldw} lds", ("D", kc))
        def ldX(b, kc):
            kofs(kc)
            dst = (kc % S)*STG + 16384 + b*4096 if b < NA else [XB3, XB4][b-3] + kc*4096
            g.e(f"s_add_u32 m0, s{sM0X}, {dst}")
            g.e(f"s_add_u32 s{sSOX}, s91, {b*32768}")
            g.vmem(f"buffer_load_dwordx4 v{vXD}, {sr(SX)}, s{sSOX} offen{ldp} lds", ("D", kc) if b < NA else ("XB", b))
        ldq = []
        for kc in range(8):
            for m in range(4): ldq.append(("W", kc, m, kc - S))
            for b in range(NA): ldq.append(("X", b, kc, kc - S))
            if not o.get("late", 1) and kc >= 2:
                for b in (3, 4): ldq.append(("X", b, kc - 2, -1))
        if o.get("late", 1):
            for b in range(NA, 5):
                for kc in range(8): ldq.append(("X", b, kc, 5 if (b == 4 and S == 4 and NA == 3) else -1))
        else:
            for kc in (6, 7):
                for b in (3, 4): ldq.append(("X", b, kc, -1))
        freed = [-1]
        def ldnext():
            if not ldq or len(g.vm) >= 60: return False
            idx = 0
            if ldq[0][3] > freed[0]:
                if not o.get("ooo", 0): return False
                cand = [i for i, t in enumerate(ldq) if t[0] == "X" and t[1] >= NA and t[3] <= freed[0]]
                if not cand or fill[0] >= o["ooo"]: return False
                idx = cand[0]; fill[0] += 1
            t, a, b_, need = ldq.pop(idx)
            if t == "W": ldW(a, b_)
            else: ldX(a, b_)
            return True
        fill = [0]
        for _ in range((4+NA)*PRE): ldnext()
        slotc = [0]
        srd(g, SDB, 48, 49, 256)
        frag_consts(False)
        srd(g, SWS, 50, 51, 16 << 20)
        g.e(f"s_lshl_b32 s{sT0}, s{sCT}, 2")
        g.e(f"s_add_u32 s{sT0}, s{sT0}, s{sW}")
        g.e(f"s_mul_i32 s{sT0}, s{sT0}, {32*10240}")
        g.e(f"s_add_u32 s{sT0}, s{sT0}, {WS_WP}")
        g.e(f"v_add_u32 v{vST}, s{sT0}, v{vL16}")
        XRB = TMP + 40
        def read_list(kc, s):
            p = (kc*4 + s) % 2
            ks = 4*kc + s
            L = []
            for h in range(2):
                L.append((f"ds_read_b64_tr_b16 {ar(4*ks+2*h,2)}, v{vWAs} offset:{s*4096+h*1024}", 0))
            for b in range(NA):
                L.append((f"ds_read_b128 {vr(XF+p*20+b*4)}, v{vXAs[s]} offset:{b*4096}", b))
            return [(r, ("R", kc, s, b)) for r, b in L]
        def stage_addr(kc):
            sb = (kc % S) * STG
            for s in range(4): g.e(f"v_add_u32 v{vXAs[s]}, {sb + 16384}, v{vXA[s]}")
            g.e(f"v_add_u32 v{vWAs}, {sb}, v{vWA}")
        stage_addr(0)
        st()
        g.wait_vm([("D", 0)])
        g.e("s_barrier")
        st()
        dt(g, 1)
        for r, t in read_list(0, 0): g.lds(r, t)
        LPA = o.get("LPA", 1)
        for kc in range(8):
            for s in range(4):
                if s < 3:
                    nxt = read_list(kc, s+1)
                else:
                    nxt = []
                    if kc < 7:
                        g.wait_lg([("R", kc, 3, b) for b in range(NA)])
                        while any(t[3] == kc+1-S and t[3] >= -10 and ((t[0] == "W" and t[1] == kc+1) or (t[0] == "X" and t[1] < NA and t[2] == kc+1)) for t in ldq): assert ldnext()
                        g.wait_vm([("D", kc+1)])
                        g.e("s_barrier")
                        if kc in (1, 3, 5): st()
                        freed[0] = kc
                        fill[0] = 0
                        stage_addr(kc+1)
                        nxt = read_list(kc+1, 0)
                p = (kc*4 + s) % 2
                ks = 4*kc + s
                for b in range(NA):
                    g.wait_lg([("R", kc, s, bb) for bb in range(b+1)])
                    ac = vr(ACC+16*b, 16)
                    g.e(f"v_mfma_f32_32x32x16_bf16 {ac}, {vr(XF+p*20+b*4)}, {ar(4*ks)}, {'0' if ks == 0 else ac}")
                    for _ in range(2):
                        if nxt:
                            r, t = nxt.pop(0); g.lds(r, t)
                    slotc[0] += 1
                    if (slotc[0] * o.get("PN", 12)) % 12 < o.get("PN", 12): ldnext()
            if kc == 4:
                g.vmem(f"buffer_load_dword v{vNC}, v{vZ}, {sr(SDB)}, 0 offen sc1", ("NC",))
        while ldq: assert ldnext()
        st(); dt(g, 10)
        def store_block(b):
            a = ACC + 16*b
            L = []
            L.append(f"s_add_u32 s{sT0}, s{sXROW}, {32*b}")
            L.append(f"s_lshr_b32 s{sT1}, s{sT0}, 9")
            L.append(f"s_and_b32 s{sT0}, s{sT0}, 511")
            L.append(f"s_lshr_b32 s{sT0}, s{sT0}, 4")
            L.append(f"s_mul_i32 s{sT0}, s{sT0}, 10")
            L.append(f"s_add_u32 s{sT0}, s{sT0}, s{sT1}")
            L.append(f"s_lshl_b32 s{sT0}, s{sT0}, 10")
            L.append(f"s_add_u32 s{sT1}, s{sT0}, 10240")
            for hh in range(2):
                d = TMP + b*8 + hh*4
                for i in range(4):
                    L.append(f"v_cvt_pk_bf16_f32 v{d+i}, v{a+8*hh+2*i}, v{a+8*hh+2*i+1}")
                L.append(("ST", f"buffer_store_dwordx4 {vr(d)}, v{vST}, {sr(SWS)}, s{sT0 if hh==0 else sT1} offen{stf}"))
            return L
        def emit(x):
            if isinstance(x, tuple): g.vmem(x[1])
            else: g.e(x)
        xr = [0]; xreg = {}
        def xread(b, ks):
            r = XRB + (xr[0] % 8)*4; xr[0] += 1
            g.lds(f"ds_read_b128 {vr(r)}, v{vXAs[ks%4]} offset:{(ks//4)*4096}", ("R2", b, ks))
            return r
        if NA == 3:
            g.wait_vm([("XB", 3)] if o.get("late", 1) else [("XB", 3), ("XB", 4)])
            g.e("s_barrier")
        else:
            g.wait_vm([("NC",)])
        def blockB(b, pend):
            for s in range(4): g.e(f"v_add_u32 v{vXAs[s]}, {[XB3, XB4][b-3]}, v{vXA[s]}")
            AH = 6
            for ks in range(AH): xreg[(b, ks)] = xread(b, ks)
            for ks in range(32):
                g.wait_lg([("R2", b, ks)])
                ac = vr(ACC + 16*b, 16)
                g.e(f"v_mfma_f32_32x32x16_bf16 {ac}, {vr(xreg[(b,ks)])}, {ar(4*ks)}, {'0' if ks == 0 else ac}")
                if ks + AH < 32: xreg[(b, ks+AH)] = xread(b, ks+AH)
                if ks >= 1:
                    for _ in range(2 if NA == 3 else 3):
                        if pend: emit(pend.pop(0))
            assert not pend
        if NA == 3: blockB(3, store_block(0) + store_block(1) + store_block(2))
        st()
        g.e(f"s_cmp_lg_u32 s{sODD}, 0")
        g.e(f"s_cbranch_scc1 {name}_P4")
        saved = (list(g.vm), list(g.lg))
        if o.get("late", 1):
            g.wait_vm([("XB", 4)])
            g.e("s_barrier")
        blockB(4, store_block(3) if NA == 3 else store_block(0) + store_block(1) + store_block(2) + store_block(3))
        st(); dt(g, 4)
        g.e("s_nop 3")
        for x in store_block(4): emit(x)
        g.e(f"s_branch {name}_Pdone")
        g.label(f"{name}_P4")
        g.vm, g.lg = saved
        g.e(f"s_lshr_b32 s{sT0}, s{sU}, 1")
        g.e(f"s_and_b32 s{sT2}, s{sT0}, 1")
        g.e(f"s_mul_i32 s{sT0}, s{sT0}, 20480")
        g.e(f"s_add_u32 s{sT0}, s{sT0}, 9216")
        g.e(f"s_add_u32 s{sT1}, s{sT0}, 10240")
        g.e(f"s_cmp_eq_u32 s{sT2}, 0")
        g.e(f"s_cbranch_scc0 {name}_rp1")
        g.e(f"buffer_store_dwordx4 {ar(0)}, v{vST}, {sr(SWS)}, s{sT0} offen{stf}")
        g.e(f"buffer_store_dwordx4 {ar(4)}, v{vST}, {sr(SWS)}, s{sT1} offen{stf}")
        g.e(f"s_branch {name}_rp2")
        g.label(f"{name}_rp1")
        g.e(f"buffer_store_dwordx4 {ar(8)}, v{vST}, {sr(SWS)}, s{sT0} offen{stf}")
        g.e(f"buffer_store_dwordx4 {ar(12)}, v{vST}, {sr(SWS)}, s{sT1} offen{stf}")
        g.label(f"{name}_rp2")
        g.e("s_nop 3")
        for b in ([3] if NA == 3 else [0, 1, 2, 3]):
            for x in store_block(b): emit(x)
        g.label(f"{name}_Pdone")
        g.vm = []
        nonce_wait("P")
        publish(False)

    def bodyG():
        ldf = " nt" if (o.get("ntg") or o.get("nt")) else ""
        NX, S = 2, 6
        XB = NX * 4096
        STG = XB + 16384
        NI = NX + 4
        PRE1 = o.get("PREG", 3)
        XT = 6*STG
        g.vm = []; g.lg = []
        st.n = st_n0
        g.e(f"s_lshl_b32 s{sXROW}, s{sU}, 16")
        g.e(f"v_lshrrev_b32 v{vT}, 4, v{vLane}")
        g.e(f"s_lshl_b32 s{sT2}, s{sW}, 2")
        g.e(f"v_add_u32 v{vT}, s{sT2}, v{vT}")
        g.e(f"v_and_b32 v{vT2}, 15, v{vLane}")
        g.e(f"v_xor_b32 v{vT2}, v{vT2}, v{vT}")
        g.e(f"v_lshlrev_b32 v{vT2}, 4, v{vT2}")
        g.e(f"v_lshl_add_u32 v{vT}, v{vT}, 10, v{vT2}")
        g.e(f"s_lshl_b32 s{sT2}, s{sCT}, 8")
        g.e(f"v_add_u32 v{vWR}, s{sT2}, v{vT}")
        g.e("s_waitcnt lgkmcnt(0)")
        if o.get("wsoff", 0):
            g.e(f"s_add_u32 s50, s50, {o['wsoff'] << 20:#x}")
            g.e("s_addc_u32 s51, s51, 0")
        st(); dt(g, 2)
        srd(g, SX, 6, 7, 2 << 20); srd(g, SWT, 8, 9, 512 << 10); srd(g, SXI, 4, 5, 2 << 20)
        def ld1(kc, m):
            sb = (kc % S) * STG
            isx = m < NX
            mm = m if isx else m - NX
            g.e(f"s_add_u32 m0, s{sM0X}, {sb + m*4096}")
            if isx: g.e(f"s_add_u32 s{sSOX}, s{sXROW}, {mm*32768 + kc*128}")
            else:   g.e(f"s_mov_b32 s{sSOW}, {(kc*64 + 16*mm)*1024}")
            va, sd, so = (vXD, SX, sSOX) if isx else (vWD, SWT, sSOW)
            g.vmem(f"buffer_load_dwordx4 v{va}, {sr(sd)}, s{so} offen{ldf if isx else ldw} lds", ("D", kc))
        for m in range(NI): ld1(0, m)
        srd(g, SDB, 48, 49, 256)
        g.e(f"s_or_b32 s{sT0}, s2, s{sW}")
        g.e(f"s_cmp_lg_u32 s{sT0}, 0")
        g.e(f"s_cbranch_scc1 {name}_nn")
        g.e("s_memrealtime s[96:97]")
        g.e("s_waitcnt lgkmcnt(0)")
        g.e(f"s_or_b32 s96, s96, 1")
        g.e(f"v_mov_b32 v{vT}, s96")
        g.e(f"buffer_store_dword v{vT}, v{vZ}, {sr(SDB)}, 0 offen sc1")
        g.label(f"{name}_nn")
        for kc in range(1, PRE1):
            for m in range(NI): ld1(kc, m)
        ldq = [(kc, m) for kc in range(PRE1, 8) for m in range(NI)]
        k6 = [i for i, (kc, m) in enumerate(ldq) if kc >= 5][0]
        ldq[k6:k6] = [("X", m) for m in range(4)]
        freed = [0]
        def ldnext():
            if not ldq: return False
            kc, m = ldq[0]
            if kc == "X":
                ldq.pop(0)
                g.e(f"s_add_u32 m0, s{sM0X}, {XT + m*4096}")
                g.e(f"s_add_u32 s{sSOX}, s{sXROW}, {m*16384}")
                g.vmem(f"buffer_load_dwordx4 v{vWR}, {sr(SXI)}, s{sSOX} offen{ldf} lds", ("D", 5))
                return True
            if kc - S >= freed[0]: return False
            ldq.pop(0); ld1(kc, m); return True
        frag_consts(True)
        srd(g, SWS, 50, 51, 16 << 20)
        mk = len(g.lines)
        vXR, vGA, vGO = TMP+60, TMP+61, TMP+62
        g.e(f"s_lshr_b32 s{sT0}, s{sW}, 1")
        g.e(f"s_and_b32 s{sT1}, s{sW}, 1")
        g.e(f"s_lshl_b32 s{sT2}, s{sT0}, 13")
        g.e(f"s_add_u32 s{sT2}, s{sT2}, {XT}")
        g.e(f"v_and_b32 v{vT}, 15, v{vPX}")
        g.e(f"s_lshl_b32 s{sSOX}, s{sT1}, 3")
        g.e(f"v_xor_b32 v{vT}, s{sSOX}, v{vT}")
        g.e(f"v_lshlrev_b32 v{vT}, 4, v{vT}")
        g.e(f"v_lshl_add_u32 v{vT}, v{vPX}, 8, v{vT}")
        g.e(f"v_lshl_add_u32 v{vT}, v{vHF}, 3, v{vT}")
        g.e(f"v_add_u32 v{vXR}, s{sT2}, v{vT}")
        g.e(f"s_lshl_b32 s{sT2}, s{sT0}, 15")
        g.e(f"s_add_u32 s{sT2}, s{sT2}, s{sXROW}")
        g.e(f"s_lshl_b32 s{sSOX}, s{sCT}, 13")
        g.e(f"s_add_u32 s{sT2}, s{sT2}, s{sSOX}")
        g.e(f"s_lshl_b32 s{sSOX}, s{sT1}, 12")
        g.e(f"s_add_u32 s{sT2}, s{sT2}, s{sSOX}")
        g.e(f"v_add_u32 v{vST}, s{sT2}, v{vL16}")
        g.e(f"s_lshl_b32 s{sSOX}, s{sU}, 1")
        g.e(f"s_add_u32 s{sSOX}, s{sSOX}, s{sT0}")
        g.e(f"s_lshl_b32 s{sSOX}, s{sSOX}, 12")
        g.e(f"s_add_u32 s{sSOX}, s{sSOX}, {WS_ST}")
        g.e(f"v_lshlrev_b32 v{vGO}, 4, v{vPX}")
        g.e(f"v_add_u32 v{vGO}, s{sSOX}, v{vGO}")
        g.e(f"v_lshl_add_u32 v{vGA}, v{vHF}, 11, v{vGO}")
        g.e(f"s_lshl_b32 s93, s{sCT}, 1")
        g.e(f"s_add_u32 s93, s93, s{sT1}")
        g.e(f"s_lshl_b32 s93, s93, 9")
        deferG = g.lines[mk:]; del g.lines[mk:]
        def stage_addr(kc):
            sb = (kc % S) * STG
            for s in range(4): g.e(f"v_add_u32 v{vXAs[s]}, {sb}, v{vXA[s]}")
            g.e(f"v_add_u32 v{vWAs}, {sb + XB}, v{vWA}")
            g.e(f"v_xor_b32 v{vWAs2}, 64, v{vWAs}")
        def read_list(kc, s):
            p = (kc*4 + s) % 2
            L = [(f"ds_read_b128 {vr(XF+p*20)}, v{vXAs[s]}", 0)]
            for cb in range(2):
                for h in range(2):
                    L.append((f"ds_read_b64_tr_b16 {vr(WF+p*8+cb*4+h*2,2)}, v{vWAs if cb==0 else vWAs2} offset:{s*4096+h*1024}", cb))
            return [(r, ("R", kc, s, b)) for r, b in L]
        stage_addr(0)
        st()
        g.wait_vm([("D", 0)])
        g.e("s_barrier")
        st()
        dt(g, 1)
        XR = TMP
        XU = ACC + 32
        for r, t in read_list(0, 0): g.lds(r, t)
        LPM = o.get("LPG", 1)
        for kc in range(8):
            for s in range(4):
                if s < 3:
                    nxt = read_list(kc, s+1)
                else:
                    nxt = []
                    if kc < 7:
                        g.wait_lg([("R", kc, 3, b) for b in range(2)])
                        while any(c_ == kc+1 for c_, _ in ldq): assert ldnext()
                        g.wait_vm([("D", kc+1)])
                        g.e("s_barrier")
                        if kc in (0, 2, 4, 6): st()
                        if kc == o.get("dtk", 2): dt(g, 10)
                        freed[0] = kc + 1
                        stage_addr(kc+1)
                        nxt = read_list(kc+1, 0)
                p = (kc*4 + s) % 2
                for b in range(2):
                    g.wait_lg([("R", kc, s, bb) for bb in range(b+1)])
                    ac = vr(ACC+16*b, 16)
                    g.e(f"v_mfma_f32_32x32x16_bf16 {ac}, {vr(WF+p*8+b*4)}, {vr(XF+p*20)}, {'0' if kc == 0 and s == 0 else ac}")
                    for _ in range(3):
                        if nxt:
                            r, t = nxt.pop(0); g.lds(r, t)
                    for _ in range(LPM): ldnext()
            if kc == 4:
                g.vmem(f"buffer_load_dword v{vNC}, v{vZ}, {sr(SDB)}, 0 offen sc1", ("NC",))
            if kc == 0: g.lines += deferG
            if kc == 5:
                for j in range(8):
                    g.e(f"v_xor_b32 v{vT2}, {j*16}, v{vXR}")
                    g.lds(f"ds_read_b64 {vr(XR+2*j,2)}, v{vT2}", ("XR", j))
            if kc == 6:
                g.wait_lg([("XR", 7)])
                for j in range(16):
                    g.e(f"v_lshlrev_b32 v{XU+2*j}, 16, v{XR+j}")
                    g.e(f"v_and_b32 v{XU+2*j+1}, 0xffff0000, v{XR+j}")
        assert not ldq
        st(); dt(g, 3)
        nonce_wait("G")
        g.e("s_nop 7")
        S1, S2 = TMP+16, TMP+18
        P1, P2 = TMP+20, TMP+22
        for i in range(16): g.e(f"v_pk_add_f32 {vr(ACC+2*i,2)}, {vr(ACC+2*i,2)}, {vr(XU+2*i,2)}")
        g.e(f"v_pk_add_f32 {vr(P1,2)}, {vr(ACC,2)}, {vr(ACC+2,2)}")
        g.e(f"v_pk_mul_f32 {vr(P2,2)}, {vr(ACC,2)}, {vr(ACC,2)}")
        g.e(f"v_pk_fma_f32 {vr(P2,2)}, {vr(ACC+2,2)}, {vr(ACC+2,2)}, {vr(P2,2)}")
        for i in range(2, 16):
            g.e(f"v_pk_add_f32 {vr(P1,2)}, {vr(P1,2)}, {vr(ACC+2*i,2)}")
            g.e(f"v_pk_fma_f32 {vr(P2,2)}, {vr(ACC+2*i,2)}, {vr(ACC+2*i,2)}, {vr(P2,2)}")
        g.e(f"v_add_f32 v{S1}, v{P1}, v{P1+1}")
        g.e(f"v_add_f32 v{S2}, v{P2}, v{P2+1}")
        g.e(f"v_mov_b32 v{vT}, v{S1}")
        g.e(f"v_mov_b32 v{vT2}, v{S2}")
        g.e(f"v_mov_b32 v{S1+1}, v{vNC}")
        g.e(f"v_mov_b32 v{S2+1}, v{vNC}")
        g.e(f"v_permlane32_swap_b32 v{S1}, v{vT}")
        g.e(f"v_permlane32_swap_b32 v{S2}, v{vT2}")
        g.e(f"v_add_f32 v{S1}, v{S1}, v{vT}")
        g.e(f"v_add_f32 v{S2}, v{S2}, v{vT2}")
        g.e("s_mov_b64 exec, 0xffffffff")
        g.e(f"buffer_store_dwordx4 {vr(S1)}, v{vGO}, {sr(SWS)}, s93 offen sc1")
        g.e("s_mov_b64 exec, -1")
        st()
        for j in range(16):
            g.e(f"v_cvt_pk_bf16_f32 v{XR+j}, v{ACC+2*j}, v{ACC+2*j+1}")
        g.e("s_nop 1")
        for hh in range(4):
            g.e(f"v_permlane32_swap_b32 v{XR+4*hh}, v{XR+4*hh+2}")
            g.e(f"v_permlane32_swap_b32 v{XR+4*hh+1}, v{XR+4*hh+3}")
        EA, EB = TMP + 24, TMP + 40
        def poll_issue(E):
            for e_ in range(4):
                g.e(f"buffer_load_dwordx4 {vr(E+4*e_)}, v{vGA}, {sr(SWS)}, 0 offen offset:{e_*512} sc1")
        def poll_check(E):
            g.e(f"v_xor_b32 v{vT}, v{E+1}, v{vNC}")
            for e_ in range(4):
                for o_ in (1, 3):
                    if e_ == 0 and o_ == 1: continue
                    g.e(f"v_xor_b32 v{vT2}, v{E+4*e_+o_}, v{vNC}")
                    g.e(f"v_or_b32 v{vT}, v{vT}, v{vT2}")
            g.e(f"v_cmp_ne_u32 vcc, 0, v{vT}")
            g.e("s_nop 4")
        g.e(f"s_mov_b32 s{sT2}, 0")
        poll_issue(EA)
        g.label(f"{name}_poll")
        g.e(f"s_add_u32 s{sT2}, s{sT2}, 1")
        g.e(f"s_cmp_gt_u32 s{sT2}, 100000")
        g.e(f"s_cbranch_scc1 {name}_pollx")
        if o.get("pp", 1):
            g.e("s_sleep 4")
            poll_issue(EB)
            g.e("s_waitcnt vmcnt(4)")
            poll_check(EA)
            g.e(f"s_cbranch_vccz {name}_pollx")
            poll_issue(EA)
            g.e("s_waitcnt vmcnt(4)")
            poll_check(EB)
            g.e(f"s_cbranch_vccnz {name}_poll")
            g.e("s_waitcnt vmcnt(0)")
        else:
            g.e("s_waitcnt vmcnt(0)")
            poll_check(EA)
            g.e(f"s_cbranch_vccz {name}_pollx")
            poll_issue(EA)
            g.e(f"s_branch {name}_poll")
        g.label(f"{name}_pollx")
        st()
        E = EA
        g.e(f"s_mov_b32 s{sT1}, {WS_HI}")
        for e_ in range(1, 4):
            g.e(f"v_add_f32 v{E}, v{E}, v{E+4*e_}")
            g.e(f"v_add_f32 v{E+2}, v{E+2}, v{E+4*e_+2}")
        g.e(f"v_mov_b32 v{vT}, v{E}")
        g.e(f"v_mov_b32 v{vT2}, v{E+2}")
        for hh in range(4):
            g.e(f"buffer_store_dwordx4 {vr(XR+4*hh)}, v{vST}, {sr(SWS)}, s{sT1} offen offset:{hh*1024}{stf}")
        g.e(f"v_permlane32_swap_b32 v{E}, v{vT}")
        g.e(f"v_permlane32_swap_b32 v{E+2}, v{vT2}")
        g.e(f"v_add_f32 v{E}, v{E}, v{vT}")
        g.e(f"v_add_f32 v{E+2}, v{E+2}, v{vT2}")
        g.e(f"v_mul_f32 v{E}, {f2u(1/512):#x}, v{E}")
        g.e(f"v_mul_f32 v{E+2}, {f2u(1/512):#x}, v{E+2}")
        g.e(f"v_fma_f32 v{E+2}, -v{E}, v{E}, v{E+2}")
        g.e(f"v_max_f32 v{E+2}, 0, v{E+2}")
        g.e(f"v_add_f32 v{E+2}, {f2u(1e-5):#x}, v{E+2}")
        A_, B_, A2, B2 = E+4, E+6, E+8, E+10
        g.e(f"v_rsq_f32 v{A_}, v{E+2}")
        g.e("s_nop 0")
        g.e(f"v_mul_f32 v{B_}, v{E}, v{A_}")
        g.e(f"v_sub_f32 v{B_}, 0, v{B_}")
        g.e(f"v_mul_f32 v{A2}, {f2u(-LOG2E):#x}, v{A_}")
        g.e(f"v_mul_f32 v{B2}, {f2u(-LOG2E):#x}, v{B_}")
        Y = XF
        D = WF
        for hh in range(4):
            a = ACC + 8*hh; y = Y + (hh % 2)*8
            for i in range(4): g.e(f"v_pk_fma_f32 {vr(y+2*i,2)}, {vr(a+2*i,2)}, {vr(A2,2)}, {vr(B2,2)} op_sel_hi:[1,0,0]")
            for i in range(8): g.e(f"v_exp_f32 v{y+i}, v{y+i}")
            for i in range(4): g.e(f"v_pk_fma_f32 {vr(a+2*i,2)}, {vr(a+2*i,2)}, {vr(A_,2)}, {vr(B_,2)} op_sel_hi:[1,0,0]")
            for i in range(4): g.e(f"v_pk_add_f32 {vr(y+2*i,2)}, {vr(y+2*i,2)}, 1.0 op_sel_hi:[1,0]")
            for i in range(8): g.e(f"v_rcp_f32 v{y+i}, v{y+i}")
            g.e("s_nop 0")
            for i in range(4): g.e(f"v_pk_mul_f32 {vr(a+2*i,2)}, {vr(a+2*i,2)}, {vr(y+2*i,2)}")
            d = D + hh*4
            for i in range(4): g.e(f"v_cvt_pk_bf16_f32 v{d+i}, v{a+2*i}, v{a+2*i+1}")
            g.e(f"buffer_store_dwordx4 {vr(d)}, v{vST}, {sr(SWS)}, 0 offen offset:{hh*1024}{stf}")
        publish(True)
    bodyG(); bodyP()

def phase2(g, name, st, o):
    NST, PRE, EVERY = o.get("NST", 3), o.get("PRE", 14), o.get("EVERY", 2)
    o.setdefault("RN", 11); o.setdefault("RD", 20)
    lf = o.get("lf", " sc1").replace(" none", "")
    SA, SWP, SX, SO, SDB = 12, 16, 20, 24, 28
    C4K, C8K, C2M, C2M4K = 33, 34, 42, 43
    sMT, sNT, sB, sT0, sT1, sR0, sBASE = 35, 36, 37, 38, 39, 97, 96
    vLane, vT, vW, vMR, vML, vO, vT2 = 1, 2, 3, 4, 5, 6, 7
    vH = [8+j for j in range(6)]
    vA, vA1 = 14, 15
    vXF = 16
    HB = 24
    HIB = HB + NST*24
    T0 = HIB + NST*16
    T2 = T0 + 24
    VEND = T2 + 24
    vF, vG, vPF = VEND, VEND+1, VEND+2
    assert VEND + 8 <= 250
    ACC, WB = 0, 64
    AEND = WB + NST*40
    g.vm = []; g.lg = []
    g.label(f"{name}_ph2")
    if st.on: st.n = 15
    st()
    g.e(f"s_and_b32 s{sT0}, s2, 7")
    g.e(f"s_lshr_b32 s{sT1}, s2, 3")
    g.e(f"s_and_b32 s{sB}, s{sT0}, 1")
    g.e(f"s_lshr_b32 s{sT0}, s{sT0}, 1")
    g.e(f"s_and_b32 s{sMT}, s{sT1}, 7")
    g.e(f"s_lshr_b32 s{sT1}, s{sT1}, 3")
    g.e(f"s_lshl_b32 s{sNT}, s{sT0}, 2")
    g.e(f"s_add_u32 s{sNT}, s{sNT}, s{sT1}")
    g.e(f"s_lshl_b32 s{sT0}, s{sB}, 5")
    g.e(f"s_lshl_b32 s{sT1}, s{sMT}, 2")
    g.e(f"s_add_u32 s{sR0}, s{sT0}, s{sT1}")
    srd(g, SDB, 50, 51, 16 << 20)
    NL = o.get("NL", 8); LG = NL.bit_length() - 1; MS = NL*128
    g.e(f"s_lshr_b32 s{sT0}, s{sR0}, 2")
    g.e(f"s_lshl_b32 s{sT0}, s{sT0}, 4")
    g.e(f"s_add_u32 s{sT0}, s{sT0}, s{sNT}")
    g.e(f"s_mul_i32 s{sT0}, s{sT0}, {MS}")
    g.e(f"s_add_u32 s{sT0}, s{sT0}, {WS_MB}")
    g.e(f"v_and_b32 v{vF}, {NL-1}, v{vLane}")
    g.e(f"v_lshlrev_b32 v{vF}, 7, v{vF}")
    g.e(f"v_lshrrev_b32 v{vG}, {LG}, v{vLane}")
    g.e(f"v_lshl_add_u32 v{vF}, v{vG}, 2, v{vF}")
    g.e(f"v_add_u32 v{vF}, s{sT0}, v{vF}")
    g.e(f"s_movk_i32 s{C4K}, 0x1000")
    g.e(f"s_movk_i32 s{C8K}, 0x2000")
    g.e(f"s_mov_b32 s{C2M}, 0x200000")
    g.e(f"s_mov_b32 s{C2M4K}, 0x201000")
    g.e(f"s_lshl_b32 s{sBASE}, s{sR0}, 15")
    g.e(f"s_lshl_b32 s{sT0}, s{sW}, 13")
    g.e(f"s_add_u32 s{sBASE}, s{sBASE}, s{sT0}")
    g.e(f"v_lshlrev_b32 v{vT}, 4, v{vLane}")
    for j in range(1, 5):
        g.e(f"s_add_u32 s{sT0}, s{sBASE}, {(j-1)*32768}")
        g.e(f"v_add_u32 v{vH[j]}, s{sT0}, v{vT}")
    g.e(f"s_sub_u32 s{sT0}, s{sBASE}, 32768")
    g.e(f"s_cmp_eq_u32 s{sMT}, 0")
    g.e(f"s_cselect_b32 s{sT0}, 0x40000000, s{sT0}")
    g.e(f"v_add_u32 v{vH[0]}, s{sT0}, v{vT}")
    g.e(f"s_add_u32 s{sT0}, s{sBASE}, {4*32768}")
    g.e(f"s_cmp_eq_u32 s{sMT}, 7")
    g.e(f"s_cselect_b32 s{sT0}, 0x40000000, s{sT0}")
    g.e(f"v_add_u32 v{vH[5]}, s{sT0}, v{vT}")
    g.e(f"s_lshl_b32 s{sT0}, s{sNT}, 5")
    g.e(f"s_lshl_b32 s{sT1}, s{sW}, 3")
    g.e(f"s_add_u32 s{sT0}, s{sT0}, s{sT1}")
    g.e(f"s_mul_i32 s92, s{sT0}, 10240")
    g.e(f"v_add_u32 v{vW}, s92, v{vT}")
    srd(g, SA, 50, 51, 4 << 20)
    srd(g, SWP, 50, 51, WP_BYTES, add=WS_WP)
    srd(g, SX, 40, 41, 2 << 20)
    srd(g, SO, 46, 47, 2 << 20)
    g.e(f"s_add_u32 s{sT0}, s{sR0}, s{sW}")
    g.e(f"s_lshl_b32 s{sT0}, s{sT0}, 15")
    g.e(f"s_lshl_b32 s{sT1}, s{sNT}, 6")
    g.e(f"s_add_u32 s{sT0}, s{sT0}, s{sT1}")
    g.e(f"v_lshrrev_b32 v{vO}, 2, v{vLane}")
    g.e(f"v_lshlrev_b32 v{vO}, 10, v{vO}")
    g.e(f"v_and_b32 v{vT2}, 3, v{vLane}")
    g.e(f"v_lshlrev_b32 v{vT2}, 4, v{vT2}")
    g.e(f"v_add3_u32 v{vO}, v{vO}, v{vT2}, s{sT0}")
    g.e(f"s_movk_i32 s{sT1}, 0x4000")
    xfl = " nt" if (o.get("nt", 0) or o.get("ntf")) else ""
    XFK = o.get("xfk", 6)
    if XFK == -1:
        g.e(f"buffer_load_dwordx4 {vr(vXF)}, v{vO}, {sr(SX)}, 0 offen{xfl}")
        g.e(f"buffer_load_dwordx4 {vr(vXF+4)}, v{vO}, {sr(SX)}, s{sT1} offen{xfl}")
    elif XFK == -2:
        g.e(f"s_cmp_eq_u32 s{sW}, 0")
        g.e(f"s_cbranch_scc1 {name}_xf0")
        g.e(f"buffer_load_dwordx4 {vr(vXF)}, v{vO}, {sr(SX)}, 0 offen{xfl}")
        g.e(f"buffer_load_dwordx4 {vr(vXF+4)}, v{vO}, {sr(SX)}, s{sT1} offen{xfl}")
        g.label(f"{name}_xf0")
    g.e(f"v_and_b32 v{vT}, 31, v{vLane}")
    g.e(f"v_cmp_ne_u32 vcc, 0, v{vT}")
    g.e("s_nop 1")
    g.e(f"v_cndmask_b32 v{vMR}, 0, -1, vcc")
    g.e(f"v_cmp_ne_u32 vcc, 31, v{vT}")
    g.e("s_nop 1")
    g.e(f"v_cndmask_b32 v{vML}, 0, -1, vcc")
    g.e(f"v_lshlrev_b32 v{vA}, 4, v{vLane}")
    g.e(f"s_mul_i32 s{sT0}, s{sW}, 4352")
    g.e(f"v_add_u32 v{vA}, s{sT0}, v{vA}")
    g.e(f"v_and_b32 v{vA1}, 3, v{vLane}")
    g.e(f"v_mul_u32_u24 v{vA1}, 1088, v{vA1}")
    g.e(f"v_lshrrev_b32 v{vT}, 2, v{vLane}")
    g.e(f"v_lshl_add_u32 v{vA1}, v{vT}, 4, v{vA1}")
    g.e(f"s_mul_i32 s{sT0}, s{sW}, 17408")
    g.e(f"v_add_u32 v{vA1}, s{sT0}, v{vA1}")
    g.e("s_mov_b32 s90, 0xffff0000")
    g.e("s_mov_b32 s91, 0xffff")
    g.e(f"s_movk_i32 s{sT0}, 0x1111")
    g.e(f"s_cmp_eq_u32 s{sMT}, 0")
    g.e(f"s_cselect_b32 s{sT0}, 0x1110, s{sT0}")
    g.e(f"s_cmp_eq_u32 s{sMT}, 7")
    g.e(f"s_cselect_b32 s{sT0}, 0x0111, s{sT0}")
    g.e(f"s_lshl_b32 s94, s{sT0}, s{sW}")
    g.e("s_mov_b32 s95, 0")
    def poll(tag, mask, first_issued):
        g.e(f"s_mov_b32 s{sT0}, 0")
        if first_issued: g.e(f"s_branch {name}_fchk{tag}")
        g.label(f"{name}_fpoll{tag}")
        if o.get("fs", 0): g.e(f"s_sleep {o['fs']}")
        g.e(f"buffer_load_dword v{vG}, v{vF}, {sr(SDB)}, 0 offen sc1")
        g.label(f"{name}_fchk{tag}")
        g.e(f"s_add_u32 s{sT0}, s{sT0}, 1")
        g.e(f"s_cmp_gt_u32 s{sT0}, 200000")
        g.e(f"s_cbranch_scc1 {name}_fw{tag}")
        g.e("s_waitcnt vmcnt(0)")
        g.e(f"v_cmp_ne_u32 vcc, s3, v{vG}")
        g.e("s_nop 4")
        g.e(f"s_and_b64 vcc, vcc, {mask}")
        g.e(f"s_cbranch_scc1 {name}_fpoll{tag}")
        g.label(f"{name}_fw{tag}")

    SPF = o.get("spf", 0)
    if SPF:
        g.e(f"s_mul_i32 s{sT0}, s{sMT}, 1280")
        g.e(f"s_add_u32 s{sT0}, s{sT0}, s92")
        g.e(f"s_add_u32 s{sT0}, s{sT0}, {WS_WP}")
        g.e(f"s_add_u32 s4, s50, s{sT0}")
        g.e(f"s_addc_u32 s5, s51, 0")
        g.e(f"s_and_b32 s{sT0}, s{sNT}, 3")
        g.e(f"s_lshl_b32 s{sT0}, s{sT0}, 8")
        g.e(f"s_add_u32 s{sT0}, s{sT0}, s{sBASE}")
        g.e(f"s_add_u32 s6, s50, s{sT0}")
        g.e(f"s_addc_u32 s7, s51, 0")
        g.e(f"s_add_u32 s8, s6, 0x200000")
        g.e(f"s_addc_u32 s9, s7, 0")
    def spf_list(k):
        if not SPF or k > 7: return []
        L = [f"s_load_dword s10, s[4:5], {k*10240 + i*128:#x}" for i in range(10)]
        if o.get("spfh", 1):
            for r in range(4):
                for i in range(2):
                    L.append(f"s_load_dword s10, s[6:7], {r*32768 + k*1024 + i*128:#x}")
                    L.append(f"s_load_dword s10, s[8:9], {r*32768 + k*1024 + i*128:#x}")
        return L
    def Hreg(s_, j): return HB + s_*24 + j*4
    def HIreg(s_, r): return HIB + s_*16 + r*4
    def Wreg(s_, t): return WB + s_*40 + t*4
    def ldW(k, t):
        s_ = k % NST
        off = (k*10 + t)*1024
        return ("W", k, t, s_, off)
    def emitW(k, t):
        s_ = k % NST
        off = (k*10 + t)*1024
        g.e(f"s_mov_b32 s{sT0}, {off & ~4095}")
        g.vmem(f"buffer_load_dwordx4 {ar(Wreg(s_,t))}, v{vW}, {sr(SWP)}, s{sT0} offen offset:{off & 4095}{lf}", ("W", k, t))
    def emitH(k, j):
        s_ = k % NST
        so_h = "0" if k < 4 else f"s{C4K}"
        g.vmem(f"buffer_load_dwordx4 {vr(Hreg(s_,j))}, v{vH[j]}, {sr(SA)}, {so_h} offen offset:{(k%4)*1024}{lf}", ("H", k, j))
    def emitHI(k, r):
        s_ = k % NST
        so = f"s{C2M}" if k < 4 else f"s{C2M4K}"
        g.vmem(f"buffer_load_dwordx4 {vr(HIreg(s_,r))}, v{vH[r+1]}, {sr(SA)}, {so} offen offset:{(k%4)*1024}{lf}", ("HI", k, r))
    def order(k):
        return [("W",1),("H",0),("H",1),("H",2),("H",3),("W",4),("H",4),("W",7),("H",5),("W",9),
                ("HI",0),("HI",1),("HI",2),("HI",3),("W",0),("W",3),("W",6),("W",2),("W",5),("W",8)]
    queue = [(k, t, i) for k in range(8) for (t, i) in order(k)]
    def emit_item(it):
        k, t, i = it
        {"W": emitW, "H": emitH, "HI": emitHI}[t](k, i)
    WPRE = o.get("WPRE", 2)
    split = 0
    if split:
        poll("P", "s[90:91]", False)
        st(); dt(g, 9)
        pre = [it for it in queue if it[1] == "W" and it[0] < WPRE]
        for it in pre:
            queue.remove(it); emit_item(it)
        if o.get("pfw", 0):
            g.e(f"s_mul_i32 s{sT0}, s{sMT}, 10240")
            g.e(f"s_add_u32 s{sT0}, s{sT0}, s92")
            g.e(f"v_lshlrev_b32 v{vPF}, 7, v{vLane}")
            g.e(f"buffer_load_dword v{vPF+1}, v{vPF}, {sr(SWP)}, s{sT0} offen{lf}")
            g.e(f"s_add_u32 s{sT0}, s{sT0}, 2048")
            g.e(f"buffer_load_dword v{vPF+2}, v{vPF}, {sr(SWP)}, s{sT0} offen{lf}")
        g.e(f"v_cmp_ne_u32 vcc, s3, v{vG}")
        g.e("s_nop 4")
        g.e("s_and_b64 vcc, vcc, s[94:95]")
        g.e(f"s_cbranch_scc0 {name}_fwG")
        poll("G", "s[94:95]", False)
    else:
        if o.get("w0", 1):
            g.e(f"s_mov_b32 s{sT0}, 0xffff")
            g.e(f"s_cmp_eq_u32 s{sMT}, 0")
            g.e(f"s_cselect_b32 s{sT0}, 0xfff0, s{sT0}")
            g.e(f"s_cmp_eq_u32 s{sMT}, 7")
            g.e(f"s_cselect_b32 s94, 0x0fff, s{sT0}")
            g.e("s_or_b64 s[90:91], s[90:91], s[94:95]")
            g.e(f"s_cmp_lg_u32 s{sW}, 0")
            g.e(f"s_cbranch_scc1 {name}_fwP")
            poll("P", "s[90:91]", False)
            g.e("s_waitcnt vmcnt(0)")
            g.e("s_barrier")
        else:
            g.e("s_or_b64 s[90:91], s[90:91], s[94:95]")
            poll("P", "s[90:91]", False)
        st(); dt(g, 9)
    if st.on:
        g.e(f"s_memrealtime s[{52+2*st.n}:{53+2*st.n}]"); st.n += 1
    def issue_next(cur_k):
        if not queue: return False
        it = queue[0]
        if it[0] - NST >= cur_k or len(g.vm) >= 60: return False
        queue.pop(0); emit_item(it); return True
    def need(tok, k):
        while any((it[1], it[0], it[2]) == tok for it in queue): assert issue_next(k)
    if o.get("al"): g.raw(f".p2align {o['al']}")
    for _ in range(o.get("sh", 0)): g.e("s_nop 0")
    for _ in range(PRE): issue_next(0)
    if o.get("pfh", 0):
        g.e(f"s_and_b32 s{sT0}, s{sNT}, 3")
        g.e(f"s_lshl_b32 s{sT0}, s{sT0}, 11")
        g.e(f"s_add_u32 s{sT0}, s{sT0}, s{sBASE}")
        g.e(f"v_lshrrev_b32 v{vPF}, 4, v{vLane}")
        g.e(f"v_lshlrev_b32 v{vPF}, 15, v{vPF}")
        g.e(f"v_and_b32 v{vPF+1}, 15, v{vLane}")
        g.e(f"v_lshl_add_u32 v{vPF}, v{vPF+1}, 7, v{vPF}")
        g.vmem(f"buffer_load_dword v{vPF+1}, v{vPF}, {sr(SA)}, s{sT0} offen{lf}")
        g.e(f"s_add_u32 s{sT0}, s{sT0}, 0x200000")
        g.vmem(f"buffer_load_dword v{vPF+2}, v{vPF}, {sr(SA)}, s{sT0} offen{lf}")
    wr_pending = []
    for k in range(8):
        s_ = k % NST
        last = k == 7
        g.c(f"---- k-step {k}")
        if k == 1: st()
        if k == XFK:
            g.vmem(f"buffer_load_dwordx4 {vr(vXF)}, v{vO}, {sr(SX)}, 0 offen{xfl}", ("XF",))
            g.vmem(f"buffer_load_dwordx4 {vr(vXF+4)}, v{vO}, {sr(SX)}, s{sT1} offen{xfl}", ("XF",))
        if XFK == -2 and k == 5:
            g.e(f"s_cmp_lg_u32 s{sW}, 0")
            g.e(f"s_cbranch_scc1 {name}_xf1")
            g.e(f"buffer_load_dwordx4 {vr(vXF)}, v{vO}, {sr(SX)}, 0 offen{xfl}")
            g.e(f"buffer_load_dwordx4 {vr(vXF+4)}, v{vO}, {sr(SX)}, s{sT1} offen{xfl}")
            g.label(f"{name}_xf1")
        if o.get("ste") and k >= 2: g.e(f"s_memtime s[{60+2*(k-2)}:{61+2*(k-2)}]")
        dpp = [(T0, vMR, "wave_shr:1", j, i) for j in range(6) for i in range(4)]
        dpp2 = [(T2, vML, "wave_shl:1", j, i) for j in range(6) for i in range(4)]
        mf = []
        for di in range(3):
            for r in range(4): mf.append((r, di*3+1, ("H", k, r+di), Hreg(s_, r+di), "A"))
        for r in range(4): mf.append((r, 9, ("HI", k, r), HIreg(s_, r), "B"))
        if not last:
            for di in range(3):
                for r in range(4): mf.append((r, di*3, None, T0 + (r+di)*4, "C"))
            for di in range(3):
                for r in range(4): mf.append((r, di*3+2, None, T2 + (r+di)*4, "D"))
        else:
            dpp = [x for pair in zip(dpp, dpp2) for x in pair]; dpp2 = []
            for r in range(4):
                for di in range(3): mf.append((r, di*3, None, T0 + (r+di)*4, "E"))
                for di in range(3): mf.append((r, di*3+2, None, T2 + (r+di)*4, "E" if di < 2 else "F"))
        since = 0
        spl = spf_list(k + SPF) if k > 0 else [x for kk in range(2, SPF+1) for x in spf_list(kk)]
        for n, (r, t, ht, hreg, grp) in enumerate(mf):
            toks = [("W", k, t)] + ([ht] if ht else [])
            for tok in toks: need(tok, k)
            g.wait_vm(toks)
            c = "0" if (k == 0 and n < 4) else ar(ACC+16*r, 16)
            if o.get("fake16"):
                for u_ in range(2):
                    q_ = ACC + 16*r + 4*((2*n + u_) % 4)
                    g.e(f"v_mfma_f32_16x16x32_bf16 {ar(q_)}, {ar(Wreg(s_,t))}, {vr(hreg)}, {'0' if k == 0 and n < 8 else ar(q_)}")
            else:
                g.e(f"v_mfma_f32_32x32x16_bf16 {ar(ACC+16*r,16)}, {ar(Wreg(s_,t))}, {vr(hreg)}, {c}")
            if grp in "AB" and n >= 2:
                for _ in range(4 if last else 2):
                    if dpp:
                        T, vm_, sh, j, i = dpp.pop(0)
                        need(("H", k, j), k); g.wait_vm([("H", k, j)])
                        g.e(f"v_and_b32_dpp v{T+j*4+i}, v{Hreg(s_,j)+i}, v{vm_} {sh} row_mask:0xf bank_mask:0xf bound_ctrl:0")
            if grp == "C":
                for _ in range(3):
                    if dpp2:
                        T, vm_, sh, j, i = dpp2.pop(0)
                        g.e(f"v_and_b32_dpp v{T+j*4+i}, v{Hreg(s_,j)+i}, v{vm_} {sh} row_mask:0xf bank_mask:0xf bound_ctrl:0")
            if o.get("RN"):
                if (n * o["RN"]) % o["RD"] < o["RN"]: issue_next(k)
            elif n % EVERY == EVERY - 1: issue_next(k)
            for _ in range(2 if k == 0 else 1):
                if spl: g.e(spl.pop(0))
            if wr_pending:
                since += 1
                if since == 2: g.e("s_nop 9")
                if since >= 2:
                    g.e(wr_pending.pop(0))
            if grp == "F":
                assert not wr_pending
                wr_pending = [f"ds_write_b128 v{vA}, {ar(ACC+16*r+4*q)} offset:{r*17408 + q*1088}" for q in range(4)]
                since = 0
        assert not dpp and not dpp2
    assert not queue
    g.c("---- epilogue")
    st(); dt(g, 11)
    g.e("s_nop 11")
    for w_ in wr_pending: g.e(w_)
    g.e("s_waitcnt lgkmcnt(0)")
    if o.get("ste"): g.e("s_memtime s[54:55]")
    g.e("s_barrier")
    if o.get("ste"): g.e("s_memtime s[56:57]")
    R = HB
    for i in range(2):
        for src in range(4):
            for hf in range(2):
                g.lds(f"ds_read_b128 {vr(R + ((i*4+src)*2+hf)*4)}, v{vA1} offset:{src*4352 + hf*512 + i*256}", ("R", i, src))
    XU = R + 64
    g.e("s_waitcnt vmcnt(0)"); g.vm = []
    for i in range(2):
        for e_ in range(4):
            x = vXF + 4*i + e_
            g.e(f"v_lshlrev_b32 v{XU+8*i+2*e_}, 16, v{x}")
            g.e(f"v_and_b32 v{XU+8*i+2*e_+1}, 0xffff0000, v{x}")
    for i in range(2):
        base = R + i*32
        for src in range(4):
            g.wait_lg([("R", i, src)])
            for e_ in range(4):
                g.e(f"v_pk_add_f32 {vr(XU+8*i+2*e_,2)}, {vr(XU+8*i+2*e_,2)}, {vr(base+8*src+2*e_,2)}")
        for e_ in range(4): g.e(f"v_cvt_pk_bf16_f32 v{vXF+4*i+e_}, v{XU+8*i+2*e_}, v{XU+8*i+2*e_+1}")
        g.vmem(f"buffer_store_dwordx4 {vr(vXF+4*i)}, v{vO}, {sr(SO)}, {'0' if i==0 else 's%d'%sT1} offen{o.get('ostf',' sc1')}")
    if o.get("ste"): g.e("s_memtime s[58:59]")
    if o.get("enc"):
        i = o["enc"]
        g.e("s_waitcnt vmcnt(0)")
        g.e("s_memrealtime s[76:77]")
        g.e(f"s_cmp_lg_u32 s2, {o.get('encwg', 8)}")
        g.e("s_cbranch_scc1 enc_done")
        g.e(f"s_cmp_lg_u32 s{sW}, 0")
        g.e("s_cbranch_scc1 enc_done")
        g.e("s_waitcnt lgkmcnt(0)")
        g.e(f"s_sub_u32 s84, s{52+2*i}, s52")
        g.e("s_mul_i32 s84, s84, 20")
        g.label("enc_loop")
        g.e("s_memrealtime s[86:87]")
        g.e("s_waitcnt lgkmcnt(0)")
        g.e("s_sub_u32 s85, s86, s76")
        g.e("s_cmp_lt_u32 s85, s84")
        g.e("s_cbranch_scc1 enc_loop")
        g.label("enc_done")
    else:
        dt_finish(g)
    st.finish(st.n + 1)
    return AEND

def gen_all(out, o):
    DT[0] = bool(o.get("dt", 0)); CPF[0] = o.get("cpf", 2); CPF[1] = o.get("cpfo", 0)
    name = "fused_kernel"
    g = Gen(); st = Stamper(g, o.get("st", 0))
    entry(g, name, st)
    phase1(g, name, st, o)
    aend = phase2(g, name, st, o)
    g.label(f"{name}_end"); g.e("s_endpgm")
    build([(name, g.text(), kd(name, 256 + max(aend, 128), 256, 100), 256, 256, 160*1024)], out)

if __name__ == "__main__":
    o = {}
    for a in sys.argv[2:]:
        k, v = a.split("=")
        o[k] = int(v) if v.lstrip("-").isdigit() else " " + v.replace("+", " ")
    gen_all(sys.argv[1], o)
```

```python
import sys, struct
from gen import Gen, vr, ar, sr, srd, kd, build, WS_H, WS_HI, WS_WP, WS_ST, WP_BYTES
import gen4
from gen4 import Stamper, f2u, LOG2E, sW, WS_MB, dt, dt_finish, DT, CPF, entry

def phase1(g, name, st, o):
    stf = o.get("stf", " sc1")
    ldf = " nt" if o.get("nt", 0) else ""
    SX, SWT, SWS, SXI, SDB = 12, 16, 20, 24, 28
    sCT, sU, sT0, sT1, sT2, sXROW, sM0X = 33, 34, 35, 36, 37, 38, 39
    sSOX, sSOW, sNONCE = 42, 43, 3
    sODD, sKC = 94, 95
    vLane, vT, vT2, vXD, vWD, vWA, vPX, vHF, vL16 = 1, 2, 3, 4, 5, 6, 7, 8, 9
    vXA = [10, 11, 12, 13]; vXAs = [14, 15, 16, 17]
    vWAs, vST, vWR, vNC, vZ, vWAs2 = 18, 19, 20, 21, 22, 23
    XF, WF, ACC, TMP = 24, 64, 80, 160
    g.e(f"s_and_b32 s{sT0}, s2, 7")
    g.e(f"s_lshr_b32 s{sT1}, s2, 3")
    g.e(f"s_and_b32 s{sCT}, s{sT1}, 3")
    g.e(f"s_lshr_b32 s{sT1}, s{sT1}, 2")
    if o.get("mix", 1):
        g.e(f"s_lshl_b32 s{sU}, s{sT0}, 2")
        g.e(f"s_lshr_b32 s{sT2}, s{sT1}, 1")
        g.e(f"s_add_u32 s{sU}, s{sU}, s{sT2}")
        g.e(f"s_and_b32 s{sT0}, s{sT1}, 1")
        g.e(f"s_lshl_b32 s{sT0}, s{sT0}, 2")
    else:
        g.e(f"s_and_b32 s{sU}, s{sT0}, 3")
        g.e(f"s_lshl_b32 s{sU}, s{sU}, 3")
        g.e(f"s_add_u32 s{sU}, s{sU}, s{sT1}")
    g.e(f"v_lshrrev_b32 v{vT}, 3, v{vLane}")
    g.e(f"s_lshl_b32 s{sT2}, s{sW}, 3")
    g.e(f"v_add_u32 v{vXD}, s{sT2}, v{vT}")
    g.e(f"v_lshrrev_b32 v{vT}, 1, v{vXD}")
    g.e(f"v_and_b32 v{vT}, 7, v{vT}")
    g.e(f"v_and_b32 v{vT2}, 7, v{vLane}")
    g.e(f"v_xor_b32 v{vT}, v{vT}, v{vT2}")
    g.e(f"v_lshlrev_b32 v{vT}, 4, v{vT}")
    g.e(f"v_lshl_add_u32 v{vXD}, v{vXD}, 10, v{vT}")
    g.e(f"v_lshrrev_b32 v{vT}, 4, v{vLane}")
    g.e(f"v_lshlrev_b32 v{vT2}, 2, v{vT}")
    g.e(f"v_and_b32 v{vWD}, 15, v{vLane}")
    g.e(f"v_xor_b32 v{vWD}, v{vWD}, v{vT2}")
    g.e(f"v_lshlrev_b32 v{vWD}, 4, v{vWD}")
    g.e(f"s_lshl_b32 s{sT2}, s{sW}, 2")
    g.e(f"v_add_u32 v{vT}, s{sT2}, v{vT}")
    g.e(f"v_lshl_add_u32 v{vWD}, v{vT}, 10, v{vWD}")
    g.e(f"s_lshl_b32 s{sT2}, s{sCT}, 8")
    g.e(f"v_add_u32 v{vWD}, s{sT2}, v{vWD}")
    g.e(f"s_lshl_b32 s{sM0X}, s{sW}, 10")
    g.e(f"v_mov_b32 v{vZ}, 0")
    g.e(f"s_cmp_ge_u32 s{sT0}, 4")
    g.e(f"s_cbranch_scc1 {name}_P")
    st_n0 = st.n

    def nonce_wait(role):
        g.wait_vm([("NC",)])
        g.e(f"s_mov_b32 s{sT2}, 0")
        g.label(f"{name}_ncpoll{role}")
        g.e(f"v_readfirstlane_b32 s{sNONCE}, v{vNC}")
        g.e(f"s_add_u32 s{sT2}, s{sT2}, 1")
        g.e(f"s_cmp_gt_u32 s{sT2}, 100000")
        g.e(f"s_cbranch_scc1 {name}_ncok{role}")
        g.e(f"s_cmp_lg_u32 s{sNONCE}, 0")
        g.e(f"s_cbranch_scc1 {name}_ncok{role}")
        g.e(f"buffer_load_dword v{vNC}, v{vZ}, {sr(SDB)}, 0 offen sc1")
        g.e("s_waitcnt vmcnt(0)")
        g.e(f"s_branch {name}_ncpoll{role}")
        g.label(f"{name}_ncok{role}")

    def pretouch():
        if not o.get("tlb", 0): return
        lab = f"{name}_pt{len(g.lines)}"
        g.e(f"s_cmp_lg_u32 s{sW}, 3")
        g.e(f"s_cbranch_scc1 {lab}")
        srd(g, 84, 50, 51, 12 << 20)
        g.e(f"v_lshlrev_b32 v{vT}, 18, v{vLane}")
        g.e(f"buffer_load_dword v252, v{vT}, s[84:87], 0 offen")
        srd(g, 84, 46, 47, 2 << 20)
        g.e(f"v_lshlrev_b32 v{vT}, 16, v{vLane}")
        g.e(f"buffer_load_dword v253, v{vT}, s[84:87], 0 offen")
        srd(g, 84, 40, 41, 2 << 20)
        g.e(f"buffer_load_dword v254, v{vT}, s[84:87], 0 offen")
        g.e(f"buffer_load_dword v251, v{vZ}, {sr(SDB)}, 0 offen sc1")
        g.label(lab)

    def frag_consts(G):
        pretouch()
        g.e(f"v_and_b32 v{vPX}, 31, v{vLane}")
        g.e(f"v_lshrrev_b32 v{vHF}, 5, v{vLane}")
        g.e(f"v_lshlrev_b32 v{vL16}, 4, v{vLane}")
        g.e(f"v_lshrrev_b32 v{vT}, 1, v{vPX}")
        g.e(f"v_and_b32 v{vT}, 7, v{vT}")
        g.e(f"v_xor_b32 v{vT}, v{vT}, v{vHF}")
        g.e(f"v_lshlrev_b32 v{vT}, 4, v{vT}")
        g.e(f"v_lshl_add_u32 v{vXA[0]}, v{vPX}, 7, v{vT}")
        if G:
            g.e(f"s_lshr_b32 s{sT2}, s{sW}, 1")
            g.e(f"s_lshl_b32 s{sT2}, s{sT2}, 12")
            g.e(f"v_add_u32 v{vXA[0]}, s{sT2}, v{vXA[0]}")
        for s in range(1, 4):
            g.e(f"v_xor_b32 v{vXA[s]}, {s*32}, v{vXA[0]}")
        g.e(f"v_bfe_u32 v{vT}, v{vLane}, 2, 2")
        g.e(f"v_lshl_add_u32 v{vT2}, v{vHF}, 3, v{vT}")
        g.e(f"v_lshlrev_b32 v{vWA}, 8, v{vT2}")
        if G:
            g.e(f"s_and_b32 s{sT2}, s{sW}, 1")
            g.e(f"s_lshl_b32 s{sT2}, s{sT2}, 1")
            g.e(f"v_xor_b32 v{vT}, s{sT2}, v{vT}")
        else:
            g.e(f"v_xor_b32 v{vT}, s{sW}, v{vT}")
        g.e(f"v_lshl_add_u32 v{vWA}, v{vT}, 6, v{vWA}")
        g.e(f"v_bfe_u32 v{vT}, v{vLane}, 4, 1")
        g.e(f"v_lshl_add_u32 v{vWA}, v{vT}, 5, v{vWA}")
        g.e(f"v_and_b32 v{vT}, 3, v{vLane}")
        g.e(f"v_lshl_add_u32 v{vWA}, v{vT}, 3, v{vWA}")

    vFL = 239
    def flag_setup(G):
        NL = o.get("NL", 8); LG = NL.bit_length() - 1; MS = NL*128
        def slot_off(dst, src):
            g.e(f"s_and_b32 s88, s{src}, {NL-1}")
            g.e(f"s_lshl_b32 s88, s88, 7")
            g.e(f"s_lshr_b32 s{dst}, s{src}, {LG}")
            g.e(f"s_lshl_b32 s{dst}, s{dst}, 2")
            g.e(f"s_add_u32 s{dst}, s{dst}, s88")
        if G:
            g.e(f"s_lshr_b32 s{sT0}, s{sU}, 1")
            g.e(f"s_and_b32 s{sT1}, s{sU}, 1")
            g.e(f"s_lshl_b32 s{sT2}, s{sT1}, 1")
            g.e(f"s_add_u32 s{sT2}, s{sT2}, s{sT0}")
            g.e(f"s_sub_u32 s{sT2}, s{sT2}, 1")
            g.e(f"s_add_u32 s{sSOX}, s{sT1}, 1")
            g.e(f"s_lshl_b32 s{sSOX}, s{sSOX}, 2")
            g.e(f"s_add_u32 s{sSOX}, s{sSOX}, s{sCT}")
            slot_off(sSOX, sSOX)
            g.e(f"s_mul_i32 s89, s{sT0}, {16*MS}")
            g.e(f"s_add_u32 s{sSOX}, s{sSOX}, s89")
            g.e(f"s_cmp_eq_u32 s{sT1}, 0")
            g.e(f"s_cselect_b32 s{sSOW}, 12, 0")
            g.e(f"s_add_u32 s{sSOW}, s{sSOW}, s{sCT}")
            slot_off(sSOW, sSOW)
            g.e(f"s_mul_i32 s89, s{sT2}, {16*MS}")
            g.e(f"s_add_u32 s{sSOW}, s{sSOW}, s89")
            g.e(f"s_lshr_b32 s{sT2}, s{sT2}, 3")
            g.e(f"s_lshr_b32 s{sT0}, s{sT0}, 3")
            g.e(f"s_cmp_eq_u32 s{sT2}, s{sT0}")
            g.e(f"s_cselect_b32 s88, -1, 0xffff")
            g.e(f"s_mov_b32 s89, 0")
            g.e(f"v_and_b32 v{vT}, 15, v{vLane}")
            g.e(f"v_mul_u32_u24 v{vT}, {MS}, v{vT}")
            g.e(f"v_mov_b32 v{vT2}, s{sSOW}")
            g.e(f"v_mov_b32 v{vFL}, s{sSOX}")
            g.e(f"v_cmp_gt_u32 vcc, 16, v{vLane}")
            g.e("s_nop 1")
            g.e(f"v_cndmask_b32 v{vT2}, v{vT2}, v{vFL}, vcc")
            g.e(f"v_add_u32 v{vT}, v{vT}, v{vT2}")
            g.e(f"v_add_u32 v{vFL}, {WS_MB}, v{vT}")
        else:
            g.e(f"v_lshrrev_b32 v{vT}, 2, v{vLane}")
            g.e(f"v_lshlrev_b32 v{vT}, 4, v{vT}")
            g.e(f"v_and_b32 v{vT2}, 3, v{vLane}")
            g.e(f"v_add_u32 v{vT}, v{vT}, v{vT2}")
            g.e(f"v_mul_u32_u24 v{vT}, {MS}, v{vT}")
            g.e(f"s_add_u32 s{sT1}, s{sU}, 16")
            slot_off(sT1, sT1)
            g.e(f"s_mul_i32 s{sT0}, s{sCT}, {4*MS}")
            g.e(f"s_add_u32 s{sT0}, s{sT0}, s{sT1}")
            g.e(f"s_add_u32 s{sT0}, s{sT0}, {WS_MB}")
            g.e(f"v_add_u32 v{vFL}, s{sT0}, v{vT}")
            g.e(f"s_mov_b64 s[88:89], -1")
    def push(level, wave=0):
        lab = f"{name}_push{len(g.lines)}"
        g.e(f"s_cmp_lg_u32 s{sW}, {wave}")
        g.e(f"s_cbranch_scc1 {lab}")
        g.e(f"v_add_u32 v{vT}, {level}, v{vNC}")
        g.e(f"s_mov_b64 exec, s[88:89]")
        g.e(f"buffer_store_dword v{vT}, v{vFL}, {sr(SWS)}, 0 offen sc1")
        g.e("s_mov_b64 exec, -1")
        g.label(lab)
    def publish(G):
        while st.on and st.n < 13: st()
        dt(g, 5 if G else 6)
        if st.on: g.e("s_memrealtime s[78:79]")
        g.e("s_waitcnt vmcnt(0)")
        g.e("s_barrier")
        if st.on: g.e("s_memrealtime s[80:81]")
        dt(g, 7 if G else 8)
        push(2, 1)
        if G: g.e(f"s_branch {name}_ph2")

    def bodyP():
        g.vm = []; g.lg = []
        st.n = st_n0
        g.label(f"{name}_P")
        NA = 3
        S = o.get("SP", 4)
        STG = 16384 + NA*4096
        XB3, XB4 = S*STG, (S*STG + 32768 if S == 3 else 0)
        PRE = o.get("PREP", 3)
        g.e(f"s_and_b32 s{sODD}, s{sU}, 1")
        g.e(f"s_lshr_b32 s{sT1}, s{sU}, 1")
        g.e(f"s_mul_i32 s{sXROW}, s{sT1}, 288")
        g.e(f"s_mul_i32 s{sT2}, s{sODD}, 160")
        g.e(f"s_add_u32 s{sXROW}, s{sXROW}, s{sT2}")
        g.e(f"s_lshr_b32 s{sKC}, s{sT1}, 1")
        g.e(f"s_lshl_b32 s{sKC}, s{sKC}, 16")
        g.e(f"s_lshl_b32 s93, s{sXROW}, 10")
        g.e(f"s_lshr_b32 s92, s{sKC}, 9")
        g.e("s_waitcnt lgkmcnt(0)")
        st(); dt(g, 2)
        srd(g, SX, 44, 45, 4608*1024); srd(g, SWT, 10, 11, 512 << 10)
        cur = [None]
        def kofs(kc):
            if cur[0] == kc: return
            cur[0] = kc
            g.e(f"s_add_u32 s{sT2}, s92, {kc*128}")
            g.e(f"s_and_b32 s{sT2}, s{sT2}, 0x3ff")
            g.e(f"s_add_u32 s91, s{sT2}, s93")
            g.e(f"s_lshl_b32 s90, s{sT2}, 9")
        def ldW(kc, m):
            kofs(kc)
            g.e(f"s_add_u32 m0, s{sM0X}, {(kc % S)*STG + m*4096}")
            g.e(f"s_add_u32 s{sSOW}, s90, {m*16384}")
            g.vmem(f"buffer_load_dwordx4 v{vWD}, {sr(SWT)}, s{sSOW} offen{ldf} lds", ("D", kc))
        def ldX(b, kc):
            kofs(kc)
            dst = (kc % S)*STG + 16384 + b*4096 if b < NA else [XB3, XB4][b-NA] + kc*4096
            g.e(f"s_add_u32 m0, s{sM0X}, {dst}")
            g.e(f"s_add_u32 s{sSOX}, s91, {b*32768}")
            g.vmem(f"buffer_load_dwordx4 v{vXD}, {sr(SX)}, s{sSOX} offen{ldf} lds", ("D", kc) if b < NA else ("XB", b))
        ldq = []
        for kc in range(8):
            for m in range(4): ldq.append(("W", kc, m, kc - S))
            for b in range(NA): ldq.append(("X", b, kc, kc - S))
            if not o.get("late", 1) and kc >= 2:
                for b in (3, 4): ldq.append(("X", b, kc - 2, -1))
        if o.get("late", 1):
            for b in (3, 4):
                for kc in range(8): ldq.append(("X", b, kc, 5 if (b == 4 and S == 4) else -1))
        else:
            for kc in (6, 7):
                for b in (3, 4): ldq.append(("X", b, kc, -1))
        freed = [-1]
        def ldnext():
            if not ldq or len(g.vm) >= 60: return False
            t, a, b_, need = ldq[0]
            if need > freed[0]: return False
            ldq.pop(0)
            if t == "W": ldW(a, b_)
            else: ldX(a, b_)
            return True
        for _ in range(7*PRE): ldnext()
        slotc = [0]
        srd(g, SDB, 48, 49, 256)
        frag_consts(False)
        srd(g, SWS, 50, 51, 16 << 20)
        g.e(f"s_lshl_b32 s{sT0}, s{sCT}, 2")
        g.e(f"s_add_u32 s{sT0}, s{sT0}, s{sW}")
        g.e(f"s_mul_i32 s{sT0}, s{sT0}, {32*10240}")
        g.e(f"s_add_u32 s{sT0}, s{sT0}, {WS_WP}")
        g.e(f"v_add_u32 v{vST}, s{sT0}, v{vL16}")
        XRB = TMP + 40
        def read_list(kc, s):
            p = (kc*4 + s) % 2
            ks = 4*kc + s
            L = []
            for h in range(2):
                L.append((f"ds_read_b64_tr_b16 {ar(4*ks+2*h,2)}, v{vWAs} offset:{s*4096+h*1024}", 0))
            for b in range(NA):
                L.append((f"ds_read_b128 {vr(XF+p*20+b*4)}, v{vXAs[s]} offset:{b*4096}", b))
            return [(r, ("R", kc, s, b)) for r, b in L]
        def stage_addr(kc):
            sb = (kc % S) * STG
            for s in range(4): g.e(f"v_add_u32 v{vXAs[s]}, {sb + 16384}, v{vXA[s]}")
            g.e(f"v_add_u32 v{vWAs}, {sb}, v{vWA}")
        stage_addr(0)
        st()
        g.wait_vm([("D", 0)])
        g.e("s_barrier")
        st()
        for r, t in read_list(0, 0): g.lds(r, t)
        LPA = o.get("LPA", 1)
        for kc in range(8):
            for s in range(4):
                if s < 3:
                    nxt = read_list(kc, s+1)
                else:
                    nxt = []
                    if kc < 7:
                        g.wait_lg([("R", kc, 3, b) for b in range(NA)])
                        while any(t[3] == kc+1-S and t[3] >= -10 and ((t[0] == "W" and t[1] == kc+1) or (t[0] == "X" and t[1] < NA and t[2] == kc+1)) for t in ldq): assert ldnext()
                        g.wait_vm([("D", kc+1)])
                        g.e("s_barrier")
                        if kc in (1, 3, 5): st()
                        freed[0] = kc
                        stage_addr(kc+1)
                        nxt = read_list(kc+1, 0)
                p = (kc*4 + s) % 2
                ks = 4*kc + s
                for b in range(NA):
                    g.wait_lg([("R", kc, s, bb) for bb in range(b+1)])
                    ac = vr(ACC+16*b, 16)
                    g.e(f"v_mfma_f32_32x32x16_bf16 {ac}, {vr(XF+p*20+b*4)}, {ar(4*ks)}, {'0' if ks == 0 else ac}")
                    for _ in range(2):
                        if nxt:
                            r, t = nxt.pop(0); g.lds(r, t)
                    slotc[0] += 1
                    if (slotc[0] * o.get("PN", 12)) % 12 < o.get("PN", 12): ldnext()
            if kc == 4:
                g.vmem(f"buffer_load_dword v{vNC}, v{vZ}, {sr(SDB)}, 0 offen sc1", ("NC",))
            if kc == 0: flag_setup(False)
        while ldq: assert ldnext()
        st()
        def store_block(b):
            a = ACC + 16*b
            L = []
            L.append(f"s_add_u32 s{sT0}, s{sXROW}, {32*b}")
            L.append(f"s_lshr_b32 s{sT1}, s{sT0}, 9")
            L.append(f"s_and_b32 s{sT0}, s{sT0}, 511")
            L.append(f"s_lshr_b32 s{sT0}, s{sT0}, 4")
            L.append(f"s_mul_i32 s{sT0}, s{sT0}, 10")
            L.append(f"s_add_u32 s{sT0}, s{sT0}, s{sT1}")
            L.append(f"s_lshl_b32 s{sT0}, s{sT0}, 10")
            L.append(f"s_add_u32 s{sT1}, s{sT0}, 10240")
            for hh in range(2):
                d = TMP + b*8 + hh*4
                for i in range(4):
                    L.append(f"v_cvt_pk_bf16_f32 v{d+i}, v{a+8*hh+2*i}, v{a+8*hh+2*i+1}")
                L.append(("ST", f"buffer_store_dwordx4 {vr(d)}, v{vST}, {sr(SWS)}, s{sT0 if hh==0 else sT1} offen{stf}"))
            return L
        def emit(x):
            if isinstance(x, tuple): g.vmem(x[1])
            else: g.e(x)
        xr = [0]; xreg = {}
        def xread(b, ks):
            r = XRB + (xr[0] % 8)*4; xr[0] += 1
            g.lds(f"ds_read_b128 {vr(r)}, v{vXAs[ks%4]} offset:{(ks//4)*4096}", ("R2", b, ks))
            return r
        g.wait_vm([("XB", 3)] if o.get("late", 1) else [("XB", 3), ("XB", 4)])
        g.e("s_barrier")
        def blockB(b, pend):
            for s in range(4): g.e(f"v_add_u32 v{vXAs[s]}, {[XB3, XB4][b-3]}, v{vXA[s]}")
            AH = 6
            for ks in range(AH): xreg[(b, ks)] = xread(b, ks)
            for ks in range(32):
                g.wait_lg([("R2", b, ks)])
                ac = vr(ACC + 16*b, 16)
                g.e(f"v_mfma_f32_32x32x16_bf16 {ac}, {vr(xreg[(b,ks)])}, {ar(4*ks)}, {'0' if ks == 0 else ac}")
                if ks + AH < 32: xreg[(b, ks+AH)] = xread(b, ks+AH)
                if ks >= 1:
                    for _ in range(2):
                        if pend: emit(pend.pop(0))
            assert not pend
        blockB(3, store_block(0) + store_block(1) + store_block(2))
        st()
        g.e(f"s_cmp_lg_u32 s{sODD}, 0")
        g.e(f"s_cbranch_scc1 {name}_P4")
        saved = (list(g.vm), list(g.lg))
        if o.get("late", 1):
            g.wait_vm([("XB", 4)])
            g.e("s_barrier")
        blockB(4, store_block(3))
        st(); dt(g, 4)
        g.e("s_nop 3")
        for x in store_block(4): emit(x)
        g.e(f"s_branch {name}_Pdone")
        g.label(f"{name}_P4")
        g.vm, g.lg = saved
        g.e(f"s_lshr_b32 s{sT0}, s{sU}, 1")
        g.e(f"s_and_b32 s{sT2}, s{sT0}, 1")
        g.e(f"s_mul_i32 s{sT0}, s{sT0}, 20480")
        g.e(f"s_add_u32 s{sT0}, s{sT0}, 9216")
        g.e(f"s_add_u32 s{sT1}, s{sT0}, 10240")
        g.e(f"s_cmp_eq_u32 s{sT2}, 0")
        g.e(f"s_cbranch_scc0 {name}_rp1")
        g.e(f"buffer_store_dwordx4 {ar(0)}, v{vST}, {sr(SWS)}, s{sT0} offen{stf}")
        g.e(f"buffer_store_dwordx4 {ar(4)}, v{vST}, {sr(SWS)}, s{sT1} offen{stf}")
        g.e(f"s_branch {name}_rp2")
        g.label(f"{name}_rp1")
        g.e(f"buffer_store_dwordx4 {ar(8)}, v{vST}, {sr(SWS)}, s{sT0} offen{stf}")
        g.e(f"buffer_store_dwordx4 {ar(12)}, v{vST}, {sr(SWS)}, s{sT1} offen{stf}")
        g.label(f"{name}_rp2")
        g.e("s_nop 3")
        for x in store_block(3): emit(x)
        g.label(f"{name}_Pdone")
        g.vm = []
        nonce_wait("P")
        publish(False)

    def bodyG():
        NX, S = 2, 6
        XB = NX * 4096
        STG = XB + 16384
        NI = NX + 4
        PRE1 = o.get("PREG", 3)
        XT = 6*STG
        g.vm = []; g.lg = []
        st.n = st_n0
        g.e(f"s_lshl_b32 s{sXROW}, s{sU}, 16")
        g.e(f"v_lshrrev_b32 v{vT}, 4, v{vLane}")
        g.e(f"s_lshl_b32 s{sT2}, s{sW}, 2")
        g.e(f"v_add_u32 v{vT}, s{sT2}, v{vT}")
        g.e(f"v_and_b32 v{vT2}, 15, v{vLane}")
        g.e(f"v_xor_b32 v{vT2}, v{vT2}, v{vT}")
        g.e(f"v_lshlrev_b32 v{vT2}, 4, v{vT2}")
        g.e(f"v_lshl_add_u32 v{vT}, v{vT}, 10, v{vT2}")
        g.e(f"s_lshl_b32 s{sT2}, s{sCT}, 8")
        g.e(f"v_add_u32 v{vWR}, s{sT2}, v{vT}")
        g.e("s_waitcnt lgkmcnt(0)")
        st(); dt(g, 2)
        srd(g, SX, 6, 7, 2 << 20); srd(g, SWT, 8, 9, 512 << 10); srd(g, SXI, 4, 5, 2 << 20)
        def ld1(kc, m):
            sb = (kc % S) * STG
            isx = m < NX
            mm = m if isx else m - NX
            g.e(f"s_add_u32 m0, s{sM0X}, {sb + m*4096}")
            if isx: g.e(f"s_add_u32 s{sSOX}, s{sXROW}, {mm*32768 + kc*128}")
            else:   g.e(f"s_mov_b32 s{sSOW}, {(kc*64 + 16*mm)*1024}")
            va, sd, so = (vXD, SX, sSOX) if isx else (vWD, SWT, sSOW)
            g.vmem(f"buffer_load_dwordx4 v{va}, {sr(sd)}, s{so} offen{ldf} lds", ("D", kc))
        for m in range(NI): ld1(0, m)
        srd(g, SDB, 48, 49, 256)
        g.e(f"s_or_b32 s{sT0}, s2, s{sW}")
        g.e(f"s_cmp_lg_u32 s{sT0}, 0")
        g.e(f"s_cbranch_scc1 {name}_nn")
        g.e("s_memrealtime s[96:97]")
        g.e("s_waitcnt lgkmcnt(0)")
        g.e(f"s_or_b32 s96, s96, 1")
        g.e(f"s_and_b32 s96, s96, 0x7fffffff")
        g.e(f"v_mov_b32 v{vT}, s96")
        g.e(f"buffer_store_dword v{vT}, v{vZ}, {sr(SDB)}, 0 offen sc1")
        g.label(f"{name}_nn")
        for kc in range(1, PRE1):
            for m in range(NI): ld1(kc, m)
        ldq = [(kc, m) for kc in range(PRE1, 8) for m in range(NI)]
        k6 = [i for i, (kc, m) in enumerate(ldq) if kc >= 5][0]
        ldq[k6:k6] = [("X", m) for m in range(4)]
        freed = [0]
        def ldnext():
            if not ldq: return False
            kc, m = ldq[0]
            if kc == "X":
                ldq.pop(0)
                g.e(f"s_add_u32 m0, s{sM0X}, {XT + m*4096}")
                g.e(f"s_add_u32 s{sSOX}, s{sXROW}, {m*16384}")
                g.vmem(f"buffer_load_dwordx4 v{vWR}, {sr(SXI)}, s{sSOX} offen{ldf} lds", ("D", 5))
                return True
            if kc - S >= freed[0]: return False
            ldq.pop(0); ld1(kc, m); return True
        frag_consts(True)
        srd(g, SWS, 50, 51, 16 << 20)
        mk = len(g.lines)
        vXR, vGA, vGO = TMP+60, TMP+61, TMP+62
        g.e(f"s_lshr_b32 s{sT0}, s{sW}, 1")
        g.e(f"s_and_b32 s{sT1}, s{sW}, 1")
        g.e(f"s_lshl_b32 s{sT2}, s{sT0}, 13")
        g.e(f"s_add_u32 s{sT2}, s{sT2}, {XT}")
        g.e(f"v_and_b32 v{vT}, 15, v{vPX}")
        g.e(f"s_lshl_b32 s{sSOX}, s{sT1}, 3")
        g.e(f"v_xor_b32 v{vT}, s{sSOX}, v{vT}")
        g.e(f"v_lshlrev_b32 v{vT}, 4, v{vT}")
        g.e(f"v_lshl_add_u32 v{vT}, v{vPX}, 8, v{vT}")
        g.e(f"v_lshl_add_u32 v{vT}, v{vHF}, 3, v{vT}")
        g.e(f"v_add_u32 v{vXR}, s{sT2}, v{vT}")
        g.e(f"s_lshl_b32 s{sT2}, s{sT0}, 15")
        g.e(f"s_add_u32 s{sT2}, s{sT2}, s{sXROW}")
        g.e(f"s_lshl_b32 s{sSOX}, s{sCT}, 13")
        g.e(f"s_add_u32 s{sT2}, s{sT2}, s{sSOX}")
        g.e(f"s_lshl_b32 s{sSOX}, s{sT1}, 12")
        g.e(f"s_add_u32 s{sT2}, s{sT2}, s{sSOX}")
        g.e(f"v_add_u32 v{vST}, s{sT2}, v{vL16}")
        g.e(f"s_lshl_b32 s{sSOX}, s{sU}, 1")
        g.e(f"s_add_u32 s{sSOX}, s{sSOX}, s{sT0}")
        g.e(f"s_lshl_b32 s{sSOX}, s{sSOX}, 12")
        g.e(f"s_add_u32 s{sSOX}, s{sSOX}, {WS_ST}")
        g.e(f"v_lshlrev_b32 v{vGO}, 4, v{vPX}")
        g.e(f"v_add_u32 v{vGO}, s{sSOX}, v{vGO}")
        g.e(f"v_lshl_add_u32 v{vGA}, v{vHF}, 11, v{vGO}")
        g.e(f"s_lshl_b32 s93, s{sCT}, 1")
        g.e(f"s_add_u32 s93, s93, s{sT1}")
        g.e(f"s_lshl_b32 s93, s93, 9")
        flag_setup(True)
        deferG = g.lines[mk:]; del g.lines[mk:]
        def stage_addr(kc):
            sb = (kc % S) * STG
            for s in range(4): g.e(f"v_add_u32 v{vXAs[s]}, {sb}, v{vXA[s]}")
            g.e(f"v_add_u32 v{vWAs}, {sb + XB}, v{vWA}")
            g.e(f"v_xor_b32 v{vWAs2}, 64, v{vWAs}")
        def read_list(kc, s):
            p = (kc*4 + s) % 2
            L = [(f"ds_read_b128 {vr(XF+p*20)}, v{vXAs[s]}", 0)]
            for cb in range(2):
                for h in range(2):
                    L.append((f"ds_read_b64_tr_b16 {vr(WF+p*8+cb*4+h*2,2)}, v{vWAs if cb==0 else vWAs2} offset:{s*4096+h*1024}", cb))
            return [(r, ("R", kc, s, b)) for r, b in L]
        stage_addr(0)
        st()
        g.wait_vm([("D", 0)])
        g.e("s_barrier")
        st()
        XR = TMP
        XU = ACC + 32
        for r, t in read_list(0, 0): g.lds(r, t)
        LPM = o.get("LPG", 1)
        for kc in range(8):
            for s in range(4):
                if s < 3:
                    nxt = read_list(kc, s+1)
                else:
                    nxt = []
                    if kc < 7:
                        g.wait_lg([("R", kc, 3, b) for b in range(2)])
                        while any(c_ == kc+1 for c_, _ in ldq): assert ldnext()
                        g.wait_vm([("D", kc+1)])
                        g.e("s_barrier")
                        if kc in (0, 2, 4, 6): st()
                        freed[0] = kc + 1
                        stage_addr(kc+1)
                        nxt = read_list(kc+1, 0)
                p = (kc*4 + s) % 2
                for b in range(2):
                    g.wait_lg([("R", kc, s, bb) for bb in range(b+1)])
                    ac = vr(ACC+16*b, 16)
                    g.e(f"v_mfma_f32_32x32x16_bf16 {ac}, {vr(WF+p*8+b*4)}, {vr(XF+p*20)}, {'0' if kc == 0 and s == 0 else ac}")
                    for _ in range(3):
                        if nxt:
                            r, t = nxt.pop(0); g.lds(r, t)
                    for _ in range(LPM): ldnext()
            if kc == 4:
                g.vmem(f"buffer_load_dword v{vNC}, v{vZ}, {sr(SDB)}, 0 offen sc1", ("NC",))
            if kc == 0: g.lines += deferG
            if kc == 5:
                for j in range(8):
                    g.e(f"v_xor_b32 v{vT2}, {j*16}, v{vXR}")
                    g.lds(f"ds_read_b64 {vr(XR+2*j,2)}, v{vT2}", ("XR", j))
            if kc == 6:
                g.wait_lg([("XR", 7)])
                for j in range(16):
                    g.e(f"v_lshlrev_b32 v{XU+2*j}, 16, v{XR+j}")
                    g.e(f"v_and_b32 v{XU+2*j+1}, 0xffff0000, v{XR+j}")
        assert not ldq
        st(); dt(g, 3)
        nonce_wait("G")
        g.e("s_nop 7")
        S1, S2 = TMP+16, TMP+18
        P1, P2 = TMP+20, TMP+22
        for i in range(16): g.e(f"v_pk_add_f32 {vr(ACC+2*i,2)}, {vr(ACC+2*i,2)}, {vr(XU+2*i,2)}")
        g.e(f"v_pk_add_f32 {vr(P1,2)}, {vr(ACC,2)}, {vr(ACC+2,2)}")
        g.e(f"v_pk_mul_f32 {vr(P2,2)}, {vr(ACC,2)}, {vr(ACC,2)}")
        g.e(f"v_pk_fma_f32 {vr(P2,2)}, {vr(ACC+2,2)}, {vr(ACC+2,2)}, {vr(P2,2)}")
        for i in range(2, 16):
            g.e(f"v_pk_add_f32 {vr(P1,2)}, {vr(P1,2)}, {vr(ACC+2*i,2)}")
            g.e(f"v_pk_fma_f32 {vr(P2,2)}, {vr(ACC+2*i,2)}, {vr(ACC+2*i,2)}, {vr(P2,2)}")
        g.e(f"v_add_f32 v{S1}, v{P1}, v{P1+1}")
        g.e(f"v_add_f32 v{S2}, v{P2}, v{P2+1}")
        g.e(f"v_mov_b32 v{vT}, v{S1}")
        g.e(f"v_mov_b32 v{vT2}, v{S2}")
        g.e(f"v_mov_b32 v{S1+1}, v{vNC}")
        g.e(f"v_mov_b32 v{S2+1}, v{vNC}")
        g.e(f"v_permlane32_swap_b32 v{S1}, v{vT}")
        g.e(f"v_permlane32_swap_b32 v{S2}, v{vT2}")
        g.e(f"v_add_f32 v{S1}, v{S1}, v{vT}")
        g.e(f"v_add_f32 v{S2}, v{S2}, v{vT2}")
        g.e("s_mov_b64 exec, 0xffffffff")
        g.e(f"buffer_store_dwordx4 {vr(S1)}, v{vGO}, {sr(SWS)}, s93 offen sc1")
        g.e("s_mov_b64 exec, -1")
        st()
        for j in range(16):
            g.e(f"v_cvt_pk_bf16_f32 v{XR+j}, v{ACC+2*j}, v{ACC+2*j+1}")
        g.e("s_nop 1")
        for hh in range(4):
            g.e(f"v_permlane32_swap_b32 v{XR+4*hh}, v{XR+4*hh+2}")
            g.e(f"v_permlane32_swap_b32 v{XR+4*hh+1}, v{XR+4*hh+3}")
        EA, EB = TMP + 24, TMP + 40
        def poll_issue(E):
            for e_ in range(4):
                g.e(f"buffer_load_dwordx4 {vr(E+4*e_)}, v{vGA}, {sr(SWS)}, 0 offen offset:{e_*512} sc1")
        def poll_check(E):
            g.e(f"v_xor_b32 v{vT}, v{E+1}, v{vNC}")
            for e_ in range(4):
                for o_ in (1, 3):
                    if e_ == 0 and o_ == 1: continue
                    g.e(f"v_xor_b32 v{vT2}, v{E+4*e_+o_}, v{vNC}")
                    g.e(f"v_or_b32 v{vT}, v{vT}, v{vT2}")
            g.e(f"v_cmp_ne_u32 vcc, 0, v{vT}")
            g.e("s_nop 4")
        g.e(f"s_mov_b32 s{sT2}, 0")
        poll_issue(EA)
        g.label(f"{name}_poll")
        g.e(f"s_add_u32 s{sT2}, s{sT2}, 1")
        g.e(f"s_cmp_gt_u32 s{sT2}, 100000")
        g.e(f"s_cbranch_scc1 {name}_pollx")
        if o.get("pp", 1):
            g.e("s_sleep 4")
            poll_issue(EB)
            g.e("s_waitcnt vmcnt(4)")
            poll_check(EA)
            g.e(f"s_cbranch_vccz {name}_pollx")
            poll_issue(EA)
            g.e("s_waitcnt vmcnt(4)")
            poll_check(EB)
            g.e(f"s_cbranch_vccnz {name}_poll")
            g.e("s_waitcnt vmcnt(0)")
        else:
            g.e("s_waitcnt vmcnt(0)")
            poll_check(EA)
            g.e(f"s_cbranch_vccz {name}_pollx")
            poll_issue(EA)
            g.e(f"s_branch {name}_poll")
        g.label(f"{name}_pollx")
        st()
        E = EA
        g.e(f"s_mov_b32 s{sT1}, {WS_HI}")
        for e_ in range(1, 4):
            g.e(f"v_add_f32 v{E}, v{E}, v{E+4*e_}")
            g.e(f"v_add_f32 v{E+2}, v{E+2}, v{E+4*e_+2}")
        g.e(f"v_mov_b32 v{vT}, v{E}")
        g.e(f"v_mov_b32 v{vT2}, v{E+2}")
        for hh in range(4):
            g.e(f"buffer_store_dwordx4 {vr(XR+4*hh)}, v{vST}, {sr(SWS)}, s{sT1} offen offset:{hh*1024}{stf}")
        g.e(f"v_permlane32_swap_b32 v{E}, v{vT}")
        g.e(f"v_permlane32_swap_b32 v{E+2}, v{vT2}")
        g.e(f"v_add_f32 v{E}, v{E}, v{vT}")
        g.e(f"v_add_f32 v{E+2}, v{E+2}, v{vT2}")
        g.e(f"v_mul_f32 v{E}, {f2u(1/512):#x}, v{E}")
        g.e(f"v_mul_f32 v{E+2}, {f2u(1/512):#x}, v{E+2}")
        g.e(f"v_fma_f32 v{E+2}, -v{E}, v{E}, v{E+2}")
        g.e(f"v_max_f32 v{E+2}, 0, v{E+2}")
        g.e(f"v_add_f32 v{E+2}, {f2u(1e-5):#x}, v{E+2}")
        A_, B_, A2, B2 = E+4, E+6, E+8, E+10
        g.e(f"v_rsq_f32 v{A_}, v{E+2}")
        g.e("s_nop 0")
        g.e(f"v_mul_f32 v{B_}, v{E}, v{A_}")
        g.e(f"v_sub_f32 v{B_}, 0, v{B_}")
        g.e(f"v_mul_f32 v{A2}, {f2u(-LOG2E):#x}, v{A_}")
        g.e(f"v_mul_f32 v{B2}, {f2u(-LOG2E):#x}, v{B_}")
        Y = XF
        D = WF
        for hh in range(4):
            a = ACC + 8*hh; y = Y + (hh % 2)*8
            for i in range(4): g.e(f"v_pk_fma_f32 {vr(y+2*i,2)}, {vr(a+2*i,2)}, {vr(A2,2)}, {vr(B2,2)} op_sel_hi:[1,0,0]")
            for i in range(8): g.e(f"v_exp_f32 v{y+i}, v{y+i}")
            for i in range(4): g.e(f"v_pk_fma_f32 {vr(a+2*i,2)}, {vr(a+2*i,2)}, {vr(A_,2)}, {vr(B_,2)} op_sel_hi:[1,0,0]")
            for i in range(4): g.e(f"v_pk_add_f32 {vr(y+2*i,2)}, {vr(y+2*i,2)}, 1.0 op_sel_hi:[1,0]")
            for i in range(8): g.e(f"v_rcp_f32 v{y+i}, v{y+i}")
            g.e("s_nop 0")
            for i in range(4): g.e(f"v_pk_mul_f32 {vr(a+2*i,2)}, {vr(a+2*i,2)}, {vr(y+2*i,2)}")
            d = D + hh*4
            for i in range(4): g.e(f"v_cvt_pk_bf16_f32 v{d+i}, v{a+2*i}, v{a+2*i+1}")
            g.e(f"buffer_store_dwordx4 {vr(d)}, v{vST}, {sr(SWS)}, 0 offen offset:{hh*1024}{stf}")
            if hh == o.get("L1H", 3):
                g.e(f"s_waitcnt vmcnt({hh+1})")
                g.e("s_barrier")
                push(1)
        publish(True)
    bodyG(); bodyP()

def phase2(g, name, st, o):
    NST, PRE, EVERY = o.get("NST", 3), o.get("PRE", 20), o.get("EVERY", 2)
    lf = o.get("lf", " sc1").replace(" none", "")
    SA, SWP, SX, SO, SDB = 12, 16, 20, 24, 28
    C4K, C8K, C2M, C2M4K = 33, 34, 42, 43
    sMT, sNT, sB, sT0, sT1, sR0, sBASE = 35, 36, 37, 38, 39, 97, 96
    vLane, vT, vW, vMR, vML, vO, vT2 = 1, 2, 3, 4, 5, 6, 7
    vH = [8+j for j in range(6)]
    vA, vA1 = 14, 15
    vXF = 16
    HB = 24
    HIB = HB + NST*24
    T0 = HIB + NST*16
    T2 = T0 + 24
    VEND = T2 + 24
    vF, vG, vPF = VEND, VEND+1, VEND+2
    assert VEND + 8 <= 250
    ACC, WB = 0, 64
    AEND = WB + NST*40
    g.vm = []; g.lg = []
    g.label(f"{name}_ph2")
    if st.on: st.n = 15
    st()
    g.e(f"s_and_b32 s{sT0}, s2, 7")
    g.e(f"s_lshr_b32 s{sT1}, s2, 3")
    g.e(f"s_and_b32 s{sB}, s{sT0}, 1")
    g.e(f"s_lshr_b32 s{sT0}, s{sT0}, 1")
    g.e(f"s_and_b32 s{sMT}, s{sT1}, 7")
    g.e(f"s_lshr_b32 s{sT1}, s{sT1}, 3")
    g.e(f"s_lshl_b32 s{sNT}, s{sT0}, 2")
    g.e(f"s_add_u32 s{sNT}, s{sNT}, s{sT1}")
    g.e(f"s_lshl_b32 s{sT0}, s{sB}, 5")
    g.e(f"s_lshl_b32 s{sT1}, s{sMT}, 2")
    g.e(f"s_add_u32 s{sR0}, s{sT0}, s{sT1}")
    srd(g, SDB, 50, 51, 16 << 20)
    NL = o.get("NL", 8); LG = NL.bit_length() - 1; MS = NL*128
    g.e(f"s_lshr_b32 s{sT0}, s{sR0}, 2")
    g.e(f"s_lshl_b32 s{sT0}, s{sT0}, 4")
    g.e(f"s_add_u32 s{sT0}, s{sT0}, s{sNT}")
    g.e(f"s_mul_i32 s{sT0}, s{sT0}, {MS}")
    g.e(f"s_add_u32 s{sT0}, s{sT0}, {WS_MB}")
    g.e(f"v_and_b32 v{vF}, {NL-1}, v{vLane}")
    g.e(f"v_lshlrev_b32 v{vF}, 7, v{vF}")
    g.e(f"v_lshrrev_b32 v{vG}, {LG}, v{vLane}")
    g.e(f"v_lshl_add_u32 v{vF}, v{vG}, 2, v{vF}")
    g.e(f"v_add_u32 v{vF}, s{sT0}, v{vF}")
    g.e(f"s_movk_i32 s{C4K}, 0x1000")
    g.e(f"s_movk_i32 s{C8K}, 0x2000")
    g.e(f"s_mov_b32 s{C2M}, 0x200000")
    g.e(f"s_mov_b32 s{C2M4K}, 0x201000")
    g.e(f"s_lshl_b32 s{sBASE}, s{sR0}, 15")
    g.e(f"s_lshl_b32 s{sT0}, s{sW}, 13")
    g.e(f"s_add_u32 s{sBASE}, s{sBASE}, s{sT0}")
    g.e(f"v_lshlrev_b32 v{vT}, 4, v{vLane}")
    for j in range(1, 5):
        g.e(f"s_add_u32 s{sT0}, s{sBASE}, {(j-1)*32768}")
        g.e(f"v_add_u32 v{vH[j]}, s{sT0}, v{vT}")
    g.e(f"s_sub_u32 s{sT0}, s{sBASE}, 32768")
    g.e(f"s_cmp_eq_u32 s{sMT}, 0")
    g.e(f"s_cselect_b32 s{sT0}, 0x40000000, s{sT0}")
    g.e(f"v_add_u32 v{vH[0]}, s{sT0}, v{vT}")
    g.e(f"s_add_u32 s{sT0}, s{sBASE}, {4*32768}")
    g.e(f"s_cmp_eq_u32 s{sMT}, 7")
    g.e(f"s_cselect_b32 s{sT0}, 0x40000000, s{sT0}")
    g.e(f"v_add_u32 v{vH[5]}, s{sT0}, v{vT}")
    g.e(f"s_lshl_b32 s{sT0}, s{sNT}, 5")
    g.e(f"s_lshl_b32 s{sT1}, s{sW}, 3")
    g.e(f"s_add_u32 s{sT0}, s{sT0}, s{sT1}")
    g.e(f"s_mul_i32 s92, s{sT0}, 10240")
    g.e(f"v_add_u32 v{vW}, s92, v{vT}")
    srd(g, SA, 50, 51, 4 << 20)
    srd(g, SWP, 50, 51, WP_BYTES, add=WS_WP)
    srd(g, SX, 40, 41, 2 << 20)
    srd(g, SO, 46, 47, 2 << 20)
    g.e(f"s_add_u32 s{sT0}, s{sR0}, s{sW}")
    g.e(f"s_lshl_b32 s{sT0}, s{sT0}, 15")
    g.e(f"s_lshl_b32 s{sT1}, s{sNT}, 6")
    g.e(f"s_add_u32 s{sT0}, s{sT0}, s{sT1}")
    g.e(f"v_lshrrev_b32 v{vO}, 2, v{vLane}")
    g.e(f"v_lshlrev_b32 v{vO}, 10, v{vO}")
    g.e(f"v_and_b32 v{vT2}, 3, v{vLane}")
    g.e(f"v_lshlrev_b32 v{vT2}, 4, v{vT2}")
    g.e(f"v_add3_u32 v{vO}, v{vO}, v{vT2}, s{sT0}")
    g.e(f"s_movk_i32 s{sT1}, 0x4000")

    g.e(f"v_and_b32 v{vT}, 31, v{vLane}")
    g.e(f"v_cmp_ne_u32 vcc, 0, v{vT}")
    g.e("s_nop 1")
    g.e(f"v_cndmask_b32 v{vMR}, 0, -1, vcc")
    g.e(f"v_cmp_ne_u32 vcc, 31, v{vT}")
    g.e("s_nop 1")
    g.e(f"v_cndmask_b32 v{vML}, 0, -1, vcc")
    g.e(f"v_lshlrev_b32 v{vA}, 4, v{vLane}")
    g.e(f"s_mul_i32 s{sT0}, s{sW}, 4352")
    g.e(f"v_add_u32 v{vA}, s{sT0}, v{vA}")
    g.e(f"v_and_b32 v{vA1}, 3, v{vLane}")
    g.e(f"v_mul_u32_u24 v{vA1}, 1088, v{vA1}")
    g.e(f"v_lshrrev_b32 v{vT}, 2, v{vLane}")
    g.e(f"v_lshl_add_u32 v{vA1}, v{vT}, 4, v{vA1}")
    g.e(f"s_mul_i32 s{sT0}, s{sW}, 17408")
    g.e(f"v_add_u32 v{vA1}, s{sT0}, v{vA1}")
    g.e("s_mov_b32 s90, 0xffff0000")
    g.e("s_mov_b32 s91, 0xffff")
    g.e(f"s_movk_i32 s{sT0}, 0x1111")
    g.e(f"s_cmp_eq_u32 s{sMT}, 0")
    g.e(f"s_cselect_b32 s{sT0}, 0x1110, s{sT0}")
    g.e(f"s_cmp_eq_u32 s{sMT}, 7")
    g.e(f"s_cselect_b32 s{sT0}, 0x0111, s{sT0}")
    g.e(f"s_lshl_b32 s94, s{sT0}, s{sW}")
    g.e("s_mov_b32 s95, 0")
    def poll(tag, mask, first_issued):
        g.e(f"s_mov_b32 s{sT0}, 0")
        if first_issued: g.e(f"s_branch {name}_fchk{tag}")
        g.label(f"{name}_fpoll{tag}")
        if o.get("fs", 0): g.e(f"s_sleep {o['fs']}")
        g.e(f"buffer_load_dword v{vG}, v{vF}, {sr(SDB)}, 0 offen sc1")
        g.label(f"{name}_fchk{tag}")
        g.e(f"s_add_u32 s{sT0}, s{sT0}, 1")
        g.e(f"s_cmp_gt_u32 s{sT0}, 200000")
        g.e(f"s_cbranch_scc1 {name}_fw{tag}")
        g.e("s_waitcnt vmcnt(0)")
        g.e(f"v_cmp_ne_u32 vcc, s3, v{vG}")
        g.e("s_nop 4")
        g.e(f"s_and_b64 vcc, vcc, {mask}")
        g.e(f"s_cbranch_scc1 {name}_fpoll{tag}")
        g.label(f"{name}_fw{tag}")

    SPF = o.get("spf", 0)
    if SPF:
        g.e(f"s_mul_i32 s{sT0}, s{sMT}, 1280")
        g.e(f"s_add_u32 s{sT0}, s{sT0}, s92")
        g.e(f"s_add_u32 s{sT0}, s{sT0}, {WS_WP}")
        g.e(f"s_add_u32 s4, s50, s{sT0}")
        g.e(f"s_addc_u32 s5, s51, 0")
        g.e(f"s_and_b32 s{sT0}, s{sNT}, 3")
        g.e(f"s_lshl_b32 s{sT0}, s{sT0}, 8")
        g.e(f"s_add_u32 s{sT0}, s{sT0}, s{sBASE}")
        g.e(f"s_add_u32 s6, s50, s{sT0}")
        g.e(f"s_addc_u32 s7, s51, 0")
        g.e(f"s_add_u32 s8, s6, 0x200000")
        g.e(f"s_addc_u32 s9, s7, 0")
    def spf_list(k):
        if not SPF or k > 7: return []
        L = [f"s_load_dword s10, s[4:5], {k*10240 + i*128:#x}" for i in range(10)]
        if o.get("spfh", 1):
            for r in range(4):
                for i in range(2):
                    L.append(f"s_load_dword s10, s[6:7], {r*32768 + k*1024 + i*128:#x}")
                    L.append(f"s_load_dword s10, s[8:9], {r*32768 + k*1024 + i*128:#x}")
        return L
    def Hreg(s_, j): return HB + s_*24 + j*4
    def HIreg(s_, r): return HIB + s_*16 + r*4
    def Wreg(s_, t): return WB + s_*40 + t*4
    def ldW(k, t):
        s_ = k % NST
        off = (k*10 + t)*1024
        return ("W", k, t, s_, off)
    def emitW(k, t):
        s_ = k % NST
        off = (k*10 + t)*1024
        g.e(f"s_mov_b32 s{sT0}, {off & ~4095}")
        g.vmem(f"buffer_load_dwordx4 {ar(Wreg(s_,t))}, v{vW}, {sr(SWP)}, s{sT0} offen offset:{off & 4095}{lf}", ("W", k, t))
    def emitH(k, j):
        s_ = k % NST
        so_h = "0" if k < 4 else f"s{C4K}"
        g.vmem(f"buffer_load_dwordx4 {vr(Hreg(s_,j))}, v{vH[j]}, {sr(SA)}, {so_h} offen offset:{(k%4)*1024}{lf}", ("H", k, j))
    def emitHI(k, r):
        s_ = k % NST
        so = f"s{C2M}" if k < 4 else f"s{C2M4K}"
        g.vmem(f"buffer_load_dwordx4 {vr(HIreg(s_,r))}, v{vH[r+1]}, {sr(SA)}, {so} offen offset:{(k%4)*1024}{lf}", ("HI", k, r))
    def order(k):
        return [("W",1),("H",0),("H",1),("H",2),("H",3),("W",4),("H",4),("W",7),("H",5),("W",9),
                ("HI",0),("HI",1),("HI",2),("HI",3),("W",0),("W",3),("W",6),("W",2),("W",5),("W",8)]
    queue = [(k, t, i) for k in range(8) for (t, i) in order(k)]
    def emit_item(it):
        k, t, i = it
        {"W": emitW, "H": emitH, "HI": emitHI}[t](k, i)
    g.e(f"s_mov_b32 s{sT0}, 0xffff")
    g.e(f"s_cmp_eq_u32 s{sMT}, 0")
    g.e(f"s_cselect_b32 s{sT0}, 0xfff0, s{sT0}")
    g.e(f"s_cmp_eq_u32 s{sMT}, 7")
    g.e(f"s_cselect_b32 s94, 0x0fff, s{sT0}")
    g.e("s_or_b64 s[90:91], s[90:91], s[94:95]")
    g.e("s_mov_b32 s94, 0xaaaa0ff0")
    g.e("s_mov_b32 s95, 0xaaaa")
    def wait_level(tag, lvl, mask, pre_issued=False):
        g.e(f"s_cmp_lg_u32 s{sW}, 0")
        g.e(f"s_cbranch_scc1 {name}_fw{tag}")
        g.e(f"s_add_u32 s93, s3, {lvl}")
        g.e(f"s_mov_b32 s{sT0}, 0")
        if pre_issued: g.e(f"s_branch {name}_fchk{tag}")
        g.label(f"{name}_fpoll{tag}")
        g.e(f"buffer_load_dword v{vG}, v{vF}, {sr(SDB)}, 0 offen sc1")
        g.label(f"{name}_fchk{tag}")
        g.e(f"s_add_u32 s{sT0}, s{sT0}, 1")
        g.e(f"s_cmp_gt_u32 s{sT0}, 200000")
        g.e(f"s_cbranch_scc1 {name}_fw{tag}")
        g.e("s_waitcnt vmcnt(0)")
        g.e(f"v_subrev_u32 v{vG}, s93, v{vG}")
        g.e(f"v_cmp_lt_u32 vcc, {2-lvl}, v{vG}")
        g.e("s_nop 4")
        g.e(f"s_and_b64 vcc, vcc, {mask}")
        g.e(f"s_cbranch_scc1 {name}_fpoll{tag}")
        g.label(f"{name}_fw{tag}")
        g.e("s_barrier")
    NA2 = o.get("NA2", 8)
    wait_level("1", 1, "s[94:95]")
    st(); dt(g, 9)
    W2B = AEND
    for k in range(NA2):
        off = (k*10 + 9)*1024
        g.e(f"s_mov_b32 s{sT0}, {off & ~4095}")
        g.vmem(f"buffer_load_dwordx4 {ar(W2B+4*k)}, v{vW}, {sr(SWP)}, s{sT0} offen offset:{off & 4095}{lf}", ("W2", k))
        for r in range(4):
            so = f"s{C2M}" if k < 4 else f"s{C2M4K}"
            g.vmem(f"buffer_load_dwordx4 {vr(HB+(k*4+r)*4)}, v{vH[r+1]}, {sr(SA)}, {so} offen offset:{(k%4)*1024}{lf}", ("HIa", k, r))
        queue[:] = [it for it in queue if not (it[0] == k and (it[1] == "HI" or (it[1] == "W" and it[2] == 9)))]
    g.vmem(f"buffer_load_dword v{vG}, v{vF}, {sr(SDB)}, 0 offen sc1")
    for k in range(NA2):
        for r in range(4):
            g.wait_vm([("W2", k), ("HIa", k, r)])
            c = "0" if k == 0 else ar(ACC+16*r, 16)
            g.e(f"v_mfma_f32_32x32x16_bf16 {ar(ACC+16*r,16)}, {ar(W2B+4*k)}, {vr(HB+(k*4+r)*4)}, {c}")
    wait_level("2", 2, "s[90:91]", True)
    dt(g, 10)
    AEND = AEND + 32
    if st.on:
        g.e(f"s_memrealtime s[{52+2*st.n}:{53+2*st.n}]"); st.n += 1
    def issue_next(cur_k):
        if not queue: return False
        it = queue[0]
        if it[0] - NST >= cur_k or len(g.vm) >= 60: return False
        queue.pop(0); emit_item(it); return True
    def need(tok, k):
        while any((it[1], it[0], it[2]) == tok for it in queue): assert issue_next(k)
    for _ in range(PRE): issue_next(0)
    if o.get("pfh", 0):
        g.e(f"s_and_b32 s{sT0}, s{sNT}, 3")
        g.e(f"s_lshl_b32 s{sT0}, s{sT0}, 11")
        g.e(f"s_add_u32 s{sT0}, s{sT0}, s{sBASE}")
        g.e(f"v_lshrrev_b32 v{vPF}, 4, v{vLane}")
        g.e(f"v_lshlrev_b32 v{vPF}, 15, v{vPF}")
        g.e(f"v_and_b32 v{vPF+1}, 15, v{vLane}")
        g.e(f"v_lshl_add_u32 v{vPF}, v{vPF+1}, 7, v{vPF}")
        g.vmem(f"buffer_load_dword v{vPF+1}, v{vPF}, {sr(SA)}, s{sT0} offen{lf}")
        g.e(f"s_add_u32 s{sT0}, s{sT0}, 0x200000")
        g.vmem(f"buffer_load_dword v{vPF+2}, v{vPF}, {sr(SA)}, s{sT0} offen{lf}")
    wr_pending = []
    for k in range(8):
        s_ = k % NST
        last = k == 7
        g.c(f"---- k-step {k}")
        if k == 1: st()
        if k == 6:
            g.vmem(f"buffer_load_dwordx4 {vr(vXF)}, v{vO}, {sr(SX)}, 0 offen")
            g.vmem(f"buffer_load_dwordx4 {vr(vXF+4)}, v{vO}, {sr(SX)}, s{sT1} offen")
        if o.get("ste") and k >= 2: g.e(f"s_memtime s[{60+2*(k-2)}:{61+2*(k-2)}]")
        dpp = [(T0, vMR, "wave_shr:1", j, i) for j in range(6) for i in range(4)]
        dpp2 = [(T2, vML, "wave_shl:1", j, i) for j in range(6) for i in range(4)]
        mf = []
        for di in range(3):
            for r in range(4): mf.append((r, di*3+1, ("H", k, r+di), Hreg(s_, r+di), "A"))
        if k >= NA2:
            for r in range(4): mf.append((r, 9, ("HI", k, r), HIreg(s_, r), "B"))
        if not last:
            for di in range(3):
                for r in range(4): mf.append((r, di*3, None, T0 + (r+di)*4, "C"))
            for di in range(3):
                for r in range(4): mf.append((r, di*3+2, None, T2 + (r+di)*4, "D"))
        else:
            dpp = [x for pair in zip(dpp, dpp2) for x in pair]; dpp2 = []
            for r in range(4):
                for di in range(3): mf.append((r, di*3, None, T0 + (r+di)*4, "E"))
                for di in range(3): mf.append((r, di*3+2, None, T2 + (r+di)*4, "E" if di < 2 else "F"))
        since = 0
        spl = spf_list(k + SPF) if k > 0 else [x for kk in range(2, SPF+1) for x in spf_list(kk)]
        for n, (r, t, ht, hreg, grp) in enumerate(mf):
            toks = [("W", k, t)] + ([ht] if ht else [])
            for tok in toks: need(tok, k)
            g.wait_vm(toks)
            c = "0" if (k == 0 and n < 4 and NA2 == 0) else ar(ACC+16*r, 16)
            if o.get("fake16"):
                for u_ in range(2):
                    q_ = ACC + 16*r + 4*((2*n + u_) % 4)
                    g.e(f"v_mfma_f32_16x16x32_bf16 {ar(q_)}, {ar(Wreg(s_,t))}, {vr(hreg)}, {'0' if k == 0 and n < 8 else ar(q_)}")
            else:
                g.e(f"v_mfma_f32_32x32x16_bf16 {ar(ACC+16*r,16)}, {ar(Wreg(s_,t))}, {vr(hreg)}, {c}")
            if grp in "AB" and n < 10:
                for _ in range(5 if last else 3):
                    if dpp:
                        T, vm_, sh, j, i = dpp.pop(0)
                        need(("H", k, j), k); g.wait_vm([("H", k, j)])
                        g.e(f"v_and_b32_dpp v{T+j*4+i}, v{Hreg(s_,j)+i}, v{vm_} {sh} row_mask:0xf bank_mask:0xf bound_ctrl:0")
            if grp == "C":
                for _ in range(3):
                    if dpp2:
                        T, vm_, sh, j, i = dpp2.pop(0)
                        g.e(f"v_and_b32_dpp v{T+j*4+i}, v{Hreg(s_,j)+i}, v{vm_} {sh} row_mask:0xf bank_mask:0xf bound_ctrl:0")
            if o.get("RN"):
                if (n * o["RN"]) % o["RD"] < o["RN"]: issue_next(k)
            elif n % EVERY == EVERY - 1: issue_next(k)
            for _ in range(2 if k == 0 else 1):
                if spl: g.e(spl.pop(0))
            if wr_pending:
                since += 1
                if since == 2: g.e("s_nop 9")
                if since >= 2:
                    g.e(wr_pending.pop(0))
            if grp == "F":
                assert not wr_pending
                wr_pending = [f"ds_write_b128 v{vA}, {ar(ACC+16*r+4*q)} offset:{r*17408 + q*1088}" for q in range(4)]
                since = 0
        assert not dpp and not dpp2
    assert not queue
    g.c("---- epilogue")
    st(); dt(g, 11)
    g.e("s_nop 11")
    for w_ in wr_pending: g.e(w_)
    g.e("s_waitcnt lgkmcnt(0)")
    if o.get("ste"): g.e("s_memtime s[54:55]")
    g.e("s_barrier")
    if o.get("ste"): g.e("s_memtime s[56:57]")
    R = HB
    for i in range(2):
        for src in range(4):
            for hf in range(2):
                g.lds(f"ds_read_b128 {vr(R + ((i*4+src)*2+hf)*4)}, v{vA1} offset:{src*4352 + hf*512 + i*256}", ("R", i, src))
    XU = R + 64
    g.e("s_waitcnt vmcnt(0)"); g.vm = []
    for i in range(2):
        for e_ in range(4):
            x = vXF + 4*i + e_
            g.e(f"v_lshlrev_b32 v{XU+8*i+2*e_}, 16, v{x}")
            g.e(f"v_and_b32 v{XU+8*i+2*e_+1}, 0xffff0000, v{x}")
    for i in range(2):
        base = R + i*32
        for src in range(4):
            g.wait_lg([("R", i, src)])
            for e_ in range(4):
                g.e(f"v_pk_add_f32 {vr(XU+8*i+2*e_,2)}, {vr(XU+8*i+2*e_,2)}, {vr(base+8*src+2*e_,2)}")
        for e_ in range(4): g.e(f"v_cvt_pk_bf16_f32 v{vXF+4*i+e_}, v{XU+8*i+2*e_}, v{XU+8*i+2*e_+1}")
        g.vmem(f"buffer_store_dwordx4 {vr(vXF+4*i)}, v{vO}, {sr(SO)}, {'0' if i==0 else 's%d'%sT1} offen{o.get('ostf',' sc1')}")
    if o.get("ste"): g.e("s_memtime s[58:59]")
    if o.get("enc"):
        i = o["enc"]
        g.e("s_waitcnt vmcnt(0)")
        g.e("s_memrealtime s[76:77]")
        g.e(f"s_cmp_lg_u32 s2, {o.get('encwg', 8)}")
        g.e("s_cbranch_scc1 enc_done")
        g.e(f"s_cmp_lg_u32 s{sW}, 0")
        g.e("s_cbranch_scc1 enc_done")
        g.e("s_waitcnt lgkmcnt(0)")
        g.e(f"s_sub_u32 s84, s{52+2*i}, s52")
        g.e("s_mul_i32 s84, s84, 20")
        g.label("enc_loop")
        g.e("s_memrealtime s[86:87]")
        g.e("s_waitcnt lgkmcnt(0)")
        g.e("s_sub_u32 s85, s86, s76")
        g.e("s_cmp_lt_u32 s85, s84")
        g.e("s_cbranch_scc1 enc_loop")
        g.label("enc_done")
    else:
        dt_finish(g)
    st.finish(st.n + 1)
    return AEND

def gen_all(out, o):
    DT[0] = bool(o.get("dt", 0)); CPF[0] = o.get("cpf", 2)
    name = "fused_kernel"
    g = Gen(); st = Stamper(g, o.get("st", 0))
    entry(g, name, st)
    phase1(g, name, st, o)
    aend = phase2(g, name, st, o)
    g.label(f"{name}_end"); g.e("s_endpgm")
    build([(name, g.text(), kd(name, 256 + max(aend, 128), 256, 100), 256, 256, 160*1024)], out)

if __name__ == "__main__":
    o = {}
    for a in sys.argv[2:]:
        k, v = a.split("=")
        o[k] = int(v) if v.lstrip("-").isdigit() else " " + v.replace("+", " ")
    gen_all(sys.argv[1], o)
```

```python
import sys, struct
from gen import Gen, vr, ar, sr, srd, kd, build, WS_H, WS_HI, WS_WP, WS_ST, WP_BYTES
import gen4
from gen4 import Stamper, f2u, LOG2E, sW, WS_MB, dt, dt_finish, DT, CPF, entry

def phase1(g, name, st, o):
    stf = o.get("stf", " sc1")
    ldf = " nt" if o.get("nt", 0) else ""
    SX, SWT, SWS, SXI, SDB = 12, 16, 20, 24, 28
    sCT, sU, sT0, sT1, sT2, sXROW, sM0X = 33, 34, 35, 36, 37, 38, 39
    sSOX, sSOW, sNONCE = 42, 43, 3
    sODD, sKC = 94, 95
    vLane, vT, vT2, vXD, vWD, vWA, vPX, vHF, vL16 = 1, 2, 3, 4, 5, 6, 7, 8, 9
    vXA = [10, 11, 12, 13]; vXAs = [14, 15, 16, 17]
    vWAs, vST, vWR, vNC, vZ, vWAs2 = 18, 19, 20, 21, 22, 23
    XF, WF, ACC, TMP = 24, 64, 80, 160
    g.e(f"s_and_b32 s{sT0}, s2, 7")
    g.e(f"s_lshr_b32 s{sT1}, s2, 3")
    g.e(f"s_and_b32 s{sCT}, s{sT1}, 3")
    g.e(f"s_lshr_b32 s{sT1}, s{sT1}, 2")
    if o.get("mix", 1):
        g.e(f"s_lshl_b32 s{sU}, s{sT0}, 2")
        g.e(f"s_lshr_b32 s{sT2}, s{sT1}, 1")
        g.e(f"s_add_u32 s{sU}, s{sU}, s{sT2}")
        g.e(f"s_and_b32 s{sT0}, s{sT1}, 1")
        g.e(f"s_lshl_b32 s{sT0}, s{sT0}, 2")
    else:
        g.e(f"s_and_b32 s{sU}, s{sT0}, 3")
        g.e(f"s_lshl_b32 s{sU}, s{sU}, 3")
        g.e(f"s_add_u32 s{sU}, s{sU}, s{sT1}")
    g.e(f"v_lshrrev_b32 v{vT}, 3, v{vLane}")
    g.e(f"s_lshl_b32 s{sT2}, s{sW}, 3")
    g.e(f"v_add_u32 v{vXD}, s{sT2}, v{vT}")
    g.e(f"v_lshrrev_b32 v{vT}, 1, v{vXD}")
    g.e(f"v_and_b32 v{vT}, 7, v{vT}")
    g.e(f"v_and_b32 v{vT2}, 7, v{vLane}")
    g.e(f"v_xor_b32 v{vT}, v{vT}, v{vT2}")
    g.e(f"v_lshlrev_b32 v{vT}, 4, v{vT}")
    g.e(f"v_lshl_add_u32 v{vXD}, v{vXD}, 10, v{vT}")
    g.e(f"v_lshrrev_b32 v{vT}, 4, v{vLane}")
    g.e(f"v_lshlrev_b32 v{vT2}, 2, v{vT}")
    g.e(f"v_and_b32 v{vWD}, 15, v{vLane}")
    g.e(f"v_xor_b32 v{vWD}, v{vWD}, v{vT2}")
    g.e(f"v_lshlrev_b32 v{vWD}, 4, v{vWD}")
    g.e(f"s_lshl_b32 s{sT2}, s{sW}, 2")
    g.e(f"v_add_u32 v{vT}, s{sT2}, v{vT}")
    g.e(f"v_lshl_add_u32 v{vWD}, v{vT}, 10, v{vWD}")
    g.e(f"s_lshl_b32 s{sT2}, s{sCT}, 8")
    g.e(f"v_add_u32 v{vWD}, s{sT2}, v{vWD}")
    g.e(f"s_lshl_b32 s{sM0X}, s{sW}, 10")
    g.e(f"v_mov_b32 v{vZ}, 0")
    g.e(f"s_cmp_ge_u32 s{sT0}, 4")
    g.e(f"s_cbranch_scc1 {name}_P")
    st_n0 = st.n

    def nonce_wait(role):
        g.wait_vm([("NC",)])
        g.e(f"s_mov_b32 s{sT2}, 0")
        g.label(f"{name}_ncpoll{role}")
        g.e(f"v_readfirstlane_b32 s{sNONCE}, v{vNC}")
        g.e(f"s_add_u32 s{sT2}, s{sT2}, 1")
        g.e(f"s_cmp_gt_u32 s{sT2}, 100000")
        g.e(f"s_cbranch_scc1 {name}_ncok{role}")
        g.e(f"s_cmp_lg_u32 s{sNONCE}, 0")
        g.e(f"s_cbranch_scc1 {name}_ncok{role}")
        g.e(f"buffer_load_dword v{vNC}, v{vZ}, {sr(SDB)}, 0 offen sc1")
        g.e("s_waitcnt vmcnt(0)")
        g.e(f"s_branch {name}_ncpoll{role}")
        g.label(f"{name}_ncok{role}")

    def pretouch():
        if not o.get("tlb", 0): return
        lab = f"{name}_pt{len(g.lines)}"
        g.e(f"s_cmp_lg_u32 s{sW}, 3")
        g.e(f"s_cbranch_scc1 {lab}")
        srd(g, 84, 50, 51, 12 << 20)
        g.e(f"v_lshlrev_b32 v{vT}, 18, v{vLane}")
        g.e(f"buffer_load_dword v252, v{vT}, s[84:87], 0 offen")
        srd(g, 84, 46, 47, 2 << 20)
        g.e(f"v_lshlrev_b32 v{vT}, 16, v{vLane}")
        g.e(f"buffer_load_dword v253, v{vT}, s[84:87], 0 offen")
        srd(g, 84, 40, 41, 2 << 20)
        g.e(f"buffer_load_dword v254, v{vT}, s[84:87], 0 offen")
        g.e(f"buffer_load_dword v251, v{vZ}, {sr(SDB)}, 0 offen sc1")
        g.label(lab)

    def frag_consts(G):
        pretouch()
        g.e(f"v_and_b32 v{vPX}, 31, v{vLane}")
        g.e(f"v_lshrrev_b32 v{vHF}, 5, v{vLane}")
        g.e(f"v_lshlrev_b32 v{vL16}, 4, v{vLane}")
        g.e(f"v_lshrrev_b32 v{vT}, 1, v{vPX}")
        g.e(f"v_and_b32 v{vT}, 7, v{vT}")
        g.e(f"v_xor_b32 v{vT}, v{vT}, v{vHF}")
        g.e(f"v_lshlrev_b32 v{vT}, 4, v{vT}")
        g.e(f"v_lshl_add_u32 v{vXA[0]}, v{vPX}, 7, v{vT}")
        if G:
            g.e(f"s_lshr_b32 s{sT2}, s{sW}, 1")
            g.e(f"s_lshl_b32 s{sT2}, s{sT2}, 12")
            g.e(f"v_add_u32 v{vXA[0]}, s{sT2}, v{vXA[0]}")
        for s in range(1, 4):
            g.e(f"v_xor_b32 v{vXA[s]}, {s*32}, v{vXA[0]}")
        g.e(f"v_bfe_u32 v{vT}, v{vLane}, 2, 2")
        g.e(f"v_lshl_add_u32 v{vT2}, v{vHF}, 3, v{vT}")
        g.e(f"v_lshlrev_b32 v{vWA}, 8, v{vT2}")
        if G:
            g.e(f"s_and_b32 s{sT2}, s{sW}, 1")
            g.e(f"s_lshl_b32 s{sT2}, s{sT2}, 1")
            g.e(f"v_xor_b32 v{vT}, s{sT2}, v{vT}")
        else:
            g.e(f"v_xor_b32 v{vT}, s{sW}, v{vT}")
        g.e(f"v_lshl_add_u32 v{vWA}, v{vT}, 6, v{vWA}")
        g.e(f"v_bfe_u32 v{vT}, v{vLane}, 4, 1")
        g.e(f"v_lshl_add_u32 v{vWA}, v{vT}, 5, v{vWA}")
        g.e(f"v_and_b32 v{vT}, 3, v{vLane}")
        g.e(f"v_lshl_add_u32 v{vWA}, v{vT}, 3, v{vWA}")

    vFL = 239
    def flag_setup(G):
        NL = o.get("NL", 8); LG = NL.bit_length() - 1; MS = NL*128
        def slot_off(dst, src):
            g.e(f"s_and_b32 s88, s{src}, {NL-1}")
            g.e(f"s_lshl_b32 s88, s88, 7")
            g.e(f"s_lshr_b32 s{dst}, s{src}, {LG}")
            g.e(f"s_lshl_b32 s{dst}, s{dst}, 2")
            g.e(f"s_add_u32 s{dst}, s{dst}, s88")
        if G:
            g.e(f"s_lshr_b32 s{sT0}, s{sU}, 1")
            g.e(f"s_and_b32 s{sT1}, s{sU}, 1")
            g.e(f"s_lshl_b32 s{sT2}, s{sT1}, 1")
            g.e(f"s_add_u32 s{sT2}, s{sT2}, s{sT0}")
            g.e(f"s_sub_u32 s{sT2}, s{sT2}, 1")
            g.e(f"s_add_u32 s{sSOX}, s{sT1}, 1")
            g.e(f"s_lshl_b32 s{sSOX}, s{sSOX}, 2")
            g.e(f"s_add_u32 s{sSOX}, s{sSOX}, s{sCT}")
            slot_off(sSOX, sSOX)
            g.e(f"s_mul_i32 s89, s{sT0}, {16*MS}")
            g.e(f"s_add_u32 s{sSOX}, s{sSOX}, s89")
            g.e(f"s_cmp_eq_u32 s{sT1}, 0")
            g.e(f"s_cselect_b32 s{sSOW}, 12, 0")
            g.e(f"s_add_u32 s{sSOW}, s{sSOW}, s{sCT}")
            slot_off(sSOW, sSOW)
            g.e(f"s_mul_i32 s89, s{sT2}, {16*MS}")
            g.e(f"s_add_u32 s{sSOW}, s{sSOW}, s89")
            g.e(f"s_lshr_b32 s{sT2}, s{sT2}, 3")
            g.e(f"s_lshr_b32 s{sT0}, s{sT0}, 3")
            g.e(f"s_cmp_eq_u32 s{sT2}, s{sT0}")
            g.e(f"s_cselect_b32 s88, -1, 0xffff")
            g.e(f"s_mov_b32 s89, 0")
            g.e(f"v_and_b32 v{vT}, 15, v{vLane}")
            g.e(f"v_mul_u32_u24 v{vT}, {MS}, v{vT}")
            g.e(f"v_mov_b32 v{vT2}, s{sSOW}")
            g.e(f"v_mov_b32 v{vFL}, s{sSOX}")
            g.e(f"v_cmp_gt_u32 vcc, 16, v{vLane}")
            g.e("s_nop 1")
            g.e(f"v_cndmask_b32 v{vT2}, v{vT2}, v{vFL}, vcc")
            g.e(f"v_add_u32 v{vT}, v{vT}, v{vT2}")
            g.e(f"v_add_u32 v{vFL}, {WS_MB}, v{vT}")
        else:
            g.e(f"v_lshrrev_b32 v{vT}, 2, v{vLane}")
            g.e(f"v_lshlrev_b32 v{vT}, 4, v{vT}")
            g.e(f"v_and_b32 v{vT2}, 3, v{vLane}")
            g.e(f"v_add_u32 v{vT}, v{vT}, v{vT2}")
            g.e(f"v_mul_u32_u24 v{vT}, {MS}, v{vT}")
            g.e(f"s_add_u32 s{sT1}, s{sU}, 16")
            slot_off(sT1, sT1)
            g.e(f"s_mul_i32 s{sT0}, s{sCT}, {4*MS}")
            g.e(f"s_add_u32 s{sT0}, s{sT0}, s{sT1}")
            g.e(f"s_add_u32 s{sT0}, s{sT0}, {WS_MB}")
            g.e(f"v_add_u32 v{vFL}, s{sT0}, v{vT}")
            g.e(f"s_mov_b64 s[88:89], -1")
    def push(level, wave=0):
        lab = f"{name}_push{len(g.lines)}"
        g.e(f"s_cmp_lg_u32 s{sW}, {wave}")
        g.e(f"s_cbranch_scc1 {lab}")
        g.e(f"v_add_u32 v{vT}, {level}, v{vNC}")
        g.e(f"s_mov_b64 exec, s[88:89]")
        g.e(f"buffer_store_dword v{vT}, v{vFL}, {sr(SWS)}, 0 offen sc1")
        g.e("s_mov_b64 exec, -1")
        g.label(lab)
    def publish(G):
        while st.on and st.n < 13: st()
        dt(g, 5 if G else 6)
        if st.on: g.e("s_memrealtime s[78:79]")
        g.e("s_waitcnt vmcnt(0)")
        g.e("s_barrier")
        if st.on: g.e("s_memrealtime s[80:81]")
        dt(g, 7 if G else 8)
        push(2, 1)
        if G: g.e(f"s_branch {name}_ph2")

    def bodyP():
        g.vm = []; g.lg = []
        st.n = st_n0
        g.label(f"{name}_P")
        NA = 3
        S = o.get("SP", 4)
        STG = 16384 + NA*4096
        XB3, XB4 = S*STG, (S*STG + 32768 if S == 3 else 0)
        PRE = o.get("PREP", 3)
        g.e(f"s_and_b32 s{sODD}, s{sU}, 1")
        g.e(f"s_lshr_b32 s{sT1}, s{sU}, 1")
        g.e(f"s_mul_i32 s{sXROW}, s{sT1}, 288")
        g.e(f"s_mul_i32 s{sT2}, s{sODD}, 160")
        g.e(f"s_add_u32 s{sXROW}, s{sXROW}, s{sT2}")
        g.e(f"s_lshr_b32 s{sKC}, s{sT1}, 1")
        g.e(f"s_lshl_b32 s{sKC}, s{sKC}, 16")
        g.e(f"s_lshl_b32 s93, s{sXROW}, 10")
        g.e(f"s_lshr_b32 s92, s{sKC}, 9")
        g.e("s_waitcnt lgkmcnt(0)")
        st(); dt(g, 2)
        srd(g, SX, 44, 45, 4608*1024); srd(g, SWT, 10, 11, 512 << 10)
        cur = [None]
        def kofs(kc):
            if cur[0] == kc: return
            cur[0] = kc
            g.e(f"s_add_u32 s{sT2}, s92, {kc*128}")
            g.e(f"s_and_b32 s{sT2}, s{sT2}, 0x3ff")
            g.e(f"s_add_u32 s91, s{sT2}, s93")
            g.e(f"s_lshl_b32 s90, s{sT2}, 9")
        def ldW(kc, m):
            kofs(kc)
            g.e(f"s_add_u32 m0, s{sM0X}, {(kc % S)*STG + m*4096}")
            g.e(f"s_add_u32 s{sSOW}, s90, {m*16384}")
            g.vmem(f"buffer_load_dwordx4 v{vWD}, {sr(SWT)}, s{sSOW} offen{ldf} lds", ("D", kc))
        def ldX(b, kc):
            kofs(kc)
            dst = (kc % S)*STG + 16384 + b*4096 if b < NA else [XB3, XB4][b-NA] + kc*4096
            g.e(f"s_add_u32 m0, s{sM0X}, {dst}")
            g.e(f"s_add_u32 s{sSOX}, s91, {b*32768}")
            g.vmem(f"buffer_load_dwordx4 v{vXD}, {sr(SX)}, s{sSOX} offen{ldf} lds", ("D", kc) if b < NA else ("XB", b))
        ldq = []
        for kc in range(8):
            for m in range(4): ldq.append(("W", kc, m, kc - S))
            for b in range(NA): ldq.append(("X", b, kc, kc - S))
            if not o.get("late", 1) and kc >= 2:
                for b in (3, 4): ldq.append(("X", b, kc - 2, -1))
        if o.get("late", 1):
            for b in (3, 4):
                for kc in range(8): ldq.append(("X", b, kc, 5 if (b == 4 and S == 4) else -1))
        else:
            for kc in (6, 7):
                for b in (3, 4): ldq.append(("X", b, kc, -1))
        freed = [-1]
        def ldnext():
            if not ldq or len(g.vm) >= 60: return False
            t, a, b_, need = ldq[0]
            if need > freed[0]: return False
            ldq.pop(0)
            if t == "W": ldW(a, b_)
            else: ldX(a, b_)
            return True
        for _ in range(7*PRE): ldnext()
        slotc = [0]
        srd(g, SDB, 48, 49, 256)
        frag_consts(False)
        srd(g, SWS, 50, 51, 16 << 20)
        g.e(f"s_lshl_b32 s{sT0}, s{sCT}, 2")
        g.e(f"s_add_u32 s{sT0}, s{sT0}, s{sW}")
        g.e(f"s_mul_i32 s{sT0}, s{sT0}, {32*10240}")
        g.e(f"s_add_u32 s{sT0}, s{sT0}, {WS_WP}")
        g.e(f"v_add_u32 v{vST}, s{sT0}, v{vL16}")
        XRB = TMP + 40
        def read_list(kc, s):
            p = (kc*4 + s) % 2
            ks = 4*kc + s
            L = []
            for h in range(2):
                L.append((f"ds_read_b64_tr_b16 {ar(4*ks+2*h,2)}, v{vWAs} offset:{s*4096+h*1024}", 0))
            for b in range(NA):
                L.append((f"ds_read_b128 {vr(XF+p*20+b*4)}, v{vXAs[s]} offset:{b*4096}", b))
            return [(r, ("R", kc, s, b)) for r, b in L]
        def stage_addr(kc):
            sb = (kc % S) * STG
            for s in range(4): g.e(f"v_add_u32 v{vXAs[s]}, {sb + 16384}, v{vXA[s]}")
            g.e(f"v_add_u32 v{vWAs}, {sb}, v{vWA}")
        stage_addr(0)
        st()
        g.wait_vm([("D", 0)])
        g.e("s_barrier")
        st()
        for r, t in read_list(0, 0): g.lds(r, t)
        LPA = o.get("LPA", 1)
        for kc in range(8):
            for s in range(4):
                if s < 3:
                    nxt = read_list(kc, s+1)
                else:
                    nxt = []
                    if kc < 7:
                        g.wait_lg([("R", kc, 3, b) for b in range(NA)])
                        while any(t[3] == kc+1-S and t[3] >= -10 and ((t[0] == "W" and t[1] == kc+1) or (t[0] == "X" and t[1] < NA and t[2] == kc+1)) for t in ldq): assert ldnext()
                        g.wait_vm([("D", kc+1)])
                        g.e("s_barrier")
                        if kc in (1, 3, 5): st()
                        freed[0] = kc
                        stage_addr(kc+1)
                        nxt = read_list(kc+1, 0)
                p = (kc*4 + s) % 2
                ks = 4*kc + s
                for b in range(NA):
                    g.wait_lg([("R", kc, s, bb) for bb in range(b+1)])
                    ac = vr(ACC+16*b, 16)
                    g.e(f"v_mfma_f32_32x32x16_bf16 {ac}, {vr(XF+p*20+b*4)}, {ar(4*ks)}, {'0' if ks == 0 else ac}")
                    for _ in range(2):
                        if nxt:
                            r, t = nxt.pop(0); g.lds(r, t)
                    slotc[0] += 1
                    if (slotc[0] * o.get("PN", 12)) % 12 < o.get("PN", 12): ldnext()
            if kc == 4:
                g.vmem(f"buffer_load_dword v{vNC}, v{vZ}, {sr(SDB)}, 0 offen sc1", ("NC",))
            if kc == 0: flag_setup(False)
        while ldq: assert ldnext()
        st()
        def store_block(b):
            a = ACC + 16*b
            L = []
            L.append(f"s_add_u32 s{sT0}, s{sXROW}, {32*b}")
            L.append(f"s_lshr_b32 s{sT1}, s{sT0}, 9")
            L.append(f"s_and_b32 s{sT0}, s{sT0}, 511")
            L.append(f"s_lshr_b32 s{sT0}, s{sT0}, 4")
            L.append(f"s_mul_i32 s{sT0}, s{sT0}, 10")
            L.append(f"s_add_u32 s{sT0}, s{sT0}, s{sT1}")
            L.append(f"s_lshl_b32 s{sT0}, s{sT0}, 10")
            L.append(f"s_add_u32 s{sT1}, s{sT0}, 10240")
            for hh in range(2):
                d = TMP + b*8 + hh*4
                for i in range(4):
                    L.append(f"v_cvt_pk_bf16_f32 v{d+i}, v{a+8*hh+2*i}, v{a+8*hh+2*i+1}")
                L.append(("ST", f"buffer_store_dwordx4 {vr(d)}, v{vST}, {sr(SWS)}, s{sT0 if hh==0 else sT1} offen{stf}"))
            return L
        def emit(x):
            if isinstance(x, tuple): g.vmem(x[1])
            else: g.e(x)
        xr = [0]; xreg = {}
        def xread(b, ks):
            r = XRB + (xr[0] % 8)*4; xr[0] += 1
            g.lds(f"ds_read_b128 {vr(r)}, v{vXAs[ks%4]} offset:{(ks//4)*4096}", ("R2", b, ks))
            return r
        g.wait_vm([("XB", 3)] if o.get("late", 1) else [("XB", 3), ("XB", 4)])
        g.e("s_barrier")
        def blockB(b, pend):
            for s in range(4): g.e(f"v_add_u32 v{vXAs[s]}, {[XB3, XB4][b-3]}, v{vXA[s]}")
            AH = 6
            for ks in range(AH): xreg[(b, ks)] = xread(b, ks)
            for ks in range(32):
                g.wait_lg([("R2", b, ks)])
                ac = vr(ACC + 16*b, 16)
                g.e(f"v_mfma_f32_32x32x16_bf16 {ac}, {vr(xreg[(b,ks)])}, {ar(4*ks)}, {'0' if ks == 0 else ac}")
                if ks + AH < 32: xreg[(b, ks+AH)] = xread(b, ks+AH)
                if ks >= 1:
                    for _ in range(2):
                        if pend: emit(pend.pop(0))
            assert not pend
        blockB(3, store_block(0) + store_block(1) + store_block(2))
        st()
        g.e(f"s_cmp_lg_u32 s{sODD}, 0")
        g.e(f"s_cbranch_scc1 {name}_P4")
        saved = (list(g.vm), list(g.lg))
        if o.get("late", 1):
            g.wait_vm([("XB", 4)])
            g.e("s_barrier")
        blockB(4, store_block(3))
        st(); dt(g, 4)
        g.e("s_nop 3")
        for x in store_block(4): emit(x)
        g.e(f"s_branch {name}_Pdone")
        g.label(f"{name}_P4")
        g.vm, g.lg = saved
        g.e(f"s_lshr_b32 s{sT0}, s{sU}, 1")
        g.e(f"s_and_b32 s{sT2}, s{sT0}, 1")
        g.e(f"s_mul_i32 s{sT0}, s{sT0}, 20480")
        g.e(f"s_add_u32 s{sT0}, s{sT0}, 9216")
        g.e(f"s_add_u32 s{sT1}, s{sT0}, 10240")
        g.e(f"s_cmp_eq_u32 s{sT2}, 0")
        g.e(f"s_cbranch_scc0 {name}_rp1")
        g.e(f"buffer_store_dwordx4 {ar(0)}, v{vST}, {sr(SWS)}, s{sT0} offen{stf}")
        g.e(f"buffer_store_dwordx4 {ar(4)}, v{vST}, {sr(SWS)}, s{sT1} offen{stf}")
        g.e(f"s_branch {name}_rp2")
        g.label(f"{name}_rp1")
        g.e(f"buffer_store_dwordx4 {ar(8)}, v{vST}, {sr(SWS)}, s{sT0} offen{stf}")
        g.e(f"buffer_store_dwordx4 {ar(12)}, v{vST}, {sr(SWS)}, s{sT1} offen{stf}")
        g.label(f"{name}_rp2")
        g.e("s_nop 3")
        for x in store_block(3): emit(x)
        g.label(f"{name}_Pdone")
        g.vm = []
        nonce_wait("P")
        publish(False)

    def bodyG():
        NX, S = 2, 6
        XB = NX * 4096
        STG = XB + 16384
        NI = NX + 4
        PRE1 = o.get("PREG", 3)
        XT = 6*STG
        g.vm = []; g.lg = []
        st.n = st_n0
        g.e(f"s_lshl_b32 s{sXROW}, s{sU}, 16")
        g.e(f"v_lshrrev_b32 v{vT}, 4, v{vLane}")
        g.e(f"s_lshl_b32 s{sT2}, s{sW}, 2")
        g.e(f"v_add_u32 v{vT}, s{sT2}, v{vT}")
        g.e(f"v_and_b32 v{vT2}, 15, v{vLane}")
        g.e(f"v_xor_b32 v{vT2}, v{vT2}, v{vT}")
        g.e(f"v_lshlrev_b32 v{vT2}, 4, v{vT2}")
        g.e(f"v_lshl_add_u32 v{vT}, v{vT}, 10, v{vT2}")
        g.e(f"s_lshl_b32 s{sT2}, s{sCT}, 8")
        g.e(f"v_add_u32 v{vWR}, s{sT2}, v{vT}")
        g.e("s_waitcnt lgkmcnt(0)")
        st(); dt(g, 2)
        srd(g, SX, 6, 7, 2 << 20); srd(g, SWT, 8, 9, 512 << 10); srd(g, SXI, 4, 5, 2 << 20)
        def ld1(kc, m):
            sb = (kc % S) * STG
            isx = m < NX
            mm = m if isx else m - NX
            g.e(f"s_add_u32 m0, s{sM0X}, {sb + m*4096}")
            if isx: g.e(f"s_add_u32 s{sSOX}, s{sXROW}, {mm*32768 + kc*128}")
            else:   g.e(f"s_mov_b32 s{sSOW}, {(kc*64 + 16*mm)*1024}")
            va, sd, so = (vXD, SX, sSOX) if isx else (vWD, SWT, sSOW)
            g.vmem(f"buffer_load_dwordx4 v{va}, {sr(sd)}, s{so} offen{ldf} lds", ("D", kc))
        for m in range(NI): ld1(0, m)
        srd(g, SDB, 48, 49, 256)
        g.e(f"s_or_b32 s{sT0}, s2, s{sW}")
        g.e(f"s_cmp_lg_u32 s{sT0}, 0")
        g.e(f"s_cbranch_scc1 {name}_nn")
        g.e("s_memrealtime s[96:97]")
        g.e("s_waitcnt lgkmcnt(0)")
        g.e(f"s_or_b32 s96, s96, 1")
        g.e(f"s_and_b32 s96, s96, 0x7fffffff")
        g.e(f"v_mov_b32 v{vT}, s96")
        g.e(f"buffer_store_dword v{vT}, v{vZ}, {sr(SDB)}, 0 offen sc1")
        g.label(f"{name}_nn")
        for kc in range(1, PRE1):
            for m in range(NI): ld1(kc, m)
        ldq = [(kc, m) for kc in range(PRE1, 8) for m in range(NI)]
        k6 = [i for i, (kc, m) in enumerate(ldq) if kc >= 5][0]
        ldq[k6:k6] = [("X", m) for m in range(4)]
        freed = [0]
        def ldnext():
            if not ldq: return False
            kc, m = ldq[0]
            if kc == "X":
                ldq.pop(0)
                g.e(f"s_add_u32 m0, s{sM0X}, {XT + m*4096}")
                g.e(f"s_add_u32 s{sSOX}, s{sXROW}, {m*16384}")
                g.vmem(f"buffer_load_dwordx4 v{vWR}, {sr(SXI)}, s{sSOX} offen{ldf} lds", ("D", 5))
                return True
            if kc - S >= freed[0]: return False
            ldq.pop(0); ld1(kc, m); return True
        frag_consts(True)
        srd(g, SWS, 50, 51, 16 << 20)
        mk = len(g.lines)
        vXR, vGA, vGO = TMP+60, TMP+61, TMP+62
        g.e(f"s_lshr_b32 s{sT0}, s{sW}, 1")
        g.e(f"s_and_b32 s{sT1}, s{sW}, 1")
        g.e(f"s_lshl_b32 s{sT2}, s{sT0}, 13")
        g.e(f"s_add_u32 s{sT2}, s{sT2}, {XT}")
        g.e(f"v_and_b32 v{vT}, 15, v{vPX}")
        g.e(f"s_lshl_b32 s{sSOX}, s{sT1}, 3")
        g.e(f"v_xor_b32 v{vT}, s{sSOX}, v{vT}")
        g.e(f"v_lshlrev_b32 v{vT}, 4, v{vT}")
        g.e(f"v_lshl_add_u32 v{vT}, v{vPX}, 8, v{vT}")
        g.e(f"v_lshl_add_u32 v{vT}, v{vHF}, 3, v{vT}")
        g.e(f"v_add_u32 v{vXR}, s{sT2}, v{vT}")
        g.e(f"s_lshl_b32 s{sT2}, s{sT0}, 15")
        g.e(f"s_add_u32 s{sT2}, s{sT2}, s{sXROW}")
        g.e(f"s_lshl_b32 s{sSOX}, s{sCT}, 13")
        g.e(f"s_add_u32 s{sT2}, s{sT2}, s{sSOX}")
        g.e(f"s_lshl_b32 s{sSOX}, s{sT1}, 12")
        g.e(f"s_add_u32 s{sT2}, s{sT2}, s{sSOX}")
        g.e(f"v_add_u32 v{vST}, s{sT2}, v{vL16}")
        g.e(f"s_lshl_b32 s{sSOX}, s{sU}, 1")
        g.e(f"s_add_u32 s{sSOX}, s{sSOX}, s{sT0}")
        g.e(f"s_lshl_b32 s{sSOX}, s{sSOX}, 12")
        g.e(f"s_add_u32 s{sSOX}, s{sSOX}, {WS_ST}")
        g.e(f"v_lshlrev_b32 v{vGO}, 4, v{vPX}")
        g.e(f"v_add_u32 v{vGO}, s{sSOX}, v{vGO}")
        g.e(f"v_lshl_add_u32 v{vGA}, v{vHF}, 11, v{vGO}")
        g.e(f"s_lshl_b32 s93, s{sCT}, 1")
        g.e(f"s_add_u32 s93, s93, s{sT1}")
        g.e(f"s_lshl_b32 s93, s93, 9")
        flag_setup(True)
        deferG = g.lines[mk:]; del g.lines[mk:]
        def stage_addr(kc):
            sb = (kc % S) * STG
            for s in range(4): g.e(f"v_add_u32 v{vXAs[s]}, {sb}, v{vXA[s]}")
            g.e(f"v_add_u32 v{vWAs}, {sb + XB}, v{vWA}")
            g.e(f"v_xor_b32 v{vWAs2}, 64, v{vWAs}")
        def read_list(kc, s):
            p = (kc*4 + s) % 2
            L = [(f"ds_read_b128 {vr(XF+p*20)}, v{vXAs[s]}", 0)]
            for cb in range(2):
                for h in range(2):
                    L.append((f"ds_read_b64_tr_b16 {vr(WF+p*8+cb*4+h*2,2)}, v{vWAs if cb==0 else vWAs2} offset:{s*4096+h*1024}", cb))
            return [(r, ("R", kc, s, b)) for r, b in L]
        stage_addr(0)
        st()
        g.wait_vm([("D", 0)])
        g.e("s_barrier")
        st()
        XR = TMP
        XU = ACC + 32
        for r, t in read_list(0, 0): g.lds(r, t)
        LPM = o.get("LPG", 1)
        for kc in range(8):
            for s in range(4):
                if s < 3:
                    nxt = read_list(kc, s+1)
                else:
                    nxt = []
                    if kc < 7:
                        g.wait_lg([("R", kc, 3, b) for b in range(2)])
                        while any(c_ == kc+1 for c_, _ in ldq): assert ldnext()
                        g.wait_vm([("D", kc+1)])
                        g.e("s_barrier")
                        if kc in (0, 2, 4, 6): st()
                        freed[0] = kc + 1
                        stage_addr(kc+1)
                        nxt = read_list(kc+1, 0)
                p = (kc*4 + s) % 2
                for b in range(2):
                    g.wait_lg([("R", kc, s, bb) for bb in range(b+1)])
                    ac = vr(ACC+16*b, 16)
                    g.e(f"v_mfma_f32_32x32x16_bf16 {ac}, {vr(WF+p*8+b*4)}, {vr(XF+p*20)}, {'0' if kc == 0 and s == 0 else ac}")
                    for _ in range(3):
                        if nxt:
                            r, t = nxt.pop(0); g.lds(r, t)
                    for _ in range(LPM): ldnext()
            if kc == 4:
                g.vmem(f"buffer_load_dword v{vNC}, v{vZ}, {sr(SDB)}, 0 offen sc1", ("NC",))
            if kc == 0: g.lines += deferG
            if kc == 5:
                for j in range(8):
                    g.e(f"v_xor_b32 v{vT2}, {j*16}, v{vXR}")
                    g.lds(f"ds_read_b64 {vr(XR+2*j,2)}, v{vT2}", ("XR", j))
            if kc == 6:
                g.wait_lg([("XR", 7)])
                for j in range(16):
                    g.e(f"v_lshlrev_b32 v{XU+2*j}, 16, v{XR+j}")
                    g.e(f"v_and_b32 v{XU+2*j+1}, 0xffff0000, v{XR+j}")
        assert not ldq
        st(); dt(g, 3)
        nonce_wait("G")
        g.e("s_nop 7")
        S1, S2 = TMP+16, TMP+18
        P1, P2 = TMP+20, TMP+22
        for i in range(16): g.e(f"v_pk_add_f32 {vr(ACC+2*i,2)}, {vr(ACC+2*i,2)}, {vr(XU+2*i,2)}")
        g.e(f"v_pk_add_f32 {vr(P1,2)}, {vr(ACC,2)}, {vr(ACC+2,2)}")
        g.e(f"v_pk_mul_f32 {vr(P2,2)}, {vr(ACC,2)}, {vr(ACC,2)}")
        g.e(f"v_pk_fma_f32 {vr(P2,2)}, {vr(ACC+2,2)}, {vr(ACC+2,2)}, {vr(P2,2)}")
        for i in range(2, 16):
            g.e(f"v_pk_add_f32 {vr(P1,2)}, {vr(P1,2)}, {vr(ACC+2*i,2)}")
            g.e(f"v_pk_fma_f32 {vr(P2,2)}, {vr(ACC+2*i,2)}, {vr(ACC+2*i,2)}, {vr(P2,2)}")
        g.e(f"v_add_f32 v{S1}, v{P1}, v{P1+1}")
        g.e(f"v_add_f32 v{S2}, v{P2}, v{P2+1}")
        g.e(f"v_mov_b32 v{vT}, v{S1}")
        g.e(f"v_mov_b32 v{vT2}, v{S2}")
        g.e(f"v_mov_b32 v{S1+1}, v{vNC}")
        g.e(f"v_mov_b32 v{S2+1}, v{vNC}")
        g.e(f"v_permlane32_swap_b32 v{S1}, v{vT}")
        g.e(f"v_permlane32_swap_b32 v{S2}, v{vT2}")
        g.e(f"v_add_f32 v{S1}, v{S1}, v{vT}")
        g.e(f"v_add_f32 v{S2}, v{S2}, v{vT2}")
        g.e("s_mov_b64 exec, 0xffffffff")
        g.e(f"buffer_store_dwordx4 {vr(S1)}, v{vGO}, {sr(SWS)}, s93 offen sc1")
        g.e("s_mov_b64 exec, -1")
        st()
        for j in range(16):
            g.e(f"v_cvt_pk_bf16_f32 v{XR+j}, v{ACC+2*j}, v{ACC+2*j+1}")
        g.e("s_nop 1")
        for hh in range(4):
            g.e(f"v_permlane32_swap_b32 v{XR+4*hh}, v{XR+4*hh+2}")
            g.e(f"v_permlane32_swap_b32 v{XR+4*hh+1}, v{XR+4*hh+3}")
        EA, EB = TMP + 24, TMP + 40
        def poll_issue(E):
            for e_ in range(4):
                g.e(f"buffer_load_dwordx4 {vr(E+4*e_)}, v{vGA}, {sr(SWS)}, 0 offen offset:{e_*512} sc1")
        def poll_check(E):
            g.e(f"v_xor_b32 v{vT}, v{E+1}, v{vNC}")
            for e_ in range(4):
                for o_ in (1, 3):
                    if e_ == 0 and o_ == 1: continue
                    g.e(f"v_xor_b32 v{vT2}, v{E+4*e_+o_}, v{vNC}")
                    g.e(f"v_or_b32 v{vT}, v{vT}, v{vT2}")
            g.e(f"v_cmp_ne_u32 vcc, 0, v{vT}")
            g.e("s_nop 4")
        g.e(f"s_mov_b32 s{sT2}, 0")
        poll_issue(EA)
        g.label(f"{name}_poll")
        g.e(f"s_add_u32 s{sT2}, s{sT2}, 1")
        g.e(f"s_cmp_gt_u32 s{sT2}, 100000")
        g.e(f"s_cbranch_scc1 {name}_pollx")
        if o.get("pp", 1):
            g.e("s_sleep 4")
            poll_issue(EB)
            g.e("s_waitcnt vmcnt(4)")
            poll_check(EA)
            g.e(f"s_cbranch_vccz {name}_pollx")
            poll_issue(EA)
            g.e("s_waitcnt vmcnt(4)")
            poll_check(EB)
            g.e(f"s_cbranch_vccnz {name}_poll")
            g.e("s_waitcnt vmcnt(0)")
        else:
            g.e("s_waitcnt vmcnt(0)")
            poll_check(EA)
            g.e(f"s_cbranch_vccz {name}_pollx")
            poll_issue(EA)
            g.e(f"s_branch {name}_poll")
        g.label(f"{name}_pollx")
        st()
        E = EA
        g.e(f"s_mov_b32 s{sT1}, {WS_HI}")
        for e_ in range(1, 4):
            g.e(f"v_add_f32 v{E}, v{E}, v{E+4*e_}")
            g.e(f"v_add_f32 v{E+2}, v{E+2}, v{E+4*e_+2}")
        g.e(f"v_mov_b32 v{vT}, v{E}")
        g.e(f"v_mov_b32 v{vT2}, v{E+2}")
        for hh in range(4):
            g.e(f"buffer_store_dwordx4 {vr(XR+4*hh)}, v{vST}, {sr(SWS)}, s{sT1} offen offset:{hh*1024}{stf}")
        g.e(f"v_permlane32_swap_b32 v{E}, v{vT}")
        g.e(f"v_permlane32_swap_b32 v{E+2}, v{vT2}")
        g.e(f"v_add_f32 v{E}, v{E}, v{vT}")
        g.e(f"v_add_f32 v{E+2}, v{E+2}, v{vT2}")
        g.e(f"v_mul_f32 v{E}, {f2u(1/512):#x}, v{E}")
        g.e(f"v_mul_f32 v{E+2}, {f2u(1/512):#x}, v{E+2}")
        g.e(f"v_fma_f32 v{E+2}, -v{E}, v{E}, v{E+2}")
        g.e(f"v_max_f32 v{E+2}, 0, v{E+2}")
        g.e(f"v_add_f32 v{E+2}, {f2u(1e-5):#x}, v{E+2}")
        A_, B_, A2, B2 = E+4, E+6, E+8, E+10
        g.e(f"v_rsq_f32 v{A_}, v{E+2}")
        g.e("s_nop 0")
        g.e(f"v_mul_f32 v{B_}, v{E}, v{A_}")
        g.e(f"v_sub_f32 v{B_}, 0, v{B_}")
        g.e(f"v_mul_f32 v{A2}, {f2u(-LOG2E):#x}, v{A_}")
        g.e(f"v_mul_f32 v{B2}, {f2u(-LOG2E):#x}, v{B_}")
        Y = XF
        D = WF
        for hh in range(4):
            a = ACC + 8*hh; y = Y + (hh % 2)*8
            for i in range(4): g.e(f"v_pk_fma_f32 {vr(y+2*i,2)}, {vr(a+2*i,2)}, {vr(A2,2)}, {vr(B2,2)} op_sel_hi:[1,0,0]")
            for i in range(8): g.e(f"v_exp_f32 v{y+i}, v{y+i}")
            for i in range(4): g.e(f"v_pk_fma_f32 {vr(a+2*i,2)}, {vr(a+2*i,2)}, {vr(A_,2)}, {vr(B_,2)} op_sel_hi:[1,0,0]")
            for i in range(4): g.e(f"v_pk_add_f32 {vr(y+2*i,2)}, {vr(y+2*i,2)}, 1.0 op_sel_hi:[1,0]")
            for i in range(8): g.e(f"v_rcp_f32 v{y+i}, v{y+i}")
            g.e("s_nop 0")
            for i in range(4): g.e(f"v_pk_mul_f32 {vr(a+2*i,2)}, {vr(a+2*i,2)}, {vr(y+2*i,2)}")
            d = D + hh*4
            for i in range(4): g.e(f"v_cvt_pk_bf16_f32 v{d+i}, v{a+2*i}, v{a+2*i+1}")
            g.e(f"buffer_store_dwordx4 {vr(d)}, v{vST}, {sr(SWS)}, 0 offen offset:{hh*1024}{stf}")
            if hh == o.get("L1H", 3):
                g.e(f"s_waitcnt vmcnt({hh+1})")
                g.e("s_barrier")
                push(1)
        publish(True)
    bodyG(); bodyP()

def phase2(g, name, st, o):
    NST, PRE, EVERY = o.get("NST", 3), o.get("PRE", 20), o.get("EVERY", 2)
    lf = o.get("lf", " sc1").replace(" none", "")
    SA, SWP, SX, SO, SDB = 12, 16, 20, 24, 28
    C4K, C8K, C2M, C2M4K = 33, 34, 42, 43
    sMT, sNT, sB, sT0, sT1, sR0, sBASE = 35, 36, 37, 38, 39, 97, 96
    vLane, vT, vW, vMR, vML, vO, vT2 = 1, 2, 3, 4, 5, 6, 7
    vH = [8+j for j in range(6)]
    vA, vA1 = 14, 15
    vXF = 16
    HB = 24
    HIB = HB + NST*24
    T0 = HIB + NST*16
    T2 = T0 + 24
    VEND = T2 + 24
    vF, vG, vPF = VEND, VEND+1, VEND+2
    assert VEND + 8 <= 250
    ACC, WB = 0, 64
    AEND = WB + NST*40
    g.vm = []; g.lg = []
    g.label(f"{name}_ph2")
    if st.on: st.n = 15
    st()
    g.e(f"s_and_b32 s{sT0}, s2, 7")
    g.e(f"s_lshr_b32 s{sT1}, s2, 3")
    g.e(f"s_and_b32 s{sB}, s{sT0}, 1")
    g.e(f"s_lshr_b32 s{sT0}, s{sT0}, 1")
    g.e(f"s_and_b32 s{sMT}, s{sT1}, 7")
    g.e(f"s_lshr_b32 s{sT1}, s{sT1}, 3")
    g.e(f"s_lshl_b32 s{sNT}, s{sT0}, 2")
    g.e(f"s_add_u32 s{sNT}, s{sNT}, s{sT1}")
    g.e(f"s_lshl_b32 s{sT0}, s{sB}, 5")
    g.e(f"s_lshl_b32 s{sT1}, s{sMT}, 2")
    g.e(f"s_add_u32 s{sR0}, s{sT0}, s{sT1}")
    srd(g, SDB, 50, 51, 16 << 20)
    NL = o.get("NL", 8); LG = NL.bit_length() - 1; MS = NL*128
    g.e(f"s_lshr_b32 s{sT0}, s{sR0}, 2")
    g.e(f"s_lshl_b32 s{sT0}, s{sT0}, 4")
    g.e(f"s_add_u32 s{sT0}, s{sT0}, s{sNT}")
    g.e(f"s_mul_i32 s{sT0}, s{sT0}, {MS}")
    g.e(f"s_add_u32 s{sT0}, s{sT0}, {WS_MB}")
    g.e(f"v_and_b32 v{vF}, {NL-1}, v{vLane}")
    g.e(f"v_lshlrev_b32 v{vF}, 7, v{vF}")
    g.e(f"v_lshrrev_b32 v{vG}, {LG}, v{vLane}")
    g.e(f"v_lshl_add_u32 v{vF}, v{vG}, 2, v{vF}")
    g.e(f"v_add_u32 v{vF}, s{sT0}, v{vF}")
    g.e(f"s_movk_i32 s{C4K}, 0x1000")
    g.e(f"s_movk_i32 s{C8K}, 0x2000")
    g.e(f"s_mov_b32 s{C2M}, 0x200000")
    g.e(f"s_mov_b32 s{C2M4K}, 0x201000")
    g.e(f"s_lshl_b32 s{sBASE}, s{sR0}, 15")
    g.e(f"s_lshl_b32 s{sT0}, s{sW}, 13")
    g.e(f"s_add_u32 s{sBASE}, s{sBASE}, s{sT0}")
    g.e(f"v_lshlrev_b32 v{vT}, 4, v{vLane}")
    for j in range(1, 5):
        g.e(f"s_add_u32 s{sT0}, s{sBASE}, {(j-1)*32768}")
        g.e(f"v_add_u32 v{vH[j]}, s{sT0}, v{vT}")
    g.e(f"s_sub_u32 s{sT0}, s{sBASE}, 32768")
    g.e(f"s_cmp_eq_u32 s{sMT}, 0")
    g.e(f"s_cselect_b32 s{sT0}, 0x40000000, s{sT0}")
    g.e(f"v_add_u32 v{vH[0]}, s{sT0}, v{vT}")
    g.e(f"s_add_u32 s{sT0}, s{sBASE}, {4*32768}")
    g.e(f"s_cmp_eq_u32 s{sMT}, 7")
    g.e(f"s_cselect_b32 s{sT0}, 0x40000000, s{sT0}")
    g.e(f"v_add_u32 v{vH[5]}, s{sT0}, v{vT}")
    g.e(f"s_lshl_b32 s{sT0}, s{sNT}, 5")
    g.e(f"s_lshl_b32 s{sT1}, s{sW}, 3")
    g.e(f"s_add_u32 s{sT0}, s{sT0}, s{sT1}")
    g.e(f"s_mul_i32 s92, s{sT0}, 10240")
    g.e(f"v_add_u32 v{vW}, s92, v{vT}")
    srd(g, SA, 50, 51, 4 << 20)
    srd(g, SWP, 50, 51, WP_BYTES, add=WS_WP)
    srd(g, SX, 40, 41, 2 << 20)
    srd(g, SO, 46, 47, 2 << 20)
    g.e(f"s_add_u32 s{sT0}, s{sR0}, s{sW}")
    g.e(f"s_lshl_b32 s{sT0}, s{sT0}, 15")
    g.e(f"s_lshl_b32 s{sT1}, s{sNT}, 6")
    g.e(f"s_add_u32 s{sT0}, s{sT0}, s{sT1}")
    g.e(f"v_lshrrev_b32 v{vO}, 2, v{vLane}")
    g.e(f"v_lshlrev_b32 v{vO}, 10, v{vO}")
    g.e(f"v_and_b32 v{vT2}, 3, v{vLane}")
    g.e(f"v_lshlrev_b32 v{vT2}, 4, v{vT2}")
    g.e(f"v_add3_u32 v{vO}, v{vO}, v{vT2}, s{sT0}")
    g.e(f"s_movk_i32 s{sT1}, 0x4000")

    g.e(f"v_and_b32 v{vT}, 31, v{vLane}")
    g.e(f"v_cmp_ne_u32 vcc, 0, v{vT}")
    g.e("s_nop 1")
    g.e(f"v_cndmask_b32 v{vMR}, 0, -1, vcc")
    g.e(f"v_cmp_ne_u32 vcc, 31, v{vT}")
    g.e("s_nop 1")
    g.e(f"v_cndmask_b32 v{vML}, 0, -1, vcc")
    g.e(f"v_lshlrev_b32 v{vA}, 4, v{vLane}")
    g.e(f"s_mul_i32 s{sT0}, s{sW}, 4352")
    g.e(f"v_add_u32 v{vA}, s{sT0}, v{vA}")
    g.e(f"v_and_b32 v{vA1}, 3, v{vLane}")
    g.e(f"v_mul_u32_u24 v{vA1}, 1088, v{vA1}")
    g.e(f"v_lshrrev_b32 v{vT}, 2, v{vLane}")
    g.e(f"v_lshl_add_u32 v{vA1}, v{vT}, 4, v{vA1}")
    g.e(f"s_mul_i32 s{sT0}, s{sW}, 17408")
    g.e(f"v_add_u32 v{vA1}, s{sT0}, v{vA1}")
    g.e("s_mov_b32 s90, 0xffff0000")
    g.e("s_mov_b32 s91, 0xffff")
    g.e(f"s_movk_i32 s{sT0}, 0x1111")
    g.e(f"s_cmp_eq_u32 s{sMT}, 0")
    g.e(f"s_cselect_b32 s{sT0}, 0x1110, s{sT0}")
    g.e(f"s_cmp_eq_u32 s{sMT}, 7")
    g.e(f"s_cselect_b32 s{sT0}, 0x0111, s{sT0}")
    g.e(f"s_lshl_b32 s94, s{sT0}, s{sW}")
    g.e("s_mov_b32 s95, 0")
    def poll(tag, mask, first_issued):
        g.e(f"s_mov_b32 s{sT0}, 0")
        if first_issued: g.e(f"s_branch {name}_fchk{tag}")
        g.label(f"{name}_fpoll{tag}")
        if o.get("fs", 0): g.e(f"s_sleep {o['fs']}")
        g.e(f"buffer_load_dword v{vG}, v{vF}, {sr(SDB)}, 0 offen sc1")
        g.label(f"{name}_fchk{tag}")
        g.e(f"s_add_u32 s{sT0}, s{sT0}, 1")
        g.e(f"s_cmp_gt_u32 s{sT0}, 200000")
        g.e(f"s_cbranch_scc1 {name}_fw{tag}")
        g.e("s_waitcnt vmcnt(0)")
        g.e(f"v_cmp_ne_u32 vcc, s3, v{vG}")
        g.e("s_nop 4")
        g.e(f"s_and_b64 vcc, vcc, {mask}")
        g.e(f"s_cbranch_scc1 {name}_fpoll{tag}")
        g.label(f"{name}_fw{tag}")

    SPF = o.get("spf", 0)
    if SPF:
        g.e(f"s_mul_i32 s{sT0}, s{sMT}, 1280")
        g.e(f"s_add_u32 s{sT0}, s{sT0}, s92")
        g.e(f"s_add_u32 s{sT0}, s{sT0}, {WS_WP}")
        g.e(f"s_add_u32 s4, s50, s{sT0}")
        g.e(f"s_addc_u32 s5, s51, 0")
        g.e(f"s_and_b32 s{sT0}, s{sNT}, 3")
        g.e(f"s_lshl_b32 s{sT0}, s{sT0}, 8")
        g.e(f"s_add_u32 s{sT0}, s{sT0}, s{sBASE}")
        g.e(f"s_add_u32 s6, s50, s{sT0}")
        g.e(f"s_addc_u32 s7, s51, 0")
        g.e(f"s_add_u32 s8, s6, 0x200000")
        g.e(f"s_addc_u32 s9, s7, 0")
    def spf_list(k):
        if not SPF or k > 7: return []
        L = [f"s_load_dword s10, s[4:5], {k*10240 + i*128:#x}" for i in range(10)]
        if o.get("spfh", 1):
            for r in range(4):
                for i in range(2):
                    L.append(f"s_load_dword s10, s[6:7], {r*32768 + k*1024 + i*128:#x}")
                    L.append(f"s_load_dword s10, s[8:9], {r*32768 + k*1024 + i*128:#x}")
        return L
    def Hreg(s_, j): return HB + s_*24 + j*4
    def HIreg(s_, r): return HIB + s_*16 + r*4
    def Wreg(s_, t): return WB + s_*40 + t*4
    def ldW(k, t):
        s_ = k % NST
        off = (k*10 + t)*1024
        return ("W", k, t, s_, off)
    def emitW(k, t):
        s_ = k % NST
        off = (k*10 + t)*1024
        g.e(f"s_mov_b32 s{sT0}, {off & ~4095}")
        g.vmem(f"buffer_load_dwordx4 {ar(Wreg(s_,t))}, v{vW}, {sr(SWP)}, s{sT0} offen offset:{off & 4095}{lf}", ("W", k, t))
    def emitH(k, j):
        s_ = k % NST
        so_h = "0" if k < 4 else f"s{C4K}"
        g.vmem(f"buffer_load_dwordx4 {vr(Hreg(s_,j))}, v{vH[j]}, {sr(SA)}, {so_h} offen offset:{(k%4)*1024}{lf}", ("H", k, j))
    def emitHI(k, r):
        s_ = k % NST
        so = f"s{C2M}" if k < 4 else f"s{C2M4K}"
        g.vmem(f"buffer_load_dwordx4 {vr(HIreg(s_,r))}, v{vH[r+1]}, {sr(SA)}, {so} offen offset:{(k%4)*1024}{lf}", ("HI", k, r))
    def order(k):
        return [("W",1),("H",0),("H",1),("H",2),("H",3),("W",4),("H",4),("W",7),("H",5),("W",9),
                ("HI",0),("HI",1),("HI",2),("HI",3),("W",0),("W",3),("W",6),("W",2),("W",5),("W",8)]
    queue = [(k, t, i) for k in range(8) for (t, i) in order(k)]
    def emit_item(it):
        k, t, i = it
        {"W": emitW, "H": emitH, "HI": emitHI}[t](k, i)
    g.e(f"s_mov_b32 s{sT0}, 0xffff")
    g.e(f"s_cmp_eq_u32 s{sMT}, 0")
    g.e(f"s_cselect_b32 s{sT0}, 0xfff0, s{sT0}")
    g.e(f"s_cmp_eq_u32 s{sMT}, 7")
    g.e(f"s_cselect_b32 s94, 0x0fff, s{sT0}")
    g.e("s_or_b64 s[90:91], s[90:91], s[94:95]")
    g.e("s_mov_b32 s94, 0xaaaa0ff0")
    g.e("s_mov_b32 s95, 0xaaaa")
    def wait_level(tag, lvl, mask, pre_issued=False):
        g.e(f"s_cmp_lg_u32 s{sW}, 0")
        g.e(f"s_cbranch_scc1 {name}_fw{tag}")
        g.e(f"s_add_u32 s93, s3, {lvl}")
        g.e(f"s_mov_b32 s{sT0}, 0")
        if pre_issued: g.e(f"s_branch {name}_fchk{tag}")
        g.label(f"{name}_fpoll{tag}")
        g.e(f"buffer_load_dword v{vG}, v{vF}, {sr(SDB)}, 0 offen sc1")
        g.label(f"{name}_fchk{tag}")
        g.e(f"s_add_u32 s{sT0}, s{sT0}, 1")
        g.e(f"s_cmp_gt_u32 s{sT0}, 200000")
        g.e(f"s_cbranch_scc1 {name}_fw{tag}")
        g.e("s_waitcnt vmcnt(0)")
        g.e(f"v_subrev_u32 v{vG}, s93, v{vG}")
        g.e(f"v_cmp_lt_u32 vcc, {2-lvl}, v{vG}")
        g.e("s_nop 4")
        g.e(f"s_and_b64 vcc, vcc, {mask}")
        g.e(f"s_cbranch_scc1 {name}_fpoll{tag}")
        g.label(f"{name}_fw{tag}")
        g.e("s_barrier")
    NA2 = o.get("NA2", 8)
    wait_level("1", 1, "s[94:95]")
    st(); dt(g, 9)
    W2B = AEND
    def ld2a(k):
        off = (k*10 + 9)*1024
        g.e(f"s_mov_b32 s{sT0}, {off & ~4095}")
        g.vmem(f"buffer_load_dwordx4 {ar(W2B+4*k)}, v{vW}, {sr(SWP)}, s{sT0} offen offset:{off & 4095}{lf}", ("W2", k))
        for r in range(4):
            so = f"s{C2M}" if k < 4 else f"s{C2M4K}"
            g.vmem(f"buffer_load_dwordx4 {vr(HB+(k*4+r)*4)}, v{vH[r+1]}, {sr(SA)}, {so} offen offset:{(k%4)*1024}{lf}", ("HIa", k, r))
        queue[:] = [it for it in queue if not (it[0] == k and (it[1] == "HI" or (it[1] == "W" and it[2] == 9)))]
    def mf2a(k, fill=None):
        for r in range(4):
            g.wait_vm([("W2", k), ("HIa", k, r)])
            c = "0" if k == 0 else ar(ACC+16*r, 16)
            g.e(f"v_mfma_f32_32x32x16_bf16 {ar(ACC+16*r,16)}, {ar(W2B+4*k)}, {vr(HB+(k*4+r)*4)}, {c}")
            if fill: fill()
    KP = o.get("KP", 4)
    for k in range(KP): ld2a(k)
    g.vmem(f"buffer_load_dword v{vG}, v{vF}, {sr(SDB)}, 0 offen sc1", ("P2",))
    for k in range(KP, 8): ld2a(k)
    for k in range(KP): mf2a(k)
    g.wait_vm([("P2",)])
    g.e(f"s_cmp_lg_u32 s{sW}, 0")
    g.e(f"s_cbranch_scc1 {name}_fw2")
    g.e(f"s_add_u32 s93, s3, 2")
    g.e(f"s_mov_b32 s{sT0}, 0")
    g.label(f"{name}_fchk2")
    g.e(f"v_cmp_ne_u32 vcc, s93, v{vG}")
    g.e(f"s_add_u32 s{sT0}, s{sT0}, 1")
    g.e(f"s_cmp_gt_u32 s{sT0}, 200000")
    g.e(f"s_cbranch_scc1 {name}_fw2")
    g.e("s_nop 2")
    g.e(f"s_and_b64 vcc, vcc, s[90:91]")
    g.e(f"s_cbranch_scc0 {name}_fw2")
    g.e(f"buffer_load_dword v{vG}, v{vF}, {sr(SDB)}, 0 offen sc1")
    g.e("s_waitcnt vmcnt(0)")
    g.e(f"s_branch {name}_fchk2")
    g.label(f"{name}_fw2")
    g.e("s_barrier")
    dt(g, 10)
    late2a = list(range(KP, 8))
    AEND = AEND + 32
    if st.on:
        g.e(f"s_memrealtime s[{52+2*st.n}:{53+2*st.n}]"); st.n += 1
    def issue_next(cur_k):
        if not queue: return False
        it = queue[0]
        if it[0] - NST >= cur_k or len(g.vm) >= 60: return False
        queue.pop(0); emit_item(it); return True
    def need(tok, k):
        while any((it[1], it[0], it[2]) == tok for it in queue): assert issue_next(k)
    def fill_():
        if queue and queue[0][0] <= 1: issue_next(0)
    for _ in range(o.get("PRE0", 4)): fill_()
    for k in late2a: mf2a(k, fill_)
    if o.get("pfh", 0):
        g.e(f"s_and_b32 s{sT0}, s{sNT}, 3")
        g.e(f"s_lshl_b32 s{sT0}, s{sT0}, 11")
        g.e(f"s_add_u32 s{sT0}, s{sT0}, s{sBASE}")
        g.e(f"v_lshrrev_b32 v{vPF}, 4, v{vLane}")
        g.e(f"v_lshlrev_b32 v{vPF}, 15, v{vPF}")
        g.e(f"v_and_b32 v{vPF+1}, 15, v{vLane}")
        g.e(f"v_lshl_add_u32 v{vPF}, v{vPF+1}, 7, v{vPF}")
        g.vmem(f"buffer_load_dword v{vPF+1}, v{vPF}, {sr(SA)}, s{sT0} offen{lf}")
        g.e(f"s_add_u32 s{sT0}, s{sT0}, 0x200000")
        g.vmem(f"buffer_load_dword v{vPF+2}, v{vPF}, {sr(SA)}, s{sT0} offen{lf}")
    wr_pending = []
    for k in range(8):
        s_ = k % NST
        last = k == 7
        g.c(f"---- k-step {k}")
        if k == 1: st()
        if k == 6:
            g.vmem(f"buffer_load_dwordx4 {vr(vXF)}, v{vO}, {sr(SX)}, 0 offen")
            g.vmem(f"buffer_load_dwordx4 {vr(vXF+4)}, v{vO}, {sr(SX)}, s{sT1} offen")
        if o.get("ste") and k >= 2: g.e(f"s_memtime s[{60+2*(k-2)}:{61+2*(k-2)}]")
        dpp = [(T0, vMR, "wave_shr:1", j, i) for j in range(6) for i in range(4)]
        dpp2 = [(T2, vML, "wave_shl:1", j, i) for j in range(6) for i in range(4)]
        mf = []
        for di in range(3):
            for r in range(4): mf.append((r, di*3+1, ("H", k, r+di), Hreg(s_, r+di), "A"))
        if k >= NA2:
            for r in range(4): mf.append((r, 9, ("HI", k, r), HIreg(s_, r), "B"))
        if not last:
            for di in range(3):
                for r in range(4): mf.append((r, di*3, None, T0 + (r+di)*4, "C"))
            for di in range(3):
                for r in range(4): mf.append((r, di*3+2, None, T2 + (r+di)*4, "D"))
        else:
            dpp = [x for pair in zip(dpp, dpp2) for x in pair]; dpp2 = []
            for r in range(4):
                for di in range(3): mf.append((r, di*3, None, T0 + (r+di)*4, "E"))
                for di in range(3): mf.append((r, di*3+2, None, T2 + (r+di)*4, "E" if di < 2 else "F"))
        since = 0
        spl = spf_list(k + SPF) if k > 0 else [x for kk in range(2, SPF+1) for x in spf_list(kk)]
        for n, (r, t, ht, hreg, grp) in enumerate(mf):
            toks = [("W", k, t)] + ([ht] if ht else [])
            for tok in toks: need(tok, k)
            g.wait_vm(toks)
            c = "0" if (k == 0 and n < 4 and NA2 == 0) else ar(ACC+16*r, 16)
            if o.get("fake16"):
                for u_ in range(2):
                    q_ = ACC + 16*r + 4*((2*n + u_) % 4)
                    g.e(f"v_mfma_f32_16x16x32_bf16 {ar(q_)}, {ar(Wreg(s_,t))}, {vr(hreg)}, {'0' if k == 0 and n < 8 else ar(q_)}")
            else:
                g.e(f"v_mfma_f32_32x32x16_bf16 {ar(ACC+16*r,16)}, {ar(Wreg(s_,t))}, {vr(hreg)}, {c}")
            if grp in "AB" and n < 10:
                for _ in range(5 if last else 3):
                    if dpp:
                        T, vm_, sh, j, i = dpp.pop(0)
                        need(("H", k, j), k); g.wait_vm([("H", k, j)])
                        g.e(f"v_and_b32_dpp v{T+j*4+i}, v{Hreg(s_,j)+i}, v{vm_} {sh} row_mask:0xf bank_mask:0xf bound_ctrl:0")
            if grp == "C":
                for _ in range(3):
                    if dpp2:
                        T, vm_, sh, j, i = dpp2.pop(0)
                        g.e(f"v_and_b32_dpp v{T+j*4+i}, v{Hreg(s_,j)+i}, v{vm_} {sh} row_mask:0xf bank_mask:0xf bound_ctrl:0")
            if o.get("RN"):
                if (n * o["RN"]) % o["RD"] < o["RN"]: issue_next(k)
            elif n % EVERY == EVERY - 1: issue_next(k)
            for _ in range(2 if k == 0 else 1):
                if spl: g.e(spl.pop(0))
            if wr_pending:
                since += 1
                if since == 2: g.e("s_nop 9")
                if since >= 2:
                    g.e(wr_pending.pop(0))
            if grp == "F":
                assert not wr_pending
                wr_pending = [f"ds_write_b128 v{vA}, {ar(ACC+16*r+4*q)} offset:{r*17408 + q*1088}" for q in range(4)]
                since = 0
        assert not dpp and not dpp2
    assert not queue
    g.c("---- epilogue")
    st(); dt(g, 11)
    g.e("s_nop 11")
    for w_ in wr_pending: g.e(w_)
    g.e("s_waitcnt lgkmcnt(0)")
    if o.get("ste"): g.e("s_memtime s[54:55]")
    g.e("s_barrier")
    if o.get("ste"): g.e("s_memtime s[56:57]")
    R = HB
    for i in range(2):
        for src in range(4):
            for hf in range(2):
                g.lds(f"ds_read_b128 {vr(R + ((i*4+src)*2+hf)*4)}, v{vA1} offset:{src*4352 + hf*512 + i*256}", ("R", i, src))
    XU = R + 64
    g.e("s_waitcnt vmcnt(0)"); g.vm = []
    for i in range(2):
        for e_ in range(4):
            x = vXF + 4*i + e_
            g.e(f"v_lshlrev_b32 v{XU+8*i+2*e_}, 16, v{x}")
            g.e(f"v_and_b32 v{XU+8*i+2*e_+1}, 0xffff0000, v{x}")
    for i in range(2):
        base = R + i*32
        for src in range(4):
            g.wait_lg([("R", i, src)])
            for e_ in range(4):
                g.e(f"v_pk_add_f32 {vr(XU+8*i+2*e_,2)}, {vr(XU+8*i+2*e_,2)}, {vr(base+8*src+2*e_,2)}")
        for e_ in range(4): g.e(f"v_cvt_pk_bf16_f32 v{vXF+4*i+e_}, v{XU+8*i+2*e_}, v{XU+8*i+2*e_+1}")
        g.vmem(f"buffer_store_dwordx4 {vr(vXF+4*i)}, v{vO}, {sr(SO)}, {'0' if i==0 else 's%d'%sT1} offen{o.get('ostf',' sc1')}")
    if o.get("ste"): g.e("s_memtime s[58:59]")
    if o.get("enc"):
        i = o["enc"]
        g.e("s_waitcnt vmcnt(0)")
        g.e("s_memrealtime s[76:77]")
        g.e(f"s_cmp_lg_u32 s2, {o.get('encwg', 8)}")
        g.e("s_cbranch_scc1 enc_done")
        g.e(f"s_cmp_lg_u32 s{sW}, 0")
        g.e("s_cbranch_scc1 enc_done")
        g.e("s_waitcnt lgkmcnt(0)")
        g.e(f"s_sub_u32 s84, s{52+2*i}, s52")
        g.e("s_mul_i32 s84, s84, 20")
        g.label("enc_loop")
        g.e("s_memrealtime s[86:87]")
        g.e("s_waitcnt lgkmcnt(0)")
        g.e("s_sub_u32 s85, s86, s76")
        g.e("s_cmp_lt_u32 s85, s84")
        g.e("s_cbranch_scc1 enc_loop")
        g.label("enc_done")
    else:
        dt_finish(g)
    st.finish(st.n + 1)
    return AEND

def gen_all(out, o):
    DT[0] = bool(o.get("dt", 0)); CPF[0] = o.get("cpf", 2)
    name = "fused_kernel"
    g = Gen(); st = Stamper(g, o.get("st", 0))
    entry(g, name, st)
    phase1(g, name, st, o)
    aend = phase2(g, name, st, o)
    g.label(f"{name}_end"); g.e("s_endpgm")
    build([(name, g.text(), kd(name, 256 + max(aend, 128), 256, 100), 256, 256, 160*1024)], out)

if __name__ == "__main__":
    o = {}
    for a in sys.argv[2:]:
        k, v = a.split("=")
        o[k] = int(v) if v.lstrip("-").isdigit() else " " + v.replace("+", " ")
    gen_all(sys.argv[1], o)
```

```python
import sys, struct
from gen import Gen, vr, ar, sr, srd, kd, build, WS_H, WS_HI, WS_WP, WS_ST, WP_BYTES
import gen4
from gen4 import Stamper, f2u, LOG2E, sW, WS_MB, dt, dt_finish, DT, CPF, entry

def phase1(g, name, st, o):
    stf = o.get("stf", " sc1")
    ldf = " nt" if o.get("nt", 0) else ""
    ldw = " nt" if o.get("ntw", 0) else ""
    ldp = " nt" if (o.get("ntp") or o.get("nt")) else ""
    SX, SWT, SWS, SXI, SDB = 12, 16, 20, 24, 28
    sCT, sU, sT0, sT1, sT2, sXROW, sM0X = 33, 34, 35, 36, 37, 38, 39
    sSOX, sSOW, sNONCE = 42, 43, 3
    sODD, sKC = 94, 95
    vLane, vT, vT2, vXD, vWD, vWA, vPX, vHF, vL16 = 1, 2, 3, 4, 5, 6, 7, 8, 9
    vXA = [10, 11, 12, 13]; vXAs = [14, 15, 16, 17]
    vWAs, vST, vWR, vNC, vZ, vWAs2 = 18, 19, 20, 21, 22, 23
    XF, WF, ACC, TMP = 24, 64, 80, 160
    g.e(f"s_and_b32 s{sT0}, s2, 7")
    g.e(f"s_lshr_b32 s{sT1}, s2, 3")
    g.e(f"s_and_b32 s{sCT}, s{sT1}, 3")
    g.e(f"s_lshr_b32 s{sT1}, s{sT1}, 2")
    if o.get("mix", 1):
        g.e(f"s_lshl_b32 s{sU}, s{sT0}, 2")
        g.e(f"s_lshr_b32 s{sT2}, s{sT1}, 1")
        g.e(f"s_add_u32 s{sU}, s{sU}, s{sT2}")
        g.e(f"s_and_b32 s{sT0}, s{sT1}, 1")
        g.e(f"s_lshl_b32 s{sT0}, s{sT0}, 2")
    else:
        g.e(f"s_and_b32 s{sU}, s{sT0}, 3")
        g.e(f"s_lshl_b32 s{sU}, s{sU}, 3")
        g.e(f"s_add_u32 s{sU}, s{sU}, s{sT1}")
    g.e(f"v_lshrrev_b32 v{vT}, 3, v{vLane}")
    g.e(f"s_lshl_b32 s{sT2}, s{sW}, 3")
    g.e(f"v_add_u32 v{vXD}, s{sT2}, v{vT}")
    g.e(f"v_lshrrev_b32 v{vT}, 1, v{vXD}")
    g.e(f"v_and_b32 v{vT}, 7, v{vT}")
    g.e(f"v_and_b32 v{vT2}, 7, v{vLane}")
    g.e(f"v_xor_b32 v{vT}, v{vT}, v{vT2}")
    g.e(f"v_lshlrev_b32 v{vT}, 4, v{vT}")
    g.e(f"v_lshl_add_u32 v{vXD}, v{vXD}, 10, v{vT}")
    g.e(f"v_lshrrev_b32 v{vT}, 4, v{vLane}")
    g.e(f"v_lshlrev_b32 v{vT2}, 2, v{vT}")
    g.e(f"v_and_b32 v{vWD}, 15, v{vLane}")
    g.e(f"v_xor_b32 v{vWD}, v{vWD}, v{vT2}")
    g.e(f"v_lshlrev_b32 v{vWD}, 4, v{vWD}")
    g.e(f"s_lshl_b32 s{sT2}, s{sW}, 2")
    g.e(f"v_add_u32 v{vT}, s{sT2}, v{vT}")
    g.e(f"v_lshl_add_u32 v{vWD}, v{vT}, 10, v{vWD}")
    g.e(f"s_lshl_b32 s{sT2}, s{sCT}, 8")
    g.e(f"v_add_u32 v{vWD}, s{sT2}, v{vWD}")
    g.e(f"s_lshl_b32 s{sM0X}, s{sW}, 10")
    g.e(f"v_mov_b32 v{vZ}, 0")
    g.e(f"s_cmp_ge_u32 s{sT0}, 4")
    g.e(f"s_cbranch_scc1 {name}_P")
    st_n0 = st.n

    def nonce_wait(role):
        g.wait_vm([("NC",)])
        g.e(f"s_mov_b32 s{sT2}, 0")
        g.label(f"{name}_ncpoll{role}")
        g.e(f"v_readfirstlane_b32 s{sNONCE}, v{vNC}")
        g.e(f"s_add_u32 s{sT2}, s{sT2}, 1")
        g.e(f"s_cmp_gt_u32 s{sT2}, 100000")
        g.e(f"s_cbranch_scc1 {name}_ncok{role}")
        g.e(f"s_cmp_lg_u32 s{sNONCE}, 0")
        g.e(f"s_cbranch_scc1 {name}_ncok{role}")
        g.e(f"buffer_load_dword v{vNC}, v{vZ}, {sr(SDB)}, 0 offen sc1")
        g.e("s_waitcnt vmcnt(0)")
        g.e(f"s_branch {name}_ncpoll{role}")
        g.label(f"{name}_ncok{role}")

    def pretouch():
        if not o.get("tlb", 0): return
        lab = f"{name}_pt{len(g.lines)}"
        g.e(f"s_cmp_lg_u32 s{sW}, 3")
        g.e(f"s_cbranch_scc1 {lab}")
        srd(g, 84, 50, 51, 12 << 20)
        g.e(f"v_lshlrev_b32 v{vT}, 18, v{vLane}")
        g.e(f"buffer_load_dword v252, v{vT}, s[84:87], 0 offen")
        srd(g, 84, 46, 47, 2 << 20)
        g.e(f"v_lshlrev_b32 v{vT}, 16, v{vLane}")
        g.e(f"buffer_load_dword v253, v{vT}, s[84:87], 0 offen")
        srd(g, 84, 40, 41, 2 << 20)
        g.e(f"buffer_load_dword v254, v{vT}, s[84:87], 0 offen")
        g.e(f"buffer_load_dword v251, v{vZ}, {sr(SDB)}, 0 offen sc1")
        g.label(lab)

    def l2pf(G):
        pf = o.get("pf", 0)
        if not (pf & (1 if G else 2)): return
        if G:
            g.e(f"v_lshrrev_b32 v{vT}, 2, v{vLane}")
            g.e(f"v_and_b32 v{vT2}, 3, v{vLane}")
            g.e(f"v_lshlrev_b32 v{vT2}, 6, v{vT2}")
            g.e(f"v_lshl_add_u32 v{vT}, v{vT}, 10, v{vT2}")
            g.e(f"s_lshl_b32 s{sT2}, s{sW}, 14")
            g.e(f"s_add_u32 s{sT2}, s{sT2}, s{sXROW}")
        else:
            g.e(f"v_lshrrev_b32 v{vT}, 1, v{vLane}")
            g.e(f"v_and_b32 v{vT2}, 1, v{vLane}")
            g.e(f"v_lshlrev_b32 v{vT2}, 7, v{vT2}")
            g.e(f"v_lshl_add_u32 v{vT}, v{vT}, 10, v{vT2}")
            g.e(f"s_mul_i32 s{sT2}, s{sW}, {40*1024}")
            g.e(f"s_add_u32 s{sT2}, s{sT2}, s93")
        g.e(f"s_lshl_b32 s{sT0}, s{sCT}, 8")
        g.e(f"s_add_u32 s{sT2}, s{sT2}, s{sT0}")
        g.vmem(f"buffer_load_dword v250, v{vT}, {sr(SX)}, s{sT2} offen")
        if not G:
            g.e(f"s_add_u32 s{sT2}, s{sT2}, 0x8000")
            g.vmem(f"buffer_load_dword v251, v{vT}, {sr(SX)}, s{sT2} offen")
        if pf & 4:
            g.e(f"s_and_b32 s{sT0}, s{sU}, 3")
            g.e(f"s_lshl_b32 s{sT0}, s{sT0}, 2")
            g.e(f"s_add_u32 s{sT0}, s{sT0}, s{sCT}")
            g.e(f"s_lshl_b32 s{sT0}, s{sT0}, 2")
            g.e(f"s_add_u32 s{sT0}, s{sT0}, s{sW}")
            g.e(f"s_lshl_b32 s{sT0}, s{sT0}, 13")
            g.e(f"v_lshlrev_b32 v{vT}, 7, v{vLane}")
            g.vmem(f"buffer_load_dword v252, v{vT}, {sr(SWT)}, s{sT0} offen")

    def frag_consts(G):
        pretouch()
        l2pf(G)
        g.e(f"v_and_b32 v{vPX}, 31, v{vLane}")
        g.e(f"v_lshrrev_b32 v{vHF}, 5, v{vLane}")
        g.e(f"v_lshlrev_b32 v{vL16}, 4, v{vLane}")
        g.e(f"v_lshrrev_b32 v{vT}, 1, v{vPX}")
        g.e(f"v_and_b32 v{vT}, 7, v{vT}")
        g.e(f"v_xor_b32 v{vT}, v{vT}, v{vHF}")
        g.e(f"v_lshlrev_b32 v{vT}, 4, v{vT}")
        g.e(f"v_lshl_add_u32 v{vXA[0]}, v{vPX}, 7, v{vT}")
        if G:
            g.e(f"s_lshr_b32 s{sT2}, s{sW}, 1")
            g.e(f"s_lshl_b32 s{sT2}, s{sT2}, 12")
            g.e(f"v_add_u32 v{vXA[0]}, s{sT2}, v{vXA[0]}")
        for s in range(1, 4):
            g.e(f"v_xor_b32 v{vXA[s]}, {s*32}, v{vXA[0]}")
        g.e(f"v_bfe_u32 v{vT}, v{vLane}, 2, 2")
        g.e(f"v_lshl_add_u32 v{vT2}, v{vHF}, 3, v{vT}")
        g.e(f"v_lshlrev_b32 v{vWA}, 8, v{vT2}")
        if G:
            g.e(f"s_and_b32 s{sT2}, s{sW}, 1")
            g.e(f"s_lshl_b32 s{sT2}, s{sT2}, 1")
            g.e(f"v_xor_b32 v{vT}, s{sT2}, v{vT}")
        else:
            g.e(f"v_xor_b32 v{vT}, s{sW}, v{vT}")
        g.e(f"v_lshl_add_u32 v{vWA}, v{vT}, 6, v{vWA}")
        g.e(f"v_bfe_u32 v{vT}, v{vLane}, 4, 1")
        g.e(f"v_lshl_add_u32 v{vWA}, v{vT}, 5, v{vWA}")
        g.e(f"v_and_b32 v{vT}, 3, v{vLane}")
        g.e(f"v_lshl_add_u32 v{vWA}, v{vT}, 3, v{vWA}")

    def publish(G):
        while st.on and st.n < 13: st()
        NL = o.get("NL", 8); LG = NL.bit_length() - 1; MS = NL*128
        def slot_off(dst, src):
            g.e(f"s_and_b32 s92, s{src}, {NL-1}")
            g.e(f"s_lshl_b32 s92, s92, 7")
            g.e(f"s_lshr_b32 s{dst}, s{src}, {LG}")
            g.e(f"s_lshl_b32 s{dst}, s{dst}, 2")
            g.e(f"s_add_u32 s{dst}, s{dst}, s92")
        if G:
            g.e(f"s_lshr_b32 s{sT0}, s{sU}, 1")
            g.e(f"s_and_b32 s{sT1}, s{sU}, 1")
            g.e(f"s_lshl_b32 s{sT2}, s{sT1}, 1")
            g.e(f"s_add_u32 s{sT2}, s{sT2}, s{sT0}")
            g.e(f"s_sub_u32 s{sT2}, s{sT2}, 1")
            g.e(f"s_add_u32 s{sSOX}, s{sT1}, 1")
            g.e(f"s_lshl_b32 s{sSOX}, s{sSOX}, 2")
            g.e(f"s_add_u32 s{sSOX}, s{sSOX}, s{sCT}")
            slot_off(sSOX, sSOX)
            g.e(f"s_mul_i32 s93, s{sT0}, {16*MS}")
            g.e(f"s_add_u32 s{sSOX}, s{sSOX}, s93")
            g.e(f"s_cmp_eq_u32 s{sT1}, 0")
            g.e(f"s_cselect_b32 s{sSOW}, 12, 0")
            g.e(f"s_add_u32 s{sSOW}, s{sSOW}, s{sCT}")
            slot_off(sSOW, sSOW)
            g.e(f"s_mul_i32 s93, s{sT2}, {16*MS}")
            g.e(f"s_add_u32 s{sSOW}, s{sSOW}, s93")
            g.e(f"s_lshr_b32 s{sT2}, s{sT2}, 3")
            g.e(f"s_lshr_b32 s{sT0}, s{sT0}, 3")
            g.e(f"s_cmp_eq_u32 s{sT2}, s{sT0}")
            g.e(f"s_cselect_b32 s92, -1, 0xffff")
            g.e(f"s_mov_b32 s93, 0")
            g.e(f"v_and_b32 v{vT}, 15, v{vLane}")
            g.e(f"v_mul_u32_u24 v{vT}, {MS}, v{vT}")
            g.e(f"v_mov_b32 v{vT2}, s{sSOW}")
            g.e(f"v_mov_b32 v{vPX}, s{sSOX}")
            g.e(f"v_cmp_gt_u32 vcc, 16, v{vLane}")
            g.e("s_nop 1")
            g.e(f"v_cndmask_b32 v{vT2}, v{vT2}, v{vPX}, vcc")
            g.e(f"v_add_u32 v{vT}, v{vT}, v{vT2}")
            g.e(f"s_mov_b32 s{sT0}, {WS_MB}")
        else:
            g.e(f"v_lshrrev_b32 v{vT}, 2, v{vLane}")
            g.e(f"v_lshlrev_b32 v{vT}, 4, v{vT}")
            g.e(f"v_and_b32 v{vT2}, 3, v{vLane}")
            g.e(f"v_add_u32 v{vT}, v{vT}, v{vT2}")
            g.e(f"v_mul_u32_u24 v{vT}, {MS}, v{vT}")
            g.e(f"s_add_u32 s{sT1}, s{sU}, 16")
            slot_off(sT1, sT1)
            g.e(f"s_mul_i32 s{sT0}, s{sCT}, {4*MS}")
            g.e(f"s_add_u32 s{sT0}, s{sT0}, s{sT1}")
            g.e(f"s_add_u32 s{sT0}, s{sT0}, {WS_MB}")
            g.e(f"s_mov_b64 s[92:93], -1")
        dt(g, 5 if G else 6)
        if st.on: g.e("s_memrealtime s[78:79]")
        g.e("s_waitcnt vmcnt(0)")
        g.e("s_barrier")
        if st.on: g.e("s_memrealtime s[80:81]")
        dt(g, 7 if G else 8)
        g.e(f"s_cmp_lg_u32 s{sW}, 0")
        g.e(f"s_cbranch_scc1 {name}_ph2")
        g.e(f"s_mov_b64 exec, s[92:93]")
        g.e(f"buffer_store_dword v{vNC}, v{vT}, {sr(SWS)}, s{sT0} offen sc1")
        g.e("s_mov_b64 exec, -1")
        g.e(f"s_branch {name}_ph2")

    def bodyP():
        g.vm = []; g.lg = []
        st.n = st_n0
        g.label(f"{name}_P")
        NA = o.get("NA", 3)
        S = o.get("SP", 4)
        STG = 16384 + NA*4096
        XB3, XB4 = S*STG, (S*STG + 32768 if S == 3 else 0)
        if NA == 4: XB3, XB4 = None, S*STG
        PRE = o.get("PREP", 3)
        g.e(f"s_and_b32 s{sODD}, s{sU}, 1")
        g.e(f"s_lshr_b32 s{sT1}, s{sU}, 1")
        g.e(f"s_mul_i32 s{sXROW}, s{sT1}, 288")
        g.e(f"s_mul_i32 s{sT2}, s{sODD}, 160")
        g.e(f"s_add_u32 s{sXROW}, s{sXROW}, s{sT2}")
        g.e(f"s_lshr_b32 s{sKC}, s{sT1}, 1")
        g.e(f"s_lshl_b32 s{sKC}, s{sKC}, 16")
        g.e(f"s_lshl_b32 s93, s{sXROW}, 10")
        g.e(f"s_lshr_b32 s92, s{sKC}, 9")
        g.e("s_waitcnt lgkmcnt(0)")
        if o.get("wsoff", 0):
            g.e(f"s_add_u32 s50, s50, {o['wsoff'] << 20:#x}")
            g.e("s_addc_u32 s51, s51, 0")
        st(); dt(g, 2)
        srd(g, SX, 44, 45, 4608*1024); srd(g, SWT, 10, 11, 512 << 10)
        cur = [None]
        def kofs(kc):
            if cur[0] == kc: return
            cur[0] = kc
            g.e(f"s_add_u32 s{sT2}, s92, {kc*128}")
            g.e(f"s_and_b32 s{sT2}, s{sT2}, 0x3ff")
            g.e(f"s_add_u32 s91, s{sT2}, s93")
            g.e(f"s_lshl_b32 s90, s{sT2}, 9")
        def ldW(kc, m):
            kofs(kc)
            g.e(f"s_add_u32 m0, s{sM0X}, {(kc % S)*STG + m*4096}")
            g.e(f"s_add_u32 s{sSOW}, s90, {m*16384}")
            g.vmem(f"buffer_load_dwordx4 v{vWD}, {sr(SWT)}, s{sSOW} offen{ldw} lds", ("D", kc))
        def ldX(b, kc):
            kofs(kc)
            dst = (kc % S)*STG + 16384 + b*4096 if b < NA else [XB3, XB4][b-3] + kc*4096
            g.e(f"s_add_u32 m0, s{sM0X}, {dst}")
            g.e(f"s_add_u32 s{sSOX}, s91, {b*32768}")
            g.vmem(f"buffer_load_dwordx4 v{vXD}, {sr(SX)}, s{sSOX} offen{ldp} lds", ("D", kc) if b < NA else ("XB", b))
        ldq = []
        for kc in range(8):
            for m in range(4): ldq.append(("W", kc, m, kc - S))
            for b in range(NA): ldq.append(("X", b, kc, kc - S))
            if not o.get("late", 1) and kc >= 2:
                for b in (3, 4): ldq.append(("X", b, kc - 2, -1))
        if o.get("late", 1):
            for b in range(NA, 5):
                for kc in range(8): ldq.append(("X", b, kc, 5 if (b == 4 and S == 4 and NA == 3) else -1))
        else:
            for kc in (6, 7):
                for b in (3, 4): ldq.append(("X", b, kc, -1))
        freed = [-1]
        def ldnext():
            if not ldq or len(g.vm) >= 60: return False
            idx = 0
            if ldq[0][3] > freed[0]:
                if not o.get("ooo", 0): return False
                cand = [i for i, t in enumerate(ldq) if t[0] == "X" and t[1] >= NA and t[3] <= freed[0]]
                if not cand or fill[0] >= o["ooo"]: return False
                idx = cand[0]; fill[0] += 1
            t, a, b_, need = ldq.pop(idx)
            if t == "W": ldW(a, b_)
            else: ldX(a, b_)
            return True
        fill = [0]
        for _ in range((4+NA)*PRE): ldnext()
        slotc = [0]
        srd(g, SDB, 48, 49, 256)
        frag_consts(False)
        srd(g, SWS, 50, 51, 16 << 20)
        g.e(f"s_lshl_b32 s{sT0}, s{sCT}, 2")
        g.e(f"s_add_u32 s{sT0}, s{sT0}, s{sW}")
        g.e(f"s_mul_i32 s{sT0}, s{sT0}, {32*10240}")
        g.e(f"s_add_u32 s{sT0}, s{sT0}, {WS_WP}")
        g.e(f"v_add_u32 v{vST}, s{sT0}, v{vL16}")
        XRB = TMP + 40
        def read_list(kc, s):
            p = (kc*4 + s) % 2
            ks = 4*kc + s
            L = []
            for h in range(2):
                L.append((f"ds_read_b64_tr_b16 {ar(4*ks+2*h,2)}, v{vWAs} offset:{s*4096+h*1024}", 0))
            for b in range(NA):
                L.append((f"ds_read_b128 {vr(XF+p*20+b*4)}, v{vXAs[s]} offset:{b*4096}", b))
            return [(r, ("R", kc, s, b)) for r, b in L]
        def stage_addr(kc):
            sb = (kc % S) * STG
            for s in range(4): g.e(f"v_add_u32 v{vXAs[s]}, {sb + 16384}, v{vXA[s]}")
            g.e(f"v_add_u32 v{vWAs}, {sb}, v{vWA}")
        stage_addr(0)
        st()
        g.wait_vm([("D", 0)])
        g.e("s_barrier")
        st()
        dt(g, 1)
        for r, t in read_list(0, 0): g.lds(r, t)
        LPA = o.get("LPA", 1)
        for kc in range(8):
            for s in range(4):
                if s < 3:
                    nxt = read_list(kc, s+1)
                else:
                    nxt = []
                    if kc < 7:
                        g.wait_lg([("R", kc, 3, b) for b in range(NA)])
                        while any(t[3] == kc+1-S and t[3] >= -10 and ((t[0] == "W" and t[1] == kc+1) or (t[0] == "X" and t[1] < NA and t[2] == kc+1)) for t in ldq): assert ldnext()
                        g.wait_vm([("D", kc+1)])
                        g.e("s_barrier")
                        if kc in (1, 3, 5): st()
                        freed[0] = kc
                        fill[0] = 0
                        stage_addr(kc+1)
                        nxt = read_list(kc+1, 0)
                p = (kc*4 + s) % 2
                ks = 4*kc + s
                for b in range(NA):
                    g.wait_lg([("R", kc, s, bb) for bb in range(b+1)])
                    ac = vr(ACC+16*b, 16)
                    g.e(f"v_mfma_f32_32x32x16_bf16 {ac}, {vr(XF+p*20+b*4)}, {ar(4*ks)}, {'0' if ks == 0 else ac}")
                    for _ in range(2):
                        if nxt:
                            r, t = nxt.pop(0); g.lds(r, t)
                    slotc[0] += 1
                    if (slotc[0] * o.get("PN", 12)) % 12 < o.get("PN", 12): ldnext()
            if kc == 4:
                g.vmem(f"buffer_load_dword v{vNC}, v{vZ}, {sr(SDB)}, 0 offen sc1", ("NC",))
        while ldq: assert ldnext()
        st(); dt(g, 10)
        def store_block(b):
            a = ACC + 16*b
            L = []
            L.append(f"s_add_u32 s{sT0}, s{sXROW}, {32*b}")
            L.append(f"s_lshr_b32 s{sT1}, s{sT0}, 9")
            L.append(f"s_and_b32 s{sT0}, s{sT0}, 511")
            L.append(f"s_lshr_b32 s{sT0}, s{sT0}, 4")
            L.append(f"s_mul_i32 s{sT0}, s{sT0}, 10")
            L.append(f"s_add_u32 s{sT0}, s{sT0}, s{sT1}")
            L.append(f"s_lshl_b32 s{sT0}, s{sT0}, 10")
            L.append(f"s_add_u32 s{sT1}, s{sT0}, 10240")
            for hh in range(2):
                d = TMP + b*8 + hh*4
                for i in range(4):
                    L.append(f"v_cvt_pk_bf16_f32 v{d+i}, v{a+8*hh+2*i}, v{a+8*hh+2*i+1}")
                L.append(("ST", f"buffer_store_dwordx4 {vr(d)}, v{vST}, {sr(SWS)}, s{sT0 if hh==0 else sT1} offen{stf}"))
            return L
        def emit(x):
            if isinstance(x, tuple): g.vmem(x[1])
            else: g.e(x)
        xr = [0]; xreg = {}
        def xread(b, ks):
            r = XRB + (xr[0] % 8)*4; xr[0] += 1
            g.lds(f"ds_read_b128 {vr(r)}, v{vXAs[ks%4]} offset:{(ks//4)*4096}", ("R2", b, ks))
            return r
        if NA == 3:
            g.wait_vm([("XB", 3)] if o.get("late", 1) else [("XB", 3), ("XB", 4)])
            g.e("s_barrier")
        else:
            g.wait_vm([("NC",)])
        def blockB(b, pend):
            for s in range(4): g.e(f"v_add_u32 v{vXAs[s]}, {[XB3, XB4][b-3]}, v{vXA[s]}")
            AH = 6
            for ks in range(AH): xreg[(b, ks)] = xread(b, ks)
            for ks in range(32):
                g.wait_lg([("R2", b, ks)])
                ac = vr(ACC + 16*b, 16)
                g.e(f"v_mfma_f32_32x32x16_bf16 {ac}, {vr(xreg[(b,ks)])}, {ar(4*ks)}, {'0' if ks == 0 else ac}")
                if ks + AH < 32: xreg[(b, ks+AH)] = xread(b, ks+AH)
                if ks >= 1:
                    for _ in range(2 if NA == 3 else 3):
                        if pend: emit(pend.pop(0))
            assert not pend
        if NA == 3: blockB(3, store_block(0) + store_block(1) + store_block(2))
        st()
        g.e(f"s_cmp_lg_u32 s{sODD}, 0")
        g.e(f"s_cbranch_scc1 {name}_P4")
        saved = (list(g.vm), list(g.lg))
        if o.get("late", 1):
            g.wait_vm([("XB", 4)])
            g.e("s_barrier")
        blockB(4, store_block(3) if NA == 3 else store_block(0) + store_block(1) + store_block(2) + store_block(3))
        st(); dt(g, 4)
        g.e("s_nop 3")
        for x in store_block(4): emit(x)
        g.e(f"s_branch {name}_Pdone")
        g.label(f"{name}_P4")
        g.vm, g.lg = saved
        g.e(f"s_lshr_b32 s{sT0}, s{sU}, 1")
        g.e(f"s_and_b32 s{sT2}, s{sT0}, 1")
        g.e(f"s_mul_i32 s{sT0}, s{sT0}, 20480")
        g.e(f"s_add_u32 s{sT0}, s{sT0}, 9216")
        g.e(f"s_add_u32 s{sT1}, s{sT0}, 10240")
        g.e(f"s_cmp_eq_u32 s{sT2}, 0")
        g.e(f"s_cbranch_scc0 {name}_rp1")
        g.e(f"buffer_store_dwordx4 {ar(0)}, v{vST}, {sr(SWS)}, s{sT0} offen{stf}")
        g.e(f"buffer_store_dwordx4 {ar(4)}, v{vST}, {sr(SWS)}, s{sT1} offen{stf}")
        g.e(f"s_branch {name}_rp2")
        g.label(f"{name}_rp1")
        g.e(f"buffer_store_dwordx4 {ar(8)}, v{vST}, {sr(SWS)}, s{sT0} offen{stf}")
        g.e(f"buffer_store_dwordx4 {ar(12)}, v{vST}, {sr(SWS)}, s{sT1} offen{stf}")
        g.label(f"{name}_rp2")
        g.e("s_nop 3")
        for b in ([3] if NA == 3 else [0, 1, 2, 3]):
            for x in store_block(b): emit(x)
        g.label(f"{name}_Pdone")
        g.vm = []
        nonce_wait("P")
        publish(False)

    def bodyG():
        ldf = " nt" if (o.get("ntg") or o.get("nt")) else ""
        NX, S = 2, 6
        XB = NX * 4096
        STG = XB + 16384
        NI = NX + 4
        PRE1 = o.get("PREG", 3)
        XT = 6*STG
        g.vm = []; g.lg = []
        st.n = st_n0
        g.e(f"s_lshl_b32 s{sXROW}, s{sU}, 16")
        g.e(f"v_lshrrev_b32 v{vT}, 4, v{vLane}")
        g.e(f"s_lshl_b32 s{sT2}, s{sW}, 2")
        g.e(f"v_add_u32 v{vT}, s{sT2}, v{vT}")
        g.e(f"v_and_b32 v{vT2}, 15, v{vLane}")
        g.e(f"v_xor_b32 v{vT2}, v{vT2}, v{vT}")
        g.e(f"v_lshlrev_b32 v{vT2}, 4, v{vT2}")
        g.e(f"v_lshl_add_u32 v{vT}, v{vT}, 10, v{vT2}")
        g.e(f"s_lshl_b32 s{sT2}, s{sCT}, 8")
        g.e(f"v_add_u32 v{vWR}, s{sT2}, v{vT}")
        g.e("s_waitcnt lgkmcnt(0)")
        if o.get("wsoff", 0):
            g.e(f"s_add_u32 s50, s50, {o['wsoff'] << 20:#x}")
            g.e("s_addc_u32 s51, s51, 0")
        st(); dt(g, 2)
        srd(g, SX, 6, 7, 2 << 20); srd(g, SWT, 8, 9, 512 << 10); srd(g, SXI, 4, 5, 2 << 20)
        def ld1(kc, m):
            sb = (kc % S) * STG
            isx = m < NX
            mm = m if isx else m - NX
            g.e(f"s_add_u32 m0, s{sM0X}, {sb + m*4096}")
            if isx: g.e(f"s_add_u32 s{sSOX}, s{sXROW}, {mm*32768 + kc*128}")
            else:   g.e(f"s_mov_b32 s{sSOW}, {(kc*64 + 16*mm)*1024}")
            va, sd, so = (vXD, SX, sSOX) if isx else (vWD, SWT, sSOW)
            g.vmem(f"buffer_load_dwordx4 v{va}, {sr(sd)}, s{so} offen{ldf if isx else ldw} lds", ("D", kc))
        for m in range(NI): ld1(0, m)
        srd(g, SDB, 48, 49, 256)
        g.e(f"s_or_b32 s{sT0}, s2, s{sW}")
        g.e(f"s_cmp_lg_u32 s{sT0}, 0")
        g.e(f"s_cbranch_scc1 {name}_nn")
        g.e("s_memrealtime s[96:97]")
        g.e("s_waitcnt lgkmcnt(0)")
        g.e(f"s_or_b32 s96, s96, 1")
        g.e(f"v_mov_b32 v{vT}, s96")
        g.e(f"buffer_store_dword v{vT}, v{vZ}, {sr(SDB)}, 0 offen sc1")
        g.label(f"{name}_nn")
        for kc in range(1, PRE1):
            for m in range(NI): ld1(kc, m)
        ldq = [(kc, m) for kc in range(PRE1, 8) for m in range(NI)]
        k6 = [i for i, (kc, m) in enumerate(ldq) if kc >= 5][0]
        ldq[k6:k6] = [("X", m) for m in range(4)]
        freed = [0]
        def ldnext():
            if not ldq: return False
            kc, m = ldq[0]
            if kc == "X":
                ldq.pop(0)
                g.e(f"s_add_u32 m0, s{sM0X}, {XT + m*4096}")
                g.e(f"s_add_u32 s{sSOX}, s{sXROW}, {m*16384}")
                g.vmem(f"buffer_load_dwordx4 v{vWR}, {sr(SXI)}, s{sSOX} offen{ldf} lds", ("D", 5))
                return True
            if kc - S >= freed[0]: return False
            ldq.pop(0); ld1(kc, m); return True
        frag_consts(True)
        srd(g, SWS, 50, 51, 16 << 20)
        mk = len(g.lines)
        vXR, vGA, vGO = TMP+60, TMP+61, TMP+62
        g.e(f"s_lshr_b32 s{sT0}, s{sW}, 1")
        g.e(f"s_and_b32 s{sT1}, s{sW}, 1")
        g.e(f"s_lshl_b32 s{sT2}, s{sT0}, 13")
        g.e(f"s_add_u32 s{sT2}, s{sT2}, {XT}")
        g.e(f"v_and_b32 v{vT}, 15, v{vPX}")
        g.e(f"s_lshl_b32 s{sSOX}, s{sT1}, 3")
        g.e(f"v_xor_b32 v{vT}, s{sSOX}, v{vT}")
        g.e(f"v_lshlrev_b32 v{vT}, 4, v{vT}")
        g.e(f"v_lshl_add_u32 v{vT}, v{vPX}, 8, v{vT}")
        g.e(f"v_lshl_add_u32 v{vT}, v{vHF}, 3, v{vT}")
        g.e(f"v_add_u32 v{vXR}, s{sT2}, v{vT}")
        g.e(f"s_lshl_b32 s{sT2}, s{sT0}, 15")
        g.e(f"s_add_u32 s{sT2}, s{sT2}, s{sXROW}")
        g.e(f"s_lshl_b32 s{sSOX}, s{sCT}, 13")
        g.e(f"s_add_u32 s{sT2}, s{sT2}, s{sSOX}")
        g.e(f"s_lshl_b32 s{sSOX}, s{sT1}, 12")
        g.e(f"s_add_u32 s{sT2}, s{sT2}, s{sSOX}")
        g.e(f"v_add_u32 v{vST}, s{sT2}, v{vL16}")
        g.e(f"s_lshl_b32 s{sSOX}, s{sU}, 1")
        g.e(f"s_add_u32 s{sSOX}, s{sSOX}, s{sT0}")
        g.e(f"s_lshl_b32 s{sSOX}, s{sSOX}, 12")
        g.e(f"s_add_u32 s{sSOX}, s{sSOX}, {WS_ST}")
        g.e(f"v_lshlrev_b32 v{vGO}, 4, v{vPX}")
        g.e(f"v_add_u32 v{vGO}, s{sSOX}, v{vGO}")
        g.e(f"v_lshl_add_u32 v{vGA}, v{vHF}, 11, v{vGO}")
        g.e(f"s_lshl_b32 s93, s{sCT}, 1")
        g.e(f"s_add_u32 s93, s93, s{sT1}")
        g.e(f"s_lshl_b32 s93, s93, 9")
        deferG = g.lines[mk:]; del g.lines[mk:]
        def stage_addr(kc):
            sb = (kc % S) * STG
            for s in range(4): g.e(f"v_add_u32 v{vXAs[s]}, {sb}, v{vXA[s]}")
            g.e(f"v_add_u32 v{vWAs}, {sb + XB}, v{vWA}")
            g.e(f"v_xor_b32 v{vWAs2}, 64, v{vWAs}")
        def read_list(kc, s):
            p = (kc*4 + s) % 2
            L = [(f"ds_read_b128 {vr(XF+p*20)}, v{vXAs[s]}", 0)]
            for cb in range(2):
                for h in range(2):
                    L.append((f"ds_read_b64_tr_b16 {vr(WF+p*8+cb*4+h*2,2)}, v{vWAs if cb==0 else vWAs2} offset:{s*4096+h*1024}", cb))
            return [(r, ("R", kc, s, b)) for r, b in L]
        stage_addr(0)
        st()
        g.wait_vm([("D", 0)])
        g.e("s_barrier")
        st()
        dt(g, 1)
        XR = TMP
        XU = ACC + 32
        for r, t in read_list(0, 0): g.lds(r, t)
        LPM = o.get("LPG", 1)
        for kc in range(8):
            for s in range(4):
                if s < 3:
                    nxt = read_list(kc, s+1)
                else:
                    nxt = []
                    if kc < 7:
                        g.wait_lg([("R", kc, 3, b) for b in range(2)])
                        while any(c_ == kc+1 for c_, _ in ldq): assert ldnext()
                        g.wait_vm([("D", kc+1)])
                        g.e("s_barrier")
                        if kc in (0, 2, 4, 6): st()
                        if kc == o.get("dtk", 2): dt(g, 10)
                        freed[0] = kc + 1
                        stage_addr(kc+1)
                        nxt = read_list(kc+1, 0)
                p = (kc*4 + s) % 2
                for b in range(2):
                    g.wait_lg([("R", kc, s, bb) for bb in range(b+1)])
                    ac = vr(ACC+16*b, 16)
                    g.e(f"v_mfma_f32_32x32x16_bf16 {ac}, {vr(WF+p*8+b*4)}, {vr(XF+p*20)}, {'0' if kc == 0 and s == 0 else ac}")
                    for _ in range(3):
                        if nxt:
                            r, t = nxt.pop(0); g.lds(r, t)
                    for _ in range(LPM): ldnext()
            if kc == 4:
                g.vmem(f"buffer_load_dword v{vNC}, v{vZ}, {sr(SDB)}, 0 offen sc1", ("NC",))
            if kc == 0: g.lines += deferG
            if kc == 5:
                for j in range(8):
                    g.e(f"v_xor_b32 v{vT2}, {j*16}, v{vXR}")
                    g.lds(f"ds_read_b64 {vr(XR+2*j,2)}, v{vT2}", ("XR", j))
            if kc == 6:
                g.wait_lg([("XR", 7)])
                for j in range(16):
                    g.e(f"v_lshlrev_b32 v{XU+2*j}, 16, v{XR+j}")
                    g.e(f"v_and_b32 v{XU+2*j+1}, 0xffff0000, v{XR+j}")
        assert not ldq
        st(); dt(g, 3)
        nonce_wait("G")
        g.e("s_nop 7")
        S1, S2 = TMP+16, TMP+18
        P1, P2 = TMP+20, TMP+22
        for i in range(16): g.e(f"v_pk_add_f32 {vr(ACC+2*i,2)}, {vr(ACC+2*i,2)}, {vr(XU+2*i,2)}")
        g.e(f"v_pk_add_f32 {vr(P1,2)}, {vr(ACC,2)}, {vr(ACC+2,2)}")
        g.e(f"v_pk_mul_f32 {vr(P2,2)}, {vr(ACC,2)}, {vr(ACC,2)}")
        g.e(f"v_pk_fma_f32 {vr(P2,2)}, {vr(ACC+2,2)}, {vr(ACC+2,2)}, {vr(P2,2)}")
        for i in range(2, 16):
            g.e(f"v_pk_add_f32 {vr(P1,2)}, {vr(P1,2)}, {vr(ACC+2*i,2)}")
            g.e(f"v_pk_fma_f32 {vr(P2,2)}, {vr(ACC+2*i,2)}, {vr(ACC+2*i,2)}, {vr(P2,2)}")
        g.e(f"v_add_f32 v{S1}, v{P1}, v{P1+1}")
        g.e(f"v_add_f32 v{S2}, v{P2}, v{P2+1}")
        g.e(f"v_mov_b32 v{vT}, v{S1}")
        g.e(f"v_mov_b32 v{vT2}, v{S2}")
        g.e(f"v_mov_b32 v{S1+1}, v{vNC}")
        g.e(f"v_mov_b32 v{S2+1}, v{vNC}")
        g.e(f"v_permlane32_swap_b32 v{S1}, v{vT}")
        g.e(f"v_permlane32_swap_b32 v{S2}, v{vT2}")
        g.e(f"v_add_f32 v{S1}, v{S1}, v{vT}")
        g.e(f"v_add_f32 v{S2}, v{S2}, v{vT2}")
        g.e("s_mov_b64 exec, 0xffffffff")
        g.e(f"buffer_store_dwordx4 {vr(S1)}, v{vGO}, {sr(SWS)}, s93 offen sc1")
        g.e("s_mov_b64 exec, -1")
        st()
        for j in range(16):
            g.e(f"v_cvt_pk_bf16_f32 v{XR+j}, v{ACC+2*j}, v{ACC+2*j+1}")
        g.e("s_nop 1")
        for hh in range(4):
            g.e(f"v_permlane32_swap_b32 v{XR+4*hh}, v{XR+4*hh+2}")
            g.e(f"v_permlane32_swap_b32 v{XR+4*hh+1}, v{XR+4*hh+3}")
        EA, EB = TMP + 24, TMP + 40
        def poll_issue(E):
            for e_ in range(4):
                g.e(f"buffer_load_dwordx4 {vr(E+4*e_)}, v{vGA}, {sr(SWS)}, 0 offen offset:{e_*512} sc1")
        def poll_check(E):
            g.e(f"v_xor_b32 v{vT}, v{E+1}, v{vNC}")
            for e_ in range(4):
                for o_ in (1, 3):
                    if e_ == 0 and o_ == 1: continue
                    g.e(f"v_xor_b32 v{vT2}, v{E+4*e_+o_}, v{vNC}")
                    g.e(f"v_or_b32 v{vT}, v{vT}, v{vT2}")
            g.e(f"v_cmp_ne_u32 vcc, 0, v{vT}")
            g.e("s_nop 4")
        g.e(f"s_mov_b32 s{sT2}, 0")
        poll_issue(EA)
        g.label(f"{name}_poll")
        g.e(f"s_add_u32 s{sT2}, s{sT2}, 1")
        g.e(f"s_cmp_gt_u32 s{sT2}, 100000")
        g.e(f"s_cbranch_scc1 {name}_pollx")
        if o.get("pp", 1):
            g.e("s_sleep 4")
            poll_issue(EB)
            g.e("s_waitcnt vmcnt(4)")
            poll_check(EA)
            g.e(f"s_cbranch_vccz {name}_pollx")
            poll_issue(EA)
            g.e("s_waitcnt vmcnt(4)")
            poll_check(EB)
            g.e(f"s_cbranch_vccnz {name}_poll")
            g.e("s_waitcnt vmcnt(0)")
        else:
            g.e("s_waitcnt vmcnt(0)")
            poll_check(EA)
            g.e(f"s_cbranch_vccz {name}_pollx")
            poll_issue(EA)
            g.e(f"s_branch {name}_poll")
        g.label(f"{name}_pollx")
        st()
        E = EA
        g.e(f"s_mov_b32 s{sT1}, {WS_HI}")
        for e_ in range(1, 4):
            g.e(f"v_add_f32 v{E}, v{E}, v{E+4*e_}")
            g.e(f"v_add_f32 v{E+2}, v{E+2}, v{E+4*e_+2}")
        g.e(f"v_mov_b32 v{vT}, v{E}")
        g.e(f"v_mov_b32 v{vT2}, v{E+2}")
        for hh in range(4):
            g.e(f"buffer_store_dwordx4 {vr(XR+4*hh)}, v{vST}, {sr(SWS)}, s{sT1} offen offset:{hh*1024}{stf}")
        g.e(f"v_permlane32_swap_b32 v{E}, v{vT}")
        g.e(f"v_permlane32_swap_b32 v{E+2}, v{vT2}")
        g.e(f"v_add_f32 v{E}, v{E}, v{vT}")
        g.e(f"v_add_f32 v{E+2}, v{E+2}, v{vT2}")
        g.e(f"v_mul_f32 v{E}, {f2u(1/512):#x}, v{E}")
        g.e(f"v_mul_f32 v{E+2}, {f2u(1/512):#x}, v{E+2}")
        g.e(f"v_fma_f32 v{E+2}, -v{E}, v{E}, v{E+2}")
        g.e(f"v_max_f32 v{E+2}, 0, v{E+2}")
        g.e(f"v_add_f32 v{E+2}, {f2u(1e-5):#x}, v{E+2}")
        A_, B_, A2, B2 = E+4, E+6, E+8, E+10
        g.e(f"v_rsq_f32 v{A_}, v{E+2}")
        g.e("s_nop 0")
        g.e(f"v_mul_f32 v{B_}, v{E}, v{A_}")
        g.e(f"v_sub_f32 v{B_}, 0, v{B_}")
        g.e(f"v_mul_f32 v{A2}, {f2u(-LOG2E):#x}, v{A_}")
        g.e(f"v_mul_f32 v{B2}, {f2u(-LOG2E):#x}, v{B_}")
        Y = XF
        D = WF
        for hh in range(4):
            a = ACC + 8*hh; y = Y + (hh % 2)*8
            for i in range(4): g.e(f"v_pk_fma_f32 {vr(y+2*i,2)}, {vr(a+2*i,2)}, {vr(A2,2)}, {vr(B2,2)} op_sel_hi:[1,0,0]")
            for i in range(8): g.e(f"v_exp_f32 v{y+i}, v{y+i}")
            for i in range(4): g.e(f"v_pk_fma_f32 {vr(a+2*i,2)}, {vr(a+2*i,2)}, {vr(A_,2)}, {vr(B_,2)} op_sel_hi:[1,0,0]")
            for i in range(4): g.e(f"v_pk_add_f32 {vr(y+2*i,2)}, {vr(y+2*i,2)}, 1.0 op_sel_hi:[1,0]")
            for i in range(8): g.e(f"v_rcp_f32 v{y+i}, v{y+i}")
            g.e("s_nop 0")
            for i in range(4): g.e(f"v_pk_mul_f32 {vr(a+2*i,2)}, {vr(a+2*i,2)}, {vr(y+2*i,2)}")
            d = D + hh*4
            for i in range(4): g.e(f"v_cvt_pk_bf16_f32 v{d+i}, v{a+2*i}, v{a+2*i+1}")
            g.e(f"buffer_store_dwordx4 {vr(d)}, v{vST}, {sr(SWS)}, 0 offen offset:{hh*1024}{stf}")
        publish(True)
    bodyG(); bodyP()

def phase2(g, name, st, o):
    NST, PRE, EVERY = o.get("NST", 3), o.get("PRE", 14), o.get("EVERY", 2)
    o.setdefault("RN", 11); o.setdefault("RD", 20)
    lf = o.get("lf", " sc1").replace(" none", "")
    SA, SWP, SX, SO, SDB = 12, 16, 20, 24, 28
    C4K, C8K, C2M, C2M4K = 33, 34, 42, 43
    sMT, sNT, sB, sT0, sT1, sR0, sBASE = 35, 36, 37, 38, 39, 97, 96
    vLane, vT, vW, vMR, vML, vO, vT2 = 1, 2, 3, 4, 5, 6, 7
    vH = [8+j for j in range(6)]
    vA, vA1 = 14, 15
    vXF = 16
    HB = 24
    HIB = HB + NST*24
    T0 = HIB + NST*16
    T2 = T0 + 24
    VEND = T2 + 24
    vF, vG, vPF = VEND, VEND+1, VEND+2
    assert VEND + 8 <= 250
    ACC, WB = 0, 64
    AEND = WB + NST*40
    g.vm = []; g.lg = []
    g.label(f"{name}_ph2")
    if st.on: st.n = 15
    st()
    g.e(f"s_and_b32 s{sT0}, s2, 7")
    g.e(f"s_lshr_b32 s{sT1}, s2, 3")
    g.e(f"s_and_b32 s{sB}, s{sT0}, 1")
    g.e(f"s_lshr_b32 s{sT0}, s{sT0}, 1")
    g.e(f"s_and_b32 s{sMT}, s{sT1}, 7")
    g.e(f"s_lshr_b32 s{sT1}, s{sT1}, 3")
    g.e(f"s_lshl_b32 s{sNT}, s{sT0}, 2")
    g.e(f"s_add_u32 s{sNT}, s{sNT}, s{sT1}")
    g.e(f"s_lshl_b32 s{sT0}, s{sB}, 5")
    g.e(f"s_lshl_b32 s{sT1}, s{sMT}, 2")
    g.e(f"s_add_u32 s{sR0}, s{sT0}, s{sT1}")
    srd(g, SDB, 50, 51, 16 << 20)
    NL = o.get("NL", 8); LG = NL.bit_length() - 1; MS = NL*128
    g.e(f"s_lshr_b32 s{sT0}, s{sR0}, 2")
    g.e(f"s_lshl_b32 s{sT0}, s{sT0}, 4")
    g.e(f"s_add_u32 s{sT0}, s{sT0}, s{sNT}")
    g.e(f"s_mul_i32 s{sT0}, s{sT0}, {MS}")
    g.e(f"s_add_u32 s{sT0}, s{sT0}, {WS_MB}")
    g.e(f"v_and_b32 v{vF}, {NL-1}, v{vLane}")
    g.e(f"v_lshlrev_b32 v{vF}, 7, v{vF}")
    g.e(f"v_lshrrev_b32 v{vG}, {LG}, v{vLane}")
    g.e(f"v_lshl_add_u32 v{vF}, v{vG}, 2, v{vF}")
    g.e(f"v_add_u32 v{vF}, s{sT0}, v{vF}")
    g.e(f"s_movk_i32 s{C4K}, 0x1000")
    g.e(f"s_movk_i32 s{C8K}, 0x2000")
    g.e(f"s_mov_b32 s{C2M}, 0x200000")
    g.e(f"s_mov_b32 s{C2M4K}, 0x201000")
    g.e(f"s_lshl_b32 s{sBASE}, s{sR0}, 15")
    g.e(f"s_lshl_b32 s{sT0}, s{sW}, 13")
    g.e(f"s_add_u32 s{sBASE}, s{sBASE}, s{sT0}")
    g.e(f"v_lshlrev_b32 v{vT}, 4, v{vLane}")
    for j in range(1, 5):
        g.e(f"s_add_u32 s{sT0}, s{sBASE}, {(j-1)*32768}")
        g.e(f"v_add_u32 v{vH[j]}, s{sT0}, v{vT}")
    g.e(f"s_sub_u32 s{sT0}, s{sBASE}, 32768")
    g.e(f"s_cmp_eq_u32 s{sMT}, 0")
    g.e(f"s_cselect_b32 s{sT0}, 0x40000000, s{sT0}")
    g.e(f"v_add_u32 v{vH[0]}, s{sT0}, v{vT}")
    g.e(f"s_add_u32 s{sT0}, s{sBASE}, {4*32768}")
    g.e(f"s_cmp_eq_u32 s{sMT}, 7")
    g.e(f"s_cselect_b32 s{sT0}, 0x40000000, s{sT0}")
    g.e(f"v_add_u32 v{vH[5]}, s{sT0}, v{vT}")
    g.e(f"s_lshl_b32 s{sT0}, s{sNT}, 5")
    g.e(f"s_lshl_b32 s{sT1}, s{sW}, 3")
    g.e(f"s_add_u32 s{sT0}, s{sT0}, s{sT1}")
    g.e(f"s_mul_i32 s92, s{sT0}, 10240")
    g.e(f"v_add_u32 v{vW}, s92, v{vT}")
    srd(g, SA, 50, 51, 4 << 20)
    srd(g, SWP, 50, 51, WP_BYTES, add=WS_WP)
    srd(g, SX, 40, 41, 2 << 20)
    srd(g, SO, 46, 47, 2 << 20)
    g.e(f"s_add_u32 s{sT0}, s{sR0}, s{sW}")
    g.e(f"s_lshl_b32 s{sT0}, s{sT0}, 15")
    g.e(f"s_lshl_b32 s{sT1}, s{sNT}, 6")
    g.e(f"s_add_u32 s{sT0}, s{sT0}, s{sT1}")
    g.e(f"v_lshrrev_b32 v{vO}, 2, v{vLane}")
    g.e(f"v_lshlrev_b32 v{vO}, 10, v{vO}")
    g.e(f"v_and_b32 v{vT2}, 3, v{vLane}")
    g.e(f"v_lshlrev_b32 v{vT2}, 4, v{vT2}")
    g.e(f"v_add3_u32 v{vO}, v{vO}, v{vT2}, s{sT0}")
    g.e(f"s_movk_i32 s{sT1}, 0x4000")
    xfl = " nt" if (o.get("nt", 0) or o.get("ntf")) else ""
    XFK = o.get("xfk", 6)
    if XFK == -1:
        g.e(f"buffer_load_dwordx4 {vr(vXF)}, v{vO}, {sr(SX)}, 0 offen{xfl}")
        g.e(f"buffer_load_dwordx4 {vr(vXF+4)}, v{vO}, {sr(SX)}, s{sT1} offen{xfl}")
    elif XFK == -2:
        g.e(f"s_cmp_eq_u32 s{sW}, 0")
        g.e(f"s_cbranch_scc1 {name}_xf0")
        g.e(f"buffer_load_dwordx4 {vr(vXF)}, v{vO}, {sr(SX)}, 0 offen{xfl}")
        g.e(f"buffer_load_dwordx4 {vr(vXF+4)}, v{vO}, {sr(SX)}, s{sT1} offen{xfl}")
        g.label(f"{name}_xf0")
    g.e(f"v_and_b32 v{vT}, 31, v{vLane}")
    g.e(f"v_cmp_ne_u32 vcc, 0, v{vT}")
    g.e("s_nop 1")
    g.e(f"v_cndmask_b32 v{vMR}, 0, -1, vcc")
    g.e(f"v_cmp_ne_u32 vcc, 31, v{vT}")
    g.e("s_nop 1")
    g.e(f"v_cndmask_b32 v{vML}, 0, -1, vcc")
    g.e(f"v_lshlrev_b32 v{vA}, 4, v{vLane}")
    g.e(f"s_mul_i32 s{sT0}, s{sW}, 4352")
    g.e(f"v_add_u32 v{vA}, s{sT0}, v{vA}")
    g.e(f"v_and_b32 v{vA1}, 3, v{vLane}")
    g.e(f"v_mul_u32_u24 v{vA1}, 1088, v{vA1}")
    g.e(f"v_lshrrev_b32 v{vT}, 2, v{vLane}")
    g.e(f"v_lshl_add_u32 v{vA1}, v{vT}, 4, v{vA1}")
    g.e(f"s_mul_i32 s{sT0}, s{sW}, 17408")
    g.e(f"v_add_u32 v{vA1}, s{sT0}, v{vA1}")
    g.e("s_mov_b32 s90, 0xffff0000")
    g.e("s_mov_b32 s91, 0xffff")
    g.e(f"s_movk_i32 s{sT0}, 0x1111")
    g.e(f"s_cmp_eq_u32 s{sMT}, 0")
    g.e(f"s_cselect_b32 s{sT0}, 0x1110, s{sT0}")
    g.e(f"s_cmp_eq_u32 s{sMT}, 7")
    g.e(f"s_cselect_b32 s{sT0}, 0x0111, s{sT0}")
    g.e(f"s_lshl_b32 s94, s{sT0}, s{sW}")
    g.e("s_mov_b32 s95, 0")
    def poll(tag, mask, first_issued):
        g.e(f"s_mov_b32 s{sT0}, 0")
        if first_issued: g.e(f"s_branch {name}_fchk{tag}")
        g.label(f"{name}_fpoll{tag}")
        if o.get("fs", 0): g.e(f"s_sleep {o['fs']}")
        g.e(f"buffer_load_dword v{vG}, v{vF}, {sr(SDB)}, 0 offen sc1")
        g.label(f"{name}_fchk{tag}")
        g.e(f"s_add_u32 s{sT0}, s{sT0}, 1")
        g.e(f"s_cmp_gt_u32 s{sT0}, 200000")
        g.e(f"s_cbranch_scc1 {name}_fw{tag}")
        g.e("s_waitcnt vmcnt(0)")
        g.e(f"v_cmp_ne_u32 vcc, s3, v{vG}")
        g.e("s_nop 4")
        g.e(f"s_and_b64 vcc, vcc, {mask}")
        g.e(f"s_cbranch_scc1 {name}_fpoll{tag}")
        g.label(f"{name}_fw{tag}")

    VPF = o.get("vpf", 0)
    vPA, vPS, vPD = VEND+4, VEND+5, VEND+6
    if VPF:
        g.e(f"s_mul_i32 s{sT0}, s{sMT}, 1280")
        g.e(f"s_add_u32 s{sT0}, s{sT0}, s92")
        g.e(f"s_add_u32 s{sT0}, s{sT0}, {WS_WP}")
        g.e(f"v_lshlrev_b32 v{vPA}, 7, v{vLane}")
        g.e(f"v_add_u32 v{vPA}, s{sT0}, v{vPA}")
        g.e(f"s_and_b32 s{sT0}, s{sNT}, 3")
        g.e(f"s_lshl_b32 s{sT0}, s{sT0}, 8")
        g.e(f"s_add_u32 s{sT0}, s{sT0}, s{sBASE}")
        g.e(f"v_bfe_u32 v{vT}, v{vLane}, 1, 2")
        g.e(f"v_lshlrev_b32 v{vT}, 15, v{vT}")
        g.e(f"v_bfe_u32 v{vT2}, v{vLane}, 3, 1")
        g.e(f"v_lshl_add_u32 v{vT}, v{vT2}, 21, v{vT}")
        g.e(f"v_and_b32 v{vT2}, 1, v{vLane}")
        g.e(f"v_lshl_add_u32 v{vT}, v{vT2}, 7, v{vT}")
        g.e(f"v_add_u32 v{vT}, s{sT0}, v{vT}")
        g.e(f"v_mov_b32 v{vPS}, 1024")
        g.e(f"v_mov_b32 v{vT2}, 10240")
        g.e(f"v_cmp_gt_u32 vcc, 16, v{vLane}")
        g.e("s_nop 1")
        g.e(f"v_cndmask_b32 v{vPA}, v{vT}, v{vPA}, vcc")
        g.e(f"v_cndmask_b32 v{vPS}, v{vPS}, v{vT2}, vcc")
        g.e(f"v_mov_b32 v{vT}, 0x40000000")
        g.e(f"s_mov_b32 s4, 0xffff03ff")
        g.e(f"s_mov_b32 s5, 0")
        g.e(f"v_cndmask_b32 v{vPA}, v{vT}, v{vPA}, s[4:5]")
        g.e(f"v_lshl_add_u32 v{vPA}, v{vPS}, 1, v{vPA}")
    def vpf_touch():
        g.vmem(f"buffer_load_dword v{vPD}, v{vPA}, {sr(SDB)}, 0 offen sc1")
        g.e(f"v_add_u32 v{vPA}, v{vPA}, v{vPS}")
    SPF = o.get("spf", 0)
    if SPF:
        g.e(f"s_mul_i32 s{sT0}, s{sMT}, 1280")
        g.e(f"s_add_u32 s{sT0}, s{sT0}, s92")
        g.e(f"s_add_u32 s{sT0}, s{sT0}, {WS_WP}")
        g.e(f"s_add_u32 s4, s50, s{sT0}")
        g.e(f"s_addc_u32 s5, s51, 0")
        g.e(f"s_and_b32 s{sT0}, s{sNT}, 3")
        g.e(f"s_lshl_b32 s{sT0}, s{sT0}, 8")
        g.e(f"s_add_u32 s{sT0}, s{sT0}, s{sBASE}")
        g.e(f"s_add_u32 s6, s50, s{sT0}")
        g.e(f"s_addc_u32 s7, s51, 0")
        g.e(f"s_add_u32 s8, s6, 0x200000")
        g.e(f"s_addc_u32 s9, s7, 0")
    def spf_list(k):
        if not SPF or k > 7: return []
        L = [f"s_load_dword s10, s[4:5], {k*10240 + i*128:#x}" for i in range(10)]
        if o.get("spfh", 1):
            for r in range(4):
                for i in range(2):
                    L.append(f"s_load_dword s10, s[6:7], {r*32768 + k*1024 + i*128:#x}")
                    L.append(f"s_load_dword s10, s[8:9], {r*32768 + k*1024 + i*128:#x}")
        return L
    def Hreg(s_, j): return HB + s_*24 + j*4
    def HIreg(s_, r): return HIB + s_*16 + r*4
    def Wreg(s_, t): return WB + s_*40 + t*4
    def ldW(k, t):
        s_ = k % NST
        off = (k*10 + t)*1024
        return ("W", k, t, s_, off)
    def emitW(k, t):
        s_ = k % NST
        off = (k*10 + t)*1024
        g.e(f"s_mov_b32 s{sT0}, {off & ~4095}")
        g.vmem(f"buffer_load_dwordx4 {ar(Wreg(s_,t))}, v{vW}, {sr(SWP)}, s{sT0} offen offset:{off & 4095}{lf}", ("W", k, t))
    def emitH(k, j):
        s_ = k % NST
        so_h = "0" if k < 4 else f"s{C4K}"
        g.vmem(f"buffer_load_dwordx4 {vr(Hreg(s_,j))}, v{vH[j]}, {sr(SA)}, {so_h} offen offset:{(k%4)*1024}{lf}", ("H", k, j))
    def emitHI(k, r):
        s_ = k % NST
        so = f"s{C2M}" if k < 4 else f"s{C2M4K}"
        g.vmem(f"buffer_load_dwordx4 {vr(HIreg(s_,r))}, v{vH[r+1]}, {sr(SA)}, {so} offen offset:{(k%4)*1024}{lf}", ("HI", k, r))
    def order(k):
        return [("W",1),("H",0),("H",1),("H",2),("H",3),("W",4),("H",4),("W",7),("H",5),("W",9),
                ("HI",0),("HI",1),("HI",2),("HI",3),("W",0),("W",3),("W",6),("W",2),("W",5),("W",8)]
    queue = [(k, t, i) for k in range(8) for (t, i) in order(k)]
    def emit_item(it):
        k, t, i = it
        {"W": emitW, "H": emitH, "HI": emitHI}[t](k, i)
    WPRE = o.get("WPRE", 2)
    split = 0
    if split:
        poll("P", "s[90:91]", False)
        st(); dt(g, 9)
        pre = [it for it in queue if it[1] == "W" and it[0] < WPRE]
        for it in pre:
            queue.remove(it); emit_item(it)
        if o.get("pfw", 0):
            g.e(f"s_mul_i32 s{sT0}, s{sMT}, 10240")
            g.e(f"s_add_u32 s{sT0}, s{sT0}, s92")
            g.e(f"v_lshlrev_b32 v{vPF}, 7, v{vLane}")
            g.e(f"buffer_load_dword v{vPF+1}, v{vPF}, {sr(SWP)}, s{sT0} offen{lf}")
            g.e(f"s_add_u32 s{sT0}, s{sT0}, 2048")
            g.e(f"buffer_load_dword v{vPF+2}, v{vPF}, {sr(SWP)}, s{sT0} offen{lf}")
        g.e(f"v_cmp_ne_u32 vcc, s3, v{vG}")
        g.e("s_nop 4")
        g.e("s_and_b64 vcc, vcc, s[94:95]")
        g.e(f"s_cbranch_scc0 {name}_fwG")
        poll("G", "s[94:95]", False)
    else:
        if o.get("w0", 1):
            g.e(f"s_mov_b32 s{sT0}, 0xffff")
            g.e(f"s_cmp_eq_u32 s{sMT}, 0")
            g.e(f"s_cselect_b32 s{sT0}, 0xfff0, s{sT0}")
            g.e(f"s_cmp_eq_u32 s{sMT}, 7")
            g.e(f"s_cselect_b32 s94, 0x0fff, s{sT0}")
            g.e("s_or_b64 s[90:91], s[90:91], s[94:95]")
            g.e(f"s_cmp_lg_u32 s{sW}, 0")
            g.e(f"s_cbranch_scc1 {name}_fwP")
            poll("P", "s[90:91]", False)
            g.e("s_waitcnt vmcnt(0)")
            g.e("s_barrier")
        else:
            g.e("s_or_b64 s[90:91], s[90:91], s[94:95]")
            poll("P", "s[90:91]", False)
        st(); dt(g, 9)
    if st.on:
        g.e(f"s_memrealtime s[{52+2*st.n}:{53+2*st.n}]"); st.n += 1
    def issue_next(cur_k):
        if not queue: return False
        it = queue[0]
        if it[0] - NST >= cur_k or len(g.vm) >= 60: return False
        queue.pop(0); emit_item(it); return True
    def need(tok, k):
        while any((it[1], it[0], it[2]) == tok for it in queue): assert issue_next(k)
    if o.get("al"): g.raw(f".p2align {o['al']}")
    for _ in range(o.get("sh", 0)): g.e("s_nop 0")
    for _ in range(PRE): issue_next(0)
    if o.get("pfh", 0):
        g.e(f"s_and_b32 s{sT0}, s{sNT}, 3")
        g.e(f"s_lshl_b32 s{sT0}, s{sT0}, 11")
        g.e(f"s_add_u32 s{sT0}, s{sT0}, s{sBASE}")
        g.e(f"v_lshrrev_b32 v{vPF}, 4, v{vLane}")
        g.e(f"v_lshlrev_b32 v{vPF}, 15, v{vPF}")
        g.e(f"v_and_b32 v{vPF+1}, 15, v{vLane}")
        g.e(f"v_lshl_add_u32 v{vPF}, v{vPF+1}, 7, v{vPF}")
        g.vmem(f"buffer_load_dword v{vPF+1}, v{vPF}, {sr(SA)}, s{sT0} offen{lf}")
        g.e(f"s_add_u32 s{sT0}, s{sT0}, 0x200000")
        g.vmem(f"buffer_load_dword v{vPF+2}, v{vPF}, {sr(SA)}, s{sT0} offen{lf}")
    if VPF:
        for kk in range(2, VPF+1): vpf_touch()
    wr_pending = []
    for k in range(8):
        s_ = k % NST
        last = k == 7
        g.c(f"---- k-step {k}")
        if k == 1: st()
        if VPF and k >= 1 and k + VPF <= 7: vpf_touch()
        if k == XFK:
            g.vmem(f"buffer_load_dwordx4 {vr(vXF)}, v{vO}, {sr(SX)}, 0 offen{xfl}", ("XF",))
            g.vmem(f"buffer_load_dwordx4 {vr(vXF+4)}, v{vO}, {sr(SX)}, s{sT1} offen{xfl}", ("XF",))
        if XFK == -2 and k == 5:
            g.e(f"s_cmp_lg_u32 s{sW}, 0")
            g.e(f"s_cbranch_scc1 {name}_xf1")
            g.e(f"buffer_load_dwordx4 {vr(vXF)}, v{vO}, {sr(SX)}, 0 offen{xfl}")
            g.e(f"buffer_load_dwordx4 {vr(vXF+4)}, v{vO}, {sr(SX)}, s{sT1} offen{xfl}")
            g.label(f"{name}_xf1")
        if o.get("ste") and k >= 2: g.e(f"s_memtime s[{60+2*(k-2)}:{61+2*(k-2)}]")
        dpp = [(T0, vMR, "wave_shr:1", j, i) for j in range(6) for i in range(4)]
        dpp2 = [(T2, vML, "wave_shl:1", j, i) for j in range(6) for i in range(4)]
        mf = []
        for di in range(3):
            for r in range(4): mf.append((r, di*3+1, ("H", k, r+di), Hreg(s_, r+di), "A"))
        for r in range(4): mf.append((r, 9, ("HI", k, r), HIreg(s_, r), "B"))
        if not last:
            for di in range(3):
                for r in range(4): mf.append((r, di*3, None, T0 + (r+di)*4, "C"))
            for di in range(3):
                for r in range(4): mf.append((r, di*3+2, None, T2 + (r+di)*4, "D"))
        else:
            dpp = [x for pair in zip(dpp, dpp2) for x in pair]; dpp2 = []
            for r in range(4):
                for di in range(3): mf.append((r, di*3, None, T0 + (r+di)*4, "E"))
                for di in range(3): mf.append((r, di*3+2, None, T2 + (r+di)*4, "E" if di < 2 else "F"))
        since = 0
        spl = spf_list(k + SPF) if k > 0 else [x for kk in range(2, SPF+1) for x in spf_list(kk)]
        for n, (r, t, ht, hreg, grp) in enumerate(mf):
            toks = [("W", k, t)] + ([ht] if ht else [])
            for tok in toks: need(tok, k)
            g.wait_vm(toks)
            c = "0" if (k == 0 and n < 4) else ar(ACC+16*r, 16)
            if o.get("fake16"):
                for u_ in range(2):
                    q_ = ACC + 16*r + 4*((2*n + u_) % 4)
                    g.e(f"v_mfma_f32_16x16x32_bf16 {ar(q_)}, {ar(Wreg(s_,t))}, {vr(hreg)}, {'0' if k == 0 and n < 8 else ar(q_)}")
            else:
                g.e(f"v_mfma_f32_32x32x16_bf16 {ar(ACC+16*r,16)}, {ar(Wreg(s_,t))}, {vr(hreg)}, {c}")
            if grp in "AB" and n >= 2:
                for _ in range(4 if last else 2):
                    if dpp:
                        T, vm_, sh, j, i = dpp.pop(0)
                        need(("H", k, j), k); g.wait_vm([("H", k, j)])
                        g.e(f"v_and_b32_dpp v{T+j*4+i}, v{Hreg(s_,j)+i}, v{vm_} {sh} row_mask:0xf bank_mask:0xf bound_ctrl:0")
            if grp == "C":
                for _ in range(3):
                    if dpp2:
                        T, vm_, sh, j, i = dpp2.pop(0)
                        g.e(f"v_and_b32_dpp v{T+j*4+i}, v{Hreg(s_,j)+i}, v{vm_} {sh} row_mask:0xf bank_mask:0xf bound_ctrl:0")
            if o.get("RN"):
                if (n * o["RN"]) % o["RD"] < o["RN"]: issue_next(k)
            elif n % EVERY == EVERY - 1: issue_next(k)
            for _ in range(2 if k == 0 else 1):
                if spl: g.e(spl.pop(0))
            if wr_pending:
                since += 1
                if since == 2: g.e("s_nop 9")
                if since >= 2:
                    g.e(wr_pending.pop(0))
            if grp == "F":
                assert not wr_pending
                wr_pending = [f"ds_write_b128 v{vA}, {ar(ACC+16*r+4*q)} offset:{r*17408 + q*1088}" for q in range(4)]
                since = 0
        assert not dpp and not dpp2
    assert not queue
    g.c("---- epilogue")
    st(); dt(g, 11)
    g.e("s_nop 11")
    for w_ in wr_pending: g.e(w_)
    g.e("s_waitcnt lgkmcnt(0)")
    if o.get("ste"): g.e("s_memtime s[54:55]")
    g.e("s_barrier")
    if o.get("ste"): g.e("s_memtime s[56:57]")
    R = HB
    for i in range(2):
        for src in range(4):
            for hf in range(2):
                g.lds(f"ds_read_b128 {vr(R + ((i*4+src)*2+hf)*4)}, v{vA1} offset:{src*4352 + hf*512 + i*256}", ("R", i, src))
    XU = R + 64
    g.e("s_waitcnt vmcnt(0)"); g.vm = []
    for i in range(2):
        for e_ in range(4):
            x = vXF + 4*i + e_
            g.e(f"v_lshlrev_b32 v{XU+8*i+2*e_}, 16, v{x}")
            g.e(f"v_and_b32 v{XU+8*i+2*e_+1}, 0xffff0000, v{x}")
    for i in range(2):
        base = R + i*32
        for src in range(4):
            g.wait_lg([("R", i, src)])
            for e_ in range(4):
                g.e(f"v_pk_add_f32 {vr(XU+8*i+2*e_,2)}, {vr(XU+8*i+2*e_,2)}, {vr(base+8*src+2*e_,2)}")
        for e_ in range(4): g.e(f"v_cvt_pk_bf16_f32 v{vXF+4*i+e_}, v{XU+8*i+2*e_}, v{XU+8*i+2*e_+1}")
        g.vmem(f"buffer_store_dwordx4 {vr(vXF+4*i)}, v{vO}, {sr(SO)}, {'0' if i==0 else 's%d'%sT1} offen{o.get('ostf',' sc1')}")
    if o.get("ste"): g.e("s_memtime s[58:59]")
    if o.get("enc"):
        i = o["enc"]
        g.e("s_waitcnt vmcnt(0)")
        g.e("s_memrealtime s[76:77]")
        g.e(f"s_cmp_lg_u32 s2, {o.get('encwg', 8)}")
        g.e("s_cbranch_scc1 enc_done")
        g.e(f"s_cmp_lg_u32 s{sW}, 0")
        g.e("s_cbranch_scc1 enc_done")
        g.e("s_waitcnt lgkmcnt(0)")
        g.e(f"s_sub_u32 s84, s{52+2*i}, s52")
        g.e("s_mul_i32 s84, s84, 20")
        g.label("enc_loop")
        g.e("s_memrealtime s[86:87]")
        g.e("s_waitcnt lgkmcnt(0)")
        g.e("s_sub_u32 s85, s86, s76")
        g.e("s_cmp_lt_u32 s85, s84")
        g.e("s_cbranch_scc1 enc_loop")
        g.label("enc_done")
    else:
        dt_finish(g)
    st.finish(st.n + 1)
    return AEND

def gen_all(out, o):
    DT[0] = bool(o.get("dt", 0)); CPF[0] = o.get("cpf", 2); CPF[1] = o.get("cpfo", 0)
    name = "fused_kernel"
    g = Gen(); st = Stamper(g, o.get("st", 0))
    entry(g, name, st)
    phase1(g, name, st, o)
    aend = phase2(g, name, st, o)
    g.label(f"{name}_end"); g.e("s_endpgm")
    build([(name, g.text(), kd(name, 256 + max(aend, 128), 256, 100), 256, 256, 160*1024)], out)

if __name__ == "__main__":
    o = {}
    for a in sys.argv[2:]:
        k, v = a.split("=")
        o[k] = int(v) if v.lstrip("-").isdigit() else " " + v.replace("+", " ")
    gen_all(sys.argv[1], o)
```
